```python
import torch

def _softmax(x, axis=-1):
    return torch.softmax(x, dim=axis)
def _gelu(x):
    return torch.nn.functional.gelu(x, approximate="tanh")
def _silu(x):
    return torch.nn.functional.silu(x)
def _sigmoid(x):
    return torch.sigmoid(x)
def _layernorm(x, axis=-1, eps=1e-5):
    m = x.mean(dim=axis, keepdim=True)
    v = x.var(dim=axis, keepdim=True, unbiased=False)
    return (x - m) / torch.sqrt(v + eps)
def _scatter_add(tgt, idx, src, axis=0):
    return tgt.clone().index_add_(axis, idx, src)
def _segment_sum(src, seg, n):
    out = torch.zeros((n,) + src.shape[1:], dtype=src.dtype)
    return out.index_add_(0, seg, src)
def _pad(x, pw):
    flat = tuple(v for pair in reversed(pw) for v in pair)
    return torch.nn.functional.pad(x, flat)

kernel_name = 'recurrent_scan__sliding_block_cached__mixer_token_mlp__decode'

def setup_inputs():

    _w = (lambda a: (lambda t: t.to(torch.bfloat16) if t.is_floating_point() else t)(torch.as_tensor(a)))
    def _A_setup():
        B, Sq, D = 1, 1, 1024
        Hq, Hkv, Sk, Dh = 32, 4, 65536, 128
        assert Hq % Hkv == 0, (Hq, Hkv)
        return {
            "x": _w((lambda *s: torch.randn(*s, dtype=torch.bfloat16) * 0.05)(B, Sq, D)),
            "k_cache": _w((lambda *s: torch.randn(*s, dtype=torch.bfloat16) * 1.6)(B, Hkv, Sk, Dh)),
            "v_cache": _w((lambda *s: torch.randn(*s, dtype=torch.bfloat16) * 1.6)(B, Hkv, Sk, Dh)),
            "wq": _w((lambda *s: torch.randn(*s, dtype=torch.bfloat16) * 1.6)(D, Hq * Dh) * (D ** -0.5)),
            "wo": _w((lambda *s: torch.randn(*s, dtype=torch.bfloat16) * 1.6)(Hq * Dh, D) * ((Hq * Dh) ** -0.5)),
        }
    _A_in = _A_setup()

    def _B_setup():
        B, S, D, F = 1, 1, 1024, 3584
        return {
            "x": _w((lambda *s: torch.randn(*s, dtype=torch.bfloat16) * 0.05)(B, S, D)),
            "w1": _w((lambda *s: torch.randn(*s, dtype=torch.bfloat16) * 0.2)(S, F) * (S ** -0.5)),
            "b1": _w((lambda *s: torch.randn(*s, dtype=torch.bfloat16) * 0.2)(F) * 0.02),
            "w2": _w((lambda *s: torch.randn(*s, dtype=torch.bfloat16) * 0.2)(F, S) * (F ** -0.5)),
            "b2": _w((lambda *s: torch.randn(*s, dtype=torch.bfloat16) * 0.2)(S) * 0.02),
        }
    _B_in = _B_setup()

    return {
        "A_x": _A_in["x"],
        "A_k_cache": _A_in["k_cache"],
        "A_v_cache": _A_in["v_cache"],
        "A_wq": _A_in["wq"],
        "A_wo": _A_in["wo"],
        "B_x": _B_in["x"],
        "B_w1": _B_in["w1"],
        "B_b1": _B_in["b1"],
        "B_w2": _B_in["w2"],
        "B_b2": _B_in["b2"],
    }

def reference(A_x, A_k_cache, A_v_cache, A_wq, A_wo, B_x, B_w1, B_b1, B_w2, B_b2):
    def _A_ref(x, k_cache, v_cache, wq, wo):
        B, Sq, D = x.shape
        Hq, Dh = 32, 128
        Hkv, Sk = k_cache.shape[1], k_cache.shape[2]
        W = min(4096, max(256, Sk // 4))
        rep = Hq // Hkv
        q = (lambda x, *d: x.permute(*d))((x @ wq).reshape(B, Sq, Hq, Dh), 0, 2, 1, 3)
        k = (lambda x, n, axis: torch.repeat_interleave(x, n, dim=axis))(k_cache[:, :, Sk - W:, :], rep, axis=1)
        v = (lambda x, n, axis: torch.repeat_interleave(x, n, dim=axis))(v_cache[:, :, Sk - W:, :], rep, axis=1)
        scores = torch.einsum("bhqd,bhkd->bhqk", q, k) * (Dh ** -0.5)
        p = _softmax(scores, axis=-1)
        o = torch.einsum("bhqk,bhkd->bhqd", p, v)
        return (lambda x, *d: x.permute(*d))(o, 0, 2, 1, 3).reshape(B, Sq, Hq * Dh) @ wo

    def _B_ref(x, w1, b1, w2, b2):
        B, S, D = x.shape
        h = _layernorm(x, axis=-1)
        u = torch.einsum("bsd,sf->bdf", h, w1) + b1
        u = _gelu(u)
        y = torch.einsum("bdf,fs->bds", u, w2) + b2
        return (lambda x, *d: x.permute(*d))(y, 0, 2, 1)

    x = A_x
    xn = _layernorm(x, axis=-1)
    s = _A_ref(xn, A_k_cache, A_v_cache, A_wq, A_wo)
    g = _silu(_B_ref(xn, B_w1, B_b1, B_w2, B_b2))
    return x + s * g
```

```python
import re

class Asm:
    def __init__(self):
        self.lines = []
    def __call__(self, s):
        for l in s.split("\n"):
            l = l.strip()
            if l: self.lines.append(l)
    def label(self, n): self.lines.append(n + ":")
    def nop(self, n):
        while n > 0:
            k = min(n, 16); self.lines.append(f"s_nop {k-1}"); n -= k
    def text(self): return "\n".join(("    " + l if not l.endswith(":") else l) for l in self.lines)

_reg = re.compile(r"\b([vsa])(\d+)\b|\b([vsa])\[(\d+):(\d+)\]")
def regs(tok):
    out = set()
    for m in _reg.finditer(tok):
        if m.group(1): out.add((m.group(1), int(m.group(2))))
        else:
            for i in range(int(m.group(4)), int(m.group(5)) + 1): out.add((m.group(3), i))
    if re.search(r"\bvcc\b", tok): out |= {("s", 106), ("s", 107)}
    if re.search(r"\bexec\b", tok): out |= {("s", 126), ("s", 127)}
    if re.search(r"\bm0\b", tok): out.add(("s", 124))
    return out

TRANS = ("v_exp_f32", "v_log_f32", "v_rcp_f32", "v_rsq_f32", "v_sqrt_f32", "v_sin_f32", "v_cos_f32")
def split_ops(rest):
    ops, depth, cur = [], 0, ""
    for ch in rest + ",":
        if ch == "[": depth += 1
        if ch == "]": depth -= 1
        if ch == "," and depth == 0:
            ops.append(cur.strip()); cur = ""
        else: cur += ch
    return ops

class Ins:
    def __init__(self, text):
        self.text = text
        t = text.split(";")[0].strip()
        p = t.split(None, 1)
        self.mn = p[0]; rest = p[1] if len(p) > 1 else ""
        self.ops = split_ops(rest) if rest else []
        mn = self.mn
        self.is_valu = mn.startswith("v_") and not mn.startswith("v_mfma")
        self.is_mfma = mn.startswith("v_mfma")
        self.is_trans = any(mn.startswith(x) for x in TRANS)
        self.is_dpp = "row_" in t or "quad_perm" in t or mn.endswith("_dpp")
        self.is_perml = mn.startswith("v_permlane")
        self.is_vmem = mn.startswith("buffer_") or mn.startswith("global_")
        self.is_ds = mn.startswith("ds_")
        self.is_salu = mn.startswith("s_")
        self.w, self.r = set(), set()
        o = [x.split()[0] if x.split() else x for x in self.ops]
        if self.is_mfma:
            self.w = regs(o[0]); self.rA = regs(o[1]) | regs(o[2]); self.rC = regs(o[3]); self.r = self.rA | self.rC
        elif self.is_valu:
            if mn.startswith("v_cmp"):
                self.w = regs(o[0]); self.r = set().union(*[regs(x) for x in o[1:]])
            elif self.is_perml and "swap" in mn:
                self.w = regs(o[0]) | regs(o[1]); self.r = set(self.w)
            elif mn.startswith("v_readfirstlane") or mn.startswith("v_readlane"):
                self.w = regs(o[0]); self.r = set().union(*[regs(x) for x in o[1:]])
            else:
                self.w = regs(o[0]); self.r = set().union(*[regs(x) for x in o[1:]]) if len(o) > 1 else set()
                if "_co_" in mn: self.w |= regs(o[1])
                if mn.startswith("v_fmac") or mn.startswith("v_pk_fmac") or (self.is_dpp): self.r |= regs(o[0])
                if mn.startswith("v_cndmask") and len(o) == 3: self.r |= {("s", 106), ("s", 107)}
        elif self.is_vmem:
            if "load" in mn and " lds" not in t:
                self.w = regs(o[0]); self.r = set().union(*[regs(x) for x in o[1:]])
            elif "atomic" in mn and "sc0" in t:
                self.w = regs(o[0]); self.r = set().union(*[regs(x) for x in o])
            else:
                self.r = set().union(*[regs(x) for x in o])
                if " lds" in t: self.r.add(("s", 124))
            self.store_data = regs(o[0]) if ("store" in mn and mn.startswith("buffer_")) else (regs(o[1]) if "store" in mn else set())
        elif self.is_ds:
            if "read" in mn or "bpermute" in mn or "swizzle" in mn:
                self.w = regs(o[0]); self.r = set().union(*[regs(x) for x in o[1:]])
            else:
                self.r = set().union(*[regs(x) for x in o])
        elif self.is_salu:
            if mn.startswith("s_cmp") or mn.startswith("s_cbranch") or mn.startswith("s_branch") or mn.startswith("s_waitcnt") or mn in ("s_barrier", "s_endpgm", "s_nop", "s_sleep", "s_setprio") or mn.startswith("s_bitcmp"):
                self.r = set().union(*[regs(x) for x in o]) if o else set()
            else:
                self.w = regs(o[0]) if o else set(); self.r = set().union(*[regs(x) for x in o[1:]]) if len(o) > 1 else set()
                if "saveexec" in mn: self.w |= {("s", 126), ("s", 127)}
        self.states = 1
        if mn == "s_nop": self.states = int(o[0]) + 1

def check(lines):
    ins = []
    for l in lines:
        if l.endswith(":") or l.startswith("."): continue
        ins.append(Ins(l))
    probs = []
    def need(i, j, n, why):
        d = sum(ins[k].states for k in range(i + 1, j))
        if d < n: probs.append(f"{why}: need {n} have {d}: [{ins[i].text}] -> [{ins[j].text}]")
    for j, c in enumerate(ins):
        d = 0
        for i in range(j - 1, max(-1, j - 24), -1):
            p = ins[i]
            if p.mn in ("s_branch", "s_endpgm"): break
            vw = {x for x in p.w if x[0] == "v"}; sw = {x for x in p.w if x[0] == "s"}
            if p.is_valu:
                if c.is_mfma and vw & c.r: need(i, j, 2, "VALU->MFMA")
                if c.is_valu and c.is_dpp and not c.is_perml:
                    src0 = regs(c.ops[1].split()[0]) if len(c.ops) > 1 else set()
                    if vw & src0: need(i, j, 2, "VALU->DPP")
                if c.is_perml and vw & c.r: need(i, j, 2, "VALU->permlane")
                if c.mn.startswith("v_readfirstlane") or c.mn.startswith("v_readlane"):
                    if vw & c.r: need(i, j, 1, "VALU->readlane")
                if p.is_trans and c.is_valu and not c.is_trans and vw & c.r: need(i, j, 1, "trans->VALU")
                if p.is_trans and (c.is_mfma) and vw & c.r: need(i, j, 2, "trans->MFMA")
                if sw:
                    if c.is_valu and sw & c.r: need(i, j, 2, "VALU sgpr->VALU")
                    if c.is_vmem and sw & c.r: need(i, j, 5, "VALU sgpr->VMEM")
                    if c.is_salu and (sw - {("s",106),("s",107)}) & c.r and not c.mn.startswith("s_cbranch"): need(i, j, 1, "VALU sgpr->SALU(pad)")
            if p.is_mfma:
                if (c.is_valu or c.is_vmem or c.is_ds) and (p.w & (c.r | c.w)): need(i, j, 8, "MFMA D->VALU/MEM")
                if c.is_mfma and p.w & c.rA: need(i, j, 8, "MFMA D->MFMA A/B")
                if c.is_mfma and (p.w & c.rC) and p.w != c.rC: need(i, j, 6, "MFMA D->MFMA C overlap")
                if c.is_valu and (p.rC & c.w): need(i, j, 3, "MFMA C WAR VALU")
            if p.is_vmem and getattr(p, "store_data", set()) and len(p.store_data) >= 3:
                if c.is_valu and (p.store_data & c.w): need(i, j, 2, "store data WAR")
            if p.is_salu and ("s", 124) in p.w and c.is_vmem and ("s", 124) in c.r: need(i, j, 1, "m0->lds dma")
    return probs
```

```python
import sys, math, struct
from asmlib import Asm, check
KN = "recurrent_scan__sliding_block_cached__mixer_token_mlp__decode"

def f32bits(x): return struct.unpack("<I", struct.pack("<f", x))[0]

DEF = dict(stamps=0, nt=1, win=8, dbgdump=0, pretouch=0, spinmax=1 << 20, prio=1)

QB, LB, OB, FB, STB = 0x10000, 0x20000, 0x40000, 0x100000, 0x200000
WQ, KL, VL, WO = 0, 32768, 65536, 98304
QP = 131072; QF = QP + 1024; OP = QF + 4096; ML = OP + 8192; GP = ML + 128; FL = GP + 128
LDS_BYTES = FL + 128
F_QP, F_QF, F_O, F_K, F_V, F_WO, F_WQH, F_G, F_PUB3 = 0, 4, 8, 12, 14, 16, 18, 19, 20
KEY0 = 61440

def gen(opt):
    o = dict(DEF); o.update(opt)
    NT = " nt" if o["nt"] else ""
    a = Asm(); e = a
    uid = [0]
    def L(p):
        uid[0] += 1; return f"L_{p}_{uid[0]}"
    sT, sCNT = 50, 51
    def srd(d, lo, size):
        e(f"s_mov_b32 s{d}, s{lo}"); e(f"s_and_b32 s{d+1}, s{lo+1}, 0xffff"); e(f"s_mov_b32 s{d+2}, {size}"); e(f"s_mov_b32 s{d+3}, 0x20000")
    nst = [0]
    def stamp(k):
        if o["stamps"]: e(f"s_memrealtime s[{80+2*k}:{81+2*k}]")
    def dump_stamps():
        if not o["stamps"]: return
        e("s_waitcnt lgkmcnt(0)")
        e("s_mov_b64 exec, -1")
        e("s_lshl_b32 s76, s2, 3"); e("s_add_u32 s76, s76, s3"); e("s_lshl_b32 s76, s76, 6"); e(f"s_add_u32 s76, s76, {STB}")
        for k in range(8):
            e(f"v_mov_b32 v{2*k+4}, s{80+2*k}"); e(f"v_mov_b32 v{2*k+5}, s{81+2*k}")
        e("v_mov_b32 v20, 0")
        e("s_mov_b64 exec, 1")
        for k in range(4):
            e(f"buffer_store_dwordx4 v[{4*k+4}:{4*k+7}], v20, s[28:31], s76 offen offset:{16*k}")
        e("s_waitcnt vmcnt(0)")
    def spin_tick(abort="L_abort"):
        e(f"s_sub_u32 s{sCNT}, s{sCNT}, 1"); e(f"s_cbranch_scc1 {abort}")
    def wait_flags(first, n, vaddr, vt):
        l = L("wf"); e.label(l)
        if n == 1: e(f"ds_read_b32 v{vt}, v{vaddr} offset:{first*4}")
        elif n == 2: e(f"ds_read_b64 v[{vt}:{vt+1}], v{vaddr} offset:{first*4}")
        else: e(f"ds_read_b128 v[{vt}:{vt+3}], v{vaddr} offset:{first*4}")
        spin_tick()
        e("s_waitcnt lgkmcnt(0)")
        if n == 2: e(f"v_and_b32 v{vt}, v{vt}, v{vt+1}")
        if n == 4:
            e(f"v_and_b32 v{vt}, v{vt}, v{vt+1}"); e(f"v_and_b32 v{vt+2}, v{vt+2}, v{vt+3}"); e(f"v_and_b32 v{vt}, v{vt}, v{vt+2}")
        e(f"v_cmp_ne_u32 vcc, 0, v{vt}")
        e(f"s_cbranch_vccz {l}")
    def set_flag(idx_expr_off, vaddr, vone):
        e(f"ds_write_b32 v{vaddr}, v{vone} offset:{idx_expr_off*4}")
    def bf16r(dst, src):
        e(f"v_cvt_pk_bf16_f32 v{dst}, v{src}, v{src}"); e(f"v_lshlrev_b32 v{dst}, 16, v{dst}")
    def allreduce_row16(v, op, t=None):
        for sh in (8, 4, 2, 1):
            e.nop(2); e(f"{op}_dpp v{v}, v{v}, v{v} row_ror:{sh} row_mask:0xf bank_mask:0xf")
    def allreduce_xrow(v, t, op):
        e(f"v_mov_b32 v{t}, v{v}"); e.nop(2); e(f"v_permlane32_swap_b32 v{v}, v{t}"); e(f"{op} v{v}, v{v}, v{t}")
        e(f"v_mov_b32 v{t}, v{v}"); e.nop(2); e(f"v_permlane16_swap_b32 v{v}, v{t}"); e(f"{op} v{v}, v{v}, v{t}")
    def ln_stats(xf, t0, vm, vrs, n=16):
        s, t = t0, t0 + 1
        e(f"v_add_f32 v{s}, v{xf}, v{xf+1}")
        for k in range(2, 16): e(f"v_add_f32 v{s}, v{s}, v{xf+k}")
        allreduce_row16(s, "v_add_f32"); allreduce_xrow(s, t, "v_add_f32")
        e(f"v_mul_f32 v{s}, {f32bits(1/1024):#x}, v{s}")
        e(f"v_sub_f32 v{t}, v{xf}, v{s}"); e(f"v_mul_f32 v{t0+2}, v{t}, v{t}")
        for k in range(1, 16):
            e(f"v_sub_f32 v{t}, v{xf+k}, v{s}"); e(f"v_fmac_f32 v{t0+2}, v{t}, v{t}")
        allreduce_row16(t0 + 2, "v_add_f32"); allreduce_xrow(t0 + 2, t, "v_add_f32")
        e(f"v_mul_f32 v{t0+2}, {f32bits(1/1024):#x}, v{t0+2}")
        bf16r(vm, s)
        bf16r(t, t0 + 2)
        e(f"v_add_f32 v{t}, {f32bits(1e-5):#x}, v{t}")
        bf16r(t, t)
        e(f"v_sqrt_f32 v{t}, v{t}"); e.nop(1)
        bf16r(t, t)
        e(f"v_rcp_f32 v{vrs}, v{t}"); e.nop(1)
    def unpack(dlo, dhi, src):
        e(f"v_lshlrev_b32 v{dlo}, 16, v{src}"); e(f"v_and_b32 v{dhi}, 0xffff0000, v{src}")
    def normalize_pair(dst, src, vm, vrs, t):
        unpack(t, t + 1, src)
        e(f"v_sub_f32 v{t}, v{t}, v{vm}"); e(f"v_sub_f32 v{t+1}, v{t+1}, v{vm}")
        e(f"v_cvt_pk_bf16_f32 v{t}, v{t}, v{t+1}")
        unpack(t, t + 1, t) if False else (e(f"v_and_b32 v{t+1}, 0xffff0000, v{t}"), e(f"v_lshlrev_b32 v{t}, 16, v{t}"))
        e(f"v_mul_f32 v{t}, v{t}, v{vrs}"); e(f"v_mul_f32 v{t+1}, v{t+1}, v{vrs}")
        e(f"v_cvt_pk_bf16_f32 v{dst}, v{t}, v{t+1}")

    e("s_cmp_ge_u32 s2, 256"); e("s_cbranch_scc1 L_exit")
    stamp(0)
    e("s_load_dwordx16 s[4:19], s[0:1], 0")
    e("s_load_dwordx4 s[20:23], s[0:1], 64")
    e("s_load_dwordx2 s[24:25], s[0:1], 80")
    e("s_load_dwordx2 s[26:27], s[0:1], 96")
    e("v_lshrrev_b32 v1, 6, v0"); e("v_and_b32 v0, 63, v0")
    e("v_lshrrev_b32 v2, 4, v0"); e("v_and_b32 v3, 15, v0")
    e("v_readfirstlane_b32 s3, v1")
    e("s_and_b32 s48, s2, 7"); e("s_lshr_b32 s49, s2, 3")
    e(f"s_mov_b32 s{sCNT}, {o['spinmax']}")
    e("s_waitcnt lgkmcnt(0)")
    srd(28, 26, 268435456)
    srd(32, 4, 2048)
    e("s_cmp_ge_u32 s3, 6"); e("s_cbranch_scc1 L_bbranch")
    e("s_cmp_ge_u32 s3, 4"); e("s_cbranch_scc1 L_loader")

    if o["prio"]: e("s_setprio 3")
    srd(36, 10, 8388608)
    e("s_lshr_b32 s52, s2, 2"); e("s_and_b32 s53, s2, 3")
    e("v_lshlrev_b32 v21, 5, v0")
    e("buffer_load_dwordx4 v[4:7], v21, s[32:35], 0 offen")
    e("buffer_load_dwordx4 v[8:11], v21, s[32:35], 0 offen offset:16")
    e("s_lshl_b32 s54, s53, 9"); e("s_lshl_b32 s55, s3, 7"); e("s_add_u32 s54, s54, s55")
    e("v_lshlrev_b32 v22, 3, v2")
    for k in range(2):
        for rho in range(2):
            r = 12 + 4 * k + 2 * rho
            e(f"buffer_load_dwordx2 v[{r}:{r+1}], v22, s[32:35], s54 offen offset:{64*k+32*rho}")
    e("v_mov_b32 v23, 0")
    e("buffer_load_dword v20, v23, s[28:31], 0 offen sc1")
    e("v_lshrrev_b32 v24, 3, v0"); e("v_and_b32 v25, 7, v0")
    e("v_lshrrev_b32 v26, 1, v25"); e("v_lshrrev_b32 v27, 1, v24"); e("v_and_b32 v27, 3, v27"); e("v_xor_b32 v26, v26, v27")
    e("v_lshlrev_b32 v26, 1, v26"); e("v_and_b32 v25, 1, v25"); e("v_or_b32 v26, v26, v25"); e("v_lshlrev_b32 v26, 4, v26")
    e("v_lshlrev_b32 v24, 13, v24"); e("v_add_u32 v24, v24, v26")
    e("s_lshl_b32 s56, s53, 21"); e("s_lshl_b32 s57, s52, 7"); e("s_add_u32 s56, s56, s57"); e("s_lshl_b32 s57, s3, 19"); e("s_add_u32 s56, s56, s57")
    e("s_lshl_b32 s58, s3, 13")
    for n in range(8):
        e(f"s_add_u32 m0, s58, {WQ + n*1024}")
        e(f"s_add_u32 s57, s56, {n*8*8192}")
        e(f"buffer_load_dwordx4 v24, s[36:39], s57 offen{NT} lds")
    e(f"v_mov_b32 v21, {FL}")
    e("v_mov_b32 v22, 1")
    e("v_lshrrev_b32 v24, 2, v3"); e("v_and_b32 v25, 3, v3")
    e("v_lshlrev_b32 v26, 2, v2"); e("v_add_u32 v26, v26, v24")
    e("v_lshrrev_b32 v27, 1, v26"); e("v_and_b32 v27, 3, v27")
    e("v_lshlrev_b32 v26, 7, v26"); e("v_lshlrev_b32 v25, 3, v25"); e("v_add_u32 v26, v26, v25")
    e("v_add_u32 v26, s58, v26")
    e("v_lshlrev_b32 v27, 5, v27"); e("v_add_u32 v108, v26, v27")
    for u in range(1, 4): e(f"v_xor_b32 v{108+u}, {u<<5}, v108")
    e("v_lshrrev_b32 v24, 2, v3")
    for u in range(4):
        e(f"v_cmp_eq_u32 vcc, {u}, v24"); e.nop(2); e(f"v_cndmask_b32 v{112+u}, 0, -1, vcc")
    e("s_waitcnt vmcnt(8)")
    stamp(2)
    e(f"v_readfirstlane_b32 s{sT}, v20")
    for k in range(8): unpack(24 + 2 * k, 25 + 2 * k, 4 + k)
    e(f"s_add_u32 s{sT}, s{sT}, 1"); e(f"s_mul_i32 s{sT}, s{sT}, 0x9e3779b1")
    ln_stats(24, 100, 104, 105)
    for k in range(8): normalize_pair(12 + k, 12 + k, 104, 105, 100)
    for k in range(2):
        for u in range(4):
            for m in range(4): e(f"v_and_b32 v{40+16*k+4*u+m}, v{12+4*k+m}, v{112+u}")
    stamp(1)
    e("s_barrier")
    stamp(3)
    for k in range(2):
        e(f"s_waitcnt vmcnt({4 - 4*k})")
        if k == 0:
            l = L("nf"); e("s_cmp_lg_u32 s3, 0"); e(f"s_cbranch_scc1 {l}"); set_flag(F_WQH, 21, 22); e.label(l)
        for u in range(4):
            for rho in range(2):
                r = 72 + 16 * k + 4 * u + 2 * rho
                e(f"ds_read_b64_tr_b16 v[{r}:{r+1}], v{108+u} offset:{k*4096 + rho*2048}")
        for u in range(4):
            e(f"s_waitcnt lgkmcnt({2*(3-u)})")
            c = "0" if (k == 0 and u == 0) else "v[104:107]"
            e(f"v_mfma_f32_16x16x32_bf16 v[104:107], v[{40+16*k+4*u}:{43+16*k+4*u}], v[{72+16*k+4*u}:{75+16*k+4*u}], {c}")
    e("v_lshlrev_b32 v24, 2, v0"); e("s_lshl_b32 s57, s3, 8"); e(f"s_add_u32 s57, s57, {QP}"); e("v_add_u32 v24, s57, v24")
    e("s_lshl_b32 s57, s3, 2"); e("v_add_u32 v25, s57, v21")
    e.nop(6)
    e("ds_write_b32 v24, v104")
    e(f"ds_write_b32 v25, v22 offset:{F_QP*4}")
    stamp(4)
    lq = L("noq"); e("s_cmp_lg_u32 s3, 0"); e(f"s_cbranch_scc1 {lq}")
    e("v_lshrrev_b32 v26, 3, v3"); e("v_lshlrev_b32 v26, 5, v26"); e("v_and_b32 v27, 3, v3"); e("v_lshlrev_b32 v27, 3, v27"); e("v_add_u32 v26, v26, v27")
    e("v_lshrrev_b32 v27, 2, v3"); e("v_and_b32 v27, 1, v27"); e("v_lshlrev_b32 v27, 2, v27"); e("v_add_u32 v26, v26, v27")
    e("v_lshlrev_b32 v26, 2, v26"); e(f"v_add_u32 v26, {QP}, v26")
    l = L("qp"); e.label(l)
    e(f"ds_read_b128 v[28:31], v21 offset:{F_QP*4}")
    for w in range(4): e(f"ds_read_b128 v[{32+4*w}:{35+4*w}], v26 offset:{w*256}")
    spin_tick()
    e("s_waitcnt lgkmcnt(0)")
    e("v_and_b32 v28, v28, v29"); e("v_and_b32 v30, v30, v31"); e("v_and_b32 v28, v28, v30"); e("v_cmp_ne_u32 vcc, 0, v28"); e(f"s_cbranch_vccz {l}")
    csc = math.log2(math.e) / math.sqrt(128.0)
    e(f"s_mov_b32 s57, {f32bits(csc):#x}")
    for m in range(4):
        e(f"v_add_f32 v{32+m}, v{32+m}, v{36+m}"); e(f"v_add_f32 v{40+m}, v{40+m}, v{44+m}")
    for m in range(4):
        e(f"v_add_f32 v{32+m}, v{32+m}, v{40+m}")
    for m in range(4): e(f"v_mul_f32 v{32+m}, s57, v{32+m}")
    e("v_cvt_pk_bf16_f32 v36, v32, v33"); e("v_cvt_pk_bf16_f32 v38, v34, v35")
    e(f"v_mov_b32 v37, s{sT}"); e(f"v_mov_b32 v39, s{sT}")
    e("s_lshr_b32 s57, s52, 1"); e("s_lshl_b32 s57, s57, 11"); e("s_and_b32 s58, s52, 1"); e("s_lshl_b32 s58, s58, 8"); e("s_add_u32 s57, s57, s58")
    e("s_lshl_b32 s58, s53, 9"); e("s_add_u32 s57, s57, s58"); e(f"s_add_u32 s57, s57, {QB}")
    e("v_lshlrev_b32 v26, 4, v0")
    e("s_mov_b64 exec, 0xffff")
    e("buffer_store_dwordx4 v[36:39], v26, s[28:31], s57 offen sc1")
    e("s_mov_b64 exec, -1")
    e.label(lq)
    stamp(5)
    e("s_lshr_b32 s52, s48, 1"); e("s_and_b32 s53, s48, 1"); e("s_and_b32 s54, s49, 1"); e("s_lshr_b32 s55, s49, 1")
    e("s_lshl_b32 s53, s53, 4"); e("s_add_u32 s55, s55, s53")
    e("s_lshl_b32 s52, s52, 3"); e("s_lshl_b32 s54, s54, 2"); e("s_add_u32 s52, s52, s54")
    e("v_and_b32 v24, 3, v3"); e("v_lshlrev_b32 v24, 2, v24"); e("v_lshrrev_b32 v25, 2, v3"); e("v_add_u32 v24, v24, v25")
    e("v_lshlrev_b32 v24, 9, v24"); e("v_lshlrev_b32 v25, 4, v2"); e("v_add_u32 v24, v24, v25")
    e("s_lshl_b32 s56, s52, 11"); e("s_lshl_b32 s57, s3, 7"); e("s_add_u32 s56, s56, s57"); e(f"s_add_u32 s56, s56, {QB}")
    e("s_lshl_b32 s57, s3, 13"); e(f"s_add_u32 s57, s57, {KL}")
    e("v_lshlrev_b32 v25, 8, v3"); e("v_add_u32 v25, s57, v25")
    e("v_xor_b32 v26, v2, v3"); e("v_lshlrev_b32 v26, 4, v26"); e("v_add_u32 v108, v25, v26")
    for t in range(1, 4): e(f"v_xor_b32 v{108+t}, {t<<6}, v108")
    e("v_lshrrev_b32 v25, 2, v3"); e("v_lshlrev_b32 v26, 2, v2"); e("v_add_u32 v25, v25, v26")
    e("v_and_b32 v26, 7, v25"); e("v_lshlrev_b32 v26, 5, v26"); e("v_lshlrev_b32 v25, 8, v25"); e("v_add_u32 v25, v25, v26")
    e("v_and_b32 v26, 3, v3"); e("v_lshlrev_b32 v26, 3, v26"); e("v_add_u32 v25, v25, v26")
    e("s_lshl_b32 s57, s3, 13"); e(f"s_add_u32 s57, s57, {VL}"); e("v_add_u32 v116, s57, v25")
    for t in range(1, 8): e(f"v_xor_b32 v{116+t}, {t<<5}, v116")
    e("v_lshlrev_b32 v27, 4, v0"); e(f"v_add_u32 v27, {QF}, v27")
    e("s_lshl_b32 s57, s3, 10"); e("v_add_u32 v26, s57, v27")
    e("s_lshl_b32 s57, s3, 2"); e("v_add_u32 v25, s57, v21")
    l = L("e1"); e.label(l)
    e("buffer_load_dwordx4 v[28:31], v24, s[28:31], s56 offen sc1")
    e("buffer_load_dwordx4 v[32:35], v24, s[28:31], s56 offen offset:64 sc1")
    spin_tick()
    e("s_waitcnt vmcnt(0)")
    e(f"v_xor_b32 v36, s{sT}, v29"); e(f"v_xor_b32 v37, s{sT}, v31"); e(f"v_xor_b32 v38, s{sT}, v33"); e(f"v_xor_b32 v39, s{sT}, v35")
    e("v_or_b32 v36, v36, v37"); e("v_or_b32 v38, v38, v39"); e("v_or_b32 v36, v36, v38")
    e("v_cmp_ne_u32 vcc, 0, v36"); e(f"s_cbranch_vccnz {l}")
    e("ds_write2_b32 v26, v28, v30 offset0:0 offset1:1")
    e("ds_write2_b32 v26, v32, v34 offset0:2 offset1:3")
    e(f"ds_write_b32 v25, v22 offset:{F_QF*4}")
    stamp(6)
    wait_flags(F_K, 2, 21, 28)
    for kt in range(2):
        for t in range(4):
            r = 40 + 16 * kt + 4 * t
            e(f"ds_read_b128 v[{r}:{r+3}], v{108+t} offset:{kt*4096}")
    l = L("qf"); e.label(l)
    e(f"ds_read_b128 v[28:31], v21 offset:{F_QF*4}")
    for t in range(4): e(f"ds_read_b128 v[{72+4*t}:{75+4*t}], v27 offset:{t*1024}")
    spin_tick()
    e("s_waitcnt lgkmcnt(0)")
    e("v_and_b32 v28, v28, v29"); e("v_and_b32 v30, v30, v31"); e("v_and_b32 v28, v28, v30"); e("v_cmp_ne_u32 vcc, 0, v28"); e(f"s_cbranch_vccz {l}")
    for t in range(4):
        for kt in range(2):
            c = "0" if t == 0 else f"v[{88+4*kt}:{91+4*kt}]"
            e(f"v_mfma_f32_16x16x32_bf16 v[{88+4*kt}:{91+4*kt}], v[{40+16*kt+4*t}:{43+16*kt+4*t}], v[{72+4*t}:{75+4*t}], {c}")
    wait_flags(F_V, 2, 21, 28)
    for t in range(8):
        for rho in range(2):
            r = 40 + 4 * t + 2 * rho
            e(f"ds_read_b64_tr_b16 v[{r}:{r+1}], v{116+t} offset:{rho*4096}")
    S = list(range(88, 96))
    for s_ in S: e(f"v_add_f32_dpp v{s_+8}, v{s_}, v{s_} row_ror:4 row_mask:0xf bank_mask:0xf")
    for s_ in S: e(f"v_add_f32_dpp v{s_}, v{s_+8}, v{s_+8} row_ror:8 row_mask:0xf bank_mask:0xf")
    e("v_max3_f32 v96, v88, v89, v90"); e("v_max3_f32 v97, v91, v92, v93"); e("v_max3_f32 v96, v96, v94, v95"); e("v_max_f32 v96, v96, v97")
    allreduce_xrow(96, 97, "v_max_f32")
    for s_ in S: e(f"v_sub_f32 v{s_}, v{s_}, v96")
    for s_ in S: e(f"v_exp_f32 v{s_}, v{s_}")
    e.nop(1)
    for m in range(4): e(f"v_cvt_pk_bf16_f32 v{100+m}, v{88+2*m}, v{89+2*m}")
    for u in range(4):
        for m in range(4): e(f"v_and_b32 v{72+4*u+m}, v{100+m}, v{112+u}")
    e("v_mov_b32 v88, 0x3f803f80"); e("v_mov_b32 v89, 0x3f803f80"); e("v_mov_b32 v90, 0x3f803f80"); e("v_mov_b32 v91, 0x3f803f80")
    e("s_waitcnt lgkmcnt(0)")
    first = [True, True]
    for t in range(8):
        ee = (t >> 1) & 1; u = 2 * (t >> 2) + (t & 1)
        c = "0" if first[ee] else f"v[{104+4*ee}:{107+4*ee}]"; first[ee] = False
        e(f"v_mfma_f32_16x16x32_bf16 v[{104+4*ee}:{107+4*ee}], v[{40+4*t}:{43+4*t}], v[{72+4*u}:{75+4*u}], {c}")
    e("v_mfma_f32_16x16x32_bf16 v[92:95], v[88:91], v[100:103], 0")
    e("v_lshlrev_b32 v24, 4, v0"); e("s_lshl_b32 s57, s3, 11"); e(f"s_add_u32 s57, s57, {OP}"); e("v_add_u32 v24, s57, v24")
    e("v_lshlrev_b32 v26, 5, v3"); e("s_lshl_b32 s57, s3, 3"); e(f"s_add_u32 s57, s57, {ML}"); e("v_add_u32 v26, s57, v26")
    e.nop(4)
    e("ds_write_b128 v24, v[104:107]")
    e("ds_write_b128 v24, v[108:111] offset:1024")
    e("v_mov_b32 v97, v92")
    e("s_mov_b64 exec, 0xf")
    e("ds_write_b64 v26, v[96:97]")
    e("s_mov_b64 exec, -1")
    e(f"ds_write_b32 v25, v22 offset:{F_O*4}")
    stamp(7)
    e("s_cmp_ge_u32 s3, 2"); e("s_cbranch_scc1 L_gemv")
    e("v_lshlrev_b32 v24, 4, v0"); e("s_lshl_b32 s57, s3, 10"); e(f"s_add_u32 s57, s57, {OP}"); e("v_add_u32 v24, s57, v24")
    e("v_and_b32 v26, 3, v3"); e("v_lshlrev_b32 v26, 5, v26"); e(f"v_add_u32 v26, {ML}, v26")
    e("v_and_b32 v27, 3, v3"); e("v_lshlrev_b32 v27, 14, v27"); e("v_lshrrev_b32 v28, 3, v3"); e("v_lshlrev_b32 v28, 13, v28"); e("v_add_u32 v27, v27, v28")
    e("v_lshrrev_b32 v28, 2, v3"); e("v_and_b32 v28, 1, v28"); e("v_lshlrev_b32 v28, 2, v28"); e("v_add_u32 v28, v28, v2"); e("v_lshlrev_b32 v28, 4, v28"); e("v_add_u32 v27, v27, v28")
    e("s_lshl_b32 s56, s52, 14"); e("s_lshl_b32 s57, s55, 8"); e("s_add_u32 s56, s56, s57"); e("s_lshl_b32 s57, s3, 7"); e("s_add_u32 s56, s56, s57"); e(f"s_add_u32 s56, s56, {OB}")
    for k in range(4):
        e(f"s_lshr_b32 s{60+k}, s{sT}, {8*k}"); e(f"s_and_b32 s{60+k}, s{60+k}, 0xff")
    e("s_mov_b32 s64, 0x07060500")
    l = L("mg"); e.label(l)
    e(f"ds_read_b128 v[28:31], v21 offset:{F_O*4}")
    for w in range(4): e(f"ds_read_b128 v[{32+4*w}:{35+4*w}], v24 offset:{w*2048}")
    e("ds_read_b128 v[48:51], v26"); e("ds_read_b128 v[52:55], v26 offset:16")
    spin_tick()
    e("s_waitcnt lgkmcnt(0)")
    e("v_and_b32 v28, v28, v29"); e("v_and_b32 v30, v30, v31"); e("v_and_b32 v28, v28, v30"); e("v_cmp_ne_u32 vcc, 0, v28"); e(f"s_cbranch_vccz {l}")
    e("v_max3_f32 v56, v48, v50, v52"); e("v_max_f32 v56, v56, v54")
    for w in range(4): e(f"v_sub_f32 v{48+2*w}, v{48+2*w}, v56")
    for w in range(4): e(f"v_exp_f32 v{48+2*w}, v{48+2*w}")
    e.nop(1)
    e("v_mul_f32 v57, v48, v49")
    for w in range(1, 4): e(f"v_fmac_f32 v57, v{48+2*w}, v{49+2*w}")
    e("v_rcp_f32 v58, v57"); e("v_log_f32 v59, v57")
    for m in range(4): e(f"v_mul_f32 v{32+m}, v{32+m}, v48")
    for w in range(1, 4):
        for m in range(4): e(f"v_fmac_f32 v{32+m}, v{32+4*w+m}, v{48+2*w}")
    for m in range(4): e(f"v_mul_f32 v{32+m}, v{32+m}, v58")
    for m in range(4):
        e(f"v_mov_b32 v{36+m}, s{60+m}")
    for m in range(4): e(f"v_perm_b32 v{32+m}, v{32+m}, v{36+m}, s64")
    e("buffer_store_dwordx4 v[32:35], v27, s[28:31], s56 offen sc1")
    l = L("nolse"); e("s_cmp_lg_u32 s3, 0"); e(f"s_cbranch_scc1 {l}")
    e("v_add_f32 v60, v56, v59"); e(f"v_mov_b32 v61, s{sT}")
    e("s_lshr_b32 s56, s52, 2"); e("s_lshl_b32 s56, s56, 5"); e("s_add_u32 s56, s56, s55"); e("s_lshl_b32 s56, s56, 7"); e(f"s_add_u32 s56, s56, {LB}")
    e("v_lshlrev_b32 v62, 3, v0")
    e("s_mov_b64 exec, 0xf")
    e("buffer_store_dwordx2 v[60:61], v62, s[28:31], s56 offen sc1")
    e("s_mov_b64 exec, -1")
    e.label(l)
    if o["stamps"]:
        e("s_memrealtime s[80:81]")
    dump_stamps()
    e("s_endpgm")

    e.label("L_gemv")
    e("s_lshr_b32 s52, s49, 2"); e("s_lshl_b32 s52, s52, 3"); e("s_add_u32 s52, s52, s48")
    e("s_and_b32 s53, s49, 3"); e("s_sub_u32 s54, s3, 2")
    e("v_lshrrev_b32 v24, 2, v3"); e("v_and_b32 v25, 3, v3")
    e("v_lshlrev_b32 v26, 2, v24"); e("v_add_u32 v26, v26, v2"); e("v_lshlrev_b32 v26, 9, v26")
    e("v_and_b32 v27, 1, v2"); e("v_lshlrev_b32 v27, 2, v27"); e("v_add_u32 v27, v27, v24"); e("v_lshlrev_b32 v27, 5, v27")
    e("v_lshlrev_b32 v25, 3, v25"); e("v_add3_u32 v26, v26, v27, v25")
    e("s_lshl_b32 s57, s54, 8"); e(f"s_add_u32 s57, s57, {WO}"); e("v_add_u32 v116, s57, v26")
    for u in range(1, 8): e(f"v_xor_b32 v{116+u}, {u<<5}, v116")
    e("v_lshlrev_b32 v24, 4, v0"); e("v_add_u32 v25, 4096, v24")
    e("s_lshl_b32 s56, s52, 13"); e(f"s_add_u32 s56, s56, {OB}")
    e("v_and_b32 v26, 7, v3"); e("v_lshlrev_b32 v26, 2, v26"); e("v_add_u32 v26, v26, v2"); e("v_lshlrev_b32 v26, 7, v26")
    e("s_lshr_b32 s57, s52, 3"); e("s_lshl_b32 s57, s57, 12"); e("s_lshr_b32 s58, s52, 1"); e("s_and_b32 s58, s58, 3"); e("s_lshl_b32 s58, s58, 3")
    e("s_add_u32 s57, s57, s58"); e(f"s_add_u32 s57, s57, {LB}")
    for k in range(4):
        e(f"s_lshr_b32 s{60+k}, s{sT}, {8*k}"); e(f"s_and_b32 s{60+k}, s{60+k}, 0xff")
    e("s_mov_b32 s64, 0x07060500")
    wait_flags(F_WO, 2, 21, 28)
    for u in range(8):
        for tp in range(4):
            r = 40 + 8 * u + 2 * tp
            e(f"ds_read_b64_tr_b16 v[{r}:{r+1}], v{116+u} offset:{tp*8192}")
    if o["stamps"]: e("s_memrealtime s[82:83]")
    D0 = 128
    l = L("e2"); e.label(l)
    e("buffer_load_dwordx2 v[4:5], v26, s[28:31], s57 offen sc1")
    for n in range(8):
        e(f"buffer_load_dwordx4 v[{D0+4*n}:{D0+4*n+3}], v{24 if n < 4 else 25}, s[28:31], s56 offen offset:{(n%4)*1024} sc1")
    spin_tick()
    e("s_waitcnt vmcnt(8)")
    e(f"v_xor_b32 v6, s{sT}, v5")
    e("v_mov_b32 v7, v4")
    for sh in (1, 2, 4):
        e.nop(2); e(f"v_max_f32_dpp v7, v7, v7 row_ror:{sh} row_mask:0xf bank_mask:0xf")
    allreduce_xrow(7, 8, "v_max_f32")
    e("v_sub_f32 v7, v4, v7"); e("v_exp_f32 v7, v7"); e.nop(1); e("v_mov_b32 v9, v7")
    for sh in (1, 2, 4):
        e.nop(2); e(f"v_add_f32_dpp v9, v9, v9 row_ror:{sh} row_mask:0xf bank_mask:0xf")
    allreduce_xrow(9, 8, "v_add_f32")
    e("v_rcp_f32 v9, v9"); e.nop(1); e("v_mul_f32 v7, v7, v9")
    e("v_mov_b32 v10, 0")
    for n in range(8):
        e(f"s_waitcnt vmcnt({7-n})")
        for i in range(4):
            e(f"v_xor_b32 v11, s{60+i}, v{D0+4*n+i}"); e(f"v_or_b32 v10, v10, v11")
        for i in range(4):
            op = "v_mul_f32_dpp" if n == 0 else "v_fmac_f32_dpp"
            e(f"{op} v{12+i}, v7, v{D0+4*n+i} row_newbcast:{n} row_mask:0xf bank_mask:0xf")
    e("v_and_b32 v10, 0xff, v10"); e("v_or_b32 v6, v6, v10")
    e("v_cmp_ne_u32 vcc, 0, v6"); e(f"s_cbranch_vccnz {l}")
    if o["stamps"]: e("s_memrealtime s[84:85]")
    e("v_permlane32_swap_b32 v12, v14"); e("v_permlane32_swap_b32 v13, v15")
    e("v_add_f32 v12, v12, v14"); e("v_add_f32 v13, v13, v15"); e.nop(2)
    e("v_permlane16_swap_b32 v12, v13"); e("v_add_f32 v12, v12, v13"); e.nop(2)
    e("v_mov_b32_dpp v13, v12 quad_perm:[1,0,3,2] row_mask:0xf bank_mask:0xf")
    e("v_cvt_pk_bf16_f32 v12, v12, v13"); e.nop(2)
    for m in range(8): e(f"v_mov_b32_dpp v{28+m}, v12 row_newbcast:{2*m} row_mask:0xf bank_mask:0xf")
    e("s_waitcnt lgkmcnt(0)")
    e.nop(1)
    for k in range(2):
        for u in range(8):
            c = "0" if k == 0 else f"v[{128+4*u}:{131+4*u}]"
            e(f"v_mfma_f32_16x16x32_bf16 v[{128+4*u}:{131+4*u}], v[{28+4*k}:{31+4*k}], v[{40+8*u+4*k}:{43+8*u+4*k}], {c}")
    e("v_lshlrev_b32 v24, 1, v2"); e("v_lshrrev_b32 v25, 3, v3"); e("v_add_u32 v24, v24, v25"); e("v_lshlrev_b32 v24, 13, v24")
    e("v_and_b32 v25, 7, v3"); e("v_lshlrev_b32 v25, 4, v25"); e("v_add_u32 v24, v24, v25")
    e("s_lshl_b32 s56, s53, 3"); e("s_lshl_b32 s57, s54, 2"); e("s_add_u32 s56, s56, s57"); e("s_lshl_b32 s56, s56, 13")
    e("s_lshl_b32 s57, s52, 7"); e("s_add_u32 s56, s56, s57"); e(f"s_add_u32 s56, s56, {FB}")
    e("v_and_b32 v25, 1, v2"); e("v_cmp_eq_u32 vcc, 1, v25")
    for k in range(4): e(f"v_mov_b32 v{8+k}, s{60+k}")
    e.nop(2)
    for i in range(4): e(f"v_cndmask_b32 v{4+i}, v{128+4*i}, v{128+4*(4+i)}, vcc")
    for i in range(4): e(f"v_perm_b32 v{4+i}, v{4+i}, v{8+i}, s64")
    e("s_mov_b64 exec, 0xffffffff")
    e("buffer_store_dwordx4 v[4:7], v24, s[28:31], s56 offen sc1")
    e("s_mov_b64 exec, -1")
    e("s_lshl_b32 s57, s54, 2"); e("v_add_u32 v25, s57, v21")
    e(f"ds_write_b32 v25, v22 offset:{F_PUB3*4}")
    if o["stamps"]: e("s_memrealtime s[86:87]")
    dump_stamps()
    e("s_endpgm")

    e.label("L_loader")
    if o["prio"]: e("s_setprio 2")
    srd(36, 6, 67108864); srd(40, 8, 67108864); srd(44, 12, 8388608)
    e("s_sub_u32 s52, s3, 4")
    e(f"v_mov_b32 v21, {FL}"); e("v_mov_b32 v22, 1")
    l = L("nz"); e("s_cmp_lg_u32 s52, 0"); e(f"s_cbranch_scc1 {l}")
    e("v_lshlrev_b32 v4, 2, v0"); e(f"v_add_u32 v4, {FL}, v4"); e("v_mov_b32 v5, 0")
    e("s_mov_b64 exec, 0xffffffff"); e("ds_write_b32 v4, v5"); e("s_mov_b64 exec, -1"); e("s_waitcnt lgkmcnt(0)")
    e.label(l)
    e("s_lshr_b32 s53, s48, 1"); e("s_lshl_b32 s53, s53, 24"); e("s_and_b32 s54, s48, 1"); e("s_lshl_b32 s54, s54, 4"); e("s_lshr_b32 s55, s49, 1"); e("s_add_u32 s54, s54, s55")
    e("s_lshl_b32 s54, s54, 15"); e("s_add_u32 s53, s53, s54"); e(f"s_add_u32 s53, s53, {KEY0*256}")
    e("s_lshl_b32 s54, s52, 14"); e("s_add_u32 s53, s53, s54")
    e("s_lshr_b32 s55, s49, 2"); e("s_lshl_b32 s55, s55, 3"); e("s_add_u32 s55, s55, s48"); e("s_lshl_b32 s55, s55, 17")
    e("s_and_b32 s56, s49, 3"); e("s_lshl_b32 s56, s56, 9"); e("s_add_u32 s55, s55, s56")
    e("s_lshl_b32 s56, s52, 16"); e("s_add_u32 s55, s55, s56")
    e("s_lshl_b32 s57, s52, 14")
    for m in range(4):
        e(f"v_add_u32 v4, {4*m}, v2"); e("v_xor_b32 v4, v4, v3"); e("v_lshlrev_b32 v4, 4, v4"); e("v_lshlrev_b32 v5, 8, v2"); e(f"v_add_u32 v{8+m}, v4, v5")
    for m in range(2):
        e(f"v_add_u32 v4, {4*m}, v2"); e("v_lshrrev_b32 v5, 1, v3"); e("v_xor_b32 v4, v4, v5"); e("v_lshlrev_b32 v4, 1, v4"); e("v_and_b32 v5, 1, v3"); e("v_or_b32 v4, v4, v5")
        e("v_lshlrev_b32 v4, 4, v4"); e("v_lshlrev_b32 v5, 8, v2"); e(f"v_add_u32 v{12+m}, v4, v5")
    e("v_lshrrev_b32 v6, 5, v0"); e("v_and_b32 v7, 31, v0")
    for m in range(4):
        e("v_lshlrev_b32 v4, 2, v6"); e(f"v_add_u32 v4, {m}, v4"); e("v_lshrrev_b32 v5, 1, v7"); e("v_xor_b32 v4, v4, v5"); e("v_lshlrev_b32 v4, 1, v4")
        e("v_and_b32 v5, 1, v7"); e("v_or_b32 v4, v4, v5"); e("v_lshlrev_b32 v4, 4, v4"); e("v_lshlrev_b32 v5, 11, v6"); e(f"v_add_u32 v{16+m}, v4, v5")
    e("s_lshl_b32 s58, s52, 2"); e("v_add_u32 v20, s58, v21")
    e("s_barrier")
    stamp(1)
    wait_flags(F_WQH, 1, 21, 24)
    stamp(2)
    W = o["win"]
    seq = [("K", m) for m in range(16)] + [("V", m) for m in range(16)] + [("W", m) for m in range(16)]
    for i, (kind, m) in enumerate(seq):
        if i >= W:
            e(f"s_waitcnt vmcnt({W-1})")
            if i - W == 15: set_flag(F_K, 20, 22); stamp(3)
            if i - W == 31: set_flag(F_V, 20, 22); stamp(4)
        if kind == "K":
            e(f"s_add_u32 m0, s57, {KL + m*1024}"); e(f"s_add_u32 s58, s53, {m*1024}")
            e(f"buffer_load_dwordx4 v{8 + (m & 3)}, s[36:39], s58 offen{NT} lds")
        elif kind == "V":
            e(f"s_add_u32 m0, s57, {VL + m*1024}"); e(f"s_add_u32 s58, s53, {m*1024}")
            e(f"buffer_load_dwordx4 v{12 + (m & 1)}, s[40:43], s58 offen{NT} lds")
        else:
            e(f"s_add_u32 m0, s57, {WO + m*1024}"); e(f"s_add_u32 s58, s55, {m*4096}")
            e(f"buffer_load_dwordx4 v{16 + ((m >> 1) & 3)}, s[44:47], s58 offen{NT} lds")
    done = 48 - W
    if 15 > 47 - W: raise SystemExit("window too large")
    if 31 > 47 - W:
        e(f"s_waitcnt vmcnt({47-31})"); set_flag(F_V, 20, 22); stamp(4)
    e("s_waitcnt vmcnt(0)"); set_flag(F_WO, 20, 22); stamp(5)
    e("s_waitcnt lgkmcnt(0)")
    dump_stamps()
    e("s_endpgm")

    e.label("L_bbranch")
    srd(36, 16, 7168); srd(40, 18, 7168); srd(44, 20, 7168)
    e("s_sub_u32 s52, s3, 6")
    e(f"v_mov_b32 v21, {FL}"); e("v_mov_b32 v22, 1")
    e("s_lshr_b32 s53, s49, 3"); e("s_lshl_b32 s53, s53, 3"); e("s_add_u32 s53, s53, s48")
    e("s_and_b32 s54, s49, 7")
    e("s_lshr_b32 s55, s53, 1"); e("s_lshl_b32 s55, s55, 6"); e("s_and_b32 s56, s53, 1"); e("s_lshl_b32 s56, s56, 3"); e("s_add_u32 s55, s55, s56"); e("s_add_u32 s55, s55, s54")
    e("v_lshlrev_b32 v23, 5, v0")
    e("buffer_load_dwordx4 v[4:7], v23, s[32:35], 0 offen")
    e("buffer_load_dwordx4 v[8:11], v23, s[32:35], 0 offen offset:16")
    e("v_lshlrev_b32 v24, 5, v2"); e("s_lshl_b32 s56, s55, 1")
    e("buffer_load_ushort v12, v24, s[32:35], s56 offen")
    e("v_mov_b32 v23, 0")
    e("buffer_load_dword v20, v23, s[28:31], 0 offen sc1")
    e("buffer_load_ushort v13, v23, s[22:23], 0 offen") if False else None
    e("v_lshlrev_b32 v23, 3, v0"); e("s_lshl_b32 s57, s52, 9")
    for n in range(7):
        e(f"buffer_load_dwordx2 v[{40+2*n}:{41+2*n}], v23, s[36:39], s57 offen offset:{n*1024}" if n < 4 else f"buffer_load_dwordx2 v[{40+2*n}:{41+2*n}], v23, s[36:39], s58 offen offset:{(n-4)*1024}") if n < 4 else None
    e("s_add_u32 s58, s57, 4096")
    for n in range(4, 7): e(f"buffer_load_dwordx2 v[{40+2*n}:{41+2*n}], v23, s[36:39], s58 offen offset:{(n-4)*1024}")
    for base, sr in ((54, "s[40:43]"), (68, "s[44:47]")):
        for n in range(7):
            so = "s57" if n < 4 else "s58"
            e(f"buffer_load_dwordx2 v[{base+2*n}:{base+2*n+1}], v23, {sr}, {so} offen offset:{(n%4)*1024}")
    e("s_load_dword s59, s[22:23], 0")
    e("s_waitcnt vmcnt(21)")
    e(f"v_readfirstlane_b32 s{sT}, v20")
    for k in range(8): unpack(24 + 2 * k, 25 + 2 * k, 4 + k)
    e(f"s_add_u32 s{sT}, s{sT}, 1"); e(f"s_mul_i32 s{sT}, s{sT}, 0x9e3779b1")
    stamp(1)
    e("s_barrier")
    ln_stats(24, 84, 88, 89)
    for k in range(16):
        e(f"v_sub_f32 v{24+k}, v{24+k}, v88"); bf16r(24 + k, 24 + k); e(f"v_mul_f32 v{24+k}, v{24+k}, v89"); bf16r(24 + k, 24 + k)
    e("v_lshlrev_b32 v14, 16, v12")
    e("v_sub_f32 v15, v14, v88"); bf16r(15, 15); e("v_mul_f32 v15, v15, v89"); bf16r(15, 15)
    ln_stats(24, 84, 90, 91)
    e("v_sub_f32 v15, v15, v90"); bf16r(15, 15); e("v_mul_f32 v15, v15, v91"); bf16r(15, 15)
    e.nop(1)
    for i in range(4): e(f"v_readlane_b32 s{60+i}, v15, {16*i}")
    e.nop(2)
    for i in range(4): e(f"v_mov_b32 v{16+i}, s{60+i}")
    k1 = -2.0 * math.sqrt(2.0 / math.pi) * math.log2(math.e); k2 = k1 * 0.044715
    e(f"v_mov_b32 v92, {f32bits(k1):#x}"); e(f"v_mov_b32 v93, {f32bits(k2):#x}")
    e("v_mov_b32 v94, 1.0"); e("v_mov_b32 v95, 1.0")
    for i in range(4): e(f"v_mov_b32 v{96+i}, 0")
    e("s_waitcnt vmcnt(0)")
    stamp(2)
    for n in range(7):
        for dw in range(2):
            unpack(100, 101, 40 + 2 * n + dw); unpack(102, 103, 54 + 2 * n + dw); unpack(104, 105, 68 + 2 * n + dw)
            for f in range(2):
                sel = f"op_sel:[0,{f},{f}] op_sel_hi:[1,{f},{f}]"
                base = [108, 118]
                Hs = ["v[16:17]", "v[18:19]"]; accs = ["v[96:97]", "v[98:99]"]
                U = [f"v[{b}:{b+1}]" for b in base]; T2 = [f"v[{b+2}:{b+3}]" for b in base]; Z = [f"v[{b+4}:{b+5}]" for b in base]; G = [f"v[{b+6}:{b+7}]" for b in base]
                for d in range(2): e(f"v_pk_fma_f32 {U[d]}, {Hs[d]}, v[100:101], v[102:103] {sel}")
                for d in range(2): e(f"v_pk_mul_f32 {T2[d]}, {U[d]}, {U[d]}")
                for d in range(2): e(f"v_pk_fma_f32 {T2[d]}, {T2[d]}, v[92:93], v[92:93] op_sel:[0,1,0] op_sel_hi:[1,1,0]")
                for d in range(2): e(f"v_pk_mul_f32 {Z[d]}, {U[d]}, {T2[d]}")
                for d in range(2): e(f"v_pk_mul_f32 {G[d]}, {U[d]}, v[104:105] op_sel:[0,{f}] op_sel_hi:[1,{f}]")
                for d in range(2):
                    b_ = base[d]; e(f"v_exp_f32 v{b_+4}, v{b_+4}"); e(f"v_exp_f32 v{b_+5}, v{b_+5}")
                e.nop(1)
                for d in range(2): e(f"v_pk_add_f32 {Z[d]}, {Z[d]}, v[94:95]")
                for d in range(2):
                    b_ = base[d]; e(f"v_rcp_f32 v{b_+4}, v{b_+4}"); e(f"v_rcp_f32 v{b_+5}, v{b_+5}")
                e.nop(1)
                for d in range(2): e(f"v_pk_fma_f32 {accs[d]}, {G[d]}, {Z[d]}, {accs[d]}")
    stamp(3)
    e.nop(2)
    e("v_permlane32_swap_b32 v96, v98"); e("v_permlane32_swap_b32 v97, v99")
    e("v_add_f32 v96, v96, v98"); e("v_add_f32 v97, v97, v99"); e.nop(2)
    e("v_permlane16_swap_b32 v96, v97"); e("v_add_f32 v96, v96, v97")
    allreduce_row16(96, "v_add_f32")
    e("v_lshlrev_b32 v24, 2, v2"); e(f"v_add_u32 v24, {GP}, v24")
    e("s_cmp_eq_u32 s52, 0"); e("s_cbranch_scc1 L_final")
    e("ds_write_b32 v24, v96")
    e(f"ds_write_b32 v21, v22 offset:{F_G*4}")
    e("s_waitcnt lgkmcnt(0)")
    dump_stamps()
    e("s_endpgm")
    e.label("L_final")
    l = L("g"); e.label(l)
    e(f"ds_read_b32 v28, v21 offset:{F_G*4}"); e("ds_read_b32 v29, v24")
    spin_tick()
    e("s_waitcnt lgkmcnt(0)")
    e("v_cmp_ne_u32 vcc, 0, v28"); e(f"s_cbranch_vccz {l}")
    e("v_add_f32 v96, v96, v29")
    bf16r(96, 96)
    e("s_and_b32 s59, s59, 0xffff"); e("s_lshl_b32 s59, s59, 16")
    e("v_add_f32 v96, s59, v96"); bf16r(96, 96)
    e(f"v_mul_f32 v97, {f32bits(-math.log2(math.e)):#x}, v96"); e("v_exp_f32 v97, v97"); e.nop(1); e("v_add_f32 v97, 1.0, v97"); e("v_rcp_f32 v97, v97"); e.nop(1)
    e("v_mul_f32 v96, v96, v97"); bf16r(96, 96)
    e("v_lshlrev_b32 v24, 7, v0")
    e("s_lshl_b32 s56, s53, 13"); e("s_lshl_b32 s57, s54, 4"); e("s_add_u32 s56, s56, s57"); e(f"s_add_u32 s56, s56, {FB}")
    for k in range(4):
        e(f"s_lshr_b32 s{60+k}, s{sT}, {8*k}"); e(f"s_and_b32 s{60+k}, s{60+k}, 0xff")
    stamp(4)
    l = L("p3"); e.label(l)
    e(f"ds_read_b64 v[28:29], v21 offset:{F_PUB3*4}")
    spin_tick()
    e("s_sleep 1")
    e("s_waitcnt lgkmcnt(0)")
    e("v_and_b32 v28, v28, v29"); e("v_cmp_ne_u32 vcc, 0, v28"); e(f"s_cbranch_vccz {l}")
    stamp(5)
    l = L("e3"); e.label(l)
    e("buffer_load_dwordx4 v[28:31], v24, s[28:31], s56 offen sc1")
    spin_tick()
    e("s_waitcnt vmcnt(0)")
    for i in range(4): e(f"v_xor_b32 v{32+i}, s{60+i}, v{28+i}")
    e("v_or_b32 v32, v32, v33"); e("v_or_b32 v34, v34, v35"); e("v_or_b32 v32, v32, v34"); e("v_and_b32 v32, 0xff, v32")
    e("v_cmp_ne_u32 vcc, 0, v32"); e(f"s_cbranch_vccnz {l}")
    stamp(6)
    e("v_permlane32_swap_b32 v28, v30"); e("v_permlane32_swap_b32 v29, v31")
    e("v_add_f32 v28, v28, v30"); e("v_add_f32 v29, v29, v31"); e.nop(2)
    e("v_permlane16_swap_b32 v28, v29"); e("v_add_f32 v28, v28, v29")
    allreduce_row16(28, "v_add_f32")
    bf16r(28, 28)
    e("v_mul_f32 v28, v28, v96"); bf16r(28, 28)
    e("v_add_f32 v28, v28, v14")
    e("v_cvt_pk_bf16_f32 v28, v28, v28")
    srd(36, 24, 2048)
    e("v_lshlrev_b32 v24, 5, v2"); e("s_lshl_b32 s56, s55, 1")
    e("s_mov_b32 exec_lo, 0x00010001"); e("s_mov_b32 exec_hi, 0x00010001")
    e("buffer_store_short v28, v24, s[36:39], s56 offen")
    l = L("ne"); e("s_cmp_lg_u32 s2, 0"); e(f"s_cbranch_scc1 {l}")
    e("s_mov_b64 exec, 1")
    e("v_add_u32 v20, 1, v20"); e("v_mov_b32 v23, 0")
    e("buffer_store_dword v20, v23, s[28:31], 0 offen sc1")
    e.label(l)
    e("s_mov_b64 exec, -1")
    stamp(7)
    dump_stamps()
    e("s_endpgm")
    e.label("L_abort")
    e("s_endpgm")
    e.label("L_exit")

    probs = check(a.lines)
    body = a.text()
    hdr = open("cdna_kernels/" + KN + ".s.ref").read().split("; Override launch")[0]
    out = hdr + f"; Override launch geometry by editing the next line.\n; @launch grid=(256,1,1) block=(512,1,1) lds={LDS_BYTES}\n"
    out += f""".amdgcn_target "amdgcn-amd-amdhsa--gfx950"
.text
.globl {KN}_kernel
.p2align 8
.type {KN}_kernel,@function
{KN}_kernel:
{body}
    s_endpgm
.section .rodata,"a"
.p2align 6
.amdhsa_kernel {KN}_kernel
  .amdhsa_next_free_vgpr 168
  .amdhsa_next_free_sgpr 96
  .amdhsa_accum_offset 168
  .amdhsa_group_segment_fixed_size 0
  .amdhsa_kernarg_size 104
  .amdhsa_user_sgpr_count 2
  .amdhsa_user_sgpr_kernarg_segment_ptr 1
  .amdhsa_system_sgpr_workgroup_id_x 1
.end_amdhsa_kernel
"""
    return out, probs

if __name__ == "__main__":
    opt = {}
    name = sys.argv[1]
    for kv in sys.argv[2:]:
        k, v = kv.split("="); opt[k] = int(v, 0)
    s, probs = gen(opt)
    open(name, "w").write(s)
    for p in probs: print("HAZARD:", p)
```

```python
import sys, math, struct
from asmlib import Asm, check
KN = "recurrent_scan__sliding_block_cached__mixer_token_mlp__decode"

def f32bits(x): return struct.unpack("<I", struct.pack("<f", x))[0]

DEF = dict(stamps=0, nt=1, win=8, dbgdump=0, pretouch=0, spinmax=1 << 20, prio=1)

QB, LB, OB, FB, STB = 0x10000, 0x20000, 0x40000, 0x100000, 0x200000
WQ, KL, VL, WO = 0, 32768, 65536, 98304
QP = 131072; QF = QP + 1024; OP = QF + 4096; ML = OP + 8192; GP = ML + 128; FL = GP + 128
LDS_BYTES = FL + 128
F_QP, F_QF, F_O, F_K, F_V, F_WO, F_WQH, F_G, F_PUB3 = 0, 4, 8, 12, 14, 16, 18, 19, 20
KEY0 = 61440

def gen(opt):
    o = dict(DEF); o.update(opt)
    NT = " nt" if o["nt"] else ""
    a = Asm(); e = a
    uid = [0]
    def L(p):
        uid[0] += 1; return f"L_{p}_{uid[0]}"
    sT, sCNT = 50, 51
    def srd(d, lo, size):
        e(f"s_mov_b32 s{d}, s{lo}"); e(f"s_and_b32 s{d+1}, s{lo+1}, 0xffff"); e(f"s_mov_b32 s{d+2}, {size}"); e(f"s_mov_b32 s{d+3}, 0x20000")
    nst = [0]
    def stamp(k):
        if o["stamps"]: e(f"s_memrealtime s[{80+2*k}:{81+2*k}]")
    def dump_stamps(dmap=None):
        if not o["stamps"]: return
        if o["stamps"] == 2:
            e("s_waitcnt lgkmcnt(0)")
            e("s_load_dwordx2 s[76:77], s[0:1], 88")
            e("s_waitcnt lgkmcnt(0)")
            e("s_mov_b32 s72, s76"); e("s_and_b32 s73, s77, 0xffff"); e("s_mov_b32 s74, 256"); e("s_mov_b32 s75, 0x20000")
            e("s_mov_b64 exec, 1")
            e("v_mov_b32 v20, 0")
            for (k, slot, inv) in dmap:
                if inv: e(f"s_not_b32 s{80+2*k}, s{80+2*k}")
                e(f"v_mov_b32 v4, s{80+2*k}")
                e(f"buffer_atomic_umax v4, v20, s[72:75], 0 offen offset:{4*slot}")
                e("s_waitcnt vmcnt(0)")
            return
        e("s_waitcnt lgkmcnt(0)")
        e("s_mov_b64 exec, -1")
        e("s_lshl_b32 s76, s2, 3"); e("s_add_u32 s76, s76, s3"); e("s_lshl_b32 s76, s76, 6"); e(f"s_add_u32 s76, s76, {STB}")
        for k in range(8):
            e(f"v_mov_b32 v{2*k+4}, s{80+2*k}"); e(f"v_mov_b32 v{2*k+5}, s{81+2*k}")
        e("v_mov_b32 v20, 0")
        e("s_mov_b64 exec, 1")
        for k in range(4):
            e(f"buffer_store_dwordx4 v[{4*k+4}:{4*k+7}], v20, s[28:31], s76 offen offset:{16*k}")
        e("s_waitcnt vmcnt(0)")
    def spin_tick(abort="L_abort"):
        e(f"s_sub_u32 s{sCNT}, s{sCNT}, 1"); e(f"s_cbranch_scc1 {abort}")
    def wait_flags(first, n, vaddr, vt):
        l = L("wf"); e.label(l)
        if n == 1: e(f"ds_read_b32 v{vt}, v{vaddr} offset:{first*4}")
        elif n == 2: e(f"ds_read_b64 v[{vt}:{vt+1}], v{vaddr} offset:{first*4}")
        else: e(f"ds_read_b128 v[{vt}:{vt+3}], v{vaddr} offset:{first*4}")
        spin_tick()
        e("s_waitcnt lgkmcnt(0)")
        if n == 2: e(f"v_and_b32 v{vt}, v{vt}, v{vt+1}")
        if n == 4:
            e(f"v_and_b32 v{vt}, v{vt}, v{vt+1}"); e(f"v_and_b32 v{vt+2}, v{vt+2}, v{vt+3}"); e(f"v_and_b32 v{vt}, v{vt}, v{vt+2}")
        e(f"v_cmp_ne_u32 vcc, 0, v{vt}")
        e(f"s_cbranch_vccz {l}")
    def set_flag(idx_expr_off, vaddr, vone):
        e(f"ds_write_b32 v{vaddr}, v{vone} offset:{idx_expr_off*4}")
    def bf16r(dst, src):
        e(f"v_cvt_pk_bf16_f32 v{dst}, v{src}, v{src}"); e(f"v_lshlrev_b32 v{dst}, 16, v{dst}")
    def allreduce_row16(v, op, t=None):
        for sh in (8, 4, 2, 1):
            e.nop(2); e(f"{op}_dpp v{v}, v{v}, v{v} row_ror:{sh} row_mask:0xf bank_mask:0xf")
    def allreduce_xrow(v, t, op):
        e(f"v_mov_b32 v{t}, v{v}"); e.nop(2); e(f"v_permlane32_swap_b32 v{v}, v{t}"); e(f"{op} v{v}, v{v}, v{t}")
        e(f"v_mov_b32 v{t}, v{v}"); e.nop(2); e(f"v_permlane16_swap_b32 v{v}, v{t}"); e(f"{op} v{v}, v{v}, v{t}")
    def ln_stats(xf, t0, vm, vrs, n=16):
        s, t = t0, t0 + 1
        e(f"v_add_f32 v{s}, v{xf}, v{xf+1}")
        for k in range(2, 16): e(f"v_add_f32 v{s}, v{s}, v{xf+k}")
        allreduce_row16(s, "v_add_f32"); allreduce_xrow(s, t, "v_add_f32")
        e(f"v_mul_f32 v{s}, {f32bits(1/1024):#x}, v{s}")
        e(f"v_sub_f32 v{t}, v{xf}, v{s}"); e(f"v_mul_f32 v{t0+2}, v{t}, v{t}")
        for k in range(1, 16):
            e(f"v_sub_f32 v{t}, v{xf+k}, v{s}"); e(f"v_fmac_f32 v{t0+2}, v{t}, v{t}")
        allreduce_row16(t0 + 2, "v_add_f32"); allreduce_xrow(t0 + 2, t, "v_add_f32")
        e(f"v_mul_f32 v{t0+2}, {f32bits(1/1024):#x}, v{t0+2}")
        bf16r(vm, s)
        bf16r(t, t0 + 2)
        e(f"v_add_f32 v{t}, {f32bits(1e-5):#x}, v{t}")
        bf16r(t, t)
        e(f"v_sqrt_f32 v{t}, v{t}"); e.nop(1)
        bf16r(t, t)
        e(f"v_rcp_f32 v{vrs}, v{t}"); e.nop(1)
    def unpack(dlo, dhi, src):
        e(f"v_lshlrev_b32 v{dlo}, 16, v{src}"); e(f"v_and_b32 v{dhi}, 0xffff0000, v{src}")
    def normalize_pair(dst, src, vm, vrs, t):
        unpack(t, t + 1, src)
        e(f"v_sub_f32 v{t}, v{t}, v{vm}"); e(f"v_sub_f32 v{t+1}, v{t+1}, v{vm}")
        e(f"v_cvt_pk_bf16_f32 v{t}, v{t}, v{t+1}")
        unpack(t, t + 1, t) if False else (e(f"v_and_b32 v{t+1}, 0xffff0000, v{t}"), e(f"v_lshlrev_b32 v{t}, 16, v{t}"))
        e(f"v_mul_f32 v{t}, v{t}, v{vrs}"); e(f"v_mul_f32 v{t+1}, v{t+1}, v{vrs}")
        e(f"v_cvt_pk_bf16_f32 v{dst}, v{t}, v{t+1}")

    e("s_cmp_ge_u32 s2, 256"); e("s_cbranch_scc1 L_exit")
    stamp(0)
    e("s_load_dwordx16 s[4:19], s[0:1], 0")
    e("s_load_dwordx4 s[20:23], s[0:1], 64")
    e("s_load_dwordx2 s[24:25], s[0:1], 80")
    e("s_load_dwordx2 s[26:27], s[0:1], 96")
    e("v_lshrrev_b32 v1, 6, v0"); e("v_and_b32 v0, 63, v0")
    e("v_lshrrev_b32 v2, 4, v0"); e("v_and_b32 v3, 15, v0")
    e("v_readfirstlane_b32 s3, v1")
    e("s_and_b32 s48, s2, 7"); e("s_lshr_b32 s49, s2, 3")
    e(f"s_mov_b32 s{sCNT}, {o['spinmax']}")
    e("s_waitcnt lgkmcnt(0)")
    srd(28, 26, 268435456)
    srd(32, 4, 2048)
    e("s_cmp_ge_u32 s3, 6"); e("s_cbranch_scc1 L_bbranch")
    e("s_cmp_ge_u32 s3, 4"); e("s_cbranch_scc1 L_loader")

    if o["prio"]: e("s_setprio 3")
    srd(36, 10, 8388608)
    e("s_lshr_b32 s52, s2, 2"); e("s_and_b32 s53, s2, 3")
    e("v_lshlrev_b32 v21, 5, v0")
    e("buffer_load_dwordx4 v[4:7], v21, s[32:35], 0 offen")
    e("buffer_load_dwordx4 v[8:11], v21, s[32:35], 0 offen offset:16")
    e("s_lshl_b32 s54, s53, 9"); e("s_lshl_b32 s55, s3, 7"); e("s_add_u32 s54, s54, s55")
    e("v_lshlrev_b32 v22, 3, v2")
    for k in range(2):
        for rho in range(2):
            r = 12 + 4 * k + 2 * rho
            e(f"buffer_load_dwordx2 v[{r}:{r+1}], v22, s[32:35], s54 offen offset:{64*k+32*rho}")
    e("v_mov_b32 v23, 0")
    e("buffer_load_dword v20, v23, s[28:31], 0 offen sc1")
    e("v_lshrrev_b32 v24, 3, v0"); e("v_and_b32 v25, 7, v0")
    e("v_lshrrev_b32 v26, 1, v25"); e("v_lshrrev_b32 v27, 1, v24"); e("v_and_b32 v27, 3, v27"); e("v_xor_b32 v26, v26, v27")
    e("v_lshlrev_b32 v26, 1, v26"); e("v_and_b32 v25, 1, v25"); e("v_or_b32 v26, v26, v25"); e("v_lshlrev_b32 v26, 4, v26")
    e("v_lshlrev_b32 v24, 13, v24"); e("v_add_u32 v24, v24, v26")
    e("s_lshl_b32 s56, s53, 21"); e("s_lshl_b32 s57, s52, 7"); e("s_add_u32 s56, s56, s57"); e("s_lshl_b32 s57, s3, 19"); e("s_add_u32 s56, s56, s57")
    e("s_lshl_b32 s58, s3, 13")
    for n in range(8):
        e(f"s_add_u32 m0, s58, {WQ + n*1024}")
        e(f"s_add_u32 s57, s56, {n*8*8192}")
        e(f"buffer_load_dwordx4 v24, s[36:39], s57 offen{NT} lds")
    e(f"v_mov_b32 v21, {FL}")
    e("v_mov_b32 v22, 1")
    e("v_lshrrev_b32 v24, 2, v3"); e("v_and_b32 v25, 3, v3")
    e("v_lshlrev_b32 v26, 2, v2"); e("v_add_u32 v26, v26, v24")
    e("v_lshrrev_b32 v27, 1, v26"); e("v_and_b32 v27, 3, v27")
    e("v_lshlrev_b32 v26, 7, v26"); e("v_lshlrev_b32 v25, 3, v25"); e("v_add_u32 v26, v26, v25")
    e("v_add_u32 v26, s58, v26")
    e("v_lshlrev_b32 v27, 5, v27"); e("v_add_u32 v108, v26, v27")
    for u in range(1, 4): e(f"v_xor_b32 v{108+u}, {u<<5}, v108")
    e("v_lshrrev_b32 v24, 2, v3")
    for u in range(4):
        e(f"v_cmp_eq_u32 vcc, {u}, v24"); e.nop(2); e(f"v_cndmask_b32 v{112+u}, 0, -1, vcc")
    e("s_waitcnt vmcnt(8)")
    stamp(2)
    e(f"v_readfirstlane_b32 s{sT}, v20")
    for k in range(8): unpack(24 + 2 * k, 25 + 2 * k, 4 + k)
    e(f"s_add_u32 s{sT}, s{sT}, 1"); e(f"s_mul_i32 s{sT}, s{sT}, 0x9e3779b1")
    ln_stats(24, 100, 104, 105)
    for k in range(8): normalize_pair(12 + k, 12 + k, 104, 105, 100)
    for k in range(2):
        for u in range(4):
            for m in range(4): e(f"v_and_b32 v{40+16*k+4*u+m}, v{12+4*k+m}, v{112+u}")
    stamp(1)
    e("s_barrier")
    stamp(3)
    for k in range(2):
        e(f"s_waitcnt vmcnt({4 - 4*k})")
        if k == 0:
            l = L("nf"); e("s_cmp_lg_u32 s3, 0"); e(f"s_cbranch_scc1 {l}"); set_flag(F_WQH, 21, 22); e.label(l)
        for u in range(4):
            for rho in range(2):
                r = 72 + 16 * k + 4 * u + 2 * rho
                e(f"ds_read_b64_tr_b16 v[{r}:{r+1}], v{108+u} offset:{k*4096 + rho*2048}")
        for u in range(4):
            e(f"s_waitcnt lgkmcnt({2*(3-u)})")
            c = "0" if (k == 0 and u == 0) else "v[104:107]"
            e(f"v_mfma_f32_16x16x32_bf16 v[104:107], v[{40+16*k+4*u}:{43+16*k+4*u}], v[{72+16*k+4*u}:{75+16*k+4*u}], {c}")
    e("v_lshlrev_b32 v24, 2, v0"); e("s_lshl_b32 s57, s3, 8"); e(f"s_add_u32 s57, s57, {QP}"); e("v_add_u32 v24, s57, v24")
    e("s_lshl_b32 s57, s3, 2"); e("v_add_u32 v25, s57, v21")
    e.nop(6)
    e("ds_write_b32 v24, v104")
    e(f"ds_write_b32 v25, v22 offset:{F_QP*4}")
    stamp(4)
    lq = L("noq"); e("s_cmp_lg_u32 s3, 0"); e(f"s_cbranch_scc1 {lq}")
    e("v_lshrrev_b32 v26, 3, v3"); e("v_lshlrev_b32 v26, 5, v26"); e("v_and_b32 v27, 3, v3"); e("v_lshlrev_b32 v27, 3, v27"); e("v_add_u32 v26, v26, v27")
    e("v_lshrrev_b32 v27, 2, v3"); e("v_and_b32 v27, 1, v27"); e("v_lshlrev_b32 v27, 2, v27"); e("v_add_u32 v26, v26, v27")
    e("v_lshlrev_b32 v26, 2, v26"); e(f"v_add_u32 v26, {QP}, v26")
    l = L("qp"); e.label(l)
    e(f"ds_read_b128 v[28:31], v21 offset:{F_QP*4}")
    for w in range(4): e(f"ds_read_b128 v[{32+4*w}:{35+4*w}], v26 offset:{w*256}")
    spin_tick()
    e("s_waitcnt lgkmcnt(0)")
    e("v_and_b32 v28, v28, v29"); e("v_and_b32 v30, v30, v31"); e("v_and_b32 v28, v28, v30"); e("v_cmp_ne_u32 vcc, 0, v28"); e(f"s_cbranch_vccz {l}")
    csc = math.log2(math.e) / math.sqrt(128.0)
    e(f"s_mov_b32 s57, {f32bits(csc):#x}")
    for m in range(4):
        e(f"v_add_f32 v{32+m}, v{32+m}, v{36+m}"); e(f"v_add_f32 v{40+m}, v{40+m}, v{44+m}")
    for m in range(4):
        e(f"v_add_f32 v{32+m}, v{32+m}, v{40+m}")
    for m in range(4): e(f"v_mul_f32 v{32+m}, s57, v{32+m}")
    e("v_cvt_pk_bf16_f32 v36, v32, v33"); e("v_cvt_pk_bf16_f32 v38, v34, v35")
    e(f"v_mov_b32 v37, s{sT}"); e(f"v_mov_b32 v39, s{sT}")
    e("s_lshr_b32 s57, s52, 1"); e("s_lshl_b32 s57, s57, 11"); e("s_and_b32 s58, s52, 1"); e("s_lshl_b32 s58, s58, 8"); e("s_add_u32 s57, s57, s58")
    e("s_lshl_b32 s58, s53, 9"); e("s_add_u32 s57, s57, s58"); e(f"s_add_u32 s57, s57, {QB}")
    e("v_lshlrev_b32 v26, 4, v0")
    e("s_mov_b64 exec, 0xffff")
    e("buffer_store_dwordx4 v[36:39], v26, s[28:31], s57 offen sc1")
    e("s_mov_b64 exec, -1")
    e.label(lq)
    stamp(5)
    e("s_lshr_b32 s52, s48, 1"); e("s_and_b32 s53, s48, 1"); e("s_and_b32 s54, s49, 1"); e("s_lshr_b32 s55, s49, 1")
    e("s_lshl_b32 s53, s53, 4"); e("s_add_u32 s55, s55, s53")
    e("s_lshl_b32 s52, s52, 3"); e("s_lshl_b32 s54, s54, 2"); e("s_add_u32 s52, s52, s54")
    e("v_and_b32 v24, 3, v3"); e("v_lshlrev_b32 v24, 2, v24"); e("v_lshrrev_b32 v25, 2, v3"); e("v_add_u32 v24, v24, v25")
    e("v_lshlrev_b32 v24, 9, v24"); e("v_lshlrev_b32 v25, 4, v2"); e("v_add_u32 v24, v24, v25")
    e("s_lshl_b32 s56, s52, 11"); e("s_lshl_b32 s57, s3, 7"); e("s_add_u32 s56, s56, s57"); e(f"s_add_u32 s56, s56, {QB}")
    e("s_lshl_b32 s57, s3, 13"); e(f"s_add_u32 s57, s57, {KL}")
    e("v_lshlrev_b32 v25, 8, v3"); e("v_add_u32 v25, s57, v25")
    e("v_xor_b32 v26, v2, v3"); e("v_lshlrev_b32 v26, 4, v26"); e("v_add_u32 v108, v25, v26")
    for t in range(1, 4): e(f"v_xor_b32 v{108+t}, {t<<6}, v108")
    e("v_lshrrev_b32 v25, 2, v3"); e("v_lshlrev_b32 v26, 2, v2"); e("v_add_u32 v25, v25, v26")
    e("v_and_b32 v26, 7, v25"); e("v_lshlrev_b32 v26, 5, v26"); e("v_lshlrev_b32 v25, 8, v25"); e("v_add_u32 v25, v25, v26")
    e("v_and_b32 v26, 3, v3"); e("v_lshlrev_b32 v26, 3, v26"); e("v_add_u32 v25, v25, v26")
    e("s_lshl_b32 s57, s3, 13"); e(f"s_add_u32 s57, s57, {VL}"); e("v_add_u32 v116, s57, v25")
    for t in range(1, 8): e(f"v_xor_b32 v{116+t}, {t<<5}, v116")
    e("v_lshlrev_b32 v27, 4, v0"); e(f"v_add_u32 v27, {QF}, v27")
    e("s_lshl_b32 s57, s3, 10"); e("v_add_u32 v26, s57, v27")
    e("s_lshl_b32 s57, s3, 2"); e("v_add_u32 v25, s57, v21")
    l = L("e1"); e.label(l)
    e("buffer_load_dwordx4 v[28:31], v24, s[28:31], s56 offen sc1")
    e("buffer_load_dwordx4 v[32:35], v24, s[28:31], s56 offen offset:64 sc1")
    spin_tick()
    e("s_waitcnt vmcnt(0)")
    e(f"v_xor_b32 v36, s{sT}, v29"); e(f"v_xor_b32 v37, s{sT}, v31"); e(f"v_xor_b32 v38, s{sT}, v33"); e(f"v_xor_b32 v39, s{sT}, v35")
    e("v_or_b32 v36, v36, v37"); e("v_or_b32 v38, v38, v39"); e("v_or_b32 v36, v36, v38")
    e("v_cmp_ne_u32 vcc, 0, v36"); e(f"s_cbranch_vccnz {l}")
    e("ds_write2_b32 v26, v28, v30 offset0:0 offset1:1")
    e("ds_write2_b32 v26, v32, v34 offset0:2 offset1:3")
    e(f"ds_write_b32 v25, v22 offset:{F_QF*4}")
    stamp(6)
    wait_flags(F_K, 2, 21, 28)
    for kt in range(2):
        for t in range(4):
            r = 40 + 16 * kt + 4 * t
            e(f"ds_read_b128 v[{r}:{r+3}], v{108+t} offset:{kt*4096}")
    l = L("qf"); e.label(l)
    e(f"ds_read_b128 v[28:31], v21 offset:{F_QF*4}")
    for t in range(4): e(f"ds_read_b128 v[{72+4*t}:{75+4*t}], v27 offset:{t*1024}")
    spin_tick()
    e("s_waitcnt lgkmcnt(0)")
    e("v_and_b32 v28, v28, v29"); e("v_and_b32 v30, v30, v31"); e("v_and_b32 v28, v28, v30"); e("v_cmp_ne_u32 vcc, 0, v28"); e(f"s_cbranch_vccz {l}")
    for t in range(4):
        for kt in range(2):
            c = "0" if t == 0 else f"v[{88+4*kt}:{91+4*kt}]"
            e(f"v_mfma_f32_16x16x32_bf16 v[{88+4*kt}:{91+4*kt}], v[{40+16*kt+4*t}:{43+16*kt+4*t}], v[{72+4*t}:{75+4*t}], {c}")
    wait_flags(F_V, 2, 21, 28)
    for t in range(8):
        for rho in range(2):
            r = 40 + 4 * t + 2 * rho
            e(f"ds_read_b64_tr_b16 v[{r}:{r+1}], v{116+t} offset:{rho*4096}")
    S = list(range(88, 96))
    for s_ in S: e(f"v_add_f32_dpp v{s_+8}, v{s_}, v{s_} row_ror:4 row_mask:0xf bank_mask:0xf")
    for s_ in S: e(f"v_add_f32_dpp v{s_}, v{s_+8}, v{s_+8} row_ror:8 row_mask:0xf bank_mask:0xf")
    e("v_max3_f32 v96, v88, v89, v90"); e("v_max3_f32 v97, v91, v92, v93"); e("v_max3_f32 v96, v96, v94, v95"); e("v_max_f32 v96, v96, v97")
    allreduce_xrow(96, 97, "v_max_f32")
    for s_ in S: e(f"v_sub_f32 v{s_}, v{s_}, v96")
    for s_ in S: e(f"v_exp_f32 v{s_}, v{s_}")
    e.nop(1)
    for m in range(4): e(f"v_cvt_pk_bf16_f32 v{100+m}, v{88+2*m}, v{89+2*m}")
    for u in range(4):
        for m in range(4): e(f"v_and_b32 v{72+4*u+m}, v{100+m}, v{112+u}")
    e("v_mov_b32 v88, 0x3f803f80"); e("v_mov_b32 v89, 0x3f803f80"); e("v_mov_b32 v90, 0x3f803f80"); e("v_mov_b32 v91, 0x3f803f80")
    e("s_waitcnt lgkmcnt(0)")
    first = [True, True]
    for t in range(8):
        ee = (t >> 1) & 1; u = 2 * (t >> 2) + (t & 1)
        c = "0" if first[ee] else f"v[{104+4*ee}:{107+4*ee}]"; first[ee] = False
        e(f"v_mfma_f32_16x16x32_bf16 v[{104+4*ee}:{107+4*ee}], v[{40+4*t}:{43+4*t}], v[{72+4*u}:{75+4*u}], {c}")
    e("v_mfma_f32_16x16x32_bf16 v[92:95], v[88:91], v[100:103], 0")
    e("v_lshlrev_b32 v24, 4, v0"); e("s_lshl_b32 s57, s3, 11"); e(f"s_add_u32 s57, s57, {OP}"); e("v_add_u32 v24, s57, v24")
    e("v_lshlrev_b32 v26, 5, v3"); e("s_lshl_b32 s57, s3, 3"); e(f"s_add_u32 s57, s57, {ML}"); e("v_add_u32 v26, s57, v26")
    e.nop(4)
    e("ds_write_b128 v24, v[104:107]")
    e("ds_write_b128 v24, v[108:111] offset:1024")
    e("v_mov_b32 v97, v92")
    e("s_mov_b64 exec, 0xf")
    e("ds_write_b64 v26, v[96:97]")
    e("s_mov_b64 exec, -1")
    e(f"ds_write_b32 v25, v22 offset:{F_O*4}")
    stamp(7)
    e("s_cmp_ge_u32 s3, 2"); e("s_cbranch_scc1 L_gemv")
    e("v_lshlrev_b32 v24, 4, v0"); e("s_lshl_b32 s57, s3, 10"); e(f"s_add_u32 s57, s57, {OP}"); e("v_add_u32 v24, s57, v24")
    e("v_and_b32 v26, 3, v3"); e("v_lshlrev_b32 v26, 5, v26"); e(f"v_add_u32 v26, {ML}, v26")
    e("v_and_b32 v27, 3, v3"); e("v_lshlrev_b32 v27, 14, v27"); e("v_lshrrev_b32 v28, 3, v3"); e("v_lshlrev_b32 v28, 13, v28"); e("v_add_u32 v27, v27, v28")
    e("v_lshrrev_b32 v28, 2, v3"); e("v_and_b32 v28, 1, v28"); e("v_lshlrev_b32 v28, 2, v28"); e("v_add_u32 v28, v28, v2"); e("v_lshlrev_b32 v28, 4, v28"); e("v_add_u32 v27, v27, v28")
    e("s_lshl_b32 s56, s52, 14"); e("s_lshl_b32 s57, s55, 8"); e("s_add_u32 s56, s56, s57"); e("s_lshl_b32 s57, s3, 7"); e("s_add_u32 s56, s56, s57"); e(f"s_add_u32 s56, s56, {OB}")
    for k in range(4):
        e(f"s_lshr_b32 s{60+k}, s{sT}, {8*k}"); e(f"s_and_b32 s{60+k}, s{60+k}, 0xff")
    e("s_mov_b32 s64, 0x07060500")
    l = L("mg"); e.label(l)
    e(f"ds_read_b128 v[28:31], v21 offset:{F_O*4}")
    for w in range(4): e(f"ds_read_b128 v[{32+4*w}:{35+4*w}], v24 offset:{w*2048}")
    e("ds_read_b128 v[48:51], v26"); e("ds_read_b128 v[52:55], v26 offset:16")
    spin_tick()
    e("s_waitcnt lgkmcnt(0)")
    e("v_and_b32 v28, v28, v29"); e("v_and_b32 v30, v30, v31"); e("v_and_b32 v28, v28, v30"); e("v_cmp_ne_u32 vcc, 0, v28"); e(f"s_cbranch_vccz {l}")
    e("v_max3_f32 v56, v48, v50, v52"); e("v_max_f32 v56, v56, v54")
    for w in range(4): e(f"v_sub_f32 v{48+2*w}, v{48+2*w}, v56")
    for w in range(4): e(f"v_exp_f32 v{48+2*w}, v{48+2*w}")
    e.nop(1)
    e("v_mul_f32 v57, v48, v49")
    for w in range(1, 4): e(f"v_fmac_f32 v57, v{48+2*w}, v{49+2*w}")
    e("v_rcp_f32 v58, v57"); e("v_log_f32 v59, v57")
    for m in range(4): e(f"v_mul_f32 v{32+m}, v{32+m}, v48")
    for w in range(1, 4):
        for m in range(4): e(f"v_fmac_f32 v{32+m}, v{32+4*w+m}, v{48+2*w}")
    for m in range(4): e(f"v_mul_f32 v{32+m}, v{32+m}, v58")
    for m in range(4):
        e(f"v_mov_b32 v{36+m}, s{60+m}")
    for m in range(4): e(f"v_perm_b32 v{32+m}, v{32+m}, v{36+m}, s64")
    e("buffer_store_dwordx4 v[32:35], v27, s[28:31], s56 offen sc1")
    l = L("nolse"); e("s_cmp_lg_u32 s3, 0"); e(f"s_cbranch_scc1 {l}")
    e("v_add_f32 v60, v56, v59"); e(f"v_mov_b32 v61, s{sT}")
    e("s_lshr_b32 s56, s52, 2"); e("s_lshl_b32 s56, s56, 5"); e("s_add_u32 s56, s56, s55"); e("s_lshl_b32 s56, s56, 7"); e(f"s_add_u32 s56, s56, {LB}")
    e("v_lshlrev_b32 v62, 3, v0")
    e("s_mov_b64 exec, 0xf")
    e("buffer_store_dwordx2 v[60:61], v62, s[28:31], s56 offen sc1")
    e("s_mov_b64 exec, -1")
    e.label(l)
    if o["stamps"]:
        e("s_memrealtime s[80:81]")
    dump_stamps([(2,1,0),(3,2,0),(5,3,0),(6,4,0),(7,7,0),(0,8,0)])
    e("s_endpgm")

    e.label("L_gemv")
    e("s_lshr_b32 s52, s49, 2"); e("s_lshl_b32 s52, s52, 3"); e("s_add_u32 s52, s52, s48")
    e("s_and_b32 s53, s49, 3"); e("s_sub_u32 s54, s3, 2")
    e("v_lshrrev_b32 v24, 2, v3"); e("v_and_b32 v25, 3, v3")
    e("v_lshlrev_b32 v26, 2, v24"); e("v_add_u32 v26, v26, v2"); e("v_lshlrev_b32 v26, 9, v26")
    e("v_and_b32 v27, 1, v2"); e("v_lshlrev_b32 v27, 2, v27"); e("v_add_u32 v27, v27, v24"); e("v_lshlrev_b32 v27, 5, v27")
    e("v_lshlrev_b32 v25, 3, v25"); e("v_add3_u32 v26, v26, v27, v25")
    e("s_lshl_b32 s57, s54, 8"); e(f"s_add_u32 s57, s57, {WO}"); e("v_add_u32 v116, s57, v26")
    for u in range(1, 8): e(f"v_xor_b32 v{116+u}, {u<<5}, v116")
    e("v_lshlrev_b32 v24, 4, v0"); e("v_add_u32 v25, 4096, v24")
    e("s_lshl_b32 s56, s52, 13"); e(f"s_add_u32 s56, s56, {OB}")
    e("v_and_b32 v26, 7, v3"); e("v_lshlrev_b32 v26, 2, v26"); e("v_add_u32 v26, v26, v2"); e("v_lshlrev_b32 v26, 7, v26")
    e("s_lshr_b32 s57, s52, 3"); e("s_lshl_b32 s57, s57, 12"); e("s_lshr_b32 s58, s52, 1"); e("s_and_b32 s58, s58, 3"); e("s_lshl_b32 s58, s58, 3")
    e("s_add_u32 s57, s57, s58"); e(f"s_add_u32 s57, s57, {LB}")
    for k in range(4):
        e(f"s_lshr_b32 s{60+k}, s{sT}, {8*k}"); e(f"s_and_b32 s{60+k}, s{60+k}, 0xff")
    e("s_mov_b32 s64, 0x07060500")
    wait_flags(F_WO, 2, 21, 28)
    for u in range(8):
        for tp in range(4):
            r = 40 + 8 * u + 2 * tp
            e(f"ds_read_b64_tr_b16 v[{r}:{r+1}], v{116+u} offset:{tp*8192}")
    if o["stamps"]: e("s_memrealtime s[82:83]")
    D0 = 128
    l = L("e2"); e.label(l)
    e("buffer_load_dwordx2 v[4:5], v26, s[28:31], s57 offen sc1")
    for n in range(8):
        e(f"buffer_load_dwordx4 v[{D0+4*n}:{D0+4*n+3}], v{24 if n < 4 else 25}, s[28:31], s56 offen offset:{(n%4)*1024} sc1")
    spin_tick()
    e("s_waitcnt vmcnt(8)")
    e(f"v_xor_b32 v6, s{sT}, v5")
    e("v_mov_b32 v7, v4")
    for sh in (1, 2, 4):
        e.nop(2); e(f"v_max_f32_dpp v7, v7, v7 row_ror:{sh} row_mask:0xf bank_mask:0xf")
    allreduce_xrow(7, 8, "v_max_f32")
    e("v_sub_f32 v7, v4, v7"); e("v_exp_f32 v7, v7"); e.nop(1); e("v_mov_b32 v9, v7")
    for sh in (1, 2, 4):
        e.nop(2); e(f"v_add_f32_dpp v9, v9, v9 row_ror:{sh} row_mask:0xf bank_mask:0xf")
    allreduce_xrow(9, 8, "v_add_f32")
    e("v_rcp_f32 v9, v9"); e.nop(1); e("v_mul_f32 v7, v7, v9")
    e("v_mov_b32 v10, 0")
    for n in range(8):
        e(f"s_waitcnt vmcnt({7-n})")
        for i in range(4):
            e(f"v_xor_b32 v11, s{60+i}, v{D0+4*n+i}"); e(f"v_or_b32 v10, v10, v11")
        for i in range(4):
            op = "v_mul_f32_dpp" if n == 0 else "v_fmac_f32_dpp"
            e(f"{op} v{12+i}, v7, v{D0+4*n+i} row_newbcast:{n} row_mask:0xf bank_mask:0xf")
    e("v_and_b32 v10, 0xff, v10"); e("v_or_b32 v6, v6, v10")
    e("v_cmp_ne_u32 vcc, 0, v6"); e(f"s_cbranch_vccnz {l}")
    if o["stamps"]: e("s_memrealtime s[84:85]")
    e("v_permlane32_swap_b32 v12, v14"); e("v_permlane32_swap_b32 v13, v15")
    e("v_add_f32 v12, v12, v14"); e("v_add_f32 v13, v13, v15"); e.nop(2)
    e("v_permlane16_swap_b32 v12, v13"); e("v_add_f32 v12, v12, v13"); e.nop(2)
    e("v_mov_b32_dpp v13, v12 quad_perm:[1,0,3,2] row_mask:0xf bank_mask:0xf")
    e("v_cvt_pk_bf16_f32 v12, v12, v13"); e.nop(2)
    for m in range(8): e(f"v_mov_b32_dpp v{28+m}, v12 row_newbcast:{2*m} row_mask:0xf bank_mask:0xf")
    e("s_waitcnt lgkmcnt(0)")
    e.nop(1)
    for k in range(2):
        for u in range(8):
            c = "0" if k == 0 else f"v[{128+4*u}:{131+4*u}]"
            e(f"v_mfma_f32_16x16x32_bf16 v[{128+4*u}:{131+4*u}], v[{28+4*k}:{31+4*k}], v[{40+8*u+4*k}:{43+8*u+4*k}], {c}")
    e("v_lshlrev_b32 v24, 1, v2"); e("v_lshrrev_b32 v25, 3, v3"); e("v_add_u32 v24, v24, v25"); e("v_lshlrev_b32 v24, 13, v24")
    e("v_and_b32 v25, 7, v3"); e("v_lshlrev_b32 v25, 4, v25"); e("v_add_u32 v24, v24, v25")
    e("s_lshl_b32 s56, s53, 3"); e("s_lshl_b32 s57, s54, 2"); e("s_add_u32 s56, s56, s57"); e("s_lshl_b32 s56, s56, 13")
    e("s_lshl_b32 s57, s52, 7"); e("s_add_u32 s56, s56, s57"); e(f"s_add_u32 s56, s56, {FB}")
    e("v_and_b32 v25, 1, v2"); e("v_cmp_eq_u32 vcc, 1, v25")
    for k in range(4): e(f"v_mov_b32 v{8+k}, s{60+k}")
    e.nop(2)
    for i in range(4): e(f"v_cndmask_b32 v{4+i}, v{128+4*i}, v{128+4*(4+i)}, vcc")
    for i in range(4): e(f"v_perm_b32 v{4+i}, v{4+i}, v{8+i}, s64")
    e("s_mov_b64 exec, 0xffffffff")
    e("buffer_store_dwordx4 v[4:7], v24, s[28:31], s56 offen sc1")
    e("s_mov_b64 exec, -1")
    e("s_lshl_b32 s57, s54, 2"); e("v_add_u32 v25, s57, v21")
    e(f"ds_write_b32 v25, v22 offset:{F_PUB3*4}")
    if o["stamps"]: e("s_memrealtime s[86:87]")
    dump_stamps([(0,0,1),(6,4,0),(2,10,0),(3,11,0)])
    e("s_endpgm")

    e.label("L_loader")
    if o["prio"]: e("s_setprio 2")
    srd(36, 6, 67108864); srd(40, 8, 67108864); srd(44, 12, 8388608)
    e("s_sub_u32 s52, s3, 4")
    e(f"v_mov_b32 v21, {FL}"); e("v_mov_b32 v22, 1")
    l = L("nz"); e("s_cmp_lg_u32 s52, 0"); e(f"s_cbranch_scc1 {l}")
    e("v_lshlrev_b32 v4, 2, v0"); e(f"v_add_u32 v4, {FL}, v4"); e("v_mov_b32 v5, 0")
    e("s_mov_b64 exec, 0xffffffff"); e("ds_write_b32 v4, v5"); e("s_mov_b64 exec, -1"); e("s_waitcnt lgkmcnt(0)")
    e.label(l)
    e("s_lshr_b32 s53, s48, 1"); e("s_lshl_b32 s53, s53, 24"); e("s_and_b32 s54, s48, 1"); e("s_lshl_b32 s54, s54, 4"); e("s_lshr_b32 s55, s49, 1"); e("s_add_u32 s54, s54, s55")
    e("s_lshl_b32 s54, s54, 15"); e("s_add_u32 s53, s53, s54"); e(f"s_add_u32 s53, s53, {KEY0*256}")
    e("s_lshl_b32 s54, s52, 14"); e("s_add_u32 s53, s53, s54")
    e("s_lshr_b32 s55, s49, 2"); e("s_lshl_b32 s55, s55, 3"); e("s_add_u32 s55, s55, s48"); e("s_lshl_b32 s55, s55, 17")
    e("s_and_b32 s56, s49, 3"); e("s_lshl_b32 s56, s56, 9"); e("s_add_u32 s55, s55, s56")
    e("s_lshl_b32 s56, s52, 16"); e("s_add_u32 s55, s55, s56")
    e("s_lshl_b32 s57, s52, 14")
    for m in range(4):
        e(f"v_add_u32 v4, {4*m}, v2"); e("v_xor_b32 v4, v4, v3"); e("v_lshlrev_b32 v4, 4, v4"); e("v_lshlrev_b32 v5, 8, v2"); e(f"v_add_u32 v{8+m}, v4, v5")
    for m in range(2):
        e(f"v_add_u32 v4, {4*m}, v2"); e("v_lshrrev_b32 v5, 1, v3"); e("v_xor_b32 v4, v4, v5"); e("v_lshlrev_b32 v4, 1, v4"); e("v_and_b32 v5, 1, v3"); e("v_or_b32 v4, v4, v5")
        e("v_lshlrev_b32 v4, 4, v4"); e("v_lshlrev_b32 v5, 8, v2"); e(f"v_add_u32 v{12+m}, v4, v5")
    e("v_lshrrev_b32 v6, 5, v0"); e("v_and_b32 v7, 31, v0")
    for m in range(4):
        e("v_lshlrev_b32 v4, 2, v6"); e(f"v_add_u32 v4, {m}, v4"); e("v_lshrrev_b32 v5, 1, v7"); e("v_xor_b32 v4, v4, v5"); e("v_lshlrev_b32 v4, 1, v4")
        e("v_and_b32 v5, 1, v7"); e("v_or_b32 v4, v4, v5"); e("v_lshlrev_b32 v4, 4, v4"); e("v_lshlrev_b32 v5, 11, v6"); e(f"v_add_u32 v{16+m}, v4, v5")
    e("s_lshl_b32 s58, s52, 2"); e("v_add_u32 v20, s58, v21")
    e("s_barrier")
    stamp(1)
    wait_flags(F_WQH, 1, 21, 24)
    stamp(2)
    W = o["win"]
    seq = [("K", m) for m in range(16)] + [("V", m) for m in range(16)] + [("W", m) for m in range(16)]
    for i, (kind, m) in enumerate(seq):
        if i >= W:
            e(f"s_waitcnt vmcnt({W-1})")
            if i - W == 15: set_flag(F_K, 20, 22); stamp(3)
            if i - W == 31: set_flag(F_V, 20, 22); stamp(4)
        if kind == "K":
            e(f"s_add_u32 m0, s57, {KL + m*1024}"); e(f"s_add_u32 s58, s53, {m*1024}")
            e(f"buffer_load_dwordx4 v{8 + (m & 3)}, s[36:39], s58 offen{NT} lds")
        elif kind == "V":
            e(f"s_add_u32 m0, s57, {VL + m*1024}"); e(f"s_add_u32 s58, s53, {m*1024}")
            e(f"buffer_load_dwordx4 v{12 + (m & 1)}, s[40:43], s58 offen{NT} lds")
        else:
            e(f"s_add_u32 m0, s57, {WO + m*1024}"); e(f"s_add_u32 s58, s55, {m*4096}")
            e(f"buffer_load_dwordx4 v{16 + ((m >> 1) & 3)}, s[44:47], s58 offen{NT} lds")
    done = 48 - W
    if 15 > 47 - W: raise SystemExit("window too large")
    if 31 > 47 - W:
        e(f"s_waitcnt vmcnt({47-31})"); set_flag(F_V, 20, 22); stamp(4)
    e("s_waitcnt vmcnt(0)"); set_flag(F_WO, 20, 22); stamp(5)
    e("s_waitcnt lgkmcnt(0)")
    dump_stamps([(0,0,1),(3,5,0),(4,6,0),(5,9,0)])
    e("s_endpgm")

    e.label("L_bbranch")
    srd(36, 16, 7168); srd(40, 18, 7168); srd(44, 20, 7168)
    e("s_sub_u32 s52, s3, 6")
    e(f"v_mov_b32 v21, {FL}"); e("v_mov_b32 v22, 1")
    e("s_lshr_b32 s53, s49, 3"); e("s_lshl_b32 s53, s53, 3"); e("s_add_u32 s53, s53, s48")
    e("s_and_b32 s54, s49, 7")
    e("s_lshr_b32 s55, s53, 1"); e("s_lshl_b32 s55, s55, 6"); e("s_and_b32 s56, s53, 1"); e("s_lshl_b32 s56, s56, 3"); e("s_add_u32 s55, s55, s56"); e("s_add_u32 s55, s55, s54")
    e("v_lshlrev_b32 v23, 5, v0")
    e("buffer_load_dwordx4 v[4:7], v23, s[32:35], 0 offen")
    e("buffer_load_dwordx4 v[8:11], v23, s[32:35], 0 offen offset:16")
    e("v_lshlrev_b32 v24, 5, v2"); e("s_lshl_b32 s56, s55, 1")
    e("buffer_load_ushort v12, v24, s[32:35], s56 offen")
    e("v_mov_b32 v23, 0")
    e("buffer_load_dword v20, v23, s[28:31], 0 offen sc1")
    e("buffer_load_ushort v13, v23, s[22:23], 0 offen") if False else None
    e("v_lshlrev_b32 v23, 3, v0"); e("s_lshl_b32 s57, s52, 9")
    for n in range(7):
        e(f"buffer_load_dwordx2 v[{40+2*n}:{41+2*n}], v23, s[36:39], s57 offen offset:{n*1024}" if n < 4 else f"buffer_load_dwordx2 v[{40+2*n}:{41+2*n}], v23, s[36:39], s58 offen offset:{(n-4)*1024}") if n < 4 else None
    e("s_add_u32 s58, s57, 4096")
    for n in range(4, 7): e(f"buffer_load_dwordx2 v[{40+2*n}:{41+2*n}], v23, s[36:39], s58 offen offset:{(n-4)*1024}")
    for base, sr in ((54, "s[40:43]"), (68, "s[44:47]")):
        for n in range(7):
            so = "s57" if n < 4 else "s58"
            e(f"buffer_load_dwordx2 v[{base+2*n}:{base+2*n+1}], v23, {sr}, {so} offen offset:{(n%4)*1024}")
    e("s_load_dword s59, s[22:23], 0")
    e("s_waitcnt vmcnt(21)")
    e(f"v_readfirstlane_b32 s{sT}, v20")
    for k in range(8): unpack(24 + 2 * k, 25 + 2 * k, 4 + k)
    e(f"s_add_u32 s{sT}, s{sT}, 1"); e(f"s_mul_i32 s{sT}, s{sT}, 0x9e3779b1")
    stamp(1)
    e("s_barrier")
    ln_stats(24, 84, 88, 89)
    for k in range(16):
        e(f"v_sub_f32 v{24+k}, v{24+k}, v88"); bf16r(24 + k, 24 + k); e(f"v_mul_f32 v{24+k}, v{24+k}, v89"); bf16r(24 + k, 24 + k)
    e("v_lshlrev_b32 v14, 16, v12")
    e("v_sub_f32 v15, v14, v88"); bf16r(15, 15); e("v_mul_f32 v15, v15, v89"); bf16r(15, 15)
    ln_stats(24, 84, 90, 91)
    e("v_sub_f32 v15, v15, v90"); bf16r(15, 15); e("v_mul_f32 v15, v15, v91"); bf16r(15, 15)
    e.nop(1)
    for i in range(4): e(f"v_readlane_b32 s{60+i}, v15, {16*i}")
    e.nop(2)
    for i in range(4): e(f"v_mov_b32 v{16+i}, s{60+i}")
    k1 = -2.0 * math.sqrt(2.0 / math.pi) * math.log2(math.e); k2 = k1 * 0.044715
    e(f"v_mov_b32 v92, {f32bits(k1):#x}"); e(f"v_mov_b32 v93, {f32bits(k2):#x}")
    e("v_mov_b32 v94, 1.0"); e("v_mov_b32 v95, 1.0")
    for i in range(4): e(f"v_mov_b32 v{96+i}, 0")
    e("s_waitcnt vmcnt(0)")
    stamp(2)
    for n in range(7):
        for dw in range(2):
            unpack(100, 101, 40 + 2 * n + dw); unpack(102, 103, 54 + 2 * n + dw); unpack(104, 105, 68 + 2 * n + dw)
            for f in range(2):
                sel = f"op_sel:[0,{f},{f}] op_sel_hi:[1,{f},{f}]"
                base = [108, 118]
                Hs = ["v[16:17]", "v[18:19]"]; accs = ["v[96:97]", "v[98:99]"]
                U = [f"v[{b}:{b+1}]" for b in base]; T2 = [f"v[{b+2}:{b+3}]" for b in base]; Z = [f"v[{b+4}:{b+5}]" for b in base]; G = [f"v[{b+6}:{b+7}]" for b in base]
                for d in range(2): e(f"v_pk_fma_f32 {U[d]}, {Hs[d]}, v[100:101], v[102:103] {sel}")
                for d in range(2): e(f"v_pk_mul_f32 {T2[d]}, {U[d]}, {U[d]}")
                for d in range(2): e(f"v_pk_fma_f32 {T2[d]}, {T2[d]}, v[92:93], v[92:93] op_sel:[0,1,0] op_sel_hi:[1,1,0]")
                for d in range(2): e(f"v_pk_mul_f32 {Z[d]}, {U[d]}, {T2[d]}")
                for d in range(2): e(f"v_pk_mul_f32 {G[d]}, {U[d]}, v[104:105] op_sel:[0,{f}] op_sel_hi:[1,{f}]")
                for d in range(2):
                    b_ = base[d]; e(f"v_exp_f32 v{b_+4}, v{b_+4}"); e(f"v_exp_f32 v{b_+5}, v{b_+5}")
                e.nop(1)
                for d in range(2): e(f"v_pk_add_f32 {Z[d]}, {Z[d]}, v[94:95]")
                for d in range(2):
                    b_ = base[d]; e(f"v_rcp_f32 v{b_+4}, v{b_+4}"); e(f"v_rcp_f32 v{b_+5}, v{b_+5}")
                e.nop(1)
                for d in range(2): e(f"v_pk_fma_f32 {accs[d]}, {G[d]}, {Z[d]}, {accs[d]}")
    stamp(3)
    e.nop(2)
    e("v_permlane32_swap_b32 v96, v98"); e("v_permlane32_swap_b32 v97, v99")
    e("v_add_f32 v96, v96, v98"); e("v_add_f32 v97, v97, v99"); e.nop(2)
    e("v_permlane16_swap_b32 v96, v97"); e("v_add_f32 v96, v96, v97")
    allreduce_row16(96, "v_add_f32")
    e("v_lshlrev_b32 v24, 2, v2"); e(f"v_add_u32 v24, {GP}, v24")
    e("s_cmp_eq_u32 s52, 0"); e("s_cbranch_scc1 L_final")
    e("ds_write_b32 v24, v96")
    e(f"ds_write_b32 v21, v22 offset:{F_G*4}")
    e("s_waitcnt lgkmcnt(0)")
    dump_stamps([(3,12,0)])
    e("s_endpgm")
    e.label("L_final")
    l = L("g"); e.label(l)
    e(f"ds_read_b32 v28, v21 offset:{F_G*4}"); e("ds_read_b32 v29, v24")
    spin_tick()
    e("s_waitcnt lgkmcnt(0)")
    e("v_cmp_ne_u32 vcc, 0, v28"); e(f"s_cbranch_vccz {l}")
    e("v_add_f32 v96, v96, v29")
    bf16r(96, 96)
    e("s_and_b32 s59, s59, 0xffff"); e("s_lshl_b32 s59, s59, 16")
    e("v_add_f32 v96, s59, v96"); bf16r(96, 96)
    e(f"v_mul_f32 v97, {f32bits(-math.log2(math.e)):#x}, v96"); e("v_exp_f32 v97, v97"); e.nop(1); e("v_add_f32 v97, 1.0, v97"); e("v_rcp_f32 v97, v97"); e.nop(1)
    e("v_mul_f32 v96, v96, v97"); bf16r(96, 96)
    e("v_lshlrev_b32 v24, 7, v0")
    e("s_lshl_b32 s56, s53, 13"); e("s_lshl_b32 s57, s54, 4"); e("s_add_u32 s56, s56, s57"); e(f"s_add_u32 s56, s56, {FB}")
    for k in range(4):
        e(f"s_lshr_b32 s{60+k}, s{sT}, {8*k}"); e(f"s_and_b32 s{60+k}, s{60+k}, 0xff")
    stamp(4)
    l = L("p3"); e.label(l)
    e(f"ds_read_b64 v[28:29], v21 offset:{F_PUB3*4}")
    spin_tick()
    e("s_sleep 1")
    e("s_waitcnt lgkmcnt(0)")
    e("v_and_b32 v28, v28, v29"); e("v_cmp_ne_u32 vcc, 0, v28"); e(f"s_cbranch_vccz {l}")
    stamp(5)
    l = L("e3"); e.label(l)
    e("buffer_load_dwordx4 v[28:31], v24, s[28:31], s56 offen sc1")
    spin_tick()
    e("s_waitcnt vmcnt(0)")
    for i in range(4): e(f"v_xor_b32 v{32+i}, s{60+i}, v{28+i}")
    e("v_or_b32 v32, v32, v33"); e("v_or_b32 v34, v34, v35"); e("v_or_b32 v32, v32, v34"); e("v_and_b32 v32, 0xff, v32")
    e("v_cmp_ne_u32 vcc, 0, v32"); e(f"s_cbranch_vccnz {l}")
    stamp(6)
    e("v_permlane32_swap_b32 v28, v30"); e("v_permlane32_swap_b32 v29, v31")
    e("v_add_f32 v28, v28, v30"); e("v_add_f32 v29, v29, v31"); e.nop(2)
    e("v_permlane16_swap_b32 v28, v29"); e("v_add_f32 v28, v28, v29")
    allreduce_row16(28, "v_add_f32")
    bf16r(28, 28)
    e("v_mul_f32 v28, v28, v96"); bf16r(28, 28)
    e("v_add_f32 v28, v28, v14")
    e("v_cvt_pk_bf16_f32 v28, v28, v28")
    srd(36, 24, 2048)
    e("v_lshlrev_b32 v24, 5, v2"); e("s_lshl_b32 s56, s55, 1")
    e("s_mov_b32 exec_lo, 0x00010001"); e("s_mov_b32 exec_hi, 0x00010001")
    e("buffer_store_short v28, v24, s[36:39], s56 offen")
    l = L("ne"); e("s_cmp_lg_u32 s2, 0"); e(f"s_cbranch_scc1 {l}")
    e("s_mov_b64 exec, 1")
    e("v_add_u32 v20, 1, v20"); e("v_mov_b32 v23, 0")
    e("buffer_store_dword v20, v23, s[28:31], 0 offen sc1")
    e.label(l)
    e("s_mov_b64 exec, -1")
    stamp(7)
    dump_stamps([(0,15,0),(3,12,0),(6,13,0),(7,14,0)])
    e("s_endpgm")
    e.label("L_abort")
    e("s_endpgm")
    e.label("L_exit")

    probs = check(a.lines)
    body = a.text()
    hdr = open("cdna_kernels/" + KN + ".s.ref").read().split("; Override launch")[0]
    out = hdr + f"; Override launch geometry by editing the next line.\n; @launch grid=(256,1,1) block=(512,1,1) lds={LDS_BYTES}\n"
    out += f""".amdgcn_target "amdgcn-amd-amdhsa--gfx950"
.text
.globl {KN}_kernel
.p2align 8
.type {KN}_kernel,@function
{KN}_kernel:
{body}
    s_endpgm
.section .rodata,"a"
.p2align 6
.amdhsa_kernel {KN}_kernel
  .amdhsa_next_free_vgpr 168
  .amdhsa_next_free_sgpr 96
  .amdhsa_accum_offset 168
  .amdhsa_group_segment_fixed_size 0
  .amdhsa_kernarg_size 104
  .amdhsa_user_sgpr_count 2
  .amdhsa_user_sgpr_kernarg_segment_ptr 1
  .amdhsa_system_sgpr_workgroup_id_x 1
.end_amdhsa_kernel
"""
    return out, probs

if __name__ == "__main__":
    opt = {}
    name = sys.argv[1]
    for kv in sys.argv[2:]:
        k, v = kv.split("="); opt[k] = int(v, 0)
    s, probs = gen(opt)
    open(name, "w").write(s)
    for p in probs: print("HAZARD:", p)
```

```python
import sys, math, struct
from asmlib import Asm, check
KN = "recurrent_scan__sliding_block_cached__mixer_token_mlp__decode"

def f32bits(x): return struct.unpack("<I", struct.pack("<f", x))[0]

DEF = dict(stamps=0, nt=1, win=8, winkv=12, pretouch=0, spinmax=1 << 20, prio=1, e1gate=1)

QB, LB, OB, FB, STB = 0x10000, 0x20000, 0x40000, 0x100000, 0x200000
WQ, KL, VL, WO = 0, 32768, 65536, 98304
QP = 131072; QF = QP + 1024; OP = QF + 4096; ML = OP + 8192; GP = ML + 128; FL = GP + 128
OF = FL + 128
LDS_BYTES = OF + 128
F_QP, F_QF, F_O, F_K, F_V, F_WO, F_OF, F_G, F_PUB3, F_T = 0, 4, 8, 12, 14, 16, 18, 19, 20, 22
KEY0 = 61440
TMUL = 0x9e3779b1
TINV = pow(TMUL, -1, 1 << 32)

def gen(opt):
    o = dict(DEF); o.update(opt)
    NT = " nt" if o["nt"] else ""
    a = Asm(); e = a
    uid = [0]
    def L(p):
        uid[0] += 1; return f"L_{p}_{uid[0]}"
    sT, sCNT = 50, 51
    DPP = "row_mask:0xf bank_mask:0xf"
    def srd(d, lo, size):
        e(f"s_mov_b32 s{d}, s{lo}"); e(f"s_and_b32 s{d+1}, s{lo+1}, 0xffff"); e(f"s_mov_b32 s{d+2}, {size}"); e(f"s_mov_b32 s{d+3}, 0x20000")
    def stamp(k):
        if o["stamps"]: e(f"s_memrealtime s[{80+2*k}:{81+2*k}]")
    def dump_stamps(dmap=None, cnts=None):
        if not o["stamps"]: return
        e("s_waitcnt lgkmcnt(0)")
        for (slot, sreg) in (cnts or []):
            e(f"s_mov_b32 s{80+2*slot}, s{sreg}"); e(f"s_mov_b32 s{81+2*slot}, 0")
        e("s_mov_b64 exec, -1")
        e("s_waitcnt vmcnt(0)")
        e("s_lshl_b32 s76, s2, 3"); e("s_add_u32 s76, s76, s3"); e("s_lshl_b32 s76, s76, 6"); e(f"s_add_u32 s76, s76, {STB}")
        for k in range(8):
            e(f"v_mov_b32 v{2*k+4}, s{80+2*k}"); e(f"v_mov_b32 v{2*k+5}, s{81+2*k}")
        e("v_mov_b32 v20, 0")
        e("s_mov_b64 exec, 1")
        for k in range(4):
            e(f"buffer_store_dwordx4 v[{4*k+4}:{4*k+7}], v20, s[28:31], s76 offen offset:{16*k}")
        e("s_waitcnt vmcnt(0)")
    def spin_tick():
        e(f"s_sub_u32 s{sCNT}, s{sCNT}, 1"); e("s_cbranch_scc1 L_abort")
    def and_flags(vt, n):
        if n == 2: e(f"v_and_b32 v{vt}, v{vt}, v{vt+1}")
        if n == 4:
            e(f"v_and_b32 v{vt}, v{vt}, v{vt+1}"); e(f"v_and_b32 v{vt+2}, v{vt+2}, v{vt+3}"); e(f"v_and_b32 v{vt}, v{vt}, v{vt+2}")
    def read_flags(first, n, vaddr, vt):
        if n == 1: e(f"ds_read_b32 v{vt}, v{vaddr} offset:{first*4}")
        elif n == 2: e(f"ds_read_b64 v[{vt}:{vt+1}], v{vaddr} offset:{first*4}")
        else: e(f"ds_read_b128 v[{vt}:{vt+3}], v{vaddr} offset:{first*4}")
    def wait_flags(first, n, vaddr, vt, extra=None, sleep=0):
        l = L("wf"); e.label(l)
        read_flags(first, n, vaddr, vt)
        if extra: extra()
        spin_tick()
        if sleep: e(f"s_sleep {sleep}")
        e("s_waitcnt lgkmcnt(0)")
        and_flags(vt, n)
        e(f"v_cmp_ne_u32 vcc, 0, v{vt}")
        e(f"s_cbranch_vccz {l}")
    def set_flag(idx, vaddr, vone):
        e(f"ds_write_b32 v{vaddr}, v{vone} offset:{idx*4}")
    def bf16r(dst, src):
        e(f"v_cvt_pk_bf16_f32 v{dst}, v{src}, v{src}"); e(f"v_lshlrev_b32 v{dst}, 16, v{dst}")
    def allreduce_row16(v, op, shs=(8, 4, 2, 1)):
        for sh in shs:
            e.nop(2); e(f"{op}_dpp v{v}, v{v}, v{v} row_ror:{sh} {DPP}")
    def allreduce_xrow(v, t, op):
        e(f"v_mov_b32 v{t}, v{v}"); e.nop(2); e(f"v_permlane32_swap_b32 v{v}, v{t}"); e(f"{op} v{v}, v{v}, v{t}")
        e(f"v_mov_b32 v{t}, v{v}"); e.nop(2); e(f"v_permlane16_swap_b32 v{v}, v{t}"); e(f"{op} v{v}, v{v}, v{t}")
    def ln_stats(xf, t0, vm, vrs):
        s, t = t0, t0 + 1
        e(f"v_add_f32 v{s}, v{xf}, v{xf+1}"); e(f"v_add_f32 v{t}, v{xf+2}, v{xf+3}")
        for k in range(4, 16, 2):
            e(f"v_add_f32 v{s}, v{s}, v{xf+k}"); e(f"v_add_f32 v{t}, v{t}, v{xf+k+1}")
        e(f"v_add_f32 v{s}, v{s}, v{t}")
        allreduce_row16(s, "v_add_f32"); allreduce_xrow(s, t, "v_add_f32")
        e(f"v_mul_f32 v{s}, {f32bits(1/1024):#x}, v{s}")
        e(f"v_sub_f32 v{t}, v{xf}, v{s}"); e(f"v_sub_f32 v{t0+3}, v{xf+1}, v{s}")
        e(f"v_mul_f32 v{t0+2}, v{t}, v{t}"); e(f"v_mul_f32 v{t0+4}, v{t0+3}, v{t0+3}")
        for k in range(2, 16, 2):
            e(f"v_sub_f32 v{t}, v{xf+k}, v{s}"); e(f"v_sub_f32 v{t0+3}, v{xf+k+1}, v{s}")
            e(f"v_fmac_f32 v{t0+2}, v{t}, v{t}"); e(f"v_fmac_f32 v{t0+4}, v{t0+3}, v{t0+3}")
        e(f"v_add_f32 v{t0+2}, v{t0+2}, v{t0+4}")
        allreduce_row16(t0 + 2, "v_add_f32"); allreduce_xrow(t0 + 2, t, "v_add_f32")
        e(f"v_mul_f32 v{t0+2}, {f32bits(1/1024):#x}, v{t0+2}")
        bf16r(vm, s)
        bf16r(t, t0 + 2)
        e(f"v_add_f32 v{t}, {f32bits(1e-5):#x}, v{t}")
        bf16r(t, t)
        e(f"v_sqrt_f32 v{t}, v{t}"); e.nop(1)
        bf16r(t, t)
        e(f"v_rcp_f32 v{vrs}, v{t}"); e.nop(1)
    def unpack(dlo, dhi, src):
        e(f"v_lshlrev_b32 v{dlo}, 16, v{src}"); e(f"v_and_b32 v{dhi}, 0xffff0000, v{src}")
    def normalize_pair(dst, src, vm, vrs, t):
        unpack(t, t + 1, src)
        e(f"v_sub_f32 v{t}, v{t}, v{vm}"); e(f"v_sub_f32 v{t+1}, v{t+1}, v{vm}")
        e(f"v_cvt_pk_bf16_f32 v{t}, v{t}, v{t+1}")
        e(f"v_and_b32 v{t+1}, 0xffff0000, v{t}"); e(f"v_lshlrev_b32 v{t}, 16, v{t}")
        e(f"v_mul_f32 v{t}, v{t}, v{vrs}"); e(f"v_mul_f32 v{t+1}, v{t+1}, v{vrs}")
        e(f"v_cvt_pk_bf16_f32 v{dst}, v{t}, v{t+1}")
    def tagbytes(s0):
        for k in range(4):
            e(f"s_lshr_b32 s{s0+k}, s{sT}, {8*k}"); e(f"s_and_b32 s{s0+k}, s{s0+k}, 0xff")
    def pipelined_poll(depth, issue, nloads, check_, success, cnt=None):
        end = L("pe"); top = L("pt"); succ = [L("ps") for _ in range(depth)]
        if cnt: e(f"s_mov_b32 s{cnt}, 0")
        for d in range(depth): issue(d)
        e.label(top)
        for d in range(depth):
            if cnt: e(f"s_add_u32 s{cnt}, s{cnt}, 1")
            check_(d, nloads * (depth - 1))
            e(f"s_cbranch_vccz {succ[d]}")
            spin_tick()
            issue(d)
        e(f"s_branch {top}")
        for d in range(depth):
            e.label(succ[d]); success(d)
            if d != depth - 1: e(f"s_branch {end}")
        e.label(end)

    def masked_poll(loads, cnt=None, pre=None):
        top = L("mp"); n = len(loads)
        for ld in loads: e(f"s_mov_b64 s[{ld['mask']}:{ld['mask']+1}], {ld.get('init', '-1')}")
        if cnt: e(f"s_mov_b32 s{cnt}, 0")
        e.label(top)
        if cnt: e(f"s_add_u32 s{cnt}, s{cnt}, 1")
        for ld in loads:
            sk = L("sk"); m = ld['mask']
            e(f"s_mov_b64 exec, s[{m}:{m+1}]"); e(f"s_cbranch_execz {sk}")
            ld['issue'](); e.label(sk)
        e("s_mov_b64 exec, -1")
        if pre: pre()
        spin_tick()
        e("s_waitcnt vmcnt(0)")
        e("s_mov_b64 s[66:67], 0")
        for ld in loads:
            sk = L("sc"); m = ld['mask']
            e(f"s_mov_b64 exec, s[{m}:{m+1}]"); e(f"s_cbranch_execz {sk}")
            ld['check']()
            if ld.get('done'):
                e(f"s_andn2_b64 exec, exec, vcc"); sk2 = L("sd"); e(f"s_cbranch_execz {sk2}"); ld['done'](); e.label(sk2)
            e(f"s_mov_b64 s[{m}:{m+1}], vcc"); e(f"s_or_b64 s[66:67], s[66:67], vcc")
            e.label(sk)
        e("s_mov_b64 exec, -1")
        e("s_cmp_lg_u64 s[66:67], 0"); e(f"s_cbranch_scc1 {top}")

    e("s_cmp_ge_u32 s2, 256"); e("s_cbranch_scc1 L_exit")
    stamp(0)
    e("s_load_dwordx16 s[4:19], s[0:1], 0")
    e("s_load_dwordx4 s[20:23], s[0:1], 64")
    e("s_load_dwordx2 s[24:25], s[0:1], 80")
    e("s_load_dwordx2 s[26:27], s[0:1], 96")
    e("v_lshrrev_b32 v1, 6, v0"); e("v_and_b32 v0, 63, v0")
    e("v_lshrrev_b32 v2, 4, v0"); e("v_and_b32 v3, 15, v0")
    e("v_readfirstlane_b32 s3, v1")
    e("s_and_b32 s48, s2, 7"); e("s_lshr_b32 s49, s2, 3")
    e(f"s_mov_b32 s{sCNT}, {o['spinmax']}")
    e(f"v_mov_b32 v21, {FL}"); e("v_mov_b32 v22, 1")
    l0 = L("nz"); e("s_cmp_lg_u32 s3, 4"); e(f"s_cbranch_scc1 {l0}")
    e("v_lshlrev_b32 v4, 2, v0"); e(f"v_add_u32 v4, {FL}, v4"); e("v_mov_b32 v5, 0")
    e("s_mov_b64 exec, 0xffffffff"); e("ds_write_b32 v4, v5"); e("s_mov_b64 exec, -1")
    e.label(l0)
    e("s_waitcnt lgkmcnt(0)")
    srd(28, 26, 268435456)
    srd(32, 4, 2048)
    e("s_cmp_ge_u32 s3, 6"); e("s_cbranch_scc1 L_bbranch")
    e("s_cmp_ge_u32 s3, 4"); e("s_cbranch_scc1 L_loader")

    if o["prio"]: e("s_setprio 3")
    srd(36, 10, 8388608)
    e("s_lshr_b32 s52, s2, 2"); e("s_and_b32 s53, s2, 3")
    e("v_lshlrev_b32 v23, 5, v0")
    e("buffer_load_dwordx4 v[4:7], v23, s[32:35], 0 offen")
    e("buffer_load_dwordx4 v[8:11], v23, s[32:35], 0 offen offset:16")
    e("s_lshl_b32 s54, s53, 9"); e("s_lshl_b32 s55, s3, 7"); e("s_add_u32 s54, s54, s55")
    e("v_lshlrev_b32 v24, 3, v2")
    for k in range(2):
        for rho in range(2):
            r = 12 + 4 * k + 2 * rho
            e(f"buffer_load_dwordx2 v[{r}:{r+1}], v24, s[32:35], s54 offen offset:{64*k+32*rho}")
    e("v_mov_b32 v23, 0")
    e("buffer_load_dword v20, v23, s[28:31], 0 offen sc1")
    e("v_lshrrev_b32 v24, 3, v0"); e("v_and_b32 v25, 7, v0")
    e("v_lshrrev_b32 v26, 1, v25"); e("v_lshrrev_b32 v27, 1, v24"); e("v_and_b32 v27, 3, v27"); e("v_xor_b32 v26, v26, v27")
    e("v_lshlrev_b32 v26, 1, v26"); e("v_and_b32 v25, 1, v25"); e("v_or_b32 v26, v26, v25"); e("v_lshlrev_b32 v26, 4, v26")
    e("v_lshlrev_b32 v24, 13, v24"); e("v_add_u32 v24, v24, v26")
    e("s_lshl_b32 s56, s53, 21"); e("s_lshl_b32 s57, s52, 7"); e("s_add_u32 s56, s56, s57"); e("s_lshl_b32 s57, s3, 19"); e("s_add_u32 s56, s56, s57")
    e("s_lshl_b32 s58, s3, 13")
    for n in range(8):
        e(f"s_add_u32 m0, s58, {WQ + n*1024}")
        e(f"s_add_u32 s57, s56, {n*8*8192}")
        e(f"buffer_load_dwordx4 v24, s[36:39], s57 offen{NT} lds")
    e("s_barrier")
    e("v_lshrrev_b32 v24, 2, v3"); e("v_and_b32 v25, 3, v3")
    e("v_lshlrev_b32 v26, 2, v2"); e("v_add_u32 v26, v26, v24")
    e("v_lshrrev_b32 v27, 1, v26"); e("v_and_b32 v27, 3, v27")
    e("v_lshlrev_b32 v26, 7, v26"); e("v_lshlrev_b32 v25, 3, v25"); e("v_add_u32 v26, v26, v25")
    e("v_add_u32 v26, s58, v26")
    e("v_lshlrev_b32 v27, 5, v27"); e("v_add_u32 v108, v26, v27")
    for u in range(1, 4): e(f"v_xor_b32 v{108+u}, {u<<5}, v108")
    e("v_lshrrev_b32 v24, 2, v3")
    for u in range(4):
        e(f"v_cmp_eq_u32 vcc, {u}, v24"); e.nop(2); e(f"v_cndmask_b32 v{112+u}, 0, -1, vcc")
    e("s_waitcnt vmcnt(8)")
    stamp(2)
    e(f"v_readfirstlane_b32 s{sT}, v20")
    for k in range(8): unpack(24 + 2 * k, 25 + 2 * k, 4 + k)
    e(f"s_add_u32 s{sT}, s{sT}, 1"); e(f"s_mul_i32 s{sT}, s{sT}, {TMUL:#x}")
    ln_stats(24, 98, 104, 105)
    for k in range(8): normalize_pair(12 + k, 12 + k, 104, 105, 100)
    for k in range(2):
        for u in range(4):
            for m in range(4): e(f"v_and_b32 v{40+16*k+4*u+m}, v{12+4*k+m}, v{112+u}")
    stamp(1)
    for k in range(2):
        e(f"s_waitcnt vmcnt({4 - 4*k})")
        if k == 1: stamp(3)
        for u in range(4):
            for rho in range(2):
                r = 72 + 16 * k + 4 * u + 2 * rho
                e(f"ds_read_b64_tr_b16 v[{r}:{r+1}], v{108+u} offset:{k*4096 + rho*2048}")
        for u in range(4):
            e(f"s_waitcnt lgkmcnt({2*(3-u)})")
            c = "0" if (k == 0 and u == 0) else "v[104:107]"
            e(f"v_mfma_f32_16x16x32_bf16 v[104:107], v[{40+16*k+4*u}:{43+16*k+4*u}], v[{72+16*k+4*u}:{75+16*k+4*u}], {c}")
    e("v_lshlrev_b32 v24, 2, v0"); e("s_lshl_b32 s57, s3, 8"); e(f"s_add_u32 s57, s57, {QP}"); e("v_add_u32 v24, s57, v24")
    e("s_lshl_b32 s57, s3, 2"); e("v_add_u32 v25, s57, v21")
    e.nop(4)
    e("ds_write_b32 v24, v104")
    e(f"ds_write_b32 v25, v22 offset:{F_QP*4}")
    lq = L("noq"); e("s_cmp_lg_u32 s3, 0"); e(f"s_cbranch_scc1 {lq}")
    e("v_lshrrev_b32 v26, 3, v3"); e("v_lshlrev_b32 v26, 5, v26"); e("v_and_b32 v27, 3, v3"); e("v_lshlrev_b32 v27, 3, v27"); e("v_add_u32 v26, v26, v27")
    e("v_lshrrev_b32 v27, 2, v3"); e("v_and_b32 v27, 1, v27"); e("v_lshlrev_b32 v27, 2, v27"); e("v_add_u32 v26, v26, v27")
    e("v_lshlrev_b32 v26, 2, v26"); e(f"v_add_u32 v26, {QP}, v26")
    e("s_lshr_b32 s57, s52, 1"); e("s_lshl_b32 s57, s57, 11"); e("s_and_b32 s58, s52, 1"); e("s_lshl_b32 s58, s58, 8"); e("s_add_u32 s57, s57, s58")
    e("s_lshl_b32 s58, s53, 9"); e("s_add_u32 s57, s57, s58"); e(f"s_add_u32 s57, s57, {QB}")
    csc = math.log2(math.e) / math.sqrt(128.0)
    e(f"s_mov_b32 s58, {f32bits(csc):#x}")
    e(f"v_mov_b32 v49, s{sT}"); e(f"v_mov_b32 v51, s{sT}"); e("v_lshlrev_b32 v27, 4, v0")
    wait_flags(F_QP, 4, 21, 28, extra=lambda: [e(f"ds_read_b128 v[{32+4*w}:{35+4*w}], v26 offset:{w*256}") for w in range(4)])
    for m in range(4):
        e(f"v_add_f32 v{32+m}, v{32+m}, v{36+m}"); e(f"v_add_f32 v{40+m}, v{40+m}, v{44+m}")
    for m in range(4): e(f"v_add_f32 v{32+m}, v{32+m}, v{40+m}")
    for m in range(4): e(f"v_mul_f32 v{32+m}, s58, v{32+m}")
    e("v_cvt_pk_bf16_f32 v48, v32, v33"); e("v_cvt_pk_bf16_f32 v50, v34, v35")
    e("s_mov_b64 exec, 0xffff")
    e("buffer_store_dwordx4 v[48:51], v27, s[28:31], s57 offen sc1")
    e("s_mov_b64 exec, -1")
    e.label(lq)
    stamp(5)
    e("s_lshr_b32 s52, s48, 1"); e("s_and_b32 s53, s48, 1"); e("s_and_b32 s54, s49, 1"); e("s_lshr_b32 s55, s49, 1")
    e("s_lshl_b32 s53, s53, 4"); e("s_add_u32 s55, s55, s53")
    e("s_lshl_b32 s52, s52, 3"); e("s_lshl_b32 s54, s54, 2"); e("s_add_u32 s52, s52, s54")
    e("v_lshrrev_b32 v23, 3, v0"); e("v_and_b32 v28, 7, v0")
    for i in range(2):
        e(f"v_add_u32 v29, {8*i}, v23")
        e("v_and_b32 v30, 3, v29"); e("v_lshlrev_b32 v30, 2, v30"); e("v_lshrrev_b32 v31, 2, v29"); e("v_add_u32 v30, v30, v31"); e("v_lshlrev_b32 v30, 9, v30")
        e("v_lshlrev_b32 v31, 4, v28"); e(f"v_add_u32 v{32+i}, v30, v31")
        e("v_and_b32 v30, 3, v28"); e("v_lshlrev_b32 v30, 4, v30"); e("v_add_u32 v30, v30, v29"); e("v_lshlrev_b32 v30, 4, v30")
        e("v_lshrrev_b32 v31, 2, v28"); e("v_lshlrev_b32 v31, 3, v31"); e("v_add_u32 v30, v30, v31")
        e("s_lshl_b32 s57, s3, 10"); e(f"s_add_u32 s57, s57, {QF}"); e(f"v_add_u32 v{34+i}, s57, v30")
    e("s_lshl_b32 s56, s52, 11"); e("s_lshl_b32 s57, s3, 7"); e("s_add_u32 s56, s56, s57"); e(f"s_add_u32 s56, s56, {QB}")
    e("v_lshlrev_b32 v27, 4, v0"); e(f"v_add_u32 v27, {QF}, v27")
    e("s_lshl_b32 s57, s3, 13"); e(f"s_add_u32 s57, s57, {KL}")
    e("v_lshlrev_b32 v28, 8, v3"); e("v_add_u32 v28, s57, v28")
    e("v_xor_b32 v29, v2, v3"); e("v_lshlrev_b32 v29, 4, v29"); e("v_add_u32 v108, v28, v29")
    for t in range(1, 4): e(f"v_xor_b32 v{108+t}, {t<<6}, v108")
    e("v_lshrrev_b32 v28, 2, v3"); e("v_lshlrev_b32 v29, 2, v2"); e("v_add_u32 v28, v28, v29")
    e("v_and_b32 v29, 7, v28"); e("v_lshlrev_b32 v29, 5, v29"); e("v_lshlrev_b32 v28, 8, v28"); e("v_add_u32 v28, v28, v29")
    e("v_and_b32 v29, 3, v3"); e("v_lshlrev_b32 v29, 3, v29"); e("v_add_u32 v28, v28, v29")
    e("s_lshl_b32 s57, s3, 13"); e(f"s_add_u32 s57, s57, {VL}"); e("v_add_u32 v116, s57, v28")
    for t in range(1, 8): e(f"v_xor_b32 v{116+t}, {t<<5}, v116")
    def kreads():
        for kt in range(2):
            for t in range(4):
                r = 40 + 16 * kt + 4 * t
                e(f"ds_read_b128 v[{r}:{r+3}], v{108+t} offset:{kt*4096}")
    if o["e1gate"]:
        wait_flags(F_K, 2, 21, 28); kreads()
    PB = 128
    def mk_e1(i):
        b = PB + 4 * i
        def issue(): e(f"buffer_load_dwordx4 v[{b}:{b+3}], v{32+i}, s[28:31], s56 offen sc1")
        def chk():
            e(f"v_xor_b32 v36, s{sT}, v{b+1}"); e(f"v_xor_b32 v37, s{sT}, v{b+3}"); e("v_or_b32 v36, v36, v37"); e("v_cmp_ne_u32 vcc, 0, v36")
        def done(): e(f"ds_write2_b32 v{34+i}, v{b}, v{b+2} offset0:0 offset1:1")
        return dict(issue=issue, check=chk, done=done, mask=70 + 2 * i)
    masked_poll([mk_e1(0), mk_e1(1)], cnt=68)
    e(f"ds_write_b32 v25, v22 offset:{F_QF*4}")
    stamp(6)
    if not o["e1gate"]:
        wait_flags(F_K, 2, 21, 28); kreads()
    wait_flags(F_QF, 4, 21, 28, extra=lambda: [e(f"ds_read_b128 v[{72+4*t}:{75+4*t}], v27 offset:{t*1024}") for t in range(4)])
    for t in range(4):
        for kt in range(2):
            c = "0" if t == 0 else f"v[{88+4*kt}:{91+4*kt}]"
            e(f"v_mfma_f32_16x16x32_bf16 v[{88+4*kt}:{91+4*kt}], v[{40+16*kt+4*t}:{43+16*kt+4*t}], v[{72+4*t}:{75+4*t}], {c}")
    VF = 160
    e(f"ds_read_b64 v[28:29], v21 offset:{F_V*4}")
    e("s_waitcnt lgkmcnt(0)")
    e("v_and_b32 v28, v28, v29"); e("v_cmp_ne_u32 vcc, 0, v28")
    e("s_mov_b32 s59, 0")
    lv = L("vlate"); e(f"s_cbranch_vccz {lv}")
    def vreads():
        for t in range(8):
            for rho in range(2):
                r = VF + 4 * t + 2 * rho
                e(f"ds_read_b64_tr_b16 v[{r}:{r+1}], v{116+t} offset:{rho*4096}")
    vreads(); e("s_mov_b32 s59, 1")
    e.label(lv)
    S = list(range(88, 96))
    e.nop(2)
    for s_ in S: e(f"v_add_f32_dpp v{s_+8}, v{s_}, v{s_} row_ror:4 {DPP}")
    for s_ in S: e(f"v_add_f32_dpp v{s_}, v{s_+8}, v{s_+8} row_ror:8 {DPP}")
    e("v_max3_f32 v96, v88, v89, v90"); e("v_max3_f32 v97, v91, v92, v93"); e("v_max3_f32 v96, v96, v94, v95"); e("v_max_f32 v96, v96, v97")
    allreduce_xrow(96, 97, "v_max_f32")
    for s_ in S: e(f"v_sub_f32 v{s_}, v{s_}, v96")
    for s_ in S: e(f"v_exp_f32 v{s_}, v{s_}")
    e.nop(1)
    for m in range(4): e(f"v_cvt_pk_bf16_f32 v{100+m}, v{88+2*m}, v{89+2*m}")
    for u in range(4):
        for m in range(4): e(f"v_and_b32 v{72+4*u+m}, v{100+m}, v{112+u}")
    for m in range(4): e(f"v_mov_b32 v{88+m}, 0x3f803f80")
    lw = L("vok"); e("s_cmp_lg_u32 s59, 0"); e(f"s_cbranch_scc1 {lw}")
    wait_flags(F_V, 2, 21, 28); vreads()
    e.label(lw)
    e("s_waitcnt lgkmcnt(0)")
    first = [True, True]
    for t in range(8):
        ee = (t >> 1) & 1; u = 2 * (t >> 2) + (t & 1)
        c = "0" if first[ee] else f"v[{104+4*ee}:{107+4*ee}]"; first[ee] = False
        e(f"v_mfma_f32_16x16x32_bf16 v[{104+4*ee}:{107+4*ee}], v[{VF+4*t}:{VF+4*t+3}], v[{72+4*u}:{75+4*u}], {c}")
    e("v_mfma_f32_16x16x32_bf16 v[92:95], v[88:91], v[100:103], 0")
    e("v_lshlrev_b32 v24, 4, v0"); e("s_lshl_b32 s57, s3, 11"); e(f"s_add_u32 s57, s57, {OP}"); e("v_add_u32 v24, s57, v24")
    e("v_lshlrev_b32 v26, 5, v3"); e("s_lshl_b32 s57, s3, 3"); e(f"s_add_u32 s57, s57, {ML}"); e("v_add_u32 v26, s57, v26")
    e.nop(4)
    e("ds_write_b128 v24, v[104:107]")
    e("ds_write_b128 v24, v[108:111] offset:1024")
    e("v_mov_b32 v97, v92")
    e("s_mov_b64 exec, 0xf")
    e("ds_write_b64 v26, v[96:97]")
    e("s_mov_b64 exec, -1")
    e(f"ds_write_b32 v25, v22 offset:{F_O*4}")
    stamp(7)
    e("s_cmp_ge_u32 s3, 2"); e("s_cbranch_scc1 L_gemv")
    e("v_lshlrev_b32 v24, 4, v0"); e("s_lshl_b32 s57, s3, 10"); e(f"s_add_u32 s57, s57, {OP}"); e("v_add_u32 v24, s57, v24")
    e("v_and_b32 v26, 3, v3"); e("v_lshlrev_b32 v26, 5, v26"); e(f"v_add_u32 v26, {ML}, v26")
    e("v_and_b32 v27, 3, v3"); e("v_lshlrev_b32 v27, 14, v27"); e("v_lshrrev_b32 v28, 3, v3"); e("v_lshlrev_b32 v28, 13, v28"); e("v_add_u32 v27, v27, v28")
    e("v_lshrrev_b32 v28, 2, v3"); e("v_and_b32 v28, 1, v28"); e("v_lshlrev_b32 v28, 2, v28"); e("v_add_u32 v28, v28, v2"); e("v_lshlrev_b32 v28, 4, v28"); e("v_add_u32 v27, v27, v28")
    e("s_lshl_b32 s56, s52, 14"); e("s_lshl_b32 s57, s55, 8"); e("s_add_u32 s56, s56, s57"); e("s_lshl_b32 s57, s3, 7"); e("s_add_u32 s56, s56, s57"); e(f"s_add_u32 s56, s56, {OB}")
    tagbytes(60)
    e("s_mov_b32 s64, 0x07060500")
    for m in range(4): e(f"v_mov_b32 v{64+m}, s{60+m}")
    e("s_lshr_b32 s57, s52, 2"); e("s_lshl_b32 s57, s57, 5"); e("s_add_u32 s57, s57, s55"); e("s_lshl_b32 s57, s57, 7"); e(f"s_add_u32 s57, s57, {LB}")
    e(f"v_mov_b32 v61, s{sT}"); e("v_lshlrev_b32 v62, 3, v0")
    def mg_extra():
        for w in range(4): e(f"ds_read_b128 v[{32+4*w}:{35+4*w}], v24 offset:{w*2048}")
        e("ds_read_b128 v[48:51], v26"); e("ds_read_b128 v[52:55], v26 offset:16")
    wait_flags(F_O, 4, 21, 28, extra=mg_extra)
    e("v_max3_f32 v56, v48, v50, v52"); e("v_max_f32 v56, v56, v54")
    for w in range(4): e(f"v_sub_f32 v{48+2*w}, v{48+2*w}, v56")
    for w in range(4): e(f"v_exp_f32 v{48+2*w}, v{48+2*w}")
    e.nop(1)
    e("v_mul_f32 v57, v48, v49")
    for w in range(1, 4): e(f"v_fmac_f32 v57, v{48+2*w}, v{49+2*w}")
    e("v_rcp_f32 v58, v57"); e("v_log_f32 v59, v57")
    for m in range(4): e(f"v_mul_f32 v{32+m}, v{32+m}, v48")
    for w in range(1, 4):
        for m in range(4): e(f"v_fmac_f32 v{32+m}, v{32+4*w+m}, v{48+2*w}")
    e("v_add_f32 v60, v56, v59")
    for m in range(4): e(f"v_mul_f32 v{32+m}, v{32+m}, v58")
    for m in range(4): e(f"v_perm_b32 v{32+m}, v{32+m}, v{64+m}, s64")
    e("buffer_store_dwordx4 v[32:35], v27, s[28:31], s56 offen sc1")
    l = L("nolse"); e("s_cmp_lg_u32 s3, 0"); e(f"s_cbranch_scc1 {l}")
    e("s_mov_b64 exec, 0xf")
    e("buffer_store_dwordx2 v[60:61], v62, s[28:31], s57 offen sc1")
    e("s_mov_b64 exec, -1")
    e.label(l)
    if o["stamps"]: e("s_memrealtime s[80:81]")
    dump_stamps(cnts=[(4, 68)])
    e("s_endpgm")

    e.label("L_gemv")
    e("s_lshr_b32 s52, s49, 2"); e("s_lshl_b32 s52, s52, 3"); e("s_add_u32 s52, s52, s48")
    e("s_and_b32 s53, s49, 3"); e("s_sub_u32 s54, s3, 2")
    e("v_lshrrev_b32 v4, 2, v3"); e("v_and_b32 v5, 3, v3")
    e("v_lshlrev_b32 v6, 2, v4"); e("v_add_u32 v6, v6, v2"); e("v_lshlrev_b32 v6, 9, v6")
    e("v_and_b32 v7, 1, v2"); e("v_lshlrev_b32 v7, 2, v7"); e("v_add_u32 v7, v7, v4"); e("v_lshlrev_b32 v7, 5, v7")
    e("v_lshlrev_b32 v5, 3, v5"); e("v_add3_u32 v6, v6, v7, v5")
    e("s_lshl_b32 s58, s54, 8"); e(f"s_add_u32 s58, s58, {WO}"); e("v_add_u32 v116, s58, v6")
    for u in range(1, 8): e(f"v_xor_b32 v{116+u}, {u<<5}, v116")
    tagbytes(60)
    e("s_mov_b32 s64, 0x07060500"); e("s_mov_b32 s59, 0")
    e("v_lshlrev_b32 v36, 5, v2"); e(f"v_add_u32 v36, {OF}, v36")
    def woreads():
        for u in range(8):
            for tp in range(4):
                r = 40 + 8 * u + 2 * tp
                e(f"ds_read_b64_tr_b16 v[{r}:{r+1}], v{116+u} offset:{tp*8192}")
    e("s_cmp_eq_u32 s3, 3"); e("s_cbranch_scc1 L_gemv3")
    e("v_lshlrev_b32 v24, 4, v0"); e("v_add_u32 v25, 4096, v24")
    e("s_lshl_b32 s56, s52, 13"); e(f"s_add_u32 s56, s56, {OB}")
    e("v_and_b32 v26, 7, v3"); e("v_lshlrev_b32 v26, 2, v26"); e("v_add_u32 v26, v26, v2"); e("v_lshlrev_b32 v26, 7, v26")
    e("s_lshr_b32 s57, s52, 3"); e("s_lshl_b32 s57, s57, 12"); e("s_lshr_b32 s58, s52, 1"); e("s_and_b32 s58, s58, 3"); e("s_lshl_b32 s58, s58, 3")
    e("s_add_u32 s57, s57, s58"); e(f"s_add_u32 s57, s57, {LB}")
    B2 = 128
    def mk_lse():
        def issue(): e(f"buffer_load_dwordx2 v[{B2}:{B2+1}], v26, s[28:31], s57 offen sc1")
        def chk(): e(f"v_cmp_ne_u32 vcc, s{sT}, v{B2+1}")
        return dict(issue=issue, check=chk, mask=70, init="0x00ff00ff00ff00ff" if False else "-1")
    def mk_dat(n):
        b = B2 + 4 + 4 * n
        def issue(): e(f"buffer_load_dwordx4 v[{b}:{b+3}], v{24 if n < 4 else 25}, s[28:31], s56 offen offset:{(n%4)*1024} sc1")
        def chk():
            e(f"v_xor_b32 v4, s60, v{b}"); e(f"v_bitop3_b32 v4, v4, v{b+1}, s61 bitop3:0xf6"); e(f"v_bitop3_b32 v4, v4, v{b+2}, s62 bitop3:0xf6")
            e(f"v_bitop3_b32 v4, v4, v{b+3}, s63 bitop3:0xf6"); e("v_and_b32 v4, 0xff, v4"); e("v_cmp_ne_u32 vcc, 0, v4")
        return dict(issue=issue, check=chk, mask=[72, 74, 76, 78, 40, 42, 44, 46][n])
    def wo_try():
        lskip = L("wo"); e("s_cmp_lg_u32 s59, 0"); e(f"s_cbranch_scc1 {lskip}")
        e(f"ds_read_b64 v[28:29], v21 offset:{F_WO*4}"); e("s_waitcnt lgkmcnt(0)")
        e("v_and_b32 v28, v28, v29"); e("v_cmp_ne_u32 vcc, 0, v28"); e(f"s_cbranch_vccz {lskip}")
        woreads(); e("s_mov_b32 s59, 1")
        e.label(lskip)
    masked_poll([mk_lse()] + [mk_dat(n) for n in range(8)], cnt=69, pre=wo_try)
    if o["stamps"]: e("s_memrealtime s[84:85]")
    b = B2
    e(f"v_mov_b32 v7, v{b}")
    allreduce_row16(7, "v_max_f32", (1, 2, 4)); allreduce_xrow(7, 8, "v_max_f32")
    e(f"v_sub_f32 v7, v{b}, v7"); e("v_exp_f32 v7, v7"); e.nop(1); e("v_mov_b32 v9, v7")
    allreduce_row16(9, "v_add_f32", (1, 2, 4)); allreduce_xrow(9, 8, "v_add_f32")
    e("v_rcp_f32 v9, v9"); e.nop(1); e("v_mul_f32 v7, v7, v9"); e.nop(2)
    for n in range(8):
        for i in range(4):
            op = "v_mul_f32_dpp" if n == 0 else "v_fmac_f32_dpp"
            e(f"{op} v{12+i}, v7, v{b+4+4*n+i} row_newbcast:{n} {DPP}")
    e.nop(2)
    e("v_permlane32_swap_b32 v12, v14"); e("v_permlane32_swap_b32 v13, v15")
    e("v_add_f32 v12, v12, v14"); e("v_add_f32 v13, v13, v15"); e.nop(2)
    e("v_permlane16_swap_b32 v12, v13"); e("v_add_f32 v12, v12, v13"); e.nop(2)
    e(f"v_mov_b32_dpp v13, v12 quad_perm:[1,0,3,2] {DPP}")
    e("v_cvt_pk_bf16_f32 v12, v12, v13"); e.nop(2)
    for m in range(8): e(f"v_mov_b32_dpp v{28+m}, v12 row_newbcast:{2*m} {DPP}")
    e("v_lshlrev_b32 v4, 1, v3"); e("v_add_u32 v4, v4, v36")
    e("s_mov_b32 exec_lo, 0x55555555"); e("s_mov_b32 exec_hi, 0x55555555")
    e("ds_write_b32 v4, v12")
    e("s_mov_b64 exec, -1")
    set_flag(F_OF, 21, 22)
    e("s_branch L_gemvc")
    e.label("L_gemv3")
    wait_flags(F_WO, 2, 21, 28); woreads(); e("s_mov_b32 s59, 1")
    wait_flags(F_OF, 1, 21, 4, extra=lambda: (e("ds_read_b128 v[28:31], v36"), e("ds_read_b128 v[32:35], v36 offset:16")))
    if o["stamps"]: e("s_memrealtime s[84:85]")
    e.label("L_gemvc")
    lw = L("wook"); e("s_cmp_lg_u32 s59, 0"); e(f"s_cbranch_scc1 {lw}")
    wait_flags(F_WO, 2, 21, 4); woreads()
    e.label(lw)
    if o["stamps"]: e("s_memrealtime s[82:83]")
    e("v_lshlrev_b32 v24, 1, v2"); e("v_lshrrev_b32 v25, 3, v3"); e("v_add_u32 v24, v24, v25"); e("v_lshlrev_b32 v24, 13, v24")
    e("v_and_b32 v25, 7, v3"); e("v_lshlrev_b32 v25, 4, v25"); e("v_add_u32 v24, v24, v25")
    e("s_lshl_b32 s56, s53, 3"); e("s_lshl_b32 s57, s54, 2"); e("s_add_u32 s56, s56, s57"); e("s_lshl_b32 s56, s56, 13")
    e("s_lshl_b32 s57, s52, 7"); e("s_add_u32 s56, s56, s57"); e(f"s_add_u32 s56, s56, {FB}")
    e("v_and_b32 v25, 1, v2"); e("v_cmp_eq_u32 vcc, 1, v25")
    for k in range(4): e(f"v_mov_b32 v{8+k}, s{60+k}")
    e("s_waitcnt lgkmcnt(0)")
    AC = 128
    for k in range(2):
        for u in range(8):
            c = "0" if k == 0 else f"v[{AC+4*u}:{AC+4*u+3}]"
            e(f"v_mfma_f32_16x16x32_bf16 v[{AC+4*u}:{AC+4*u+3}], v[{28+4*k}:{31+4*k}], v[{40+8*u+4*k}:{43+8*u+4*k}], {c}")
    e.nop(5)
    for i in range(4): e(f"v_cndmask_b32 v{4+i}, v{AC+4*i}, v{AC+4*(4+i)}, vcc")
    for i in range(4): e(f"v_perm_b32 v{4+i}, v{4+i}, v{8+i}, s64")
    e("s_mov_b64 exec, 0xffffffff")
    e("buffer_store_dwordx4 v[4:7], v24, s[28:31], s56 offen sc1")
    e("s_mov_b64 exec, -1")
    e("s_lshl_b32 s57, s54, 2"); e("v_add_u32 v25, s57, v21"); e(f"v_mov_b32 v26, s{sT}")
    e(f"ds_write_b32 v21, v26 offset:{F_T*4}")
    e(f"ds_write_b32 v25, v22 offset:{F_PUB3*4}")
    if o["stamps"]: e("s_memrealtime s[86:87]")
    e("s_waitcnt lgkmcnt(0)")
    dump_stamps(cnts=[(4, 68), (5, 69)])
    e("s_endpgm")
    VMAX = AC + 32

    e.label("L_loader")
    if o["prio"]: e("s_setprio 2")
    srd(36, 6, 67108864); srd(40, 8, 67108864); srd(44, 12, 8388608)
    e("s_sub_u32 s52, s3, 4")
    if o["pretouch"]:
        lp = L("pt1"); lq2 = L("pt2")
        e("v_lshlrev_b32 v24, 4, v0"); e("v_add_u32 v25, 4096, v24")
        e("s_cmp_lg_u32 s52, 0"); e(f"s_cbranch_scc1 {lp}")
        e("s_lshr_b32 s60, s48, 1"); e("s_lshl_b32 s60, s60, 3"); e("s_and_b32 s61, s49, 1"); e("s_lshl_b32 s61, s61, 2"); e("s_add_u32 s60, s60, s61")
        e("s_lshl_b32 s60, s60, 11"); e(f"s_add_u32 s60, s60, {QB}")
        for n in range(8): e(f"buffer_load_dwordx4 v[{28+4*n}:{31+4*n}], v{24 if n < 4 else 25}, s[28:31], s60 offen offset:{(n%4)*1024} sc1")
        e("s_lshr_b32 s60, s49, 3"); e("s_lshl_b32 s60, s60, 3"); e("s_add_u32 s60, s60, s48"); e("s_lshl_b32 s60, s60, 13"); e(f"s_add_u32 s60, s60, {FB}")
        e("v_lshlrev_b32 v24, 7, v0")
        e("buffer_load_dword v60, v24, s[28:31], s60 offen sc1")
        e(f"s_branch {lq2}")
        e.label(lp)
        e("s_lshr_b32 s60, s49, 2"); e("s_lshl_b32 s60, s60, 3"); e("s_add_u32 s60, s60, s48")
        e("s_lshl_b32 s61, s60, 13"); e(f"s_add_u32 s61, s61, {OB}")
        for n in range(8): e(f"buffer_load_dwordx4 v[{28+4*n}:{31+4*n}], v{24 if n < 4 else 25}, s[28:31], s61 offen offset:{(n%4)*1024} sc1")
        e("s_lshr_b32 s61, s60, 3"); e("s_lshl_b32 s61, s61, 12"); e(f"s_add_u32 s61, s61, {LB}")
        e("v_and_b32 v24, 31, v0"); e("v_lshlrev_b32 v24, 7, v24")
        e("buffer_load_dword v60, v24, s[28:31], s61 offen sc1")
        e.label(lq2)
    e("s_lshr_b32 s53, s48, 1"); e("s_lshl_b32 s53, s53, 24"); e("s_and_b32 s54, s48, 1"); e("s_lshl_b32 s54, s54, 4"); e("s_lshr_b32 s55, s49, 1"); e("s_add_u32 s54, s54, s55")
    e("s_lshl_b32 s54, s54, 15"); e("s_add_u32 s53, s53, s54"); e(f"s_add_u32 s53, s53, {KEY0*256}")
    e("s_lshl_b32 s54, s52, 14"); e("s_add_u32 s53, s53, s54")
    e("s_lshr_b32 s55, s49, 2"); e("s_lshl_b32 s55, s55, 3"); e("s_add_u32 s55, s55, s48"); e("s_lshl_b32 s55, s55, 17")
    e("s_and_b32 s56, s49, 3"); e("s_lshl_b32 s56, s56, 9"); e("s_add_u32 s55, s55, s56")
    e("s_lshl_b32 s56, s52, 16"); e("s_add_u32 s55, s55, s56")
    e("s_lshl_b32 s57, s52, 14")
    for m in range(4):
        e(f"v_add_u32 v4, {4*m}, v2"); e("v_xor_b32 v4, v4, v3"); e("v_lshlrev_b32 v4, 4, v4"); e("v_lshlrev_b32 v5, 8, v2"); e(f"v_add_u32 v{8+m}, v4, v5")
    for m in range(2):
        e(f"v_add_u32 v4, {4*m}, v2"); e("v_lshrrev_b32 v5, 1, v3"); e("v_xor_b32 v4, v4, v5"); e("v_lshlrev_b32 v4, 1, v4"); e("v_and_b32 v5, 1, v3"); e("v_or_b32 v4, v4, v5")
        e("v_lshlrev_b32 v4, 4, v4"); e("v_lshlrev_b32 v5, 8, v2"); e(f"v_add_u32 v{12+m}, v4, v5")
    e("v_lshrrev_b32 v6, 5, v0"); e("v_and_b32 v7, 31, v0")
    for m in range(4):
        e("v_lshlrev_b32 v4, 2, v6"); e(f"v_add_u32 v4, {m}, v4"); e("v_lshrrev_b32 v5, 1, v7"); e("v_xor_b32 v4, v4, v5"); e("v_lshlrev_b32 v4, 1, v4")
        e("v_and_b32 v5, 1, v7"); e("v_or_b32 v4, v4, v5"); e("v_lshlrev_b32 v4, 4, v4"); e("v_lshlrev_b32 v5, 11, v6"); e(f"v_add_u32 v{16+m}, v4, v5")
    e("s_lshl_b32 s58, s52, 2"); e("v_add_u32 v20, s58, v21")
    stamp(1)
    e("s_barrier")
    stamp(2)
    W = o["win"]; WKV = o["winkv"]
    seq = [("K", m) for m in range(16)] + [("V", m) for m in range(16)] + [("W", m) for m in range(16)]
    st = dict(landed=-1)
    def land(upto):
        for x in range(st["landed"] + 1, upto + 1):
            if x == 15: set_flag(F_K, 20, 22); stamp(3)
            if x == 31: set_flag(F_V, 20, 22); stamp(4)
        st["landed"] = max(st["landed"], upto)
    for i, (kind, m) in enumerate(seq):
        w_ = WKV if i < 32 else W
        if i - st["landed"] - 1 > w_ - 1:
            e(f"s_waitcnt vmcnt({w_-1})"); land(i - w_)
        if kind == "K":
            e(f"s_add_u32 m0, s57, {KL + m*1024}"); e(f"s_add_u32 s58, s53, {m*1024}")
            e(f"buffer_load_dwordx4 v{8 + (m & 3)}, s[36:39], s58 offen{NT} lds")
        elif kind == "V":
            e(f"s_add_u32 m0, s57, {VL + m*1024}"); e(f"s_add_u32 s58, s53, {m*1024}")
            e(f"buffer_load_dwordx4 v{12 + (m & 1)}, s[40:43], s58 offen{NT} lds")
        else:
            e(f"s_add_u32 m0, s57, {WO + m*1024}"); e(f"s_add_u32 s58, s55, {m*4096}")
            e(f"buffer_load_dwordx4 v{16 + ((m >> 1) & 3)}, s[44:47], s58 offen{NT} lds")
    for x in (15, 31):
        if st["landed"] < x:
            e(f"s_waitcnt vmcnt({47-x})"); land(x)
    e("s_waitcnt vmcnt(0)"); set_flag(F_WO, 20, 22); stamp(5)
    e("s_waitcnt lgkmcnt(0)")
    dump_stamps()
    e("s_endpgm")

    e.label("L_bbranch")
    srd(36, 16, 7168); srd(40, 18, 7168); srd(44, 20, 7168)
    e("s_sub_u32 s52, s3, 6")
    e("s_lshr_b32 s53, s49, 3"); e("s_lshl_b32 s53, s53, 3"); e("s_add_u32 s53, s53, s48")
    e("s_and_b32 s54, s49, 7")
    e("s_lshr_b32 s55, s53, 1"); e("s_lshl_b32 s55, s55, 6"); e("s_and_b32 s56, s53, 1"); e("s_lshl_b32 s56, s56, 3"); e("s_add_u32 s55, s55, s56"); e("s_add_u32 s55, s55, s54")
    e("v_lshlrev_b32 v23, 5, v0")
    e("v_lshlrev_b32 v24, 5, v2"); e("s_lshl_b32 s56, s55, 1")
    e("s_load_dword s59, s[22:23], 0")
    e("s_barrier")
    e("buffer_load_dwordx4 v[4:7], v23, s[32:35], 0 offen")
    e("buffer_load_dwordx4 v[8:11], v23, s[32:35], 0 offen offset:16")
    e("buffer_load_ushort v12, v24, s[32:35], s56 offen")
    e("v_lshlrev_b32 v23, 3, v0"); e("s_lshl_b32 s57, s52, 9"); e("s_add_u32 s58, s57, 4096")
    for base, sr in ((40, "s[36:39]"), (54, "s[40:43]"), (68, "s[44:47]")):
        for n in range(7):
            so = "s57" if n < 4 else "s58"
            e(f"buffer_load_dwordx2 v[{base+2*n}:{base+2*n+1}], v23, {sr}, {so} offen offset:{(n%4)*1024}")
    e("s_waitcnt vmcnt(21)")
    stamp(1)
    for k in range(8): unpack(24 + 2 * k, 25 + 2 * k, 4 + k)
    ln_stats(24, 82, 88, 89)
    for k in range(16):
        e(f"v_sub_f32 v{24+k}, v{24+k}, v88"); bf16r(24 + k, 24 + k); e(f"v_mul_f32 v{24+k}, v{24+k}, v89"); bf16r(24 + k, 24 + k)
    e("v_lshlrev_b32 v14, 16, v12")
    e("v_sub_f32 v15, v14, v88"); bf16r(15, 15); e("v_mul_f32 v15, v15, v89"); bf16r(15, 15)
    ln_stats(24, 82, 90, 91)
    e("v_sub_f32 v15, v15, v90"); bf16r(15, 15); e("v_mul_f32 v15, v15, v91"); bf16r(15, 15)
    e.nop(1)
    for i in range(4): e(f"v_readlane_b32 s{60+i}, v15, {16*i}")
    e.nop(2)
    for i in range(4): e(f"v_mov_b32 v{16+i}, s{60+i}")
    k1 = -2.0 * math.sqrt(2.0 / math.pi) * math.log2(math.e); k2 = k1 * 0.044715
    e(f"v_mov_b32 v92, {f32bits(k1):#x}"); e(f"v_mov_b32 v93, {f32bits(k2):#x}")
    e("v_mov_b32 v94, 1.0"); e("v_mov_b32 v95, 1.0")
    for i in range(4): e(f"v_mov_b32 v{96+i}, 0")
    e("s_waitcnt vmcnt(0)")
    stamp(2)
    for n in range(7):
        for dw in range(2):
            unpack(100, 101, 40 + 2 * n + dw); unpack(102, 103, 54 + 2 * n + dw); unpack(104, 105, 68 + 2 * n + dw)
            for f in range(2):
                sel = f"op_sel:[0,{f},{f}] op_sel_hi:[1,{f},{f}]"
                base = [108, 118]
                Hs = ["v[16:17]", "v[18:19]"]; accs = ["v[96:97]", "v[98:99]"]
                U = [f"v[{b}:{b+1}]" for b in base]; T2 = [f"v[{b+2}:{b+3}]" for b in base]; Z = [f"v[{b+4}:{b+5}]" for b in base]; G = [f"v[{b+6}:{b+7}]" for b in base]
                for d in range(2): e(f"v_pk_fma_f32 {U[d]}, {Hs[d]}, v[100:101], v[102:103] {sel}")
                for d in range(2): e(f"v_pk_mul_f32 {T2[d]}, {U[d]}, {U[d]}")
                for d in range(2): e(f"v_pk_fma_f32 {T2[d]}, {T2[d]}, v[92:93], v[92:93] op_sel:[0,1,0] op_sel_hi:[1,1,0]")
                for d in range(2): e(f"v_pk_mul_f32 {Z[d]}, {U[d]}, {T2[d]}")
                for d in range(2): e(f"v_pk_mul_f32 {G[d]}, {U[d]}, v[104:105] op_sel:[0,{f}] op_sel_hi:[1,{f}]")
                for d in range(2):
                    b_ = base[d]; e(f"v_exp_f32 v{b_+4}, v{b_+4}"); e(f"v_exp_f32 v{b_+5}, v{b_+5}")
                e.nop(1)
                for d in range(2): e(f"v_pk_add_f32 {Z[d]}, {Z[d]}, v[94:95]")
                for d in range(2):
                    b_ = base[d]; e(f"v_rcp_f32 v{b_+4}, v{b_+4}"); e(f"v_rcp_f32 v{b_+5}, v{b_+5}")
                e.nop(1)
                for d in range(2): e(f"v_pk_fma_f32 {accs[d]}, {G[d]}, {Z[d]}, {accs[d]}")
    stamp(3)
    e.nop(2)
    e("v_permlane32_swap_b32 v96, v98"); e("v_permlane32_swap_b32 v97, v99")
    e("v_add_f32 v96, v96, v98"); e("v_add_f32 v97, v97, v99"); e.nop(2)
    e("v_permlane16_swap_b32 v96, v97"); e("v_add_f32 v96, v96, v97")
    allreduce_row16(96, "v_add_f32")
    e("v_lshlrev_b32 v24, 2, v2"); e(f"v_add_u32 v24, {GP}, v24")
    e("s_cmp_eq_u32 s52, 0"); e("s_cbranch_scc1 L_final")
    e("ds_write_b32 v24, v96")
    set_flag(F_G, 21, 22)
    e("s_waitcnt lgkmcnt(0)")
    dump_stamps()
    e("s_endpgm")
    e.label("L_final")
    wait_flags(F_G, 1, 21, 28, extra=lambda: e("ds_read_b32 v29, v24"))
    e("v_add_f32 v96, v96, v29")
    bf16r(96, 96)
    e("s_and_b32 s59, s59, 0xffff"); e("s_lshl_b32 s59, s59, 16")
    e("v_add_f32 v96, s59, v96"); bf16r(96, 96)
    e(f"v_mul_f32 v97, {f32bits(-math.log2(math.e)):#x}, v96"); e("v_exp_f32 v97, v97"); e.nop(1); e("v_add_f32 v97, 1.0, v97"); e("v_rcp_f32 v97, v97"); e.nop(1)
    e("v_mul_f32 v96, v96, v97"); bf16r(96, 96)
    e("v_lshlrev_b32 v24, 7, v0")
    e("s_lshl_b32 s56, s53, 13"); e("s_lshl_b32 s57, s54, 4"); e("s_add_u32 s56, s56, s57"); e(f"s_add_u32 s56, s56, {FB}")
    srd(36, 24, 2048)
    e("v_lshlrev_b32 v25, 5, v2"); e("s_lshl_b32 s55, s55, 1")
    stamp(4)
    wait_flags(F_PUB3, 2, 21, 28, extra=lambda: e(f"ds_read_b32 v30, v21 offset:{F_T*4}"), sleep=1)
    e(f"v_readfirstlane_b32 s{sT}, v30")
    stamp(5)
    if o["prio"]: e("s_setprio 3")
    tagbytes(60)
    def e3_issue(): e("buffer_load_dwordx4 v[28:31], v24, s[28:31], s56 offen sc1")
    def e3_chk():
        e("v_xor_b32 v60, s60, v28"); e("v_bitop3_b32 v60, v60, v29, s61 bitop3:0xf6"); e("v_bitop3_b32 v60, v60, v30, s62 bitop3:0xf6")
        e("v_bitop3_b32 v60, v60, v31, s63 bitop3:0xf6"); e("v_and_b32 v60, 0xff, v60"); e("v_cmp_ne_u32 vcc, 0, v60")
    masked_poll([dict(issue=e3_issue, check=e3_chk, mask=70)], cnt=69)
    stamp(6)
    e.nop(1)
    e("v_permlane32_swap_b32 v28, v30"); e("v_permlane32_swap_b32 v29, v31")
    e("v_add_f32 v28, v28, v30"); e("v_add_f32 v29, v29, v31"); e.nop(2)
    e("v_permlane16_swap_b32 v28, v29"); e("v_add_f32 v28, v28, v29")
    allreduce_row16(28, "v_add_f32")
    bf16r(28, 28)
    e("v_mul_f32 v28, v28, v96"); bf16r(28, 28)
    e("v_add_f32 v28, v28, v14")
    e("v_cvt_pk_bf16_f32 v28, v28, v28")
    e("s_mov_b32 exec_lo, 0x00010001"); e("s_mov_b32 exec_hi, 0x00010001")
    e("buffer_store_short v28, v25, s[36:39], s55 offen")
    l = L("ne"); e("s_cmp_lg_u32 s2, 0"); e(f"s_cbranch_scc1 {l}")
    e("s_mov_b64 exec, 1")
    e(f"s_mul_i32 s57, s{sT}, {TINV:#x}"); e("v_mov_b32 v20, s57"); e("v_mov_b32 v23, 0")
    e("buffer_store_dword v20, v23, s[28:31], 0 offen sc1")
    e.label(l)
    e("s_mov_b64 exec, -1")
    stamp(7)
    dump_stamps(cnts=[(2, 69)])
    e("s_endpgm")
    e.label("L_abort")
    e("s_endpgm")
    e.label("L_exit")

    probs = check(a.lines)
    body = a.text()
    nv = max(VMAX, VF + 32, 168, 128)
    nv = (nv + 7) // 8 * 8
    assert nv <= 256, nv
    hdr = open("cdna_kernels/" + KN + ".s.ref").read().split("; Override launch")[0]
    out = hdr + f"; Override launch geometry by editing the next line.\n; @launch grid=(256,1,1) block=(512,1,1) lds={LDS_BYTES}\n"
    out += f""".amdgcn_target "amdgcn-amd-amdhsa--gfx950"
.text
.globl {KN}_kernel
.p2align 8
.type {KN}_kernel,@function
{KN}_kernel:
{body}
    s_endpgm
.section .rodata,"a"
.p2align 6
.amdhsa_kernel {KN}_kernel
  .amdhsa_next_free_vgpr {nv}
  .amdhsa_next_free_sgpr 100
  .amdhsa_accum_offset {nv}
  .amdhsa_group_segment_fixed_size 0
  .amdhsa_kernarg_size 104
  .amdhsa_user_sgpr_count 2
  .amdhsa_user_sgpr_kernarg_segment_ptr 1
  .amdhsa_system_sgpr_workgroup_id_x 1
.end_amdhsa_kernel
"""
    return out, probs

if __name__ == "__main__":
    opt = {}
    name = sys.argv[1]
    for kv in sys.argv[2:]:
        k, v = kv.split("="); opt[k] = int(v, 0)
    s, probs = gen(opt)
    open(name, "w").write(s)
    for p in probs: print("HAZARD:", p)
```

```python
import sys, math, struct
from asmlib import Asm, check
KN = "recurrent_scan__sliding_block_cached__mixer_token_mlp__decode"

def f32bits(x): return struct.unpack("<I", struct.pack("<f", x))[0]

DEF = dict(stamps=0, nt=1, win=12, winkv=16, pretouch=0, e3pre=0, spinmax=1 << 20, prio=1, e1gate=3, wqpre=32, ppt=0, pptfl=0, so=0, nshare=1, hold=0, d1=1, d2=1, d3=1, sl1=0, sl2=0, sl3=0, ring=1, dl1=0, dl2=24, dl3=12, cpt=0, st2=0, remap=1, local=1, fb1=48, holdw=1, vi=16)

QB, QL, GB, OB, FB, STB = 0x10000, 0x20000, 0x30000, 0x40000, 0x100000, 0x200000
LB = 0x1c0000
WQ, KL, VL, WO = 0, 32768, 65536, 98304
QP = 131072; QF = QP + 1024; OP = QF + 4096; ML = OP + 8192; GP = ML + 128; FL = GP + 128
OF = FL + 128
XN = OF + 128
LNS = XN + 512
YP = LNS + 16
LDS_BYTES = YP + 256
F_P1, F_QF, F_O, F_K, F_V, F_WO, F_OF, F_G, F_PUB3, F_XN, F_LN2, F_T, F_QPUB, F_VI = 0, 4, 8, 12, 14, 16, 18, 19, 20, 22, 23, 24, 25, 26
KEY0 = 61440
TMUL = 0x9e3779b1
TINV = pow(TMUL, -1, 1 << 32)

def gen(opt):
    o = dict(DEF); o.update(opt)
    NT = " nt" if o["nt"] else ""
    a = Asm(); e = a
    uid = [0]
    def L(p):
        uid[0] += 1; return f"L_{p}_{uid[0]}"
    sT, sCNT = 50, 51
    DPP = "row_mask:0xf bank_mask:0xf"
    def srd(d, lo, size):
        e(f"s_mov_b32 s{d}, s{lo}"); e(f"s_and_b32 s{d+1}, s{lo+1}, 0xffff"); e(f"s_mov_b32 s{d+2}, {size}"); e(f"s_mov_b32 s{d+3}, 0x20000")
    def stamp(k):
        if o["stamps"]: e(f"s_memrealtime s[{80+2*k}:{81+2*k}]")
    def dump_stamps(dmap=None, cnts=None):
        if not o["stamps"]: return
        e("s_waitcnt lgkmcnt(0)")
        for (slot, sreg) in (cnts or []):
            e(f"s_mov_b32 s{80+2*slot}, s{sreg}"); e(f"s_mov_b32 s{81+2*slot}, 0")
        e("s_mov_b64 exec, -1")
        e("s_waitcnt vmcnt(0)")
        e("s_lshl_b32 s76, s2, 3"); e("s_add_u32 s76, s76, s3"); e("s_lshl_b32 s76, s76, 6"); e(f"s_add_u32 s76, s76, {STB}")
        for k in range(8):
            e(f"v_mov_b32 v{2*k+4}, s{80+2*k}"); e(f"v_mov_b32 v{2*k+5}, s{81+2*k}")
        e("v_mov_b32 v20, 0")
        e("s_mov_b64 exec, 1")
        for k in range(4):
            e(f"buffer_store_dwordx4 v[{4*k+4}:{4*k+7}], v20, s[28:31], s76 offen offset:{16*k}")
        e("s_waitcnt vmcnt(0)")
    def spin_tick():
        e(f"s_sub_u32 s{sCNT}, s{sCNT}, 1"); e("s_cbranch_scc1 L_abort")
    def and_flags(vt, n):
        if n == 2: e(f"v_and_b32 v{vt}, v{vt}, v{vt+1}")
        if n == 4:
            e(f"v_and_b32 v{vt}, v{vt}, v{vt+1}"); e(f"v_and_b32 v{vt+2}, v{vt+2}, v{vt+3}"); e(f"v_and_b32 v{vt}, v{vt}, v{vt+2}")
    def read_flags(first, n, vaddr, vt):
        if n == 1: e(f"ds_read_b32 v{vt}, v{vaddr} offset:{first*4}")
        elif n == 2: e(f"ds_read_b64 v[{vt}:{vt+1}], v{vaddr} offset:{first*4}")
        else: e(f"ds_read_b128 v[{vt}:{vt+3}], v{vaddr} offset:{first*4}")
    def wait_flags(first, n, vaddr, vt, extra=None, sleep=0):
        l = L("wf"); e.label(l)
        read_flags(first, n, vaddr, vt)
        if extra: extra()
        spin_tick()
        if sleep: e(f"s_sleep {sleep}")
        e("s_waitcnt lgkmcnt(0)")
        and_flags(vt, n)
        e(f"v_cmp_ne_u32 vcc, 0, v{vt}")
        e(f"s_cbranch_vccz {l}")
    def set_flag(idx, vaddr, vone):
        e(f"ds_write_b32 v{vaddr}, v{vone} offset:{idx*4}")
    def bf16r(dst, src):
        e(f"v_cvt_pk_bf16_f32 v{dst}, v{src}, v{src}"); e(f"v_lshlrev_b32 v{dst}, 16, v{dst}")
    def allreduce_row16(v, op, shs=(8, 4, 2, 1)):
        for sh in shs:
            e.nop(2); e(f"{op}_dpp v{v}, v{v}, v{v} row_ror:{sh} {DPP}")
    def allreduce_xrow(v, t, op):
        e(f"v_mov_b32 v{t}, v{v}"); e.nop(2); e(f"v_permlane32_swap_b32 v{v}, v{t}"); e(f"{op} v{v}, v{v}, v{t}")
        e(f"v_mov_b32 v{t}, v{v}"); e.nop(2); e(f"v_permlane16_swap_b32 v{v}, v{t}"); e(f"{op} v{v}, v{v}, v{t}")
    def ln_stats(xf, t0, vm, vrs):
        s, t = t0, t0 + 1
        e(f"v_add_f32 v{s}, v{xf}, v{xf+1}"); e(f"v_add_f32 v{t}, v{xf+2}, v{xf+3}")
        for k in range(4, 16, 2):
            e(f"v_add_f32 v{s}, v{s}, v{xf+k}"); e(f"v_add_f32 v{t}, v{t}, v{xf+k+1}")
        e(f"v_add_f32 v{s}, v{s}, v{t}")
        allreduce_row16(s, "v_add_f32"); allreduce_xrow(s, t, "v_add_f32")
        e(f"v_mul_f32 v{s}, {f32bits(1/1024):#x}, v{s}")
        e(f"v_sub_f32 v{t}, v{xf}, v{s}"); e(f"v_sub_f32 v{t0+3}, v{xf+1}, v{s}")
        e(f"v_mul_f32 v{t0+2}, v{t}, v{t}"); e(f"v_mul_f32 v{t0+4}, v{t0+3}, v{t0+3}")
        for k in range(2, 16, 2):
            e(f"v_sub_f32 v{t}, v{xf+k}, v{s}"); e(f"v_sub_f32 v{t0+3}, v{xf+k+1}, v{s}")
            e(f"v_fmac_f32 v{t0+2}, v{t}, v{t}"); e(f"v_fmac_f32 v{t0+4}, v{t0+3}, v{t0+3}")
        e(f"v_add_f32 v{t0+2}, v{t0+2}, v{t0+4}")
        allreduce_row16(t0 + 2, "v_add_f32"); allreduce_xrow(t0 + 2, t, "v_add_f32")
        e(f"v_mul_f32 v{t0+2}, {f32bits(1/1024):#x}, v{t0+2}")
        bf16r(vm, s)
        bf16r(t, t0 + 2)
        e(f"v_add_f32 v{t}, {f32bits(1e-5):#x}, v{t}")
        bf16r(t, t)
        e(f"v_sqrt_f32 v{t}, v{t}"); e.nop(1)
        bf16r(t, t)
        e(f"v_rcp_f32 v{vrs}, v{t}"); e.nop(1)
    def unpack(dlo, dhi, src):
        e(f"v_lshlrev_b32 v{dlo}, 16, v{src}"); e(f"v_and_b32 v{dhi}, 0xffff0000, v{src}")
    def normalize_pair(dst, src, vm, vrs, t):
        unpack(t, t + 1, src)
        e(f"v_sub_f32 v{t}, v{t}, v{vm}"); e(f"v_sub_f32 v{t+1}, v{t+1}, v{vm}")
        e(f"v_cvt_pk_bf16_f32 v{t}, v{t}, v{t+1}")
        e(f"v_and_b32 v{t+1}, 0xffff0000, v{t}"); e(f"v_lshlrev_b32 v{t}, 16, v{t}")
        e(f"v_mul_f32 v{t}, v{t}, v{vrs}"); e(f"v_mul_f32 v{t+1}, v{t+1}, v{vrs}")
        e(f"v_cvt_pk_bf16_f32 v{dst}, v{t}, v{t+1}")
    def tagbytes(s0):
        for k in range(4):
            e(f"s_lshr_b32 s{s0+k}, s{sT}, {8*k}"); e(f"s_and_b32 s{s0+k}, s{s0+k}, 0xff")
    def pipelined_poll(depth, issue, nloads, check_, success, cnt=None):
        end = L("pe"); top = L("pt"); succ = [L("ps") for _ in range(depth)]
        if cnt: e(f"s_mov_b32 s{cnt}, 0")
        for d in range(depth): issue(d)
        e.label(top)
        for d in range(depth):
            if cnt: e(f"s_add_u32 s{cnt}, s{cnt}, 1")
            check_(d, nloads * (depth - 1))
            e(f"s_cbranch_vccz {succ[d]}")
            spin_tick()
            issue(d)
        e(f"s_branch {top}")
        for d in range(depth):
            e.label(succ[d]); success(d)
            if d != depth - 1: e(f"s_branch {end}")
        e.label(end)

    def masked_poll(loads, cnt=None, pre=None, first=None):
        top = L("mp"); n = len(loads)
        for ld in loads:
            ini = ld.get('init', -1)
            if ini == -1: e(f"s_mov_b64 s[{ld['mask']}:{ld['mask']+1}], -1")
            else: e(f"s_mov_b32 s{ld['mask']}, {ini[0]:#x}"); e(f"s_mov_b32 s{ld['mask']+1}, {ini[1]:#x}")
        if cnt: e(f"s_mov_b32 s{cnt}, 0")
        if first:
            for ld in loads:
                m = ld['mask']; e(f"s_mov_b64 exec, s[{m}:{m+1}]"); ld['issue']()
            e("s_mov_b64 exec, -1"); first()
            skipi = L("mpi"); e(f"s_branch {skipi}")
        e.label(top)
        if cnt: e(f"s_add_u32 s{cnt}, s{cnt}, 1")
        for ld in loads:
            sk = L("sk"); m = ld['mask']
            e(f"s_mov_b64 exec, s[{m}:{m+1}]"); e(f"s_cbranch_execz {sk}")
            ld['issue'](); e.label(sk)
        e("s_mov_b64 exec, -1")
        if first: e.label(skipi)
        if pre: pre()
        spin_tick()
        e("s_waitcnt vmcnt(0)")
        e("s_mov_b64 s[66:67], 0")
        for ld in loads:
            sk = L("sc"); m = ld['mask']
            e(f"s_mov_b64 exec, s[{m}:{m+1}]"); e(f"s_cbranch_execz {sk}")
            ld['check']()
            if ld.get('done'):
                e(f"s_andn2_b64 exec, exec, vcc"); sk2 = L("sd"); e(f"s_cbranch_execz {sk2}"); ld['done'](); e.label(sk2)
            e(f"s_mov_b64 s[{m}:{m+1}], vcc"); e(f"s_or_b64 s[66:67], s[66:67], vcc")
            e.label(sk)
        e("s_mov_b64 exec, -1")
        e("s_cmp_lg_u64 s[66:67], 0"); e(f"s_cbranch_scc1 {top}")

    def ring_poll(D, loads, sleep, cnt=None, pre=None, first=None, stp=None):
        n = len(loads); top = L("rp"); end = L("re")
        for ld in loads:
            ini = ld.get('init', -1); m = ld['mask']
            if ini == -1: e(f"s_mov_b64 s[{m}:{m+1}], -1")
            else: e(f"s_mov_b32 s{m}, {ini[0]:#x}"); e(f"s_mov_b32 s{m+1}, {ini[1]:#x}")
        if cnt: e(f"s_mov_b32 s{cnt}, 0")
        def issue(d):
            for ld in loads:
                m = ld['mask']; e(f"s_mov_b64 exec, s[{m}:{m+1}]"); ld['issue'](d)
            e("s_mov_b64 exec, -1")
        if stp: e(f"s_memrealtime s[{80+2*stp[0]}:{81+2*stp[0]}]")
        for d in range(D):
            issue(d)
            if d == 0 and first: first()
            if d != D - 1 and sleep: e(f"s_sleep {sleep}")
        if stp:
            e(f"s_waitcnt vmcnt({n * (D - 1)})"); e(f"s_memrealtime s[{80+2*stp[1]}:{81+2*stp[1]}]")
        e.label(top)
        for d in range(D):
            if cnt: e(f"s_add_u32 s{cnt}, s{cnt}, 1")
            if pre: pre()
            e(f"s_waitcnt vmcnt({n * (D - 1)})")
            e("s_mov_b64 s[66:67], 0")
            for ld in loads:
                sk = L("rc"); m = ld['mask']
                e(f"s_mov_b64 exec, s[{m}:{m+1}]"); e(f"s_cbranch_execz {sk}")
                ld['check'](d)
                if ld.get('take'):
                    e("s_andn2_b64 exec, exec, vcc"); sk2 = L("rd"); e(f"s_cbranch_execz {sk2}"); ld['take'](d); e.label(sk2)
                e(f"s_mov_b64 s[{m}:{m+1}], vcc"); e("s_or_b64 s[66:67], s[66:67], vcc")
                e.label(sk)
            e("s_mov_b64 exec, -1")
            e("s_cmp_eq_u64 s[66:67], 0"); e(f"s_cbranch_scc1 {end}")
            spin_tick()
            issue(d)
            if sleep: e(f"s_sleep {sleep}")
        e(f"s_branch {top}")
        e.label(end)

    e("s_cmp_ge_u32 s2, 256"); e("s_cbranch_scc1 L_exit")
    stamp(0)
    e("s_load_dwordx16 s[4:19], s[0:1], 0")
    e("s_load_dwordx4 s[20:23], s[0:1], 64")
    e("s_load_dwordx2 s[24:25], s[0:1], 80")
    e("s_load_dwordx2 s[26:27], s[0:1], 96")
    e("v_lshrrev_b32 v1, 6, v0"); e("v_and_b32 v0, 63, v0")
    e("v_lshrrev_b32 v2, 4, v0"); e("v_and_b32 v3, 15, v0")
    e("v_readfirstlane_b32 s3, v1")
    e("s_and_b32 s48, s2, 7"); e("s_lshr_b32 s49, s2, 3")
    e(f"s_mov_b32 s{sCNT}, {o['spinmax']}")
    e(f"v_mov_b32 v21, {FL}"); e("v_mov_b32 v22, 1")
    l0 = L("nz"); e("s_cmp_lg_u32 s3, 4"); e(f"s_cbranch_scc1 {l0}")
    e("v_lshlrev_b32 v4, 2, v0"); e(f"v_add_u32 v4, {FL}, v4"); e("v_mov_b32 v5, 0")
    e("s_mov_b64 exec, 0xffffffff"); e("ds_write_b32 v4, v5"); e("s_mov_b64 exec, -1")
    e.label(l0)
    e("s_waitcnt lgkmcnt(0)")
    srd(28, 26, 268435456)
    srd(32, 4, 2048)
    e("s_cmp_ge_u32 s3, 6"); e("s_cbranch_scc1 L_bbranch")
    e("s_cmp_ge_u32 s3, 4"); e("s_cbranch_scc1 L_loader")

    if o["prio"]: e("s_setprio 3")
    if o["remap"]:
        e("s_lshl_b32 s52, s48, 3"); e("s_and_b32 s53, s49, 7"); e("s_add_u32 s52, s52, s53"); e("s_lshr_b32 s53, s49, 3")
    else:
        e("s_lshr_b32 s52, s2, 2"); e("s_and_b32 s53, s2, 3")
    e("s_cmp_eq_u32 s3, 0"); e("s_cbranch_scc1 L_qproj")
    e("s_cmp_eq_u32 s3, 1"); e("s_cbranch_scc1 L_ln")
    e("s_barrier")
    if o["cpt"]:
        lcp = L("cpt"); e("s_cmp_lg_u32 s3, 2"); e(f"s_cbranch_scc1 {lcp}")
        e("s_lshr_b32 s54, s48, 1"); e("s_lshl_b32 s54, s54, 3"); e("s_and_b32 s55, s49, 1"); e("s_lshl_b32 s55, s55, 2"); e("s_add_u32 s54, s54, s55")
        e("s_lshl_b32 s54, s54, 11"); e("s_lshr_b32 s55, s49, 1"); e("s_lshl_b32 s55, s55, 9"); e("s_add_u32 s54, s54, s55"); e(f"s_add_u32 s54, s54, {QB}")
        e("v_lshlrev_b32 v30, 7, v0"); e("v_add_u32 v31, s54, v30")
        e("s_lshr_b32 s54, s49, 2"); e("s_lshl_b32 s54, s54, 3"); e("s_add_u32 s54, s54, s48"); e("s_lshl_b32 s55, s54, 13"); e("s_and_b32 s56, s49, 3"); e("s_lshl_b32 s56, s56, 11")
        e("s_add_u32 s55, s55, s56"); e(f"s_add_u32 s55, s55, {OB - 4*128}"); e("v_add_u32 v33, s55, v30")
        e("v_cmp_lt_u32 vcc, 3, v0"); e.nop(2); e("v_cndmask_b32 v31, v31, v33, vcc")
        e("s_lshl_b32 s55, s49, 10"); e(f"s_add_u32 s55, s55, {LB - 20*128}"); e("v_add_u32 v33, s55, v30")
        e("v_cmp_lt_u32 vcc, 19, v0"); e.nop(2); e("v_cndmask_b32 v31, v31, v33, vcc")
        e("s_lshr_b32 s55, s49, 3"); e("s_lshl_b32 s55, s55, 3"); e("s_add_u32 s55, s55, s48"); e("s_lshl_b32 s56, s55, 13"); e("s_and_b32 s57, s49, 7"); e("s_lshl_b32 s57, s57, 10")
        e("s_add_u32 s56, s56, s57"); e(f"s_add_u32 s56, s56, {FB - 28*128}"); e("v_add_u32 v33, s56, v30")
        e("v_cmp_lt_u32 vcc, 27, v0"); e.nop(2); e("v_cndmask_b32 v31, v31, v33, vcc")
        e("s_mov_b32 exec_lo, -1"); e("s_mov_b32 exec_hi, 0xf")
        e("buffer_load_dword v151, v31, s[28:31], 0 offen sc1")
        e("s_mov_b64 exec, -1")
        e.label(lcp)
    if o["ppt"]:
        lpp = L("ppt"); e("s_cmp_lg_u32 s3, 3"); e(f"s_cbranch_scc1 {lpp}")
        e("s_lshr_b32 s54, s52, 1"); e("s_lshl_b32 s54, s54, 11"); e("s_and_b32 s55, s52, 1"); e("s_lshl_b32 s55, s55, 8"); e("s_add_u32 s54, s54, s55")
        e("s_lshl_b32 s55, s53, 9"); e("s_add_u32 s54, s54, s55"); e(f"s_add_u32 s54, s54, {QB}")
        e("v_lshlrev_b32 v30, 7, v0"); e("v_add_u32 v31, s54, v30")
        e("s_lshr_b32 s54, s48, 1"); e("s_lshl_b32 s54, s54, 3"); e("s_and_b32 s55, s49, 1"); e("s_lshl_b32 s55, s55, 2"); e("s_add_u32 s54, s54, s55")
        e("s_and_b32 s55, s48, 1"); e("s_lshl_b32 s55, s55, 4"); e("s_lshr_b32 s56, s49, 1"); e("s_add_u32 s55, s55, s56")
        e("v_subrev_u32 v32, 2, v0"); e("v_lshrrev_b32 v33, 2, v32"); e("v_lshlrev_b32 v33, 14, v33"); e("v_bfe_u32 v34, v32, 1, 1"); e("v_lshlrev_b32 v34, 13, v34"); e("v_add_u32 v33, v33, v34")
        e("v_and_b32 v34, 1, v32"); e("v_lshlrev_b32 v34, 7, v34"); e("v_add_u32 v33, v33, v34")
        e("s_lshl_b32 s56, s54, 14"); e("s_lshl_b32 s57, s55, 8"); e("s_add_u32 s56, s56, s57"); e(f"s_add_u32 s56, s56, {OB}"); e("v_add_u32 v33, s56, v33")
        e("v_cmp_lt_u32 vcc, 1, v0"); e.nop(2); e("v_cndmask_b32 v31, v31, v33, vcc")
        e("s_lshr_b32 s56, s54, 2"); e("s_lshl_b32 s56, s56, 5"); e("s_add_u32 s56, s56, s55"); e("s_lshl_b32 s56, s56, 7"); e(f"s_add_u32 s56, s56, {LB}")
        e("v_mov_b32 v33, s56"); e("v_cmp_lt_u32 vcc, 17, v0"); e.nop(2); e("v_cndmask_b32 v31, v31, v33, vcc")
        e("s_lshr_b32 s56, s49, 2"); e("s_lshl_b32 s56, s56, 3"); e("s_add_u32 s56, s56, s48"); e("s_and_b32 s57, s49, 3")
        e("s_lshl_b32 s57, s57, 16"); e("s_lshl_b32 s56, s56, 7"); e("s_add_u32 s56, s56, s57"); e(f"s_add_u32 s56, s56, {FB}")
        e("v_subrev_u32 v32, 19, v0"); e("v_lshlrev_b32 v33, 13, v32"); e("v_add_u32 v33, s56, v33")
        e("v_cmp_lt_u32 vcc, 18, v0"); e.nop(2); e("v_cndmask_b32 v31, v31, v33, vcc")
        e("s_lshl_b32 s56, s2, 8"); e(f"s_add_u32 s56, s56, {GB}"); e("v_subrev_u32 v32, 27, v0"); e("v_lshlrev_b32 v33, 7, v32"); e("v_add_u32 v33, s56, v33")
        e("v_cmp_lt_u32 vcc, 26, v0"); e.nop(2); e("v_cndmask_b32 v31, v31, v33, vcc")
        e("s_mov_b64 exec, 0x1fffffff")
        e("buffer_load_dword v150, v31, s[28:31], 0 offen" + (" sc1" if o["pptfl"] == 1 else ""))
        e("s_mov_b64 exec, -1")
        e.label(lpp)
    wait_flags(F_XN, 1, 21, 28, extra=lambda: e(f"ds_read_b32 v29, v21 offset:{F_T*4}"), sleep=2)
    e(f"v_readfirstlane_b32 s{sT}, v29")
    e("s_branch L_attn")
    e.label("L_ln")
    e("v_lshlrev_b32 v23, 5, v0")
    e("buffer_load_dwordx4 v[4:7], v23, s[32:35], 0 offen")
    e("buffer_load_dwordx4 v[8:11], v23, s[32:35], 0 offen offset:16")
    e("v_mov_b32 v23, 0")
    e("buffer_load_dword v20, v23, s[28:31], 0 offen sc1")
    e("s_barrier")
    e("s_lshl_b32 s54, s53, 4"); e("v_subrev_u32 v23, s54, v0"); e("v_lshlrev_b32 v23, 5, v23"); e(f"v_add_u32 v23, {XN}, v23")
    e("s_lshl_b64 s[56:57], 0xffff, s54") if False else None
    e("s_mov_b32 s56, 0xffff"); e("s_mov_b32 s57, 0"); e("s_lshl_b64 s[56:57], s[56:57], s54")
    e("s_waitcnt vmcnt(0)")
    stamp(2)
    e(f"v_readfirstlane_b32 s{sT}, v20")
    for k in range(8): unpack(24 + 2 * k, 25 + 2 * k, 4 + k)
    e(f"s_add_u32 s{sT}, s{sT}, 1"); e(f"s_mul_i32 s{sT}, s{sT}, {TMUL:#x}")
    ln_stats(24, 98, 104, 105)
    e(f"v_mov_b32 v20, s{sT}"); e(f"ds_write_b32 v21, v20 offset:{F_T*4}")
    for k in range(16): e(f"v_sub_f32 v{24+k}, v{24+k}, v104")
    for k in range(8): e(f"v_cvt_pk_bf16_f32 v{4+k}, v{24+2*k}, v{25+2*k}")
    for k in range(8): unpack(24 + 2 * k, 25 + 2 * k, 4 + k)
    for k in range(16): e(f"v_mul_f32 v{24+k}, v{24+k}, v105")
    for k in range(8): e(f"v_cvt_pk_bf16_f32 v{4+k}, v{24+2*k}, v{25+2*k}")
    e("s_mov_b64 exec, s[56:57]")
    e("ds_write_b128 v23, v[4:7]"); e("ds_write_b128 v23, v[8:11] offset:16")
    e("s_mov_b64 exec, -1")
    set_flag(F_XN, 21, 22)
    stamp(1)
    for k in range(8): unpack(24 + 2 * k, 25 + 2 * k, 4 + k)
    ln_stats(24, 98, 106, 107)
    e(f"v_mov_b32 v23, {LNS}"); e("ds_write_b128 v23, v[104:107]")
    set_flag(F_LN2, 21, 22)
    stamp(3)
    e("s_branch L_attn")
    e.label("L_qproj")
    srd(36, 10, 8388608)
    e("v_lshrrev_b32 v24, 3, v0"); e("v_and_b32 v25, 7, v0")
    e("v_lshrrev_b32 v26, 1, v25"); e("v_lshrrev_b32 v27, 1, v24"); e("v_and_b32 v27, 3, v27"); e("v_xor_b32 v26, v26, v27")
    e("v_lshlrev_b32 v26, 1, v26"); e("v_and_b32 v25, 1, v25"); e("v_or_b32 v26, v26, v25"); e("v_lshlrev_b32 v26, 4, v26")
    e("v_lshlrev_b32 v24, 13, v24"); e("v_add_u32 v24, v24, v26")
    e("s_lshl_b32 s56, s53, 21"); e("s_lshl_b32 s57, s52, 7"); e("s_add_u32 s56, s56, s57")
    NPRE = o["wqpre"]
    def wqdma(n):
        e(f"s_mov_b32 m0, {WQ + n*1024}")
        e(f"s_add_u32 s57, s56, {n*8*8192}")
        e(f"buffer_load_dwordx4 v24, s[36:39], s57 offen{NT} lds")
    for n in range(NPRE): wqdma(n)
    e("s_barrier")
    for n in range(NPRE, 32): wqdma(n)
    stamp(1)
    e("v_lshrrev_b32 v24, 2, v3"); e("v_and_b32 v25, 3, v3")
    e("v_lshlrev_b32 v26, 2, v2"); e("v_add_u32 v26, v26, v24")
    e("v_lshrrev_b32 v27, 1, v26"); e("v_and_b32 v27, 3, v27")
    e("v_lshlrev_b32 v26, 7, v26"); e("v_lshlrev_b32 v25, 3, v25"); e("v_add_u32 v26, v26, v25")
    e("v_lshlrev_b32 v27, 5, v27"); e("v_add_u32 v108, v26, v27")
    for u in range(1, 4): e(f"v_xor_b32 v{108+u}, {u<<5}, v108")
    e("v_lshrrev_b32 v24, 2, v3")
    for u in range(4):
        e(f"v_cmp_eq_u32 vcc, {u}, v24"); e.nop(2); e(f"v_cndmask_b32 v{112+u}, 0, -1, vcc")
    e("s_lshr_b32 s57, s52, 1"); e("s_lshl_b32 s57, s57, 11"); e("s_and_b32 s58, s52, 1"); e("s_lshl_b32 s58, s58, 8"); e("s_add_u32 s57, s57, s58")
    e("s_lshl_b32 s58, s53, 9"); e("s_add_u32 s57, s57, s58"); e(f"s_add_u32 s57, s57, {QB}")
    e("v_lshlrev_b32 v27, 2, v0")
    e("v_lshlrev_b32 v26, 3, v2"); e(f"v_add_u32 v26, {XN}, v26")
    def xn_extra():
        e(f"ds_read_b32 v29, v21 offset:{F_T*4}")
        for k in range(8): e(f"ds_read2_b64 v[{40+4*k}:{43+4*k}], v26 offset0:{8*k} offset1:{8*k+4}")
    wait_flags(F_XN, 1, 21, 28, extra=xn_extra)
    e(f"v_readfirstlane_b32 s{sT}, v29")
    stamp(2)
    csc = math.log2(math.e) / math.sqrt(128.0)
    e(f"s_mov_b32 s58, {f32bits(csc):#x}")
    for k in range(8):
        A = 72 + 16 * (k & 1)
        B = 128 + 16 * (k & 1)
        for u in range(4):
            for m in range(4): e(f"v_and_b32 v{A+4*u+m}, v{40+4*k+m}, v{112+u}")
        e(f"s_waitcnt vmcnt({28 - 4*k})")
        if k == 7: stamp(3)
        for u in range(4):
            for rho in range(2):
                r = B + 4 * u + 2 * rho
                e(f"ds_read_b64_tr_b16 v[{r}:{r+1}], v{108+u} offset:{k*4096 + rho*2048}")
        for u in range(4):
            e(f"s_waitcnt lgkmcnt({2*(3-u)})")
            c = "0" if (k == 0 and u == 0) else "v[104:107]"
            e(f"v_mfma_f32_16x16x32_bf16 v[104:107], v[{A+4*u}:{A+4*u+3}], v[{B+4*u}:{B+4*u+3}], {c}")
    e(f"v_mov_b32 v49, s{sT}"); e(f"v_mov_b32 v51, s{sT}")
    e.nop(6)
    e("v_mul_f32 v104, s58, v104"); e.nop(2)
    e(f"v_mov_b32_dpp v105, v104 quad_perm:[1,0,3,2] {DPP}")
    e("v_cvt_pk_bf16_f32 v48, v104, v105"); e.nop(2)
    e(f"v_mov_b32_dpp v50, v48 quad_perm:[2,3,0,1] {DPP}")
    e("s_mov_b32 exec_lo, 0x11111111"); e("s_mov_b32 exec_hi, 0x11111111")
    e("buffer_store_dwordx4 v[48:51], v27, s[28:31], s57 offen sc1")
    if o["local"]:
        e(f"s_add_u32 s57, s57, {QL - QB}")
        e("buffer_store_dwordx4 v[48:51], v27, s[28:31], s57 offen")
    e("s_mov_b64 exec, -1")
    set_flag(F_QPUB, 21, 22)
    stamp(5)
    e.label("L_attn")
    if o["so"]:
        dump_stamps(); e("s_endpgm")
    e("s_lshl_b32 s57, s3, 2"); e("v_add_u32 v25, s57, v21")
    e("v_lshrrev_b32 v24, 2, v3")
    for u in range(4):
        e(f"v_cmp_eq_u32 vcc, {u}, v24"); e.nop(2); e(f"v_cndmask_b32 v{112+u}, 0, -1, vcc")
    e("s_lshr_b32 s52, s48, 1"); e("s_and_b32 s53, s48, 1"); e("s_and_b32 s54, s49, 1"); e("s_lshr_b32 s55, s49, 1")
    e("s_lshl_b32 s53, s53, 4"); e("s_add_u32 s55, s55, s53")
    e("s_lshl_b32 s52, s52, 3"); e("s_lshl_b32 s54, s54, 2"); e("s_add_u32 s52, s52, s54")
    e("v_lshrrev_b32 v23, 3, v0"); e("v_and_b32 v28, 7, v0")
    for i in range(2):
        e(f"v_add_u32 v29, {8*i}, v23")
        e("v_and_b32 v30, 3, v29"); e("v_lshlrev_b32 v30, 2, v30"); e("v_lshrrev_b32 v31, 2, v29"); e("v_add_u32 v30, v30, v31"); e("v_lshlrev_b32 v30, 9, v30")
        e("v_lshlrev_b32 v31, 4, v28"); e(f"v_add_u32 v{32+i}, v30, v31")
        e("v_lshrrev_b32 v30, 1, v28"); e("v_lshlrev_b32 v30, 4, v30"); e("v_add_u32 v30, v30, v29"); e("v_lshlrev_b32 v30, 4, v30")
        e("v_and_b32 v31, 1, v28"); e("v_lshlrev_b32 v31, 3, v31"); e("v_add_u32 v30, v30, v31")
        e("s_lshl_b32 s57, s3, 10"); e(f"s_add_u32 s57, s57, {QF}"); e(f"v_add_u32 v{34+i}, s57, v30")
    e("s_lshl_b32 s56, s52, 11"); e("s_lshl_b32 s57, s3, 7"); e("s_add_u32 s56, s56, s57"); e(f"s_add_u32 s56, s56, {QB}")
    if o["local"]:
        e("s_mov_b32 s65, s56")
        e("s_xor_b32 s57, s48, s49"); e("s_and_b32 s57, s57, 1")
        e(f"s_mov_b32 s58, {QL - QB}"); e("s_cmp_eq_u32 s57, 0"); e("s_cselect_b32 s58, s58, 0"); e("s_add_u32 s56, s56, s58")
    e("v_lshlrev_b32 v27, 4, v0"); e(f"v_add_u32 v27, {QF}, v27")
    e("s_lshl_b32 s57, s3, 13"); e(f"s_add_u32 s57, s57, {KL}")
    e("v_lshlrev_b32 v28, 8, v3"); e("v_add_u32 v28, s57, v28")
    e("v_xor_b32 v29, v2, v3"); e("v_lshlrev_b32 v29, 4, v29"); e("v_add_u32 v108, v28, v29")
    for t in range(1, 4): e(f"v_xor_b32 v{108+t}, {t<<6}, v108")
    e("v_lshrrev_b32 v28, 2, v3"); e("v_lshlrev_b32 v29, 2, v2"); e("v_add_u32 v28, v28, v29")
    e("v_and_b32 v29, 7, v28"); e("v_lshlrev_b32 v29, 5, v29"); e("v_lshlrev_b32 v28, 8, v28"); e("v_add_u32 v28, v28, v29")
    e("v_and_b32 v29, 3, v3"); e("v_lshlrev_b32 v29, 3, v29"); e("v_add_u32 v28, v28, v29")
    e("s_lshl_b32 s57, s3, 13"); e(f"s_add_u32 s57, s57, {VL}"); e("v_add_u32 v116, s57, v28")
    for t in range(1, 8): e(f"v_xor_b32 v{116+t}, {t<<5}, v116")
    def kreads():
        for kt in range(2):
            for t in range(4):
                r = 40 + 16 * kt + 4 * t
                e(f"ds_read_b128 v[{r}:{r+3}], v{108+t} offset:{kt*4096}")
    if o["e1gate"] == 1:
        wait_flags(F_K, 2, 21, 28); kreads()
    if o["e1gate"] == 2:
        wait_flags(F_QPUB, 1, 21, 28)
    if o["e1gate"] == 3:
        wait_flags(F_QPUB, 1, 21, 28); wait_flags(F_VI, 2, 21, 28)
    PB = 128
    def mk_e1(i):
        def issue(d=0):
            b = PB + 8 * d + 4 * i; e(f"buffer_load_dwordx4 v[{b}:{b+3}], v{32+i}, s[28:31], s56 offen sc1")
        def chk(d=0):
            b = PB + 8 * d + 4 * i
            e(f"v_xor_b32 v36, s{sT}, v{b+1}"); e(f"v_xor_b32 v37, s{sT}, v{b+3}"); e("v_or_b32 v36, v36, v37"); e("v_cmp_ne_u32 vcc, 0, v36")
        def done(d=0):
            b = PB + 8 * d + 4 * i; e(f"ds_write2_b32 v{34+i}, v{b}, v{b+2} offset0:0 offset1:1")
        return dict(issue=issue, check=chk, done=done, take=done, mask=70 + 2 * i)
    if o["dl1"]:
        if o["local"]:
            ld_ = L("nodl"); e("s_cmp_lg_u32 s56, s65"); e(f"s_cbranch_scc1 {ld_}"); e(f"s_sleep {o['dl1']}"); e.label(ld_)
        else: e(f"s_sleep {o['dl1']}")
    stamp(1)
    p1flag = (lambda: e(f"ds_write_b32 v25, v22 offset:{F_P1*4}"))
    def e1_pre():
        if o["local"]:
            e(f"s_cmp_ge_u32 s68, {o['fb1']}"); e("s_cselect_b32 s56, s65, s56")
    if o["ring"]: ring_poll(o["d1"], [mk_e1(0), mk_e1(1)], o["sl1"], cnt=68, first=p1flag, pre=e1_pre)
    else: masked_poll([mk_e1(0), mk_e1(1)], cnt=68, first=p1flag)
    e(f"ds_write_b32 v25, v22 offset:{F_QF*4}")
    stamp(6)
    if o["e1gate"] != 1:
        wait_flags(F_K, 2, 21, 28); kreads()
    wait_flags(F_QF, 4, 21, 28, extra=lambda: [e(f"ds_read_b128 v[{72+4*t}:{75+4*t}], v27 offset:{t*1024}") for t in range(4)])
    for t in range(4):
        for kt in range(2):
            c = "0" if t == 0 else f"v[{88+4*kt}:{91+4*kt}]"
            e(f"v_mfma_f32_16x16x32_bf16 v[{88+4*kt}:{91+4*kt}], v[{40+16*kt+4*t}:{43+16*kt+4*t}], v[{72+4*t}:{75+4*t}], {c}")
    VF = 168
    e(f"ds_read_b64 v[28:29], v21 offset:{F_V*4}")
    e("s_waitcnt lgkmcnt(0)")
    e("v_and_b32 v28, v28, v29"); e("v_cmp_ne_u32 vcc, 0, v28")
    e("s_mov_b32 s59, 0")
    lv = L("vlate"); e(f"s_cbranch_vccz {lv}")
    def vreads():
        for t in range(8):
            for rho in range(2):
                r = VF + 4 * t + 2 * rho
                e(f"ds_read_b64_tr_b16 v[{r}:{r+1}], v{116+t} offset:{rho*4096}")
    vreads(); e("s_mov_b32 s59, 1")
    e.label(lv)
    S = list(range(88, 96))
    e.nop(2)
    for s_ in S: e(f"v_add_f32_dpp v{s_+8}, v{s_}, v{s_} row_ror:4 {DPP}")
    for s_ in S: e(f"v_add_f32_dpp v{s_}, v{s_+8}, v{s_+8} row_ror:8 {DPP}")
    e("v_max3_f32 v96, v88, v89, v90"); e("v_max3_f32 v97, v91, v92, v93"); e("v_max3_f32 v96, v96, v94, v95"); e("v_max_f32 v96, v96, v97")
    allreduce_xrow(96, 97, "v_max_f32")
    for s_ in S: e(f"v_sub_f32 v{s_}, v{s_}, v96")
    for s_ in S: e(f"v_exp_f32 v{s_}, v{s_}")
    e.nop(1)
    for m in range(4): e(f"v_cvt_pk_bf16_f32 v{100+m}, v{88+2*m}, v{89+2*m}")
    for u in range(4):
        for m in range(4): e(f"v_and_b32 v{72+4*u+m}, v{100+m}, v{112+u}")
    for m in range(4): e(f"v_mov_b32 v{88+m}, 0x3f803f80")
    lw = L("vok"); e("s_cmp_lg_u32 s59, 0"); e(f"s_cbranch_scc1 {lw}")
    wait_flags(F_V, 2, 21, 28); vreads()
    e.label(lw)
    e("s_waitcnt lgkmcnt(0)")
    first = [True, True]
    for t in range(8):
        ee = (t >> 1) & 1; u = 2 * (t >> 2) + (t & 1)
        c = "0" if first[ee] else f"v[{104+4*ee}:{107+4*ee}]"; first[ee] = False
        e(f"v_mfma_f32_16x16x32_bf16 v[{104+4*ee}:{107+4*ee}], v[{VF+4*t}:{VF+4*t+3}], v[{72+4*u}:{75+4*u}], {c}")
    e("v_mfma_f32_16x16x32_bf16 v[92:95], v[88:91], v[100:103], 0")
    e("v_lshlrev_b32 v24, 4, v0"); e("s_lshl_b32 s57, s3, 11"); e(f"s_add_u32 s57, s57, {OP}"); e("v_add_u32 v24, s57, v24")
    e("v_lshlrev_b32 v26, 5, v3"); e("s_lshl_b32 s57, s3, 3"); e(f"s_add_u32 s57, s57, {ML}"); e("v_add_u32 v26, s57, v26")
    e.nop(4)
    e("ds_write_b128 v24, v[104:107]")
    e("ds_write_b128 v24, v[108:111] offset:1024")
    e("v_mov_b32 v97, v92")
    e("s_mov_b64 exec, 0xf")
    e("ds_write_b64 v26, v[96:97]")
    e("s_mov_b64 exec, -1")
    e(f"ds_write_b32 v25, v22 offset:{F_O*4}")
    stamp(7)
    e("s_cmp_ge_u32 s3, 2"); e("s_cbranch_scc1 L_gemv")
    e("v_lshlrev_b32 v24, 4, v0"); e("s_lshl_b32 s57, s3, 10"); e(f"s_add_u32 s57, s57, {OP}"); e("v_add_u32 v24, s57, v24")
    e("v_and_b32 v26, 3, v3"); e("v_lshlrev_b32 v26, 5, v26"); e(f"v_add_u32 v26, {ML}, v26")
    e("v_and_b32 v27, 3, v3"); e("v_lshlrev_b32 v27, 14, v27"); e("v_lshrrev_b32 v28, 3, v3"); e("v_lshlrev_b32 v28, 13, v28"); e("v_add_u32 v27, v27, v28")
    e("v_lshrrev_b32 v28, 2, v3"); e("v_and_b32 v28, 1, v28"); e("v_lshlrev_b32 v28, 2, v28"); e("v_add_u32 v28, v28, v2"); e("v_lshlrev_b32 v28, 4, v28"); e("v_add_u32 v27, v27, v28")
    e("s_lshl_b32 s56, s52, 14"); e("s_lshl_b32 s57, s55, 8"); e("s_add_u32 s56, s56, s57"); e("s_lshl_b32 s57, s3, 7"); e("s_add_u32 s56, s56, s57"); e(f"s_add_u32 s56, s56, {OB}")
    e(f"v_mov_b32 v63, s{sT}")
    def mg_extra():
        for w in range(4): e(f"ds_read_b128 v[{32+4*w}:{35+4*w}], v24 offset:{w*2048}")
        e("ds_read_b128 v[48:51], v26"); e("ds_read_b128 v[52:55], v26 offset:16")
    wait_flags(F_O, 4, 21, 28, extra=mg_extra)
    e("v_max3_f32 v56, v48, v50, v52"); e("v_max_f32 v56, v56, v54")
    for w in range(4): e(f"v_sub_f32 v{48+2*w}, v{48+2*w}, v56")
    for w in range(4): e(f"v_exp_f32 v{48+2*w}, v{48+2*w}")
    e.nop(1)
    e("v_mul_f32 v57, v48, v49")
    for w in range(1, 4): e(f"v_fmac_f32 v57, v{48+2*w}, v{49+2*w}")
    e("v_rcp_f32 v58, v57"); e("v_log_f32 v59, v57")
    for m in range(4): e(f"v_mul_f32 v{32+m}, v{32+m}, v48")
    for w in range(1, 4):
        for m in range(4): e(f"v_fmac_f32 v{32+m}, v{32+4*w+m}, v{48+2*w}")
    e("v_add_f32 v62, v56, v59")
    for m in range(4): e(f"v_mul_f32 v{32+m}, v{32+m}, v58")
    e("v_cvt_pk_bf16_f32 v60, v32, v33"); e("v_cvt_pk_bf16_f32 v61, v34, v35")
    e("buffer_store_dwordx4 v[60:63], v27, s[28:31], s56 offen sc1")
    if o["stamps"]: e("s_memrealtime s[80:81]")
    dump_stamps(cnts=[(4, 68)])
    e("s_endpgm")

    e.label("L_gemv")
    e("s_lshr_b32 s52, s49, 2"); e("s_lshl_b32 s52, s52, 3"); e("s_add_u32 s52, s52, s48")
    e("s_and_b32 s53, s49, 3"); e("s_sub_u32 s54, s3, 2")
    e("v_lshrrev_b32 v4, 2, v3"); e("v_and_b32 v5, 3, v3")
    e("v_lshlrev_b32 v6, 2, v4"); e("v_add_u32 v6, v6, v2"); e("v_lshlrev_b32 v6, 9, v6")
    e("v_and_b32 v7, 1, v2"); e("v_lshlrev_b32 v7, 2, v7"); e("v_add_u32 v7, v7, v4"); e("v_lshlrev_b32 v7, 5, v7")
    e("v_lshlrev_b32 v5, 3, v5"); e("v_add3_u32 v6, v6, v7, v5")
    e("s_lshl_b32 s58, s54, 8"); e(f"s_add_u32 s58, s58, {WO}"); e("v_add_u32 v116, s58, v6")
    for u in range(1, 8): e(f"v_xor_b32 v{116+u}, {u<<5}, v116")
    tagbytes(60)
    e("s_mov_b32 s64, 0x07060500"); e("s_mov_b32 s59, 0")
    e("v_lshlrev_b32 v36, 5, v2"); e(f"v_add_u32 v36, {OF}, v36")
    def woreads():
        for u in range(8):
            for tp in range(4):
                r = 40 + 8 * u + 2 * tp
                e(f"ds_read_b64_tr_b16 v[{r}:{r+1}], v{116+u} offset:{tp*8192}")
    e("s_cmp_eq_u32 s3, 3"); e("s_cbranch_scc1 L_gemv3")
    e("v_lshlrev_b32 v24, 4, v0"); e("v_add_u32 v25, 4096, v24")
    e("s_lshl_b32 s56, s52, 13"); e(f"s_add_u32 s56, s56, {OB}")
    B2 = 128
    def rb(d): return B2 + 32 * (d + 1)
    e("s_waitcnt vmcnt(0)")
    def mk_dat(n):
        def issue(d):
            b = (rb(d) if o["d2"] > 1 else B2) + 4 * n
            e(f"buffer_load_dwordx4 v[{b}:{b+3}], v{24 if n < 4 else 25}, s[28:31], s56 offen offset:{(n%4)*1024} sc1")
        def chk(d):
            b = (rb(d) if o["d2"] > 1 else B2) + 4 * n
            e(f"v_cmp_ne_u32 vcc, s{sT}, v{b+3}")
        def take(d):
            if o["d2"] > 1:
                b = rb(d) + 4 * n
                for i in range(3): e(f"v_mov_b32 v{B2+4*n+i}, v{b+i}")
        return dict(issue=issue, check=chk, take=(take if o["d2"] > 1 else None), mask=[70, 72, 74, 76, 78, 40, 42, 44][n])
    def wo_try():
        lskip = L("wo"); e("s_cmp_lg_u32 s59, 0"); e(f"s_cbranch_scc1 {lskip}")
        e(f"ds_read_b64 v[28:29], v21 offset:{F_WO*4}"); e("s_waitcnt lgkmcnt(0)")
        e("v_and_b32 v28, v28, v29"); e("v_cmp_ne_u32 vcc, 0, v28"); e(f"s_cbranch_vccz {lskip}")
        woreads(); e("s_mov_b32 s59, 1")
        e.label(lskip)
    if o["dl2"]: e(f"s_sleep {o['dl2']}")
    ring_poll(o["d2"], [mk_dat(n) for n in range(8)], o["sl2"], cnt=69, pre=wo_try, stp=((6, 7) if o["st2"] else None))
    E2MAX = rb(o["d2"]) if o["d2"] > 1 else B2 + 32
    if o["stamps"]: e("s_memrealtime s[84:85]")
    ls = [B2 + 4 * n + 2 for n in range(8)]
    e(f"v_max3_f32 v7, v{ls[0]}, v{ls[1]}, v{ls[2]}"); e(f"v_max3_f32 v8, v{ls[3]}, v{ls[4]}, v{ls[5]}"); e(f"v_max3_f32 v7, v7, v{ls[6]}, v{ls[7]}"); e("v_max_f32 v7, v7, v8")
    allreduce_xrow(7, 8, "v_max_f32")
    for n in range(8): e(f"v_sub_f32 v{ls[n]}, v{ls[n]}, v7")
    for n in range(8): e(f"v_exp_f32 v{ls[n]}, v{ls[n]}")
    e("v_mov_b32 v10, 0xffff0000")
    for n in range(8):
        b = B2 + 4 * n
        e(f"v_lshlrev_b32 v16, 16, v{b}"); e(f"v_and_b32 v17, v10, v{b}"); e(f"v_lshlrev_b32 v18, 16, v{b+1}"); e(f"v_and_b32 v19, v10, v{b+1}")
        for i in range(4):
            if n == 0: e(f"v_mul_f32 v{12+i}, v{16+i}, v{ls[n]}")
            else: e(f"v_fmac_f32 v{12+i}, v{16+i}, v{ls[n]}")
    e(f"v_add_f32 v9, v{ls[0]}, v{ls[1]}"); e(f"v_add_f32 v8, v{ls[2]}, v{ls[3]}"); e(f"v_add_f32 v9, v9, v{ls[4]}"); e(f"v_add_f32 v8, v8, v{ls[5]}")
    e(f"v_add_f32 v9, v9, v{ls[6]}"); e(f"v_add_f32 v8, v8, v{ls[7]}"); e("v_add_f32 v9, v9, v8")
    allreduce_xrow(9, 8, "v_add_f32")
    e("v_rcp_f32 v9, v9")
    e.nop(2)
    e("v_permlane32_swap_b32 v12, v14"); e("v_permlane32_swap_b32 v13, v15")
    e("v_add_f32 v12, v12, v14"); e("v_add_f32 v13, v13, v15"); e.nop(2)
    e("v_permlane16_swap_b32 v12, v13"); e("v_add_f32 v12, v12, v13"); e("v_mul_f32 v12, v12, v9"); e.nop(2)
    e(f"v_mov_b32_dpp v13, v12 quad_perm:[1,0,3,2] {DPP}")
    e("v_cvt_pk_bf16_f32 v12, v12, v13"); e.nop(2)
    for m in range(8): e(f"v_mov_b32_dpp v{28+m}, v12 row_newbcast:{2*m} {DPP}")
    e("v_lshlrev_b32 v4, 1, v3"); e("v_add_u32 v4, v4, v36")
    e("s_mov_b32 exec_lo, 0x55555555"); e("s_mov_b32 exec_hi, 0x55555555")
    e("ds_write_b32 v4, v12")
    e("s_mov_b64 exec, -1")
    set_flag(F_OF, 21, 22)
    e("s_branch L_gemvc")
    e.label("L_gemv3")
    wait_flags(F_WO, 2, 21, 28); woreads(); e("s_mov_b32 s59, 1")
    wait_flags(F_OF, 1, 21, 4, extra=lambda: (e("ds_read_b128 v[28:31], v36"), e("ds_read_b128 v[32:35], v36 offset:16")))
    if o["stamps"]: e("s_memrealtime s[84:85]")
    e.label("L_gemvc")
    lw = L("wook"); e("s_cmp_lg_u32 s59, 0"); e(f"s_cbranch_scc1 {lw}")
    wait_flags(F_WO, 2, 21, 4); woreads()
    e.label(lw)
    if o["stamps"]: e("s_memrealtime s[82:83]")
    e("v_lshlrev_b32 v24, 1, v2"); e("v_lshrrev_b32 v25, 3, v3"); e("v_add_u32 v24, v24, v25"); e("v_lshlrev_b32 v24, 13, v24")
    e("v_and_b32 v25, 7, v3"); e("v_lshlrev_b32 v25, 4, v25"); e("v_add_u32 v24, v24, v25")
    e("s_lshl_b32 s56, s53, 3"); e("s_lshl_b32 s57, s54, 2"); e("s_add_u32 s56, s56, s57"); e("s_lshl_b32 s56, s56, 13")
    e("s_lshl_b32 s57, s52, 7"); e("s_add_u32 s56, s56, s57"); e(f"s_add_u32 s56, s56, {FB}")
    e("v_and_b32 v25, 1, v2"); e("v_cmp_eq_u32 vcc, 1, v25")
    for k in range(4): e(f"v_mov_b32 v{8+k}, s{60+k}")
    e("s_waitcnt lgkmcnt(0)")
    AC = 128
    e("s_waitcnt vmcnt(0)") if False else None
    for k in range(2):
        for u in range(8):
            c = "0" if k == 0 else f"v[{AC+4*u}:{AC+4*u+3}]"
            e(f"v_mfma_f32_16x16x32_bf16 v[{AC+4*u}:{AC+4*u+3}], v[{28+4*k}:{31+4*k}], v[{40+8*u+4*k}:{43+8*u+4*k}], {c}")
    e.nop(5)
    for i in range(4): e(f"v_cndmask_b32 v{4+i}, v{AC+4*i}, v{AC+4*(4+i)}, vcc")
    for i in range(4): e(f"v_perm_b32 v{4+i}, v{4+i}, v{8+i}, s64")
    e("s_mov_b64 exec, 0xffffffff")
    e("buffer_store_dwordx4 v[4:7], v24, s[28:31], s56 offen sc1")
    e("s_mov_b64 exec, -1")
    e("s_lshl_b32 s57, s54, 2"); e("v_add_u32 v25, s57, v21")
    e(f"ds_write_b32 v25, v22 offset:{F_PUB3*4}")
    if o["stamps"]: e("s_memrealtime s[86:87]")
    e("s_waitcnt lgkmcnt(0)")
    dump_stamps(cnts=[(4, 68), (5, 69)])
    e("s_endpgm")
    VMAX = AC + 32

    e.label("L_loader")
    if o["prio"]: e("s_setprio 2")
    srd(36, 6, 67108864); srd(40, 8, 67108864); srd(44, 12, 8388608)
    e("s_sub_u32 s52, s3, 4")
    if o["pretouch"]:
        lp = L("pt1"); lq2 = L("pt2")
        e("v_lshlrev_b32 v24, 4, v0"); e("v_add_u32 v25, 4096, v24")
        e("s_cmp_lg_u32 s52, 0"); e(f"s_cbranch_scc1 {lp}")
        e("s_lshr_b32 s60, s48, 1"); e("s_lshl_b32 s60, s60, 3"); e("s_and_b32 s61, s49, 1"); e("s_lshl_b32 s61, s61, 2"); e("s_add_u32 s60, s60, s61")
        e("s_lshl_b32 s60, s60, 11"); e(f"s_add_u32 s60, s60, {QB}")
        for n in range(8): e(f"buffer_load_dwordx4 v[{28+4*n}:{31+4*n}], v{24 if n < 4 else 25}, s[28:31], s60 offen offset:{(n%4)*1024} sc1")
        e("s_lshr_b32 s60, s49, 3"); e("s_lshl_b32 s60, s60, 3"); e("s_add_u32 s60, s60, s48"); e("s_lshl_b32 s60, s60, 13"); e(f"s_add_u32 s60, s60, {FB}")
        e("v_lshlrev_b32 v24, 7, v0")
        e("buffer_load_dword v60, v24, s[28:31], s60 offen sc1")
        e(f"s_branch {lq2}")
        e.label(lp)
        e("s_lshr_b32 s60, s49, 2"); e("s_lshl_b32 s60, s60, 3"); e("s_add_u32 s60, s60, s48")
        e("s_lshl_b32 s61, s60, 13"); e(f"s_add_u32 s61, s61, {OB}")
        for n in range(8): e(f"buffer_load_dwordx4 v[{28+4*n}:{31+4*n}], v{24 if n < 4 else 25}, s[28:31], s61 offen offset:{(n%4)*1024} sc1")
        e("s_lshr_b32 s61, s60, 3"); e("s_lshl_b32 s61, s61, 12"); e(f"s_add_u32 s61, s61, {LB}")
        e("v_and_b32 v24, 31, v0"); e("v_lshlrev_b32 v24, 7, v24")
        e("buffer_load_dword v60, v24, s[28:31], s61 offen sc1")
        e.label(lq2)
    e("s_lshr_b32 s53, s48, 1"); e("s_lshl_b32 s53, s53, 24"); e("s_and_b32 s54, s48, 1"); e("s_lshl_b32 s54, s54, 4"); e("s_lshr_b32 s55, s49, 1"); e("s_add_u32 s54, s54, s55")
    e("s_lshl_b32 s54, s54, 15"); e("s_add_u32 s53, s53, s54"); e(f"s_add_u32 s53, s53, {KEY0*256}")
    if not o["nshare"]:
        e("s_and_b32 s54, s49, 1"); e("s_lshl_b32 s54, s54, 22"); e("s_sub_u32 s53, s53, s54")
    e("s_lshl_b32 s54, s52, 14"); e("s_add_u32 s53, s53, s54")
    e("s_lshr_b32 s55, s49, 2"); e("s_lshl_b32 s55, s55, 3"); e("s_add_u32 s55, s55, s48"); e("s_lshl_b32 s55, s55, 17")
    e("s_and_b32 s56, s49, 3"); e("s_lshl_b32 s56, s56, 9"); e("s_add_u32 s55, s55, s56")
    e("s_lshl_b32 s56, s52, 16"); e("s_add_u32 s55, s55, s56")
    e("s_lshl_b32 s57, s52, 14")
    for m in range(4):
        e(f"v_add_u32 v4, {4*m}, v2"); e("v_xor_b32 v4, v4, v3"); e("v_lshlrev_b32 v4, 4, v4"); e("v_lshlrev_b32 v5, 8, v2"); e(f"v_add_u32 v{8+m}, v4, v5")
    for m in range(2):
        e(f"v_add_u32 v4, {4*m}, v2"); e("v_lshrrev_b32 v5, 1, v3"); e("v_xor_b32 v4, v4, v5"); e("v_lshlrev_b32 v4, 1, v4"); e("v_and_b32 v5, 1, v3"); e("v_or_b32 v4, v4, v5")
        e("v_lshlrev_b32 v4, 4, v4"); e("v_lshlrev_b32 v5, 8, v2"); e(f"v_add_u32 v{12+m}, v4, v5")
    e("v_lshrrev_b32 v6, 5, v0"); e("v_and_b32 v7, 31, v0")
    for m in range(4):
        e("v_lshlrev_b32 v4, 2, v6"); e(f"v_add_u32 v4, {m}, v4"); e("v_lshrrev_b32 v5, 1, v7"); e("v_xor_b32 v4, v4, v5"); e("v_lshlrev_b32 v4, 1, v4")
        e("v_and_b32 v5, 1, v7"); e("v_or_b32 v4, v4, v5"); e("v_lshlrev_b32 v4, 4, v4"); e("v_lshlrev_b32 v5, 11, v6"); e(f"v_add_u32 v{16+m}, v4, v5")
    e("s_lshl_b32 s58, s52, 2"); e("v_add_u32 v20, s58, v21")
    stamp(1)
    e("s_barrier")
    stamp(2)
    W = o["win"]; WKV = o["winkv"]
    seq = [("K", m) for m in range(16)] + [("V", m) for m in range(16)] + [("W", m) for m in range(16)]
    st = dict(landed=-1)
    def land(upto):
        for x in range(st["landed"] + 1, upto + 1):
            if x == 15: set_flag(F_K, 20, 22); stamp(3)
            if x == 31: set_flag(F_V, 20, 22); stamp(4)
        st["landed"] = max(st["landed"], upto)
    for i, (kind, m) in enumerate(seq):
        w_ = WKV if i < 32 else W
        if i == 16 and o["hold"]:
            wait_flags(F_P1, 4, 21, 24)
        if i == 16 + o["vi"]:
            set_flag(F_VI, 20, 22)
        if i == 32 and o["holdw"] == 1:
            e("s_waitcnt vmcnt(0)"); land(31)
            wait_flags(F_QF, 4, 21, 24)
        if i == 32 and o["holdw"] == 3:
            pass
        if i == 32 and o["holdw"] == 2:
            wait_flags(F_P1, 4, 21, 24)
        if i - st["landed"] - 1 > w_ - 1:
            e(f"s_waitcnt vmcnt({w_-1})"); land(i - w_)
        if kind == "K":
            e(f"s_add_u32 m0, s57, {KL + m*1024}"); e(f"s_add_u32 s58, s53, {m*1024}")
            e(f"buffer_load_dwordx4 v{8 + (m & 3)}, s[36:39], s58 offen{NT} lds")
        elif kind == "V":
            e(f"s_add_u32 m0, s57, {VL + m*1024}"); e(f"s_add_u32 s58, s53, {m*1024}")
            e(f"buffer_load_dwordx4 v{12 + (m & 1)}, s[40:43], s58 offen{NT} lds")
        else:
            e(f"s_add_u32 m0, s57, {WO + m*1024}"); e(f"s_add_u32 s58, s55, {m*4096}")
            e(f"buffer_load_dwordx4 v{16 + ((m >> 1) & 3)}, s[44:47], s58 offen{NT} lds")
    for x in (15, 31):
        if st["landed"] < x:
            e(f"s_waitcnt vmcnt({47-x})"); land(x)
    e("s_waitcnt vmcnt(0)"); set_flag(F_WO, 20, 22); stamp(5)
    e("s_waitcnt lgkmcnt(0)")
    dump_stamps()
    e("s_endpgm")

    e.label("L_bbranch")
    srd(36, 16, 7168); srd(40, 18, 7168); srd(44, 20, 7168)
    e("s_sub_u32 s52, s3, 6")
    e("s_lshr_b32 s53, s2, 4"); e("s_and_b32 s54, s2, 15")
    e("s_load_dword s59, s[22:23], 0")
    e("s_barrier")
    if o["so"]:
        e("s_endpgm")
    e("v_lshlrev_b32 v23, 1, v0"); e("s_lshl_b32 s55, s53, 7")
    e("buffer_load_ushort v12, v23, s[32:35], s55 offen")
    e("s_mul_i32 s56, s54, 448"); e("s_mul_i32 s57, s52, 224"); e("s_add_u32 s56, s56, s57")
    e("v_lshlrev_b32 v23, 2, v0")
    e("buffer_load_dword v40, v23, s[36:39], s56 offen"); e("buffer_load_dword v41, v23, s[40:43], s56 offen"); e("buffer_load_dword v42, v23, s[44:47], s56 offen")
    e(f"v_mov_b32 v23, {LNS}")
    k1 = -2.0 * math.sqrt(2.0 / math.pi) * math.log2(math.e); k2 = k1 * 0.044715
    e(f"v_mov_b32 v92, {f32bits(k1):#x}"); e(f"v_mov_b32 v93, {f32bits(k2):#x}")
    e("v_mov_b32 v94, 1.0"); e("v_mov_b32 v95, 1.0"); e("v_mov_b32 v90, 0xffff0000")
    for i in range(4): e(f"v_mov_b32 v{96+i}, 0")
    wait_flags(F_LN2, 1, 21, 28, extra=lambda: (e("ds_read_b128 v[32:35], v23"), e(f"ds_read_b32 v29, v21 offset:{F_T*4}")), sleep=2)
    e(f"v_readfirstlane_b32 s{sT}, v29")
    e("s_waitcnt vmcnt(0)")
    stamp(1)
    e("v_lshlrev_b32 v14, 16, v12")
    e("v_sub_f32 v16, v14, v32"); bf16r(16, 16); e("v_mul_f32 v16, v16, v33"); bf16r(16, 16)
    e("v_sub_f32 v16, v16, v34"); bf16r(16, 16); e("v_mul_f32 v16, v16, v35"); bf16r(16, 16)
    NP_ = 56
    def rl(k, par):
        for a_, vr in enumerate((40, 41, 42)): e(f"v_readlane_b32 s{64+4*par+a_}, v{vr}, {k}")
    def block(ks):
        base = [108, 118]; accs = ["v[96:97]", "v[98:99]"]
        sw1 = [72, 76]; sw2 = [74, 78]
        for d, k in enumerate(ks):
            r = 64 + 4 * d
            e(f"s_lshl_b32 s{sw1[d]}, s{r}, 16"); e(f"s_and_b32 s{sw1[d]+1}, s{r}, 0xffff0000")
            e(f"s_lshl_b32 s{sw2[d]}, s{r+2}, 16"); e(f"s_and_b32 s{sw2[d]+1}, s{r+2}, 0xffff0000")
            b_ = base[d]
            e(f"v_lshlrev_b32 v{b_+8}, 16, s{r+1}"); e(f"v_and_b32 v{b_+9}, s{r+1}, v90")
        nxt = [k + 2 for k in ks if k + 2 < NP_]
        U = [f"v[{b}:{b+1}]" for b in base]; T2 = [f"v[{b+2}:{b+3}]" for b in base]; Z = [f"v[{b+4}:{b+5}]" for b in base]; G = [f"v[{b+6}:{b+7}]" for b in base]; Bv = [f"v[{b+8}:{b+9}]" for b in base]
        n = len(ks)
        for d in range(n): e(f"v_pk_fma_f32 {U[d]}, v[16:17], s[{sw1[d]}:{sw1[d]+1}], {Bv[d]} op_sel_hi:[0,1,1]")
        for d, k in enumerate(nxt): rl(k, d)
        for d in range(n): e(f"v_pk_mul_f32 {T2[d]}, {U[d]}, {U[d]}")
        for d in range(n): e(f"v_pk_fma_f32 {T2[d]}, {T2[d]}, v[92:93], v[92:93] op_sel:[0,1,0] op_sel_hi:[1,1,0]")
        for d in range(n): e(f"v_pk_mul_f32 {Z[d]}, {U[d]}, {T2[d]}")
        for d in range(n): e(f"v_pk_mul_f32 {G[d]}, {U[d]}, s[{sw2[d]}:{sw2[d]+1}]")
        for d in range(n):
            b_ = base[d]; e(f"v_exp_f32 v{b_+4}, v{b_+4}"); e(f"v_exp_f32 v{b_+5}, v{b_+5}")
        e.nop(1)
        for d in range(n): e(f"v_pk_add_f32 {Z[d]}, {Z[d]}, v[94:95]")
        for d in range(n):
            b_ = base[d]; e(f"v_rcp_f32 v{b_+4}, v{b_+4}"); e(f"v_rcp_f32 v{b_+5}, v{b_+5}")
        e.nop(1)
        for d in range(n): e(f"v_pk_fma_f32 {accs[d]}, {G[d]}, {Z[d]}, {accs[d]}")
    rl(0, 0); rl(1, 1); e.nop(2)
    for k in range(0, NP_, 2): block([k, k + 1])
    e("v_add_f32 v96, v96, v97"); e("v_add_f32 v98, v98, v99"); e("v_add_f32 v96, v96, v98")
    stamp(3)
    e("v_lshlrev_b32 v24, 2, v0"); e(f"v_add_u32 v24, {YP}, v24")
    e("s_cmp_eq_u32 s52, 0"); e("s_cbranch_scc1 L_final")
    e("ds_write_b32 v24, v96")
    set_flag(F_G, 21, 22)
    e("s_waitcnt lgkmcnt(0)")
    dump_stamps()
    e("s_endpgm")
    e.label("L_final")
    tagbytes(60)
    e("s_mov_b32 s64, 0x07060500")
    for k in range(4): e(f"v_mov_b32 v{8+k}, s{60+k}")
    wait_flags(F_G, 1, 21, 28, extra=lambda: e("ds_read_b32 v29, v24"))
    e("v_add_f32 v96, v96, v29")
    e("v_mov_b32 v97, v96"); e.nop(2); e("v_permlane16_swap_b32 v96, v97")
    e("v_mov_b32 v98, v96"); e("v_mov_b32 v99, v97"); e.nop(2)
    e("v_permlane32_swap_b32 v96, v98"); e("v_permlane32_swap_b32 v97, v99")
    e.nop(1)
    for k in range(4): e(f"v_perm_b32 v{4+k}, v{96+k}, v{8+k}, s64")
    e("s_lshl_b32 s56, s2, 8"); e(f"s_add_u32 s56, s56, {GB}")
    e("v_lshlrev_b32 v24, 4, v0")
    e("s_mov_b64 exec, 0xffff")
    e("buffer_store_dwordx4 v[4:7], v24, s[28:31], s56 offen sc1")
    e("s_mov_b64 exec, -1")
    stamp(4)
    e("s_lshr_b32 s53, s49, 3"); e("s_lshl_b32 s53, s53, 3"); e("s_add_u32 s53, s53, s48")
    e("s_and_b32 s54, s49, 7")
    e("s_lshr_b32 s55, s53, 1"); e("s_lshl_b32 s55, s55, 6"); e("s_and_b32 s56, s53, 1"); e("s_lshl_b32 s56, s56, 3"); e("s_add_u32 s55, s55, s56"); e("s_add_u32 s55, s55, s54")
    e("v_lshlrev_b32 v25, 5, v2"); e("s_lshl_b32 s55, s55, 1")
    e("buffer_load_ushort v12, v25, s[32:35], s55 offen")
    e("v_lshlrev_b32 v26, 2, v3"); e("v_add_u32 v26, v26, v2"); e("v_lshlrev_b32 v26, 8, v26")
    e("s_lshr_b32 s56, s53, 1"); e("s_lshl_b32 s56, s56, 12"); e("s_and_b32 s57, s53, 1"); e("s_lshl_b32 s57, s57, 3"); e("s_add_u32 s57, s57, s54"); e("s_lshl_b32 s57, s57, 4")
    e("s_add_u32 s57, s57, s56"); e(f"s_add_u32 s57, s57, {GB}")
    e("v_lshlrev_b32 v24, 7, v0")
    e("s_lshl_b32 s56, s53, 13"); e("s_lshl_b32 s58, s54, 4"); e("s_add_u32 s56, s56, s58"); e(f"s_add_u32 s56, s56, {FB}")
    srd(36, 24, 2048)
    wait_flags(F_O, 1, 21, 28, sleep=4)
    def chk4(b, t):
        e(f"v_xor_b32 v{t}, s60, v{b}"); e(f"v_bitop3_b32 v{t}, v{t}, v{b+1}, s61 bitop3:0xf6"); e(f"v_bitop3_b32 v{t}, v{t}, v{b+2}, s62 bitop3:0xf6")
        e(f"v_bitop3_b32 v{t}, v{t}, v{b+3}, s63 bitop3:0xf6"); e(f"v_and_b32 v{t}, 0xff, v{t}"); e(f"v_cmp_ne_u32 vcc, 0, v{t}")
    if o["e3pre"]: e("buffer_load_dwordx4 v[44:47], v24, s[28:31], s56 offen sc1")
    masked_poll([dict(issue=lambda: e("buffer_load_dwordx4 v[32:35], v26, s[28:31], s57 offen sc1"), check=lambda: chk4(32, 60), mask=70, init=(0x000f000f, 0x000f000f))])
    e("v_permlane32_swap_b32 v32, v34"); e("v_permlane32_swap_b32 v33, v35")
    e("v_add_f32 v32, v32, v34"); e("v_add_f32 v33, v33, v35"); e.nop(2)
    e("v_permlane16_swap_b32 v32, v33"); e("v_add_f32 v96, v32, v33"); e.nop(2)
    e(f"v_add_f32_dpp v96, v96, v96 quad_perm:[1,0,3,2] {DPP}"); e.nop(2)
    e(f"v_add_f32_dpp v96, v96, v96 quad_perm:[2,3,0,1] {DPP}")
    bf16r(96, 96)
    e("s_and_b32 s59, s59, 0xffff"); e("s_lshl_b32 s59, s59, 16")
    e("v_add_f32 v96, s59, v96"); bf16r(96, 96)
    e(f"v_mul_f32 v97, {f32bits(-math.log2(math.e)):#x}, v96"); e("v_exp_f32 v97, v97"); e.nop(1); e("v_add_f32 v97, 1.0, v97"); e("v_rcp_f32 v97, v97"); e.nop(1)
    e("v_mul_f32 v96, v96, v97"); bf16r(96, 96)
    e("v_lshlrev_b32 v14, 16, v12")
    stamp(1)
    wait_flags(F_PUB3, 2, 21, 28, sleep=1)
    stamp(5)
    if o["prio"]: e("s_setprio 3")
    def mk_e3():
        def issue(d): e(f"buffer_load_dwordx4 v[{48+4*d}:{51+4*d}], v24, s[28:31], s56 offen sc1")
        def take(d):
            for i in range(4): e(f"v_mov_b32 v{28+i}, v{48+4*d+i}")
        return dict(issue=issue, check=(lambda d: chk4(48 + 4 * d, 100)), take=take, mask=70)
    if o["dl3"]: e(f"s_sleep {o['dl3']}")
    ring_poll(o["d3"], [mk_e3()], o["sl3"], cnt=69)
    stamp(6)
    e.nop(1)
    e("v_permlane32_swap_b32 v28, v30"); e("v_permlane32_swap_b32 v29, v31")
    e("v_add_f32 v28, v28, v30"); e("v_add_f32 v29, v29, v31"); e.nop(2)
    e("v_permlane16_swap_b32 v28, v29"); e("v_add_f32 v28, v28, v29")
    allreduce_row16(28, "v_add_f32")
    bf16r(28, 28)
    e("v_mul_f32 v28, v28, v96"); bf16r(28, 28)
    e("v_add_f32 v28, v28, v14")
    e("v_cvt_pk_bf16_f32 v28, v28, v28")
    e("s_mov_b32 exec_lo, 0x00010001"); e("s_mov_b32 exec_hi, 0x00010001")
    e("buffer_store_short v28, v25, s[36:39], s55 offen")
    l = L("ne"); e("s_cmp_lg_u32 s2, 0"); e(f"s_cbranch_scc1 {l}")
    e("s_mov_b64 exec, 1")
    e(f"s_mul_i32 s57, s{sT}, {TINV:#x}"); e("v_mov_b32 v20, s57"); e("v_mov_b32 v23, 0")
    e("buffer_store_dword v20, v23, s[28:31], 0 offen sc1")
    e.label(l)
    e("s_mov_b64 exec, -1")
    stamp(7)
    dump_stamps(cnts=[(2, 69)])
    e("s_endpgm")
    e.label("L_abort")
    e("s_endpgm")
    e.label("L_exit")

    probs = check(a.lines)
    body = a.text()
    nv = max(VMAX, VF + 32, E2MAX, PB + 8 * o['d1'], 128)
    nv = (nv + 7) // 8 * 8
    assert nv <= 256, nv
    hdr = open("cdna_kernels/" + KN + ".s.ref").read().split("; Override launch")[0]
    out = hdr + f"; Override launch geometry by editing the next line.\n; @launch grid=(256,1,1) block=(512,1,1) lds={LDS_BYTES}\n"
    out += f""".amdgcn_target "amdgcn-amd-amdhsa--gfx950"
.text
.globl {KN}_kernel
.p2align 8
.type {KN}_kernel,@function
{KN}_kernel:
{body}
    s_endpgm
.section .rodata,"a"
.p2align 6
.amdhsa_kernel {KN}_kernel
  .amdhsa_next_free_vgpr {nv}
  .amdhsa_next_free_sgpr 100
  .amdhsa_accum_offset {nv}
  .amdhsa_group_segment_fixed_size 0
  .amdhsa_kernarg_size 104
  .amdhsa_user_sgpr_count 2
  .amdhsa_user_sgpr_kernarg_segment_ptr 1
  .amdhsa_system_sgpr_workgroup_id_x 1
.end_amdhsa_kernel
"""
    return out, probs

if __name__ == "__main__":
    opt = {}
    name = sys.argv[1]
    for kv in sys.argv[2:]:
        k, v = kv.split("="); opt[k] = int(v, 0)
    s, probs = gen(opt)
    open(name, "w").write(s)
    for p in probs: print("HAZARD:", p)
```

```python
import sys, math, struct
from asmlib import Asm, check
KN = "recurrent_scan__sliding_block_cached__mixer_token_mlp__decode"
def f32bits(x): return struct.unpack("<I", struct.pack("<f", x))[0]

DEF = dict(stamps=0, nt=1, win=12, winkv=16, spinmax=1 << 20, prio=1, dl2=24, dl3=12, local=1, fb1=12, slp=1, bprio=1, bearly=1, bilp=2, wpre=3)

QB, QL, GB, OB, FB, STB = 0x10000, 0x20000, 0x30000, 0x40000, 0x100000, 0x200000
WQ, KL, VL, WO = 0, 32768, 65536, 98304
QF = 131072; OP = QF + 4096; ML = OP + 8192; FL = ML + 128; OX = FL + 128; SX = OX + 1024
XN = SX + 64; LNS = XN + 512; YP = LNS + 16; LDS_BYTES = YP + 256
F_QF, F_O, F_OX, F_K, F_V, F_WO, F_VI, F_MP, F_G, F_XN, F_LN2, F_T, F_QPUB, F_PUB3, F_P1 = 0, 4, 8, 12, 14, 16, 18, 20, 22, 23, 24, 25, 26, 27, 28
KEY0 = 61440
TMUL = 0x9e3779b1
TINV = pow(TMUL, -1, 1 << 32)
vE1V, vE1L, vQFR, vKA, vVA, vOPW, vMLW, vOPR, vMLR, vMST, vL16, vWOA, vE3V, vOXW, vOXR, vFLW = 192, 194, 196, 197, 201, 209, 210, 211, 212, 213, 214, 216, 220, 221, 222, 223
vMASK = 112
sMS, sE2, sE3, sE1, sE1G = 40, 41, 42, 43, 44

def gen(opt):
    o = dict(DEF); o.update(opt)
    assert o["winkv"] <= 16
    NT = " nt" if o["nt"] else ""
    a = Asm(); e = a
    uid = [0]
    def L(p):
        uid[0] += 1; return f"L_{p}_{uid[0]}"
    sT, sCNT = 50, 51
    DPP = "row_mask:0xf bank_mask:0xf"
    def srd(d, lo, size):
        e(f"s_mov_b32 s{d}, s{lo}"); e(f"s_and_b32 s{d+1}, s{lo+1}, 0xffff"); e(f"s_mov_b32 s{d+2}, {size}"); e(f"s_mov_b32 s{d+3}, 0x20000")
    def stamp(k):
        if o["stamps"]: e(f"s_memrealtime s[{80+2*k}:{81+2*k}]")
    def dump_stamps(cnts=None):
        if not o["stamps"]: return
        e("s_waitcnt lgkmcnt(0)")
        for (slot, sreg) in (cnts or []):
            e(f"s_mov_b32 s{80+2*slot}, s{sreg}"); e(f"s_mov_b32 s{81+2*slot}, 0")
        e("s_mov_b64 exec, -1")
        e("s_waitcnt vmcnt(0)")
        e("s_lshl_b32 s76, s2, 3"); e("s_add_u32 s76, s76, s3"); e("s_lshl_b32 s76, s76, 6"); e(f"s_add_u32 s76, s76, {STB}")
        for k in range(8):
            e(f"v_mov_b32 v{2*k+4}, s{80+2*k}"); e(f"v_mov_b32 v{2*k+5}, s{81+2*k}")
        e("v_mov_b32 v20, 0")
        e("s_mov_b64 exec, 1")
        for k in range(4):
            e(f"buffer_store_dwordx4 v[{4*k+4}:{4*k+7}], v20, s[28:31], s76 offen offset:{16*k}")
        e("s_waitcnt vmcnt(0)")
    def spin_tick():
        e(f"s_sub_u32 s{sCNT}, s{sCNT}, 1"); e("s_cbranch_scc1 L_abort")
    def and_flags(vt, n):
        if n == 2: e(f"v_and_b32 v{vt}, v{vt}, v{vt+1}")
        if n == 4:
            e(f"v_and_b32 v{vt}, v{vt}, v{vt+1}"); e(f"v_and_b32 v{vt+2}, v{vt+2}, v{vt+3}"); e(f"v_and_b32 v{vt}, v{vt}, v{vt+2}")
    def read_flags(first, n, vt):
        if n == 1: e(f"ds_read_b32 v{vt}, v21 offset:{first*4}")
        elif n == 2: e(f"ds_read_b64 v[{vt}:{vt+1}], v21 offset:{first*4}")
        else: e(f"ds_read_b128 v[{vt}:{vt+3}], v21 offset:{first*4}")
    def wait_flags(first, n, vt, extra=None, sleep=0, lowprio=None):
        if lowprio and o["prio"]: e(f"s_setprio {lowprio[0]}")
        l = L("wf"); e.label(l)
        read_flags(first, n, vt)
        if extra: extra()
        spin_tick()
        if sleep: e(f"s_sleep {sleep}")
        e("s_waitcnt lgkmcnt(0)")
        and_flags(vt, n)
        e(f"v_cmp_ne_u32 vcc, 0, v{vt}")
        e(f"s_cbranch_vccz {l}")
        if lowprio and o["prio"]: e(f"s_setprio {lowprio[1]}")
    def set_flag(idx, vaddr=21):
        e(f"ds_write_b32 v{vaddr}, v22 offset:{idx*4}")
    def bf16r(dst, src):
        e(f"v_cvt_pk_bf16_f32 v{dst}, v{src}, v{src}"); e(f"v_lshlrev_b32 v{dst}, 16, v{dst}")
    def allreduce_row16(v, op, shs=(8, 4, 2, 1)):
        for sh in shs:
            e.nop(2); e(f"{op}_dpp v{v}, v{v}, v{v} row_ror:{sh} {DPP}")
    def allreduce_xrow(v, t, op):
        e(f"v_mov_b32 v{t}, v{v}"); e.nop(2); e(f"v_permlane32_swap_b32 v{v}, v{t}"); e(f"{op} v{v}, v{v}, v{t}")
        e(f"v_mov_b32 v{t}, v{v}"); e.nop(2); e(f"v_permlane16_swap_b32 v{v}, v{t}"); e(f"{op} v{v}, v{v}, v{t}")
    def reduce_scatter4(b):
        e(f"v_permlane32_swap_b32 v{b}, v{b+2}"); e(f"v_permlane32_swap_b32 v{b+1}, v{b+3}")
        e(f"v_add_f32 v{b}, v{b}, v{b+2}"); e(f"v_add_f32 v{b+1}, v{b+1}, v{b+3}"); e.nop(2)
        e(f"v_permlane16_swap_b32 v{b}, v{b+1}"); e(f"v_add_f32 v{b}, v{b}, v{b+1}")
    def ln_stats(xf, t0, vm, vrs):
        s, t = t0, t0 + 1
        e(f"v_add_f32 v{s}, v{xf}, v{xf+1}"); e(f"v_add_f32 v{t}, v{xf+2}, v{xf+3}")
        for k in range(4, 16, 2):
            e(f"v_add_f32 v{s}, v{s}, v{xf+k}"); e(f"v_add_f32 v{t}, v{t}, v{xf+k+1}")
        e(f"v_add_f32 v{s}, v{s}, v{t}")
        allreduce_row16(s, "v_add_f32"); allreduce_xrow(s, t, "v_add_f32")
        e(f"v_mul_f32 v{s}, {f32bits(1/1024):#x}, v{s}")
        e(f"v_sub_f32 v{t}, v{xf}, v{s}"); e(f"v_sub_f32 v{t0+3}, v{xf+1}, v{s}")
        e(f"v_mul_f32 v{t0+2}, v{t}, v{t}"); e(f"v_mul_f32 v{t0+4}, v{t0+3}, v{t0+3}")
        for k in range(2, 16, 2):
            e(f"v_sub_f32 v{t}, v{xf+k}, v{s}"); e(f"v_sub_f32 v{t0+3}, v{xf+k+1}, v{s}")
            e(f"v_fmac_f32 v{t0+2}, v{t}, v{t}"); e(f"v_fmac_f32 v{t0+4}, v{t0+3}, v{t0+3}")
        e(f"v_add_f32 v{t0+2}, v{t0+2}, v{t0+4}")
        allreduce_row16(t0 + 2, "v_add_f32"); allreduce_xrow(t0 + 2, t, "v_add_f32")
        e(f"v_mul_f32 v{t0+2}, {f32bits(1/1024):#x}, v{t0+2}")
        bf16r(vm, s)
        bf16r(t, t0 + 2)
        e(f"v_add_f32 v{t}, {f32bits(1e-5):#x}, v{t}")
        bf16r(t, t)
        e(f"v_sqrt_f32 v{t}, v{t}"); e.nop(1)
        bf16r(t, t)
        e(f"v_rcp_f32 v{vrs}, v{t}"); e.nop(1)
    def unpack(dlo, dhi, src):
        e(f"v_lshlrev_b32 v{dlo}, 16, v{src}"); e(f"v_and_b32 v{dhi}, 0xffff0000, v{src}")
    def tagbytes(s0):
        for k in range(4):
            e(f"s_lshr_b32 s{s0+k}, s{sT}, {8*k}"); e(f"s_and_b32 s{s0+k}, s{s0+k}, 0xff")
    def chk4(b, t):
        e(f"v_xor_b32 v{t}, s60, v{b}"); e(f"v_bitop3_b32 v{t}, v{t}, v{b+1}, s61 bitop3:0xf6"); e(f"v_bitop3_b32 v{t}, v{t}, v{b+2}, s62 bitop3:0xf6")
        e(f"v_bitop3_b32 v{t}, v{t}, v{b+3}, s63 bitop3:0xf6"); e(f"v_and_b32 v{t}, 0xff, v{t}"); e(f"v_cmp_ne_u32 vcc, 0, v{t}")
    def mpoll(loads, cnt=None, pre=None, shadow=None):
        top = L("mp"); ent = L("me")
        for ld in loads:
            ini = ld.get('init', -1); m = ld['mask']
            if ini == -1: e(f"s_mov_b64 s[{m}:{m+1}], -1")
            else: e(f"s_mov_b32 s{m}, {ini[0]:#x}"); e(f"s_mov_b32 s{m+1}, {ini[1]:#x}")
        if cnt: e(f"s_mov_b32 s{cnt}, 0")
        for ld in loads:
            m = ld['mask']
            if ld.get('init', -1) != -1: e(f"s_mov_b64 exec, s[{m}:{m+1}]")
            ld['issue']()
            if ld.get('init', -1) != -1: e("s_mov_b64 exec, -1")
        if shadow: shadow()
        e(f"s_branch {ent}")
        e.label(top)
        spin_tick()
        if pre: pre()
        for ld in loads:
            sk = L("sk"); m = ld['mask']
            e(f"s_mov_b64 exec, s[{m}:{m+1}]"); e(f"s_cbranch_execz {sk}"); ld['issue'](); e.label(sk)
        e("s_mov_b64 exec, -1")
        e.label(ent)
        if cnt: e(f"s_add_u32 s{cnt}, s{cnt}, 1")
        e("s_waitcnt vmcnt(0)")
        e("s_mov_b64 s[66:67], 0")
        for ld in loads:
            sk = L("sc"); m = ld['mask']
            e(f"s_mov_b64 exec, s[{m}:{m+1}]"); e(f"s_cbranch_execz {sk}")
            ld['check']()
            if ld.get('take'):
                e("s_andn2_b64 exec, exec, vcc"); sk2 = L("sd"); e(f"s_cbranch_execz {sk2}"); ld['take'](); e.label(sk2)
            e(f"s_mov_b64 s[{m}:{m+1}], vcc"); e("s_or_b64 s[66:67], s[66:67], vcc")
            e.label(sk)
        e("s_mov_b64 exec, -1")
        e("s_cmp_lg_u64 s[66:67], 0"); e(f"s_cbranch_scc1 {top}")
    LOW = (0, 3)

    e("s_cmp_ge_u32 s2, 256"); e("s_cbranch_scc1 L_exit")
    stamp(0)
    e("s_load_dwordx16 s[4:19], s[0:1], 0")
    e("s_load_dwordx4 s[20:23], s[0:1], 64")
    e("s_load_dwordx2 s[24:25], s[0:1], 80")
    e("s_load_dwordx2 s[26:27], s[0:1], 96")
    e("v_lshrrev_b32 v1, 6, v0"); e("v_and_b32 v0, 63, v0")
    e("v_lshrrev_b32 v2, 4, v0"); e("v_and_b32 v3, 15, v0")
    e("v_readfirstlane_b32 s3, v1")
    e("s_and_b32 s48, s2, 7"); e("s_lshr_b32 s49, s2, 3")
    e(f"s_mov_b32 s{sCNT}, {o['spinmax']}")
    e(f"v_mov_b32 v21, {FL}"); e("v_mov_b32 v22, 1")
    e("s_cmp_ge_u32 s3, 6"); e("s_cbranch_scc1 L_bbranch")
    e("s_cmp_ge_u32 s3, 4"); e("s_cbranch_scc1 L_loader")

    def common_srd():
        e("s_waitcnt lgkmcnt(0)")
        srd(28, 26, 268435456)
        srd(32, 4, 2048)

    def prep():
        e("s_lshr_b32 s52, s48, 1"); e("s_lshl_b32 s52, s52, 3"); e("s_and_b32 s54, s49, 1"); e("s_lshl_b32 s54, s54, 2"); e("s_add_u32 s52, s52, s54")
        e("s_and_b32 s54, s48, 1"); e("s_lshl_b32 s54, s54, 4"); e("s_lshr_b32 s55, s49, 1"); e("s_add_u32 s55, s55, s54")
        e("s_lshl_b32 s57, s3, 2"); e(f"v_add_u32 v{vFLW}, s57, v21")
        e("v_lshrrev_b32 v28, 2, v3")
        for u in range(4):
            e(f"v_cmp_eq_u32 vcc, {u}, v28"); e.nop(2); e(f"v_cndmask_b32 v{vMASK+u}, 0, -1, vcc")
        e("v_lshrrev_b32 v28, 3, v0"); e("v_and_b32 v29, 7, v0")
        for i in range(2):
            e(f"v_add_u32 v30, {8*i}, v28")
            e("v_and_b32 v31, 3, v30"); e("v_lshlrev_b32 v31, 2, v31"); e(f"v_lshrrev_b32 v{vE1V+i}, 2, v30"); e(f"v_add_u32 v31, v31, v{vE1V+i}"); e("v_lshlrev_b32 v31, 9, v31")
            e(f"v_lshl_add_u32 v{vE1V+i}, v29, 4, v31")
            e("v_lshrrev_b32 v31, 1, v29"); e("v_lshl_add_u32 v31, v31, 4, v30"); e("v_lshlrev_b32 v31, 4, v31")
            e("v_and_b32 v30, 1, v29"); e("v_lshl_add_u32 v31, v30, 3, v31")
            e("s_lshl_b32 s57, s3, 10"); e(f"s_add_u32 s57, s57, {QF}"); e(f"v_add_u32 v{vE1L+i}, s57, v31")
        e(f"s_lshl_b32 s{sE1G}, s52, 11"); e("s_lshl_b32 s57, s3, 7"); e(f"s_add_u32 s{sE1G}, s{sE1G}, s57"); e(f"s_add_u32 s{sE1G}, s{sE1G}, {QB}")
        if o["local"]:
            e("s_xor_b32 s57, s48, s49"); e("s_and_b32 s57, s57, 1")
            e(f"s_mov_b32 s58, {QL - QB}"); e("s_cmp_eq_u32 s57, 0"); e("s_cselect_b32 s58, s58, 0"); e(f"s_add_u32 s{sE1}, s{sE1G}, s58")
        else: e(f"s_mov_b32 s{sE1}, s{sE1G}")
        e(f"v_lshlrev_b32 v{vL16}, 4, v0"); e(f"v_add_u32 v{vQFR}, {QF}, v{vL16}")
        e("s_lshl_b32 s57, s3, 13"); e(f"s_add_u32 s57, s57, {KL}")
        e("v_lshlrev_b32 v28, 8, v3"); e("v_add_u32 v28, s57, v28"); e("v_xor_b32 v29, v2, v3"); e(f"v_lshl_add_u32 v{vKA}, v29, 4, v28")
        for t in range(1, 4): e(f"v_xor_b32 v{vKA+t}, {t<<6}, v{vKA}")
        e("v_lshrrev_b32 v28, 2, v3"); e("v_lshl_add_u32 v28, v2, 2, v28")
        e("v_and_b32 v29, 7, v28"); e("v_lshlrev_b32 v29, 5, v29"); e("v_lshl_add_u32 v28, v28, 8, v29")
        e("v_and_b32 v29, 3, v3"); e("v_lshl_add_u32 v28, v29, 3, v28")
        e("s_lshl_b32 s57, s3, 13"); e(f"s_add_u32 s57, s57, {VL}"); e(f"v_add_u32 v{vVA}, s57, v28")
        for t in range(1, 8): e(f"v_xor_b32 v{vVA+t}, {t<<5}, v{vVA}")
        e("s_lshl_b32 s57, s3, 11"); e(f"s_add_u32 s57, s57, {OP}"); e(f"v_add_u32 v{vOPW}, s57, v{vL16}")
        e("s_lshl_b32 s57, s3, 3"); e(f"s_add_u32 s57, s57, {ML}"); e("v_lshlrev_b32 v28, 5, v3"); e(f"v_add_u32 v{vMLW}, s57, v28")
        e("s_and_b32 s57, s3, 1"); e("s_lshl_b32 s57, s57, 10"); e(f"s_add_u32 s57, s57, {OP}"); e(f"v_add_u32 v{vOPR}, s57, v{vL16}")
        e("v_and_b32 v28, 3, v3"); e("v_lshlrev_b32 v29, 5, v28"); e(f"v_add_u32 v{vMLR}, {ML}, v29")
        e("v_lshlrev_b32 v28, 14, v28"); e("v_lshrrev_b32 v29, 3, v3"); e("v_lshl_add_u32 v28, v29, 13, v28")
        e("v_bfe_u32 v29, v3, 2, 1"); e("v_lshl_add_u32 v29, v29, 2, v2"); e(f"v_lshl_add_u32 v{vMST}, v29, 4, v28")
        e(f"s_lshl_b32 s{sMS}, s52, 14"); e("s_lshl_b32 s57, s55, 8"); e(f"s_add_u32 s{sMS}, s{sMS}, s57"); e("s_and_b32 s57, s3, 1"); e("s_lshl_b32 s57, s57, 7")
        e(f"s_add_u32 s{sMS}, s{sMS}, s57"); e(f"s_add_u32 s{sMS}, s{sMS}, {OB}")
        e("s_lshr_b32 s56, s49, 2"); e("s_lshl_b32 s56, s56, 3"); e("s_add_u32 s56, s56, s48")
        e(f"s_lshl_b32 s{sE2}, s56, 13"); e("s_lshl_b32 s57, s3, 11"); e(f"s_add_u32 s{sE2}, s{sE2}, s57"); e(f"s_add_u32 s{sE2}, s{sE2}, {OB}")
        e("v_lshrrev_b32 v28, 2, v3"); e("v_lshl_add_u32 v29, v28, 2, v2"); e("v_lshlrev_b32 v29, 9, v29")
        e("v_and_b32 v30, 1, v2"); e("v_lshl_add_u32 v30, v30, 2, v28"); e("v_lshl_add_u32 v29, v30, 5, v29")
        e("v_and_b32 v30, 3, v3"); e("v_lshl_add_u32 v29, v30, 3, v29"); e(f"v_add_u32 v29, {WO}, v29")
        e("s_lshl_b32 s57, s3, 7"); e(f"v_xor_b32 v{vWOA}, s57, v29")
        for u in range(1, 4): e(f"v_xor_b32 v{vWOA+u}, {u<<5}, v{vWOA}")
        e("s_and_b32 s57, s49, 3"); e("s_lshl_b32 s57, s57, 3"); e("s_lshl_b32 s58, s3, 1"); e("s_add_u32 s57, s57, s58"); e(f"s_lshl_b32 s{sE3}, s57, 13")
        e("s_lshl_b32 s57, s56, 7"); e(f"s_add_u32 s{sE3}, s{sE3}, s57"); e(f"s_add_u32 s{sE3}, s{sE3}, {FB}")
        e("v_lshrrev_b32 v28, 3, v3"); e("v_lshlrev_b32 v28, 13, v28"); e("v_and_b32 v29, 7, v3"); e(f"v_lshl_add_u32 v{vE3V}, v29, 4, v28")
        e(f"v_add_u32 v{vOXR}, {OX}, v{vL16}"); e("s_lshl_b32 s57, s3, 2"); e(f"v_add_u32 v{vOXW}, s57, v{vOXR}")

    if o["prio"]: e("s_setprio 3")
    e("s_lshl_b32 s46, s48, 3"); e("s_and_b32 s47, s49, 7"); e("s_add_u32 s46, s46, s47"); e("s_lshr_b32 s47, s49, 3")
    e("s_cmp_eq_u32 s3, 0"); e("s_cbranch_scc1 L_qproj")
    e("s_cmp_eq_u32 s3, 1"); e("s_cbranch_scc1 L_ln")
    common_srd()
    e("s_barrier")
    prep()
    wait_flags(F_XN, 1, 28, extra=lambda: e(f"ds_read_b32 v29, v21 offset:{F_T*4}"), sleep=o["slp"], lowprio=LOW)
    e(f"v_readfirstlane_b32 s{sT}, v29")
    e("s_branch L_attn")
    e.label("L_ln")
    e("v_lshlrev_b32 v23, 5, v0"); e("v_mov_b32 v24, 0")
    common_srd()
    e("buffer_load_dwordx4 v[4:7], v23, s[32:35], 0 offen")
    e("buffer_load_dwordx4 v[8:11], v23, s[32:35], 0 offen offset:16")
    e("buffer_load_dword v20, v24, s[28:31], 0 offen sc1")
    e("s_barrier")
    e("s_lshl_b32 s54, s47, 4"); e("v_subrev_u32 v23, s54, v0"); e("v_lshlrev_b32 v23, 5, v23"); e(f"v_add_u32 v23, {XN}, v23")
    e("s_mov_b32 s56, 0xffff"); e("s_mov_b32 s57, 0"); e("s_lshl_b64 s[58:59], s[56:57], s54")
    e("s_waitcnt vmcnt(0)")
    stamp(2)
    e(f"v_readfirstlane_b32 s{sT}, v20")
    for k in range(8): unpack(24 + 2 * k, 25 + 2 * k, 4 + k)
    e(f"s_add_u32 s{sT}, s{sT}, 1"); e(f"s_mul_i32 s{sT}, s{sT}, {TMUL:#x}")
    ln_stats(24, 98, 104, 105)
    e(f"v_mov_b32 v20, s{sT}"); e(f"ds_write_b32 v21, v20 offset:{F_T*4}")
    for k in range(16): e(f"v_sub_f32 v{24+k}, v{24+k}, v104")
    for k in range(8): e(f"v_cvt_pk_bf16_f32 v{4+k}, v{24+2*k}, v{25+2*k}")
    for k in range(8): unpack(24 + 2 * k, 25 + 2 * k, 4 + k)
    for k in range(16): e(f"v_mul_f32 v{24+k}, v{24+k}, v105")
    for k in range(8): e(f"v_cvt_pk_bf16_f32 v{4+k}, v{24+2*k}, v{25+2*k}")
    e("s_mov_b64 exec, s[58:59]")
    e("ds_write_b128 v23, v[4:7]"); e("ds_write_b128 v23, v[8:11] offset:16")
    e("s_mov_b64 exec, -1")
    set_flag(F_XN)
    stamp(1)
    for k in range(8): unpack(24 + 2 * k, 25 + 2 * k, 4 + k)
    ln_stats(24, 98, 106, 107)
    e(f"v_mov_b32 v23, {LNS}"); e("ds_write_b128 v23, v[104:107]")
    set_flag(F_LN2)
    stamp(3)
    prep()
    e("s_branch L_attn")
    e.label("L_qproj")
    e("v_lshrrev_b32 v24, 3, v0"); e("v_and_b32 v25, 7, v0")
    e("v_lshrrev_b32 v26, 1, v25"); e("v_lshrrev_b32 v27, 1, v24"); e("v_and_b32 v27, 3, v27"); e("v_xor_b32 v26, v26, v27")
    e("v_lshlrev_b32 v26, 1, v26"); e("v_and_b32 v25, 1, v25"); e("v_or_b32 v26, v26, v25"); e("v_lshlrev_b32 v26, 4, v26")
    e("v_lshlrev_b32 v24, 13, v24"); e("v_add_u32 v24, v24, v26")
    e("s_lshl_b32 s56, s47, 21"); e("s_lshl_b32 s57, s46, 7"); e("s_add_u32 s56, s56, s57")
    e("s_waitcnt lgkmcnt(0)")
    srd(36, 10, 8388608)
    for n in range(32):
        e(f"s_mov_b32 m0, {WQ + n*1024}")
        e(f"s_add_u32 s57, s56, {n*8*8192}")
        e(f"buffer_load_dwordx4 v24, s[36:39], s57 offen{NT} lds")
    e("s_barrier")
    stamp(1)
    srd(28, 26, 268435456)
    prep()
    e("v_lshrrev_b32 v24, 2, v3"); e("v_and_b32 v25, 3, v3")
    e("v_lshlrev_b32 v26, 2, v2"); e("v_add_u32 v26, v26, v24")
    e("v_lshrrev_b32 v27, 1, v26"); e("v_and_b32 v27, 3, v27")
    e("v_lshlrev_b32 v26, 7, v26"); e("v_lshlrev_b32 v25, 3, v25"); e("v_add_u32 v26, v26, v25")
    e("v_lshlrev_b32 v27, 5, v27"); e("v_add_u32 v108, v26, v27")
    for u in range(1, 4): e(f"v_xor_b32 v{108+u}, {u<<5}, v108")
    e("s_lshr_b32 s57, s46, 1"); e("s_lshl_b32 s57, s57, 11"); e("s_and_b32 s58, s46, 1"); e("s_lshl_b32 s58, s58, 8"); e("s_add_u32 s57, s57, s58")
    e("s_lshl_b32 s58, s47, 9"); e("s_add_u32 s57, s57, s58"); e(f"s_add_u32 s46, s57, {QB}"); e(f"s_add_u32 s47, s57, {QL}")
    e("v_lshlrev_b32 v27, 2, v0")
    e("v_lshlrev_b32 v26, 3, v2"); e(f"v_add_u32 v26, {XN}, v26")
    def xn_extra():
        e(f"ds_read_b32 v29, v21 offset:{F_T*4}")
        for k in range(8): e(f"ds_read2_b64 v[{40+4*k}:{43+4*k}], v26 offset0:{8*k} offset1:{8*k+4}")
    wait_flags(F_XN, 1, 28, extra=xn_extra)
    e(f"v_readfirstlane_b32 s{sT}, v29")
    stamp(2)
    csc = math.log2(math.e) / math.sqrt(128.0)
    e(f"s_mov_b32 s58, {f32bits(csc):#x}")
    for k in range(8):
        A = 72 + 16 * (k & 1); B = 128 + 16 * (k & 1)
        for u in range(4):
            for m in range(4): e(f"v_and_b32 v{A+4*u+m}, v{40+4*k+m}, v{vMASK+u}")
        e(f"s_waitcnt vmcnt({28 - 4*k})")
        if k == 7: stamp(3)
        for u in range(4):
            for rho in range(2):
                r = B + 4 * u + 2 * rho
                e(f"ds_read_b64_tr_b16 v[{r}:{r+1}], v{108+u} offset:{k*4096 + rho*2048}")
        for u in range(4):
            e(f"s_waitcnt lgkmcnt({2*(3-u)})")
            c = "0" if (k == 0 and u == 0) else "v[104:107]"
            e(f"v_mfma_f32_16x16x32_bf16 v[104:107], v[{A+4*u}:{A+4*u+3}], v[{B+4*u}:{B+4*u+3}], {c}")
    e(f"v_mov_b32 v49, s{sT}"); e(f"v_mov_b32 v51, s{sT}")
    e("s_mov_b32 s56, 0x11111111"); e("s_mov_b32 s57, 0x11111111")
    e.nop(4)
    e("v_mul_f32 v104, s58, v104"); e.nop(2)
    e(f"v_mov_b32_dpp v105, v104 quad_perm:[1,0,3,2] {DPP}")
    e("v_cvt_pk_bf16_f32 v48, v104, v105"); e.nop(2)
    e(f"v_mov_b32_dpp v50, v48 quad_perm:[2,3,0,1] {DPP}")
    e("s_mov_b64 exec, s[56:57]")
    if o["local"]: e("buffer_store_dwordx4 v[48:51], v27, s[28:31], s47 offen")
    e("buffer_store_dwordx4 v[48:51], v27, s[28:31], s46 offen sc1")
    e("s_mov_b64 exec, -1")
    set_flag(F_QPUB)
    stamp(5)

    e.label("L_attn")
    wait_flags(F_QPUB, 1, 28, sleep=o["slp"], lowprio=LOW)
    wait_flags(F_VI, 2, 28, lowprio=LOW)
    PB = 128
    def mk_e1(i):
        b = PB + 4 * i
        return dict(issue=lambda: e(f"buffer_load_dwordx4 v[{b}:{b+3}], v{vE1V+i}, s[28:31], s{sE1} offen sc1"),
                    check=lambda: (e(f"v_xor_b32 v36, s{sT}, v{b+1}"), e(f"v_xor_b32 v37, s{sT}, v{b+3}"), e("v_or_b32 v36, v36, v37"), e("v_cmp_ne_u32 vcc, 0, v36")),
                    take=lambda: e(f"ds_write2_b32 v{vE1L+i}, v{b}, v{b+2} offset0:0 offset1:1"), mask=70 + 2 * i)
    def kreads():
        for kt in range(2):
            for t in range(4):
                r = 40 + 16 * kt + 4 * t
                e(f"ds_read_b128 v[{r}:{r+3}], v{vKA+t} offset:{kt*4096}")
    def e1_pre():
        if o["local"]: e(f"s_cmp_ge_u32 s68, {o['fb1']}"); e(f"s_cselect_b32 s{sE1}, s{sE1G}, s{sE1}")
    stamp(1)
    def e1_shadow():
        if o["wpre"]: e(f"ds_write_b32 v{vFLW}, v22 offset:{F_P1*4}")
        kreads()
    mpoll([mk_e1(0), mk_e1(1)], cnt=68, pre=e1_pre, shadow=e1_shadow)
    e(f"ds_write_b32 v{vFLW}, v22 offset:{F_QF*4}")
    stamp(6)
    VF = 160
    def vreads():
        for t in range(8):
            for rho in range(2):
                r = VF + 4 * t + 2 * rho
                e(f"ds_read_b64_tr_b16 v[{r}:{r+1}], v{vVA+t} offset:{rho*4096}")
    def qf_extra():
        e(f"ds_read_b64 v[32:33], v21 offset:{F_V*4}")
        for t in range(4): e(f"ds_read_b128 v[{72+4*t}:{75+4*t}], v{vQFR} offset:{t*1024}")
    wait_flags(F_QF, 4, 28, extra=qf_extra)
    for t in range(4):
        for kt in range(2):
            c = "0" if t == 0 else f"v[{88+4*kt}:{91+4*kt}]"
            e(f"v_mfma_f32_16x16x32_bf16 v[{88+4*kt}:{91+4*kt}], v[{40+16*kt+4*t}:{43+16*kt+4*t}], v[{72+4*t}:{75+4*t}], {c}")
    e("v_and_b32 v32, v32, v33"); e("v_cmp_ne_u32 vcc, 0, v32")
    e("s_mov_b32 s59, 0")
    lv = L("vlate"); e(f"s_cbranch_vccz {lv}")
    vreads(); e("s_mov_b32 s59, 1")
    e.label(lv)
    for m in range(4): e(f"v_mov_b32 v{44+m}, 0x3f803f80")
    e.nop(3)
    S = list(range(88, 96))
    for s_ in S: e(f"v_add_f32_dpp v{s_+8}, v{s_}, v{s_} row_ror:4 {DPP}")
    for s_ in S: e(f"v_add_f32_dpp v{s_}, v{s_+8}, v{s_+8} row_ror:8 {DPP}")
    e("v_max3_f32 v96, v88, v89, v90"); e("v_max3_f32 v97, v91, v92, v93"); e("v_max3_f32 v96, v96, v94, v95"); e("v_max_f32 v96, v96, v97")
    allreduce_xrow(96, 97, "v_max_f32")
    for s_ in S: e(f"v_sub_f32 v{s_}, v{s_}, v96")
    for s_ in S: e(f"v_exp_f32 v{s_}, v{s_}")
    e.nop(1)
    for m in range(4): e(f"v_cvt_pk_bf16_f32 v{100+m}, v{88+2*m}, v{89+2*m}")
    lw = L("vok"); e("s_cmp_lg_u32 s59, 0"); e(f"s_cbranch_scc1 {lw}")
    wait_flags(F_V, 2, 28); vreads()
    e.label(lw)
    for m in range(4): e(f"v_and_b32 v{72+m}, v{100+m}, v{vMASK}")
    for m in range(4): e(f"v_and_b32 v{76+m}, v{100+m}, v{vMASK+1}")
    e("s_waitcnt lgkmcnt(0)")
    first = [True, True]
    for t in range(8):
        ee = (t >> 1) & 1; u = 2 * (t >> 2) + (t & 1)
        c = "0" if first[ee] else f"v[{104+4*ee}:{107+4*ee}]"; first[ee] = False
        e(f"v_mfma_f32_16x16x32_bf16 v[{104+4*ee}:{107+4*ee}], v[{VF+4*t}:{VF+4*t+3}], v[{72+4*u}:{75+4*u}], {c}")
        if t in (0, 1):
            for m in range(4): e(f"v_and_b32 v{80+4*t+m}, v{100+m}, v{vMASK+2+t}")
    e("v_mfma_f32_16x16x32_bf16 v[92:95], v[44:47], v[100:103], 0")
    e.nop(6)
    e(f"ds_write_b128 v{vOPW}, v[104:107]")
    e(f"ds_write_b128 v{vOPW}, v[108:111] offset:1024")
    e("v_mov_b32 v97, v92")
    e("s_mov_b64 exec, 0xf")
    e(f"ds_write_b64 v{vMLW}, v[96:97]")
    e("s_mov_b64 exec, -1")
    e(f"ds_write_b32 v{vFLW}, v22 offset:{F_O*4}")
    stamp(7)
    tagbytes(60); e("s_mov_b32 s64, 0x07060500"); e("s_mov_b32 s59, 0")
    e("s_cmp_ge_u32 s3, 2"); e("s_cbranch_scc1 L_e2")
    e(f"v_mov_b32 v63, s{sT}")
    def mg_extra():
        for w in range(4): e(f"ds_read_b128 v[{32+4*w}:{35+4*w}], v{vOPR} offset:{w*2048}")
        e(f"ds_read_b128 v[48:51], v{vMLR}"); e(f"ds_read_b128 v[52:55], v{vMLR} offset:16")
    wait_flags(F_O, 4, 28, extra=mg_extra)
    e("v_max3_f32 v56, v48, v50, v52"); e("v_max_f32 v56, v56, v54")
    for w in range(4): e(f"v_sub_f32 v{48+2*w}, v{48+2*w}, v56")
    for w in range(4): e(f"v_exp_f32 v{48+2*w}, v{48+2*w}")
    e.nop(1)
    e("v_mul_f32 v57, v48, v49")
    for m in range(4): e(f"v_mul_f32 v{32+m}, v{32+m}, v48")
    for w in range(1, 4): e(f"v_fmac_f32 v57, v{48+2*w}, v{49+2*w}")
    for m in range(4): e(f"v_fmac_f32 v{32+m}, v{36+m}, v50")
    e("v_rcp_f32 v58, v57"); e("v_log_f32 v59, v57")
    for w in range(2, 4):
        for m in range(4): e(f"v_fmac_f32 v{32+m}, v{32+4*w+m}, v{48+2*w}")
    e("v_add_f32 v62, v56, v59")
    for m in range(4): e(f"v_mul_f32 v{32+m}, v{32+m}, v58")
    e("v_cvt_pk_bf16_f32 v60, v32, v33"); e("v_cvt_pk_bf16_f32 v61, v34, v35")
    e(f"buffer_store_dwordx4 v[60:63], v{vMST}, s[28:31], s{sMS} offen sc1")
    e(f"ds_write_b32 v{vFLW}, v22 offset:{F_MP*4}")
    if o["stamps"]: e("s_memrealtime s[80:81]")

    e.label("L_e2")
    def woreads():
        for u in range(4):
            for tp in range(4):
                r = 40 + 8 * u + 2 * tp
                e(f"ds_read_b64_tr_b16 v[{r}:{r+1}], v{vWOA+u} offset:{tp*8192}")
    def wo_try():
        lskip = L("wo"); e("s_cmp_lg_u32 s59, 0"); e(f"s_cbranch_scc1 {lskip}")
        e(f"ds_read_b64 v[28:29], v21 offset:{F_WO*4}"); e("s_waitcnt lgkmcnt(0)")
        e("v_and_b32 v28, v28, v29"); e("v_cmp_ne_u32 vcc, 0, v28"); e(f"s_cbranch_vccz {lskip}")
        woreads(); e("s_mov_b32 s59, 1")
        e.label(lskip)
    for k in range(4): e(f"v_mov_b32 v{8+k}, s{60+k}")
    e("v_mov_b32 v10, v10") if False else None
    wait_flags(F_MP, 2, 28, lowprio=LOW)
    if o["dl2"]: e(f"s_sleep {o['dl2']}")
    B2 = 128
    def mk_dat(n):
        b = B2 + 4 * n
        return dict(issue=lambda: e(f"buffer_load_dwordx4 v[{b}:{b+3}], v{vL16}, s[28:31], s{sE2} offen offset:{n*1024} sc1"),
                    check=lambda: e(f"v_cmp_ne_u32 vcc, s{sT}, v{b+3}"), mask=70 + 2 * n)
    if o["stamps"]: e("s_memrealtime s[82:83]")
    mpoll([mk_dat(0), mk_dat(1)], cnt=69, pre=wo_try, shadow=wo_try)
    if o["stamps"]: e("s_memrealtime s[84:85]")
    l0, l1 = B2 + 2, B2 + 6
    e(f"v_max_f32 v7, v{l0}, v{l1}")
    e("v_mov_b32 v20, 0xffff0000")
    e(f"v_lshlrev_b32 v16, 16, v{B2}"); e(f"v_and_b32 v17, v20, v{B2}")
    allreduce_xrow(7, 6, "v_max_f32")
    e(f"v_sub_f32 v{l0}, v{l0}, v7"); e(f"v_sub_f32 v{l1}, v{l1}, v7")
    e(f"v_lshlrev_b32 v18, 16, v{B2+1}"); e(f"v_and_b32 v19, v20, v{B2+1}")
    e(f"v_exp_f32 v{l0}, v{l0}"); e(f"v_exp_f32 v{l1}, v{l1}")
    e(f"v_lshlrev_b32 v24, 16, v{B2+4}"); e(f"v_and_b32 v25, v20, v{B2+4}"); e(f"v_lshlrev_b32 v26, 16, v{B2+5}"); e(f"v_and_b32 v27, v20, v{B2+5}")
    for i in range(4): e(f"v_mul_f32 v{12+i}, v{16+i}, v{l0}")
    e(f"v_add_f32 v5, v{l0}, v{l1}")
    for i in range(4): e(f"v_fmac_f32 v{12+i}, v{24+i}, v{l1}")
    e("v_mov_b32 v4, v7")
    allreduce_xrow(5, 6, "v_add_f32")
    reduce_scatter4(12)
    e(f"ds_write_b32 v{vOXW}, v12")
    e("s_lshl_b32 s57, s3, 3"); e(f"s_add_u32 s57, s57, {SX}"); e("v_mov_b32 v6, s57")
    e("s_mov_b64 exec, 1"); e("ds_write_b64 v6, v[4:5]"); e("s_mov_b64 exec, -1")
    e(f"ds_write_b32 v{vFLW}, v22 offset:{F_OX*4}")
    e(f"v_mov_b32 v6, {SX}")
    def ox_extra():
        e(f"ds_read_b128 v[12:15], v{vOXR}"); e("ds_read_b128 v[24:27], v6"); e("ds_read_b128 v[72:75], v6 offset:16")
    wait_flags(F_OX, 4, 28, extra=ox_extra)
    e("v_max3_f32 v7, v24, v26, v72"); e("v_max_f32 v7, v7, v74")
    e("v_sub_f32 v24, v24, v7"); e("v_sub_f32 v26, v26, v7"); e("v_sub_f32 v72, v72, v7"); e("v_sub_f32 v74, v74, v7")
    e("v_exp_f32 v24, v24"); e("v_exp_f32 v26, v26"); e("v_exp_f32 v72, v72"); e("v_exp_f32 v74, v74"); e.nop(1)
    e("v_mul_f32 v5, v24, v25"); e("v_mul_f32 v12, v12, v24"); e("v_fmac_f32 v5, v26, v27"); e("v_fmac_f32 v12, v13, v26")
    e("v_fmac_f32 v5, v72, v73"); e("v_fmac_f32 v12, v14, v72"); e("v_fmac_f32 v5, v74, v75"); e("v_fmac_f32 v12, v15, v74")
    e("v_rcp_f32 v5, v5"); e.nop(1); e("v_mul_f32 v12, v12, v5"); e.nop(2)
    e(f"v_mov_b32_dpp v13, v12 quad_perm:[1,0,3,2] {DPP}")
    e("v_cvt_pk_bf16_f32 v12, v12, v13"); e.nop(2)
    for m in range(8): e(f"v_mov_b32_dpp v{76+m}, v12 row_newbcast:{2*m} {DPP}")
    lw = L("wook"); e("s_cmp_lg_u32 s59, 0"); e(f"s_cbranch_scc1 {lw}")
    wait_flags(F_WO, 2, 28); woreads(); e("s_waitcnt lgkmcnt(0)")
    e.label(lw)
    AC = 136
    for k in range(2):
        for u in range(4):
            c = "0" if k == 0 else f"v[{AC+4*u}:{AC+4*u+3}]"
            e(f"v_mfma_f32_16x16x32_bf16 v[{AC+4*u}:{AC+4*u+3}], v[{76+4*k}:{79+4*k}], v[{40+8*u+4*k}:{43+8*u+4*k}], {c}")
    e("s_mov_b64 exec, 0xffff")
    e.nop(4)
    for i in range(4): e(f"v_perm_b32 v{4+i}, v{AC+4*i}, v{8+i}, s64")
    e(f"buffer_store_dwordx4 v[4:7], v{vE3V}, s[28:31], s{sE3} offen sc1")
    e("s_mov_b64 exec, -1")
    set_flag(F_PUB3)
    if o["stamps"]: e("s_memrealtime s[86:87]")
    e("s_waitcnt lgkmcnt(0)")
    dump_stamps(cnts=[(4, 68), (5, 69)] if True else None)
    e("s_endpgm")

    e.label("L_loader")
    if o["prio"]: e("s_setprio 2")
    e("s_sub_u32 s52, s3, 4")
    l0_ = L("nz"); e("s_cmp_lg_u32 s52, 0"); e(f"s_cbranch_scc1 {l0_}")
    e("v_lshlrev_b32 v4, 2, v0"); e(f"v_add_u32 v4, {FL}, v4"); e("v_mov_b32 v5, 0")
    e("s_mov_b64 exec, 0xffffffff"); e("ds_write_b32 v4, v5"); e("s_mov_b64 exec, -1")
    e.label(l0_)
    e("s_lshr_b32 s53, s48, 1"); e("s_lshl_b32 s53, s53, 24"); e("s_and_b32 s54, s48, 1"); e("s_lshl_b32 s54, s54, 4"); e("s_lshr_b32 s55, s49, 1"); e("s_add_u32 s54, s54, s55")
    e("s_lshl_b32 s54, s54, 15"); e("s_add_u32 s53, s53, s54"); e(f"s_add_u32 s53, s53, {KEY0*256}")
    e("s_lshl_b32 s54, s52, 14"); e("s_add_u32 s53, s53, s54")
    e("s_lshr_b32 s55, s49, 2"); e("s_lshl_b32 s55, s55, 3"); e("s_add_u32 s55, s55, s48"); e("s_lshl_b32 s55, s55, 17")
    e("s_and_b32 s56, s49, 3"); e("s_lshl_b32 s56, s56, 9"); e("s_add_u32 s55, s55, s56")
    e("s_lshl_b32 s56, s52, 16"); e("s_add_u32 s55, s55, s56")
    e("s_lshl_b32 s57, s52, 14")
    for m in range(4):
        e(f"v_add_u32 v4, {4*m}, v2"); e("v_xor_b32 v4, v4, v3"); e("v_lshlrev_b32 v4, 4, v4"); e("v_lshlrev_b32 v5, 8, v2"); e(f"v_add_u32 v{8+m}, v4, v5")
    for m in range(2):
        e(f"v_add_u32 v4, {4*m}, v2"); e("v_lshrrev_b32 v5, 1, v3"); e("v_xor_b32 v4, v4, v5"); e("v_lshlrev_b32 v4, 1, v4"); e("v_and_b32 v5, 1, v3"); e("v_or_b32 v4, v4, v5")
        e("v_lshlrev_b32 v4, 4, v4"); e("v_lshlrev_b32 v5, 8, v2"); e(f"v_add_u32 v{12+m}, v4, v5")
    e("v_lshrrev_b32 v6, 5, v0"); e("v_and_b32 v7, 31, v0")
    for m in range(4):
        e("v_lshlrev_b32 v4, 2, v6"); e(f"v_add_u32 v4, {m}, v4"); e("v_lshrrev_b32 v5, 1, v7"); e("v_xor_b32 v4, v4, v5"); e("v_lshlrev_b32 v4, 1, v4")
        e("v_and_b32 v5, 1, v7"); e("v_or_b32 v4, v4, v5"); e("v_lshlrev_b32 v4, 4, v4"); e("v_lshlrev_b32 v5, 11, v6"); e(f"v_add_u32 v{16+m}, v4, v5")
    e("s_lshl_b32 s58, s52, 2"); e("v_add_u32 v20, s58, v21")
    e("s_waitcnt lgkmcnt(0)")
    srd(36, 6, 67108864); srd(40, 8, 67108864); srd(44, 12, 8388608)
    if o["stamps"]: srd(28, 26, 268435456)
    stamp(1)
    e("s_barrier")
    stamp(2)
    W = o["win"]; WKV = o["winkv"]
    seq = [("K", m) for m in range(16)] + [("V", m) for m in range(16)] + [("W", m) for m in range(16)]
    st = dict(landed=-1)
    def land(upto):
        for x in range(st["landed"] + 1, upto + 1):
            if x == 15: set_flag(F_K, 20); stamp(3)
            if x == 31: set_flag(F_V, 20); stamp(4)
        st["landed"] = max(st["landed"], upto)
    for i, (kind, m) in enumerate(seq):
        w_ = WKV if i < 32 else W
        skipwin = False
        if i == 32:
            assert st["landed"] >= 15
            set_flag(F_VI, 20)
            if o["wpre"]:
                wait_flags(F_P1, 4, 24)
            else:
                e("s_waitcnt vmcnt(0)"); land(31)
                wait_flags(F_QF, 4, 24)
        if o["wpre"] and 32 <= i < 32 + o["wpre"]:
            skipwin = True
        if o["wpre"] and i == 32 + o["wpre"]:
            e(f"s_waitcnt vmcnt({o['wpre']})"); land(31)
            wait_flags(F_QF, 4, 24)
        if not skipwin and i - st["landed"] - 1 > w_ - 1:
            e(f"s_waitcnt vmcnt({w_-1})"); land(i - w_)
        if kind == "K":
            e(f"s_add_u32 m0, s57, {KL + m*1024}"); e(f"s_add_u32 s58, s53, {m*1024}")
            e(f"buffer_load_dwordx4 v{8 + (m & 3)}, s[36:39], s58 offen{NT} lds")
        elif kind == "V":
            e(f"s_add_u32 m0, s57, {VL + m*1024}"); e(f"s_add_u32 s58, s53, {m*1024}")
            e(f"buffer_load_dwordx4 v{12 + (m & 1)}, s[40:43], s58 offen{NT} lds")
        else:
            e(f"s_add_u32 m0, s57, {WO + m*1024}"); e(f"s_add_u32 s58, s55, {m*4096}")
            e(f"buffer_load_dwordx4 v{16 + ((m >> 1) & 3)}, s[44:47], s58 offen{NT} lds")
    e("s_waitcnt vmcnt(0)"); set_flag(F_WO, 20); stamp(5)
    e("s_waitcnt lgkmcnt(0)")
    dump_stamps()
    e("s_endpgm")

    e.label("L_bbranch")
    if o["prio"]: e(f"s_setprio {o['bprio']}")
    e("s_sub_u32 s52, s3, 6")
    e("s_lshr_b32 s53, s2, 4"); e("s_and_b32 s54, s2, 15")
    common_srd()
    srd(36, 16, 7168); srd(40, 18, 7168); srd(44, 20, 7168)
    e("s_load_dword s59, s[22:23], 0")
    e("v_and_b32 v23, 31, v0"); e("v_lshlrev_b32 v23, 1, v23"); e("s_lshl_b32 s55, s53, 7"); e("s_lshl_b32 s56, s52, 6"); e("s_add_u32 s55, s55, s56")
    if not o["bearly"]: e("s_barrier")
    e("buffer_load_ushort v12, v23, s[32:35], s55 offen")
    e("s_mul_i32 s56, s54, 448"); e("v_lshlrev_b32 v23, 1, v0")
    for n in range(4):
        e(f"buffer_load_ushort v{40+2*n}, v23, s[36:39], s56 offen offset:{128*n}")
        e(f"buffer_load_ushort v{41+2*n}, v23, s[40:43], s56 offen offset:{128*n}")
        e(f"buffer_load_ushort v{48+2*n}, v23, s[44:47], s56 offen offset:{128*n}")
    if o["bearly"]: e("s_barrier")
    e(f"v_mov_b32 v23, {LNS}")
    k1 = -2.0 * math.sqrt(2.0 / math.pi) * math.log2(math.e); k2 = k1 * 0.044715
    e(f"v_mov_b32 v92, {f32bits(k1):#x}"); e(f"v_mov_b32 v93, {f32bits(k2):#x}")
    wait_flags(F_LN2, 1, 28, extra=lambda: (e("ds_read_b128 v[32:35], v23"), e(f"ds_read_b32 v29, v21 offset:{F_T*4}")), sleep=2)
    e(f"v_readfirstlane_b32 s{sT}, v29")
    e("s_waitcnt vmcnt(0)")
    stamp(1)
    for k in range(8): e(f"v_lshlrev_b32 v{40+k}, 16, v{40+k}")
    for n in range(4): e(f"v_lshlrev_b32 v{48+2*n}, 16, v{48+2*n}")
    e("v_cmp_gt_u32 vcc, 32, v0"); e("v_mov_b32 v94, 1.0"); e("v_mov_b32 v95, 1.0"); e("v_cndmask_b32 v54, 0, v54, vcc")
    e("v_lshlrev_b32 v14, 16, v12")
    e("v_sub_f32 v16, v14, v32"); bf16r(16, 16); e("v_mul_f32 v16, v16, v33"); bf16r(16, 16)
    e("v_sub_f32 v16, v16, v34"); bf16r(16, 16); e("v_mul_f32 v16, v16, v35"); bf16r(16, 16)
    ACCB = 128
    for half in range(2):
        e.nop(1)
        for k in range(16): e(f"v_readlane_b32 s{64+k}, v16, {16*half+k}")
        e.nop(2)
        NI = o["bilp"]
        for k in range(0, 16, 2 * NI):
            dps = [16 * half + k + 2 * q_ for q_ in range(NI)]
            for n in range(4):
                R = range(NI)
                U = [f"v[{100+6*q_}:{101+6*q_}]" for q_ in R]; Z = [f"v[{102+6*q_}:{103+6*q_}]" for q_ in R]; G = [f"v[{104+6*q_}:{105+6*q_}]" for q_ in R]
                WB = f"v[{40+2*n}:{41+2*n}]"; W2 = f"v[{48+2*n}:{49+2*n}]"
                for q_, d in enumerate(dps): e(f"v_pk_fma_f32 {U[q_]}, s[{64+(d&15)}:{65+(d&15)}], {WB}, {WB} op_sel:[0,0,1] op_sel_hi:[1,0,1]")
                for q_ in R: e(f"v_pk_mul_f32 {Z[q_]}, {U[q_]}, {U[q_]}")
                for q_ in R: e(f"v_pk_fma_f32 {Z[q_]}, {Z[q_]}, v[92:93], v[92:93] op_sel:[0,1,0] op_sel_hi:[1,1,0]")
                for q_ in R: e(f"v_pk_mul_f32 {Z[q_]}, {Z[q_]}, {U[q_]}")
                for q_ in R: e(f"v_pk_mul_f32 {G[q_]}, {U[q_]}, {W2} op_sel_hi:[1,0]")
                for q_ in R: e(f"v_exp_f32 v{102+6*q_}, v{102+6*q_}"); e(f"v_exp_f32 v{103+6*q_}, v{103+6*q_}")
                e.nop(1)
                for q_ in R: e(f"v_pk_add_f32 {Z[q_]}, {Z[q_]}, v[94:95]")
                for q_ in R: e(f"v_rcp_f32 v{102+6*q_}, v{102+6*q_}"); e(f"v_rcp_f32 v{103+6*q_}, v{103+6*q_}")
                e.nop(1)
                for q_, d in enumerate(dps):
                    A_ = f"v[{ACCB+d}:{ACCB+d+1}]"
                    if n == 0: e(f"v_pk_mul_f32 {A_}, {G[q_]}, {Z[q_]}")
                    else: e(f"v_pk_fma_f32 {A_}, {G[q_]}, {Z[q_]}, {A_}")
    stamp(3)
    e.nop(2)
    for k in range(16):
        e(f"v_permlane32_swap_b32 v{ACCB+k}, v{ACCB+16+k}")
    for k in range(16): e(f"v_add_f32 v{ACCB+k}, v{ACCB+k}, v{ACCB+16+k}")
    e.nop(1)
    for k in range(8): e(f"v_permlane16_swap_b32 v{ACCB+k}, v{ACCB+8+k}")
    for k in range(8): e(f"v_add_f32 v{ACCB+k}, v{ACCB+k}, v{ACCB+8+k}")
    for sh in (8, 4, 2, 1):
        e.nop(1)
        for k in range(8): e(f"v_add_f32_dpp v{ACCB+k}, v{ACCB+k}, v{ACCB+k} row_ror:{sh} {DPP}")
    e("s_lshl_b32 s57, s52, 7"); e(f"s_add_u32 s57, s57, {YP}"); e("v_lshlrev_b32 v24, 5, v2"); e("v_add_u32 v24, s57, v24")
    e("s_mov_b32 exec_lo, 0x00010001"); e("s_mov_b32 exec_hi, 0x00010001")
    e(f"ds_write_b128 v24, v[{ACCB}:{ACCB+3}]"); e(f"ds_write_b128 v24, v[{ACCB+4}:{ACCB+7}] offset:16")
    e("s_mov_b64 exec, -1")
    e("s_cmp_eq_u32 s52, 0"); e("s_cbranch_scc1 L_final")
    set_flag(F_G)
    e("s_waitcnt lgkmcnt(0)")
    dump_stamps()
    e("s_endpgm")
    e.label("L_final")
    tagbytes(60)
    e("s_mov_b32 s64, 0x07060500")
    for k in range(4): e(f"v_mov_b32 v{8+k}, s{60+k}")
    e("v_lshlrev_b32 v24, 2, v3"); e(f"v_add_u32 v24, {YP}, v24")
    wait_flags(F_G, 1, 28, extra=lambda: [e(f"ds_read_b32 v{96+i}, v24 offset:{64*i}") for i in range(4)])
    for k in range(4): e(f"v_perm_b32 v{4+k}, v{96+k}, v{8+k}, s64")
    e("s_lshl_b32 s56, s2, 8"); e(f"s_add_u32 s56, s56, {GB}")
    e("v_lshlrev_b32 v24, 4, v0")
    e("s_mov_b64 exec, 0xffff")
    e("buffer_store_dwordx4 v[4:7], v24, s[28:31], s56 offen sc1")
    e("s_mov_b64 exec, -1")
    stamp(4)
    e("s_lshr_b32 s53, s49, 3"); e("s_lshl_b32 s53, s53, 3"); e("s_add_u32 s53, s53, s48")
    e("s_and_b32 s54, s49, 7")
    e("s_lshr_b32 s55, s53, 1"); e("s_lshl_b32 s55, s55, 6"); e("s_and_b32 s56, s53, 1"); e("s_lshl_b32 s56, s56, 3"); e("s_add_u32 s55, s55, s56"); e("s_add_u32 s55, s55, s54")
    e("v_lshlrev_b32 v25, 5, v2"); e("s_lshl_b32 s55, s55, 1")
    e("buffer_load_ushort v12, v25, s[32:35], s55 offen")
    e("v_lshlrev_b32 v26, 2, v3"); e("v_add_u32 v26, v26, v2"); e("v_lshlrev_b32 v26, 8, v26")
    e("s_lshr_b32 s56, s53, 1"); e("s_lshl_b32 s56, s56, 12"); e("s_and_b32 s57, s53, 1"); e("s_lshl_b32 s57, s57, 3"); e("s_add_u32 s57, s57, s54"); e("s_lshl_b32 s57, s57, 4")
    e("s_add_u32 s57, s57, s56"); e(f"s_add_u32 s57, s57, {GB}")
    e("v_lshlrev_b32 v24, 7, v0")
    e("s_lshl_b32 s56, s53, 13"); e("s_lshl_b32 s58, s54, 4"); e("s_add_u32 s56, s56, s58"); e(f"s_add_u32 s56, s56, {FB}")
    srd(36, 24, 2048)
    wait_flags(F_MP, 2, 28, sleep=4)
    mpoll([dict(issue=lambda: e("buffer_load_dwordx4 v[32:35], v26, s[28:31], s57 offen sc1"), check=lambda: chk4(32, 60), mask=70, init=(0x000f000f, 0x000f000f))])
    reduce_scatter4(32); e("v_mov_b32 v96, v32"); e.nop(2)
    e(f"v_add_f32_dpp v96, v96, v96 quad_perm:[1,0,3,2] {DPP}"); e.nop(2)
    e(f"v_add_f32_dpp v96, v96, v96 quad_perm:[2,3,0,1] {DPP}")
    bf16r(96, 96)
    e("s_and_b32 s59, s59, 0xffff"); e("s_lshl_b32 s59, s59, 16")
    e("v_add_f32 v96, s59, v96"); bf16r(96, 96)
    e(f"v_mul_f32 v97, {f32bits(-math.log2(math.e)):#x}, v96"); e("v_exp_f32 v97, v97"); e.nop(1); e("v_add_f32 v97, 1.0, v97"); e("v_rcp_f32 v97, v97"); e.nop(1)
    e("v_mul_f32 v96, v96, v97"); bf16r(96, 96)
    e("v_lshlrev_b32 v14, 16, v12")
    stamp(1)
    wait_flags(F_PUB3, 1, 28, sleep=1)
    if o["prio"]: e("s_setprio 3")
    if o["dl3"]: e(f"s_sleep {o['dl3']}")
    stamp(5)
    mpoll([dict(issue=lambda: e("buffer_load_dwordx4 v[28:31], v24, s[28:31], s56 offen sc1"), check=lambda: chk4(28, 100), mask=70)], cnt=69)
    stamp(6)
    reduce_scatter4(28)
    allreduce_row16(28, "v_add_f32")
    bf16r(28, 28)
    e("v_mul_f32 v28, v28, v96"); bf16r(28, 28)
    e("v_add_f32 v28, v28, v14")
    e("v_cvt_pk_bf16_f32 v28, v28, v28")
    e("s_mov_b32 exec_lo, 0x00010001"); e("s_mov_b32 exec_hi, 0x00010001")
    e("buffer_store_short v28, v25, s[36:39], s55 offen")
    l = L("ne"); e("s_cmp_lg_u32 s2, 0"); e(f"s_cbranch_scc1 {l}")
    e("s_mov_b64 exec, 1")
    e(f"s_mul_i32 s57, s{sT}, {TINV:#x}"); e("v_mov_b32 v20, s57"); e("v_mov_b32 v23, 0")
    e("buffer_store_dword v20, v23, s[28:31], 0 offen sc1")
    e.label(l)
    e("s_mov_b64 exec, -1")
    stamp(7)
    dump_stamps(cnts=[(2, 69)])
    e("s_endpgm")
    e.label("L_abort")
    e("s_endpgm")
    e.label("L_exit")

    probs = check(a.lines)
    body = a.text()
    nv = 224
    hdr = open("cdna_kernels/" + KN + ".s.ref").read().split("; Override launch")[0]
    out = hdr + f"; Override launch geometry by editing the next line.\n; @launch grid=(256,1,1) block=(512,1,1) lds={LDS_BYTES}\n"
    out += f""".amdgcn_target "amdgcn-amd-amdhsa--gfx950"
.text
.globl {KN}_kernel
.p2align 8
.type {KN}_kernel,@function
{KN}_kernel:
{body}
    s_endpgm
.section .rodata,"a"
.p2align 6
.amdhsa_kernel {KN}_kernel
  .amdhsa_next_free_vgpr {nv}
  .amdhsa_next_free_sgpr 100
  .amdhsa_accum_offset {nv}
  .amdhsa_group_segment_fixed_size 0
  .amdhsa_kernarg_size 104
  .amdhsa_user_sgpr_count 2
  .amdhsa_user_sgpr_kernarg_segment_ptr 1
  .amdhsa_system_sgpr_workgroup_id_x 1
.end_amdhsa_kernel
"""
    return out, probs

if __name__ == "__main__":
    opt = {}
    name = sys.argv[1]
    for kv in sys.argv[2:]:
        k, v = kv.split("="); opt[k] = int(v, 0)
    s, probs = gen(opt)
    open(name, "w").write(s)
    for p in probs: print("HAZARD:", p)
```

```python
import sys, math, struct
from asmlib import Asm, check
KN = "recurrent_scan__sliding_block_cached__mixer_token_mlp__decode"
def f32bits(x): return struct.unpack("<I", struct.pack("<f", x))[0]

DEF = dict(stamps=0, nt=1, win=12, winkv=16, spinmax=1 << 20, prio=1, dl2=24, dl3=12, local=1, fb1=12, slp=1, bprio=1, bearly=1, bilp=2, wpre=3, cpf=1)

QB, QL, GB, OB, FB, STB = 0x10000, 0x20000, 0x30000, 0x40000, 0x100000, 0x200000
WQ, KL, VL, WO = 0, 32768, 65536, 98304
QF = 131072; OP = QF + 4096; ML = OP + 8192; FL = ML + 128; OX = FL + 128; SX = OX + 1024
XN = SX + 64; LNS = XN + 512; YP = LNS + 16; LDS_BYTES = YP + 256
F_QF, F_O, F_OX, F_K, F_V, F_WO, F_VI, F_MP, F_G, F_XN, F_LN2, F_T, F_QPUB, F_PUB3, F_P1 = 0, 4, 8, 12, 14, 16, 18, 20, 22, 23, 24, 25, 26, 27, 28
KEY0 = 61440
TMUL = 0x9e3779b1
TINV = pow(TMUL, -1, 1 << 32)
vE1V, vE1L, vQFR, vKA, vVA, vOPW, vMLW, vOPR, vMLR, vMST, vL16, vWOA, vE3V, vOXW, vOXR, vFLW = 192, 194, 196, 197, 201, 209, 210, 211, 212, 213, 214, 216, 220, 221, 222, 223
vMASK = 112
sMS, sE2, sE3, sE1, sE1G = 40, 41, 42, 43, 44

def gen(opt):
    o = dict(DEF); o.update(opt)
    assert o["winkv"] <= 16
    NT = " nt" if o["nt"] else ""
    a = Asm(); e = a
    uid = [0]
    def L(p):
        uid[0] += 1; return f"L_{p}_{uid[0]}"
    sT, sCNT = 50, 51
    DPP = "row_mask:0xf bank_mask:0xf"
    def srd(d, lo, size):
        e(f"s_mov_b32 s{d}, s{lo}"); e(f"s_and_b32 s{d+1}, s{lo+1}, 0xffff"); e(f"s_mov_b32 s{d+2}, {size}"); e(f"s_mov_b32 s{d+3}, 0x20000")
    def stamp(k):
        if o["stamps"]: e(f"s_memrealtime s[{80+2*k}:{81+2*k}]")
    def dump_stamps(cnts=None):
        if not o["stamps"]: return
        e("s_waitcnt lgkmcnt(0)")
        for (slot, sreg) in (cnts or []):
            e(f"s_mov_b32 s{80+2*slot}, s{sreg}"); e(f"s_mov_b32 s{81+2*slot}, 0")
        e("s_mov_b64 exec, -1")
        e("s_waitcnt vmcnt(0)")
        e("s_lshl_b32 s76, s2, 3"); e("s_add_u32 s76, s76, s3"); e("s_lshl_b32 s76, s76, 6"); e(f"s_add_u32 s76, s76, {STB}")
        for k in range(8):
            e(f"v_mov_b32 v{2*k+4}, s{80+2*k}"); e(f"v_mov_b32 v{2*k+5}, s{81+2*k}")
        e("v_mov_b32 v20, 0")
        e("s_mov_b64 exec, 1")
        for k in range(4):
            e(f"buffer_store_dwordx4 v[{4*k+4}:{4*k+7}], v20, s[28:31], s76 offen offset:{16*k}")
        e("s_waitcnt vmcnt(0)")
    def spin_tick():
        e(f"s_sub_u32 s{sCNT}, s{sCNT}, 1"); e("s_cbranch_scc1 L_abort")
    def and_flags(vt, n):
        if n == 2: e(f"v_and_b32 v{vt}, v{vt}, v{vt+1}")
        if n == 4:
            e(f"v_and_b32 v{vt}, v{vt}, v{vt+1}"); e(f"v_and_b32 v{vt+2}, v{vt+2}, v{vt+3}"); e(f"v_and_b32 v{vt}, v{vt}, v{vt+2}")
    def read_flags(first, n, vt):
        if n == 1: e(f"ds_read_b32 v{vt}, v21 offset:{first*4}")
        elif n == 2: e(f"ds_read_b64 v[{vt}:{vt+1}], v21 offset:{first*4}")
        else: e(f"ds_read_b128 v[{vt}:{vt+3}], v21 offset:{first*4}")
    def wait_flags(first, n, vt, extra=None, sleep=0, lowprio=None):
        if lowprio and o["prio"]: e(f"s_setprio {lowprio[0]}")
        l = L("wf"); e.label(l)
        read_flags(first, n, vt)
        if extra: extra()
        spin_tick()
        if sleep: e(f"s_sleep {sleep}")
        e("s_waitcnt lgkmcnt(0)")
        and_flags(vt, n)
        e(f"v_cmp_ne_u32 vcc, 0, v{vt}")
        e(f"s_cbranch_vccz {l}")
        if lowprio and o["prio"]: e(f"s_setprio {lowprio[1]}")
    def set_flag(idx, vaddr=21):
        e(f"ds_write_b32 v{vaddr}, v22 offset:{idx*4}")
    def bf16r(dst, src):
        e(f"v_cvt_pk_bf16_f32 v{dst}, v{src}, v{src}"); e(f"v_lshlrev_b32 v{dst}, 16, v{dst}")
    def allreduce_row16(v, op, shs=(8, 4, 2, 1)):
        for sh in shs:
            e.nop(2); e(f"{op}_dpp v{v}, v{v}, v{v} row_ror:{sh} {DPP}")
    def allreduce_xrow(v, t, op):
        e(f"v_mov_b32 v{t}, v{v}"); e.nop(2); e(f"v_permlane32_swap_b32 v{v}, v{t}"); e(f"{op} v{v}, v{v}, v{t}")
        e(f"v_mov_b32 v{t}, v{v}"); e.nop(2); e(f"v_permlane16_swap_b32 v{v}, v{t}"); e(f"{op} v{v}, v{v}, v{t}")
    def reduce_scatter4(b):
        e(f"v_permlane32_swap_b32 v{b}, v{b+2}"); e(f"v_permlane32_swap_b32 v{b+1}, v{b+3}")
        e(f"v_add_f32 v{b}, v{b}, v{b+2}"); e(f"v_add_f32 v{b+1}, v{b+1}, v{b+3}"); e.nop(2)
        e(f"v_permlane16_swap_b32 v{b}, v{b+1}"); e(f"v_add_f32 v{b}, v{b}, v{b+1}")
    def ln_stats(xf, t0, vm, vrs):
        s, t = t0, t0 + 1
        e(f"v_add_f32 v{s}, v{xf}, v{xf+1}"); e(f"v_add_f32 v{t}, v{xf+2}, v{xf+3}")
        for k in range(4, 16, 2):
            e(f"v_add_f32 v{s}, v{s}, v{xf+k}"); e(f"v_add_f32 v{t}, v{t}, v{xf+k+1}")
        e(f"v_add_f32 v{s}, v{s}, v{t}")
        allreduce_row16(s, "v_add_f32"); allreduce_xrow(s, t, "v_add_f32")
        e(f"v_mul_f32 v{s}, {f32bits(1/1024):#x}, v{s}")
        e(f"v_sub_f32 v{t}, v{xf}, v{s}"); e(f"v_sub_f32 v{t0+3}, v{xf+1}, v{s}")
        e(f"v_mul_f32 v{t0+2}, v{t}, v{t}"); e(f"v_mul_f32 v{t0+4}, v{t0+3}, v{t0+3}")
        for k in range(2, 16, 2):
            e(f"v_sub_f32 v{t}, v{xf+k}, v{s}"); e(f"v_sub_f32 v{t0+3}, v{xf+k+1}, v{s}")
            e(f"v_fmac_f32 v{t0+2}, v{t}, v{t}"); e(f"v_fmac_f32 v{t0+4}, v{t0+3}, v{t0+3}")
        e(f"v_add_f32 v{t0+2}, v{t0+2}, v{t0+4}")
        allreduce_row16(t0 + 2, "v_add_f32"); allreduce_xrow(t0 + 2, t, "v_add_f32")
        e(f"v_mul_f32 v{t0+2}, {f32bits(1/1024):#x}, v{t0+2}")
        bf16r(vm, s)
        bf16r(t, t0 + 2)
        e(f"v_add_f32 v{t}, {f32bits(1e-5):#x}, v{t}")
        bf16r(t, t)
        e(f"v_sqrt_f32 v{t}, v{t}"); e.nop(1)
        bf16r(t, t)
        e(f"v_rcp_f32 v{vrs}, v{t}"); e.nop(1)
    def unpack(dlo, dhi, src):
        e(f"v_lshlrev_b32 v{dlo}, 16, v{src}"); e(f"v_and_b32 v{dhi}, 0xffff0000, v{src}")
    def tagbytes(s0):
        for k in range(4):
            e(f"s_lshr_b32 s{s0+k}, s{sT}, {8*k}"); e(f"s_and_b32 s{s0+k}, s{s0+k}, 0xff")
    def chk4(b, t):
        e(f"v_xor_b32 v{t}, s60, v{b}"); e(f"v_bitop3_b32 v{t}, v{t}, v{b+1}, s61 bitop3:0xf6"); e(f"v_bitop3_b32 v{t}, v{t}, v{b+2}, s62 bitop3:0xf6")
        e(f"v_bitop3_b32 v{t}, v{t}, v{b+3}, s63 bitop3:0xf6"); e(f"v_and_b32 v{t}, 0xff, v{t}"); e(f"v_cmp_ne_u32 vcc, 0, v{t}")
    def mpoll(loads, cnt=None, pre=None, shadow=None):
        top = L("mp"); ent = L("me")
        for ld in loads:
            ini = ld.get('init', -1); m = ld['mask']
            if ini == -1: e(f"s_mov_b64 s[{m}:{m+1}], -1")
            else: e(f"s_mov_b32 s{m}, {ini[0]:#x}"); e(f"s_mov_b32 s{m+1}, {ini[1]:#x}")
        if cnt: e(f"s_mov_b32 s{cnt}, 0")
        for ld in loads:
            m = ld['mask']
            if ld.get('init', -1) != -1: e(f"s_mov_b64 exec, s[{m}:{m+1}]")
            ld['issue']()
            if ld.get('init', -1) != -1: e("s_mov_b64 exec, -1")
        if shadow: shadow()
        e(f"s_branch {ent}")
        e.label(top)
        spin_tick()
        if pre: pre()
        for ld in loads:
            sk = L("sk"); m = ld['mask']
            e(f"s_mov_b64 exec, s[{m}:{m+1}]"); e(f"s_cbranch_execz {sk}"); ld['issue'](); e.label(sk)
        e("s_mov_b64 exec, -1")
        e.label(ent)
        if cnt: e(f"s_add_u32 s{cnt}, s{cnt}, 1")
        e("s_waitcnt vmcnt(0)")
        e("s_mov_b64 s[66:67], 0")
        for ld in loads:
            sk = L("sc"); m = ld['mask']
            e(f"s_mov_b64 exec, s[{m}:{m+1}]"); e(f"s_cbranch_execz {sk}")
            ld['check']()
            if ld.get('take'):
                e("s_andn2_b64 exec, exec, vcc"); sk2 = L("sd"); e(f"s_cbranch_execz {sk2}"); ld['take'](); e.label(sk2)
            e(f"s_mov_b64 s[{m}:{m+1}], vcc"); e("s_or_b64 s[66:67], s[66:67], vcc")
            e.label(sk)
        e("s_mov_b64 exec, -1")
        e("s_cmp_lg_u64 s[66:67], 0"); e(f"s_cbranch_scc1 {top}")
    LOW = (0, 3)

    e("s_cmp_ge_u32 s2, 256"); e("s_cbranch_scc1 L_exit")
    stamp(0)
    e("s_load_dwordx16 s[4:19], s[0:1], 0")
    e("s_load_dwordx4 s[20:23], s[0:1], 64")
    e("s_load_dwordx2 s[24:25], s[0:1], 80")
    e("s_load_dwordx2 s[26:27], s[0:1], 96")
    e("v_lshrrev_b32 v1, 6, v0"); e("v_and_b32 v0, 63, v0")
    e("v_lshrrev_b32 v2, 4, v0"); e("v_and_b32 v3, 15, v0")
    e("v_readfirstlane_b32 s3, v1")
    e("s_and_b32 s48, s2, 7"); e("s_lshr_b32 s49, s2, 3")
    e(f"s_mov_b32 s{sCNT}, {o['spinmax']}")
    e(f"v_mov_b32 v21, {FL}"); e("v_mov_b32 v22, 1")
    e("s_lshl_b32 s46, s48, 3"); e("s_and_b32 s47, s49, 7"); e("s_add_u32 s46, s46, s47"); e("s_lshr_b32 s47, s49, 3")
    e("s_cmp_eq_u32 s3, 0"); e("s_cbranch_scc0 L_not0")
    e("v_lshrrev_b32 v24, 3, v0"); e("v_and_b32 v25, 7, v0")
    e("v_lshrrev_b32 v26, 1, v25"); e("v_bfe_u32 v27, v24, 1, 2"); e("v_xor_b32 v26, v26, v27")
    e("v_lshlrev_b32 v26, 1, v26"); e("v_and_b32 v25, 1, v25"); e("v_or_b32 v26, v26, v25"); e("v_lshlrev_b32 v26, 4, v26")
    e("v_lshl_add_u32 v24, v24, 13, v26")
    e("s_lshl_b32 s56, s47, 21"); e("s_lshl_b32 s57, s46, 7"); e("s_add_u32 s56, s56, s57")
    e(f"s_mov_b32 m0, {WQ}"); e("s_mov_b32 s57, 0")
    e("s_waitcnt lgkmcnt(0)")
    srd(36, 10, 8388608)
    e.label("L_wqloop")
    e(f"buffer_load_dwordx4 v24, s[36:39], s56 offen{NT} lds")
    e("s_add_u32 m0, m0, 1024"); e(f"s_add_u32 s56, s56, {8*8192}"); e("s_add_u32 s57, s57, 1"); e("s_cmp_lt_u32 s57, 32"); e("s_cbranch_scc1 L_wqloop")
    e("s_barrier")
    e("s_branch L_qproj")
    e.label("L_not0")
    e("s_cmp_eq_u32 s3, 1"); e("s_cbranch_scc0 L_not1")
    e("v_lshlrev_b32 v23, 5, v0"); e("v_mov_b32 v24, 0")
    e("s_waitcnt lgkmcnt(0)")
    srd(28, 26, 268435456); srd(32, 4, 2048)
    e("buffer_load_dwordx4 v[4:7], v23, s[32:35], 0 offen")
    e("buffer_load_dwordx4 v[8:11], v23, s[32:35], 0 offen offset:16")
    e("buffer_load_dword v20, v24, s[28:31], 0 offen sc1")
    e("s_barrier")
    e("s_branch L_ln")
    e.label("L_not1")
    e("s_cmp_ge_u32 s3, 6"); e("s_cbranch_scc1 L_bearly")
    e("s_cmp_ge_u32 s3, 4"); e("s_cbranch_scc1 L_learly")
    if o["cpf"]:
        lc = L("cpf"); e("s_cmp_eq_u32 s3, 2"); e(f"s_cbranch_scc0 {lc}")
        e("s_getpc_b64 s[54:55]")
        e.label("L_pc")
        e(f"s_sub_u32 s54, s54, L_pc-{KN}_kernel"); e("s_subb_u32 s55, s55, 0")
        e("s_mul_i32 s56, s49, 6"); e("v_add_u32 v24, s56, v0"); e("v_lshlrev_b32 v24, 7, v24")
        e(f"s_mov_b32 s56, L_exit-{KN}_kernel")
        e("v_cmp_gt_u32 vcc, s56, v24")
        e("s_and_b64 exec, vcc, 0x3f")
        lc2 = L("cpf"); e(f"s_cbranch_execz {lc2}")
        e("global_load_dword v150, v24, s[54:55]")
        e.label(lc2)
        e("s_mov_b64 exec, -1")
        e.label(lc)
    e("s_barrier")
    e("s_branch L_w23")
    e.label("L_learly")
    lz = L("nz"); e("s_cmp_eq_u32 s3, 4"); e(f"s_cbranch_scc0 {lz}")
    e("v_lshlrev_b32 v4, 2, v0"); e(f"v_add_u32 v4, {FL}, v4"); e("v_mov_b32 v5, 0")
    e("s_mov_b64 exec, 0xffffffff"); e("ds_write_b32 v4, v5"); e("s_mov_b64 exec, -1"); e("s_waitcnt lgkmcnt(0)")
    e.label(lz)
    e("s_barrier")
    e("s_branch L_loader")
    e.label("L_bearly")
    e("s_sub_u32 s52, s3, 6")
    e("s_lshr_b32 s53, s2, 4"); e("s_and_b32 s54, s2, 15")
    e("v_and_b32 v23, 31, v0"); e("v_lshlrev_b32 v23, 1, v23"); e("s_lshl_b32 s55, s53, 7"); e("s_lshl_b32 s56, s52, 6"); e("s_add_u32 s55, s55, s56")
    e("s_mul_i32 s56, s54, 448"); e("v_lshlrev_b32 v24, 1, v0")
    e("s_waitcnt lgkmcnt(0)")
    srd(28, 26, 268435456); srd(32, 4, 2048)
    srd(36, 16, 7168); srd(40, 18, 7168); srd(44, 20, 7168)
    e("buffer_load_ushort v12, v23, s[32:35], s55 offen")
    for n in range(4):
        e(f"buffer_load_ushort v{40+2*n}, v24, s[36:39], s56 offen offset:{128*n}")
        e(f"buffer_load_ushort v{41+2*n}, v24, s[40:43], s56 offen offset:{128*n}")
        e(f"buffer_load_ushort v{48+2*n}, v24, s[44:47], s56 offen offset:{128*n}")
    e("s_load_dword s59, s[22:23], 0")
    e("s_barrier")
    e("s_branch L_bbranch")

    def common_srd():
        e("s_waitcnt lgkmcnt(0)")
        srd(28, 26, 268435456)
        srd(32, 4, 2048)

    def prep():
        e("s_lshr_b32 s52, s48, 1"); e("s_lshl_b32 s52, s52, 3"); e("s_and_b32 s54, s49, 1"); e("s_lshl_b32 s54, s54, 2"); e("s_add_u32 s52, s52, s54")
        e("s_and_b32 s54, s48, 1"); e("s_lshl_b32 s54, s54, 4"); e("s_lshr_b32 s55, s49, 1"); e("s_add_u32 s55, s55, s54")
        e("s_lshl_b32 s57, s3, 2"); e(f"v_add_u32 v{vFLW}, s57, v21")
        e("v_lshrrev_b32 v28, 2, v3")
        for u in range(4):
            e(f"v_cmp_eq_u32 vcc, {u}, v28"); e.nop(2); e(f"v_cndmask_b32 v{vMASK+u}, 0, -1, vcc")
        e("v_lshrrev_b32 v28, 3, v0"); e("v_and_b32 v29, 7, v0")
        for i in range(2):
            e(f"v_add_u32 v30, {8*i}, v28")
            e("v_and_b32 v31, 3, v30"); e("v_lshlrev_b32 v31, 2, v31"); e(f"v_lshrrev_b32 v{vE1V+i}, 2, v30"); e(f"v_add_u32 v31, v31, v{vE1V+i}"); e("v_lshlrev_b32 v31, 9, v31")
            e(f"v_lshl_add_u32 v{vE1V+i}, v29, 4, v31")
            e("v_lshrrev_b32 v31, 1, v29"); e("v_lshl_add_u32 v31, v31, 4, v30"); e("v_lshlrev_b32 v31, 4, v31")
            e("v_and_b32 v30, 1, v29"); e("v_lshl_add_u32 v31, v30, 3, v31")
            e("s_lshl_b32 s57, s3, 10"); e(f"s_add_u32 s57, s57, {QF}"); e(f"v_add_u32 v{vE1L+i}, s57, v31")
        e(f"s_lshl_b32 s{sE1G}, s52, 11"); e("s_lshl_b32 s57, s3, 7"); e(f"s_add_u32 s{sE1G}, s{sE1G}, s57"); e(f"s_add_u32 s{sE1G}, s{sE1G}, {QB}")
        if o["local"]:
            e("s_xor_b32 s57, s48, s49"); e("s_and_b32 s57, s57, 1")
            e(f"s_mov_b32 s58, {QL - QB}"); e("s_cmp_eq_u32 s57, 0"); e("s_cselect_b32 s58, s58, 0"); e(f"s_add_u32 s{sE1}, s{sE1G}, s58")
        else: e(f"s_mov_b32 s{sE1}, s{sE1G}")
        e(f"v_lshlrev_b32 v{vL16}, 4, v0"); e(f"v_add_u32 v{vQFR}, {QF}, v{vL16}")
        e("s_lshl_b32 s57, s3, 13"); e(f"s_add_u32 s57, s57, {KL}")
        e("v_lshlrev_b32 v28, 8, v3"); e("v_add_u32 v28, s57, v28"); e("v_xor_b32 v29, v2, v3"); e(f"v_lshl_add_u32 v{vKA}, v29, 4, v28")
        for t in range(1, 4): e(f"v_xor_b32 v{vKA+t}, {t<<6}, v{vKA}")
        e("v_lshrrev_b32 v28, 2, v3"); e("v_lshl_add_u32 v28, v2, 2, v28")
        e("v_and_b32 v29, 7, v28"); e("v_lshlrev_b32 v29, 5, v29"); e("v_lshl_add_u32 v28, v28, 8, v29")
        e("v_and_b32 v29, 3, v3"); e("v_lshl_add_u32 v28, v29, 3, v28")
        e("s_lshl_b32 s57, s3, 13"); e(f"s_add_u32 s57, s57, {VL}"); e(f"v_add_u32 v{vVA}, s57, v28")
        for t in range(1, 8): e(f"v_xor_b32 v{vVA+t}, {t<<5}, v{vVA}")
        e("s_lshl_b32 s57, s3, 11"); e(f"s_add_u32 s57, s57, {OP}"); e(f"v_add_u32 v{vOPW}, s57, v{vL16}")
        e("s_lshl_b32 s57, s3, 3"); e(f"s_add_u32 s57, s57, {ML}"); e("v_lshlrev_b32 v28, 5, v3"); e(f"v_add_u32 v{vMLW}, s57, v28")
        e("s_and_b32 s57, s3, 1"); e("s_lshl_b32 s57, s57, 10"); e(f"s_add_u32 s57, s57, {OP}"); e(f"v_add_u32 v{vOPR}, s57, v{vL16}")
        e("v_and_b32 v28, 3, v3"); e("v_lshlrev_b32 v29, 5, v28"); e(f"v_add_u32 v{vMLR}, {ML}, v29")
        e("v_lshlrev_b32 v28, 14, v28"); e("v_lshrrev_b32 v29, 3, v3"); e("v_lshl_add_u32 v28, v29, 13, v28")
        e("v_bfe_u32 v29, v3, 2, 1"); e("v_lshl_add_u32 v29, v29, 2, v2"); e(f"v_lshl_add_u32 v{vMST}, v29, 4, v28")
        e(f"s_lshl_b32 s{sMS}, s52, 14"); e("s_lshl_b32 s57, s55, 8"); e(f"s_add_u32 s{sMS}, s{sMS}, s57"); e("s_and_b32 s57, s3, 1"); e("s_lshl_b32 s57, s57, 7")
        e(f"s_add_u32 s{sMS}, s{sMS}, s57"); e(f"s_add_u32 s{sMS}, s{sMS}, {OB}")
        e("s_lshr_b32 s56, s49, 2"); e("s_lshl_b32 s56, s56, 3"); e("s_add_u32 s56, s56, s48")
        e(f"s_lshl_b32 s{sE2}, s56, 13"); e("s_lshl_b32 s57, s3, 11"); e(f"s_add_u32 s{sE2}, s{sE2}, s57"); e(f"s_add_u32 s{sE2}, s{sE2}, {OB}")
        e("v_lshrrev_b32 v28, 2, v3"); e("v_lshl_add_u32 v29, v28, 2, v2"); e("v_lshlrev_b32 v29, 9, v29")
        e("v_and_b32 v30, 1, v2"); e("v_lshl_add_u32 v30, v30, 2, v28"); e("v_lshl_add_u32 v29, v30, 5, v29")
        e("v_and_b32 v30, 3, v3"); e("v_lshl_add_u32 v29, v30, 3, v29"); e(f"v_add_u32 v29, {WO}, v29")
        e("s_lshl_b32 s57, s3, 7"); e(f"v_xor_b32 v{vWOA}, s57, v29")
        for u in range(1, 4): e(f"v_xor_b32 v{vWOA+u}, {u<<5}, v{vWOA}")
        e("s_and_b32 s57, s49, 3"); e("s_lshl_b32 s57, s57, 3"); e("s_lshl_b32 s58, s3, 1"); e("s_add_u32 s57, s57, s58"); e(f"s_lshl_b32 s{sE3}, s57, 13")
        e("s_lshl_b32 s57, s56, 7"); e(f"s_add_u32 s{sE3}, s{sE3}, s57"); e(f"s_add_u32 s{sE3}, s{sE3}, {FB}")
        e("v_lshrrev_b32 v28, 3, v3"); e("v_lshlrev_b32 v28, 13, v28"); e("v_and_b32 v29, 7, v3"); e(f"v_lshl_add_u32 v{vE3V}, v29, 4, v28")
        e(f"v_add_u32 v{vOXR}, {OX}, v{vL16}"); e("s_lshl_b32 s57, s3, 2"); e(f"v_add_u32 v{vOXW}, s57, v{vOXR}")

    e.label("L_w23")
    if o["prio"]: e("s_setprio 3")
    common_srd()
    prep()
    wait_flags(F_XN, 1, 28, extra=lambda: e(f"ds_read_b32 v29, v21 offset:{F_T*4}"), sleep=o["slp"], lowprio=LOW)
    e(f"v_readfirstlane_b32 s{sT}, v29")
    e("s_branch L_attn")
    e.label("L_ln")
    if o["prio"]: e("s_setprio 3")
    e("s_lshl_b32 s54, s47, 4"); e("v_subrev_u32 v23, s54, v0"); e("v_lshlrev_b32 v23, 5, v23"); e(f"v_add_u32 v23, {XN}, v23")
    e("s_mov_b32 s56, 0xffff"); e("s_mov_b32 s57, 0"); e("s_lshl_b64 s[58:59], s[56:57], s54")
    e("s_waitcnt vmcnt(0)")
    stamp(2)
    e(f"v_readfirstlane_b32 s{sT}, v20")
    for k in range(8): unpack(24 + 2 * k, 25 + 2 * k, 4 + k)
    e(f"s_add_u32 s{sT}, s{sT}, 1"); e(f"s_mul_i32 s{sT}, s{sT}, {TMUL:#x}")
    ln_stats(24, 98, 104, 105)
    e(f"v_mov_b32 v20, s{sT}"); e(f"ds_write_b32 v21, v20 offset:{F_T*4}")
    for k in range(16): e(f"v_sub_f32 v{24+k}, v{24+k}, v104")
    for k in range(8): e(f"v_cvt_pk_bf16_f32 v{4+k}, v{24+2*k}, v{25+2*k}")
    for k in range(8): unpack(24 + 2 * k, 25 + 2 * k, 4 + k)
    for k in range(16): e(f"v_mul_f32 v{24+k}, v{24+k}, v105")
    for k in range(8): e(f"v_cvt_pk_bf16_f32 v{4+k}, v{24+2*k}, v{25+2*k}")
    e("s_mov_b64 exec, s[58:59]")
    e("ds_write_b128 v23, v[4:7]"); e("ds_write_b128 v23, v[8:11] offset:16")
    e("s_mov_b64 exec, -1")
    set_flag(F_XN)
    stamp(1)
    for k in range(8): unpack(24 + 2 * k, 25 + 2 * k, 4 + k)
    ln_stats(24, 98, 106, 107)
    e(f"v_mov_b32 v23, {LNS}"); e("ds_write_b128 v23, v[104:107]")
    set_flag(F_LN2)
    stamp(3)
    prep()
    e("s_branch L_attn")
    e.label("L_qproj")
    if o["prio"]: e("s_setprio 3")
    stamp(1)
    srd(28, 26, 268435456)
    prep()
    e("v_lshrrev_b32 v24, 2, v3"); e("v_and_b32 v25, 3, v3")
    e("v_lshlrev_b32 v26, 2, v2"); e("v_add_u32 v26, v26, v24")
    e("v_lshrrev_b32 v27, 1, v26"); e("v_and_b32 v27, 3, v27")
    e("v_lshlrev_b32 v26, 7, v26"); e("v_lshlrev_b32 v25, 3, v25"); e("v_add_u32 v26, v26, v25")
    e("v_lshlrev_b32 v27, 5, v27"); e("v_add_u32 v108, v26, v27")
    for u in range(1, 4): e(f"v_xor_b32 v{108+u}, {u<<5}, v108")
    e("s_lshr_b32 s57, s46, 1"); e("s_lshl_b32 s57, s57, 11"); e("s_and_b32 s58, s46, 1"); e("s_lshl_b32 s58, s58, 8"); e("s_add_u32 s57, s57, s58")
    e("s_lshl_b32 s58, s47, 9"); e("s_add_u32 s57, s57, s58"); e(f"s_add_u32 s46, s57, {QB}"); e(f"s_add_u32 s47, s57, {QL}")
    e("v_lshlrev_b32 v27, 2, v0")
    e("v_lshlrev_b32 v26, 3, v2"); e(f"v_add_u32 v26, {XN}, v26")
    def xn_extra():
        e(f"ds_read_b32 v29, v21 offset:{F_T*4}")
        for k in range(8): e(f"ds_read2_b64 v[{40+4*k}:{43+4*k}], v26 offset0:{8*k} offset1:{8*k+4}")
    wait_flags(F_XN, 1, 28, extra=xn_extra)
    e(f"v_readfirstlane_b32 s{sT}, v29")
    stamp(2)
    csc = math.log2(math.e) / math.sqrt(128.0)
    e(f"s_mov_b32 s58, {f32bits(csc):#x}")
    for k in range(8):
        A = 72 + 16 * (k & 1); B = 128 + 16 * (k & 1)
        for u in range(4):
            for m in range(4): e(f"v_and_b32 v{A+4*u+m}, v{40+4*k+m}, v{vMASK+u}")
        e(f"s_waitcnt vmcnt({28 - 4*k})")
        if k == 7: stamp(3)
        for u in range(4):
            for rho in range(2):
                r = B + 4 * u + 2 * rho
                e(f"ds_read_b64_tr_b16 v[{r}:{r+1}], v{108+u} offset:{k*4096 + rho*2048}")
        for u in range(4):
            e(f"s_waitcnt lgkmcnt({2*(3-u)})")
            c = "0" if (k == 0 and u == 0) else "v[104:107]"
            e(f"v_mfma_f32_16x16x32_bf16 v[104:107], v[{A+4*u}:{A+4*u+3}], v[{B+4*u}:{B+4*u+3}], {c}")
    e(f"v_mov_b32 v49, s{sT}"); e(f"v_mov_b32 v51, s{sT}")
    e("s_mov_b32 s56, 0x11111111"); e("s_mov_b32 s57, 0x11111111")
    e.nop(4)
    e("v_mul_f32 v104, s58, v104"); e.nop(2)
    e(f"v_mov_b32_dpp v105, v104 quad_perm:[1,0,3,2] {DPP}")
    e("v_cvt_pk_bf16_f32 v48, v104, v105"); e.nop(2)
    e(f"v_mov_b32_dpp v50, v48 quad_perm:[2,3,0,1] {DPP}")
    e("s_mov_b64 exec, s[56:57]")
    if o["local"]: e("buffer_store_dwordx4 v[48:51], v27, s[28:31], s47 offen")
    e("buffer_store_dwordx4 v[48:51], v27, s[28:31], s46 offen sc1")
    e("s_mov_b64 exec, -1")
    set_flag(F_QPUB)
    stamp(5)

    e.label("L_attn")
    wait_flags(F_QPUB, 1, 28, sleep=o["slp"], lowprio=LOW)
    wait_flags(F_VI, 2, 28, lowprio=LOW)
    PB = 128
    def mk_e1(i):
        b = PB + 4 * i
        return dict(issue=lambda: e(f"buffer_load_dwordx4 v[{b}:{b+3}], v{vE1V+i}, s[28:31], s{sE1} offen sc1"),
                    check=lambda: (e(f"v_xor_b32 v36, s{sT}, v{b+1}"), e(f"v_xor_b32 v37, s{sT}, v{b+3}"), e("v_or_b32 v36, v36, v37"), e("v_cmp_ne_u32 vcc, 0, v36")),
                    take=lambda: e(f"ds_write2_b32 v{vE1L+i}, v{b}, v{b+2} offset0:0 offset1:1"), mask=70 + 2 * i)
    def kreads():
        for kt in range(2):
            for t in range(4):
                r = 40 + 16 * kt + 4 * t
                e(f"ds_read_b128 v[{r}:{r+3}], v{vKA+t} offset:{kt*4096}")
    def e1_pre():
        if o["local"]: e(f"s_cmp_ge_u32 s68, {o['fb1']}"); e(f"s_cselect_b32 s{sE1}, s{sE1G}, s{sE1}")
    stamp(1)
    def e1_shadow():
        if o["wpre"]: e(f"ds_write_b32 v{vFLW}, v22 offset:{F_P1*4}")
        kreads()
    mpoll([mk_e1(0), mk_e1(1)], cnt=68, pre=e1_pre, shadow=e1_shadow)
    e(f"ds_write_b32 v{vFLW}, v22 offset:{F_QF*4}")
    stamp(6)
    VF = 160
    def vreads():
        for t in range(8):
            for rho in range(2):
                r = VF + 4 * t + 2 * rho
                e(f"ds_read_b64_tr_b16 v[{r}:{r+1}], v{vVA+t} offset:{rho*4096}")
    def qf_extra():
        e(f"ds_read_b64 v[32:33], v21 offset:{F_V*4}")
        for t in range(4): e(f"ds_read_b128 v[{72+4*t}:{75+4*t}], v{vQFR} offset:{t*1024}")
    wait_flags(F_QF, 4, 28, extra=qf_extra)
    for t in range(4):
        for kt in range(2):
            c = "0" if t == 0 else f"v[{88+4*kt}:{91+4*kt}]"
            e(f"v_mfma_f32_16x16x32_bf16 v[{88+4*kt}:{91+4*kt}], v[{40+16*kt+4*t}:{43+16*kt+4*t}], v[{72+4*t}:{75+4*t}], {c}")
    e("v_and_b32 v32, v32, v33"); e("v_cmp_ne_u32 vcc, 0, v32")
    e("s_mov_b32 s59, 0")
    lv = L("vlate"); e(f"s_cbranch_vccz {lv}")
    vreads(); e("s_mov_b32 s59, 1")
    e.label(lv)
    for m in range(4): e(f"v_mov_b32 v{44+m}, 0x3f803f80")
    e.nop(3)
    S = list(range(88, 96))
    for s_ in S: e(f"v_add_f32_dpp v{s_+8}, v{s_}, v{s_} row_ror:4 {DPP}")
    for s_ in S: e(f"v_add_f32_dpp v{s_}, v{s_+8}, v{s_+8} row_ror:8 {DPP}")
    e("v_max3_f32 v96, v88, v89, v90"); e("v_max3_f32 v97, v91, v92, v93"); e("v_max3_f32 v96, v96, v94, v95"); e("v_max_f32 v96, v96, v97")
    allreduce_xrow(96, 97, "v_max_f32")
    for s_ in S: e(f"v_sub_f32 v{s_}, v{s_}, v96")
    for s_ in S: e(f"v_exp_f32 v{s_}, v{s_}")
    e.nop(1)
    for m in range(4): e(f"v_cvt_pk_bf16_f32 v{100+m}, v{88+2*m}, v{89+2*m}")
    lw = L("vok"); e("s_cmp_lg_u32 s59, 0"); e(f"s_cbranch_scc1 {lw}")
    wait_flags(F_V, 2, 28); vreads()
    e.label(lw)
    for m in range(4): e(f"v_and_b32 v{72+m}, v{100+m}, v{vMASK}")
    for m in range(4): e(f"v_and_b32 v{76+m}, v{100+m}, v{vMASK+1}")
    e("s_waitcnt lgkmcnt(0)")
    first = [True, True]
    for t in range(8):
        ee = (t >> 1) & 1; u = 2 * (t >> 2) + (t & 1)
        c = "0" if first[ee] else f"v[{104+4*ee}:{107+4*ee}]"; first[ee] = False
        e(f"v_mfma_f32_16x16x32_bf16 v[{104+4*ee}:{107+4*ee}], v[{VF+4*t}:{VF+4*t+3}], v[{72+4*u}:{75+4*u}], {c}")
        if t in (0, 1):
            for m in range(4): e(f"v_and_b32 v{80+4*t+m}, v{100+m}, v{vMASK+2+t}")
    e("v_mfma_f32_16x16x32_bf16 v[92:95], v[44:47], v[100:103], 0")
    e.nop(6)
    e(f"ds_write_b128 v{vOPW}, v[104:107]")
    e(f"ds_write_b128 v{vOPW}, v[108:111] offset:1024")
    e("v_mov_b32 v97, v92")
    e("s_mov_b64 exec, 0xf")
    e(f"ds_write_b64 v{vMLW}, v[96:97]")
    e("s_mov_b64 exec, -1")
    e(f"ds_write_b32 v{vFLW}, v22 offset:{F_O*4}")
    stamp(7)
    tagbytes(60); e("s_mov_b32 s64, 0x07060500"); e("s_mov_b32 s59, 0")
    e("s_cmp_ge_u32 s3, 2"); e("s_cbranch_scc1 L_e2")
    e(f"v_mov_b32 v63, s{sT}")
    def mg_extra():
        for w in range(4): e(f"ds_read_b128 v[{32+4*w}:{35+4*w}], v{vOPR} offset:{w*2048}")
        e(f"ds_read_b128 v[48:51], v{vMLR}"); e(f"ds_read_b128 v[52:55], v{vMLR} offset:16")
    wait_flags(F_O, 4, 28, extra=mg_extra)
    e("v_max3_f32 v56, v48, v50, v52"); e("v_max_f32 v56, v56, v54")
    for w in range(4): e(f"v_sub_f32 v{48+2*w}, v{48+2*w}, v56")
    for w in range(4): e(f"v_exp_f32 v{48+2*w}, v{48+2*w}")
    e.nop(1)
    e("v_mul_f32 v57, v48, v49")
    for m in range(4): e(f"v_mul_f32 v{32+m}, v{32+m}, v48")
    for w in range(1, 4): e(f"v_fmac_f32 v57, v{48+2*w}, v{49+2*w}")
    for m in range(4): e(f"v_fmac_f32 v{32+m}, v{36+m}, v50")
    e("v_rcp_f32 v58, v57"); e("v_log_f32 v59, v57")
    for w in range(2, 4):
        for m in range(4): e(f"v_fmac_f32 v{32+m}, v{32+4*w+m}, v{48+2*w}")
    e("v_add_f32 v62, v56, v59")
    for m in range(4): e(f"v_mul_f32 v{32+m}, v{32+m}, v58")
    e("v_cvt_pk_bf16_f32 v60, v32, v33"); e("v_cvt_pk_bf16_f32 v61, v34, v35")
    e(f"buffer_store_dwordx4 v[60:63], v{vMST}, s[28:31], s{sMS} offen sc1")
    e(f"ds_write_b32 v{vFLW}, v22 offset:{F_MP*4}")
    if o["stamps"]: e("s_memrealtime s[80:81]")

    e.label("L_e2")
    def woreads():
        for u in range(4):
            for tp in range(4):
                r = 40 + 8 * u + 2 * tp
                e(f"ds_read_b64_tr_b16 v[{r}:{r+1}], v{vWOA+u} offset:{tp*8192}")
    def wo_try():
        lskip = L("wo"); e("s_cmp_lg_u32 s59, 0"); e(f"s_cbranch_scc1 {lskip}")
        e(f"ds_read_b64 v[28:29], v21 offset:{F_WO*4}"); e("s_waitcnt lgkmcnt(0)")
        e("v_and_b32 v28, v28, v29"); e("v_cmp_ne_u32 vcc, 0, v28"); e(f"s_cbranch_vccz {lskip}")
        woreads(); e("s_mov_b32 s59, 1")
        e.label(lskip)
    for k in range(4): e(f"v_mov_b32 v{8+k}, s{60+k}")
    e("v_mov_b32 v10, v10") if False else None
    wait_flags(F_MP, 2, 28, lowprio=LOW)
    if o["dl2"]: e(f"s_sleep {o['dl2']}")
    B2 = 128
    def mk_dat(n):
        b = B2 + 4 * n
        return dict(issue=lambda: e(f"buffer_load_dwordx4 v[{b}:{b+3}], v{vL16}, s[28:31], s{sE2} offen offset:{n*1024} sc1"),
                    check=lambda: e(f"v_cmp_ne_u32 vcc, s{sT}, v{b+3}"), mask=70 + 2 * n)
    if o["stamps"]: e("s_memrealtime s[82:83]")
    mpoll([mk_dat(0), mk_dat(1)], cnt=69, pre=wo_try, shadow=wo_try)
    if o["stamps"]: e("s_memrealtime s[84:85]")
    l0, l1 = B2 + 2, B2 + 6
    e(f"v_max_f32 v7, v{l0}, v{l1}")
    e("v_mov_b32 v20, 0xffff0000")
    e(f"v_lshlrev_b32 v16, 16, v{B2}"); e(f"v_and_b32 v17, v20, v{B2}")
    allreduce_xrow(7, 6, "v_max_f32")
    e(f"v_sub_f32 v{l0}, v{l0}, v7"); e(f"v_sub_f32 v{l1}, v{l1}, v7")
    e(f"v_lshlrev_b32 v18, 16, v{B2+1}"); e(f"v_and_b32 v19, v20, v{B2+1}")
    e(f"v_exp_f32 v{l0}, v{l0}"); e(f"v_exp_f32 v{l1}, v{l1}")
    e(f"v_lshlrev_b32 v24, 16, v{B2+4}"); e(f"v_and_b32 v25, v20, v{B2+4}"); e(f"v_lshlrev_b32 v26, 16, v{B2+5}"); e(f"v_and_b32 v27, v20, v{B2+5}")
    for i in range(4): e(f"v_mul_f32 v{12+i}, v{16+i}, v{l0}")
    e(f"v_add_f32 v5, v{l0}, v{l1}")
    for i in range(4): e(f"v_fmac_f32 v{12+i}, v{24+i}, v{l1}")
    e("v_mov_b32 v4, v7")
    allreduce_xrow(5, 6, "v_add_f32")
    reduce_scatter4(12)
    e(f"ds_write_b32 v{vOXW}, v12")
    e("s_lshl_b32 s57, s3, 3"); e(f"s_add_u32 s57, s57, {SX}"); e("v_mov_b32 v6, s57")
    e("s_mov_b64 exec, 1"); e("ds_write_b64 v6, v[4:5]"); e("s_mov_b64 exec, -1")
    e(f"ds_write_b32 v{vFLW}, v22 offset:{F_OX*4}")
    e(f"v_mov_b32 v6, {SX}")
    def ox_extra():
        e(f"ds_read_b128 v[12:15], v{vOXR}"); e("ds_read_b128 v[24:27], v6"); e("ds_read_b128 v[72:75], v6 offset:16")
    wait_flags(F_OX, 4, 28, extra=ox_extra)
    e("v_max3_f32 v7, v24, v26, v72"); e("v_max_f32 v7, v7, v74")
    e("v_sub_f32 v24, v24, v7"); e("v_sub_f32 v26, v26, v7"); e("v_sub_f32 v72, v72, v7"); e("v_sub_f32 v74, v74, v7")
    e("v_exp_f32 v24, v24"); e("v_exp_f32 v26, v26"); e("v_exp_f32 v72, v72"); e("v_exp_f32 v74, v74"); e.nop(1)
    e("v_mul_f32 v5, v24, v25"); e("v_mul_f32 v12, v12, v24"); e("v_fmac_f32 v5, v26, v27"); e("v_fmac_f32 v12, v13, v26")
    e("v_fmac_f32 v5, v72, v73"); e("v_fmac_f32 v12, v14, v72"); e("v_fmac_f32 v5, v74, v75"); e("v_fmac_f32 v12, v15, v74")
    e("v_rcp_f32 v5, v5"); e.nop(1); e("v_mul_f32 v12, v12, v5"); e.nop(2)
    e(f"v_mov_b32_dpp v13, v12 quad_perm:[1,0,3,2] {DPP}")
    e("v_cvt_pk_bf16_f32 v12, v12, v13"); e.nop(2)
    for m in range(8): e(f"v_mov_b32_dpp v{76+m}, v12 row_newbcast:{2*m} {DPP}")
    lw = L("wook"); e("s_cmp_lg_u32 s59, 0"); e(f"s_cbranch_scc1 {lw}")
    wait_flags(F_WO, 2, 28); woreads(); e("s_waitcnt lgkmcnt(0)")
    e.label(lw)
    AC = 136
    for k in range(2):
        for u in range(4):
            c = "0" if k == 0 else f"v[{AC+4*u}:{AC+4*u+3}]"
            e(f"v_mfma_f32_16x16x32_bf16 v[{AC+4*u}:{AC+4*u+3}], v[{76+4*k}:{79+4*k}], v[{40+8*u+4*k}:{43+8*u+4*k}], {c}")
    e("s_mov_b64 exec, 0xffff")
    e.nop(4)
    for i in range(4): e(f"v_perm_b32 v{4+i}, v{AC+4*i}, v{8+i}, s64")
    e(f"buffer_store_dwordx4 v[4:7], v{vE3V}, s[28:31], s{sE3} offen sc1")
    e("s_mov_b64 exec, -1")
    set_flag(F_PUB3)
    if o["stamps"]: e("s_memrealtime s[86:87]")
    e("s_waitcnt lgkmcnt(0)")
    dump_stamps(cnts=[(4, 68), (5, 69)] if True else None)
    e("s_endpgm")

    e.label("L_loader")
    stamp(1)
    if o["prio"]: e("s_setprio 2")
    e("s_sub_u32 s52, s3, 4")
    e("s_lshr_b32 s53, s48, 1"); e("s_lshl_b32 s53, s53, 24"); e("s_and_b32 s54, s48, 1"); e("s_lshl_b32 s54, s54, 4"); e("s_lshr_b32 s55, s49, 1"); e("s_add_u32 s54, s54, s55")
    e("s_lshl_b32 s54, s54, 15"); e("s_add_u32 s53, s53, s54"); e(f"s_add_u32 s53, s53, {KEY0*256}")
    e("s_lshl_b32 s54, s52, 14"); e("s_add_u32 s53, s53, s54")
    e("s_lshr_b32 s55, s49, 2"); e("s_lshl_b32 s55, s55, 3"); e("s_add_u32 s55, s55, s48"); e("s_lshl_b32 s55, s55, 17")
    e("s_and_b32 s56, s49, 3"); e("s_lshl_b32 s56, s56, 9"); e("s_add_u32 s55, s55, s56")
    e("s_lshl_b32 s56, s52, 16"); e("s_add_u32 s55, s55, s56")
    e("s_lshl_b32 s57, s52, 14")
    for m in range(4):
        e(f"v_add_u32 v4, {4*m}, v2"); e("v_xor_b32 v4, v4, v3"); e("v_lshlrev_b32 v4, 4, v4"); e("v_lshlrev_b32 v5, 8, v2"); e(f"v_add_u32 v{8+m}, v4, v5")
    for m in range(2):
        e(f"v_add_u32 v4, {4*m}, v2"); e("v_lshrrev_b32 v5, 1, v3"); e("v_xor_b32 v4, v4, v5"); e("v_lshlrev_b32 v4, 1, v4"); e("v_and_b32 v5, 1, v3"); e("v_or_b32 v4, v4, v5")
        e("v_lshlrev_b32 v4, 4, v4"); e("v_lshlrev_b32 v5, 8, v2"); e(f"v_add_u32 v{12+m}, v4, v5")
    e("v_lshrrev_b32 v6, 5, v0"); e("v_and_b32 v7, 31, v0")
    for m in range(4):
        e("v_lshlrev_b32 v4, 2, v6"); e(f"v_add_u32 v4, {m}, v4"); e("v_lshrrev_b32 v5, 1, v7"); e("v_xor_b32 v4, v4, v5"); e("v_lshlrev_b32 v4, 1, v4")
        e("v_and_b32 v5, 1, v7"); e("v_or_b32 v4, v4, v5"); e("v_lshlrev_b32 v4, 4, v4"); e("v_lshlrev_b32 v5, 11, v6"); e(f"v_add_u32 v{16+m}, v4, v5")
    e("s_lshl_b32 s58, s52, 2"); e("v_add_u32 v20, s58, v21")
    e("s_waitcnt lgkmcnt(0)")
    srd(36, 6, 67108864); srd(40, 8, 67108864); srd(44, 12, 8388608)
    if o["stamps"]: srd(28, 26, 268435456)
    stamp(2)
    W = o["win"]; WKV = o["winkv"]
    seq = [("K", m) for m in range(16)] + [("V", m) for m in range(16)] + [("W", m) for m in range(16)]
    st = dict(landed=-1)
    def land(upto):
        for x in range(st["landed"] + 1, upto + 1):
            if x == 15: set_flag(F_K, 20); stamp(3)
            if x == 31: set_flag(F_V, 20); stamp(4)
        st["landed"] = max(st["landed"], upto)
    for i, (kind, m) in enumerate(seq):
        w_ = WKV if i < 32 else W
        skipwin = False
        if i == 32:
            assert st["landed"] >= 15
            set_flag(F_VI, 20)
            if o["wpre"]:
                wait_flags(F_P1, 4, 24)
            else:
                e("s_waitcnt vmcnt(0)"); land(31)
                wait_flags(F_QF, 4, 24)
        if o["wpre"] and 32 <= i < 32 + o["wpre"]:
            skipwin = True
        if o["wpre"] and i == 32 + o["wpre"]:
            e(f"s_waitcnt vmcnt({o['wpre']})"); land(31)
            wait_flags(F_QF, 4, 24)
        if not skipwin and i - st["landed"] - 1 > w_ - 1:
            e(f"s_waitcnt vmcnt({w_-1})"); land(i - w_)
        if kind == "K":
            e(f"s_add_u32 m0, s57, {KL + m*1024}"); e(f"s_add_u32 s58, s53, {m*1024}")
            e(f"buffer_load_dwordx4 v{8 + (m & 3)}, s[36:39], s58 offen{NT} lds")
        elif kind == "V":
            e(f"s_add_u32 m0, s57, {VL + m*1024}"); e(f"s_add_u32 s58, s53, {m*1024}")
            e(f"buffer_load_dwordx4 v{12 + (m & 1)}, s[40:43], s58 offen{NT} lds")
        else:
            e(f"s_add_u32 m0, s57, {WO + m*1024}"); e(f"s_add_u32 s58, s55, {m*4096}")
            e(f"buffer_load_dwordx4 v{16 + ((m >> 1) & 3)}, s[44:47], s58 offen{NT} lds")
    e("s_waitcnt vmcnt(0)"); set_flag(F_WO, 20); stamp(5)
    e("s_waitcnt lgkmcnt(0)")
    dump_stamps()
    e("s_endpgm")

    e.label("L_bbranch")
    if o["prio"]: e(f"s_setprio {o['bprio']}")
    e(f"v_mov_b32 v23, {LNS}")
    k1 = -2.0 * math.sqrt(2.0 / math.pi) * math.log2(math.e); k2 = k1 * 0.044715
    e(f"v_mov_b32 v92, {f32bits(k1):#x}"); e(f"v_mov_b32 v93, {f32bits(k2):#x}")
    wait_flags(F_LN2, 1, 28, extra=lambda: (e("ds_read_b128 v[32:35], v23"), e(f"ds_read_b32 v29, v21 offset:{F_T*4}")), sleep=2)
    e(f"v_readfirstlane_b32 s{sT}, v29")
    e("s_waitcnt vmcnt(0)")
    stamp(1)
    for k in range(8): e(f"v_lshlrev_b32 v{40+k}, 16, v{40+k}")
    for n in range(4): e(f"v_lshlrev_b32 v{48+2*n}, 16, v{48+2*n}")
    e("v_cmp_gt_u32 vcc, 32, v0"); e("v_mov_b32 v94, 1.0"); e("v_mov_b32 v95, 1.0"); e("v_cndmask_b32 v54, 0, v54, vcc")
    e("v_lshlrev_b32 v14, 16, v12")
    e("v_sub_f32 v16, v14, v32"); bf16r(16, 16); e("v_mul_f32 v16, v16, v33"); bf16r(16, 16)
    e("v_sub_f32 v16, v16, v34"); bf16r(16, 16); e("v_mul_f32 v16, v16, v35"); bf16r(16, 16)
    ACCB = 128
    for half in range(2):
        e.nop(1)
        for k in range(16): e(f"v_readlane_b32 s{64+k}, v16, {16*half+k}")
        e.nop(2)
        NI = o["bilp"]
        for k in range(0, 16, 2 * NI):
            dps = [16 * half + k + 2 * q_ for q_ in range(NI)]
            for n in range(4):
                R = range(NI)
                U = [f"v[{100+6*q_}:{101+6*q_}]" for q_ in R]; Z = [f"v[{102+6*q_}:{103+6*q_}]" for q_ in R]; G = [f"v[{104+6*q_}:{105+6*q_}]" for q_ in R]
                WB = f"v[{40+2*n}:{41+2*n}]"; W2 = f"v[{48+2*n}:{49+2*n}]"
                for q_, d in enumerate(dps): e(f"v_pk_fma_f32 {U[q_]}, s[{64+(d&15)}:{65+(d&15)}], {WB}, {WB} op_sel:[0,0,1] op_sel_hi:[1,0,1]")
                for q_ in R: e(f"v_pk_mul_f32 {Z[q_]}, {U[q_]}, {U[q_]}")
                for q_ in R: e(f"v_pk_fma_f32 {Z[q_]}, {Z[q_]}, v[92:93], v[92:93] op_sel:[0,1,0] op_sel_hi:[1,1,0]")
                for q_ in R: e(f"v_pk_mul_f32 {Z[q_]}, {Z[q_]}, {U[q_]}")
                for q_ in R: e(f"v_pk_mul_f32 {G[q_]}, {U[q_]}, {W2} op_sel_hi:[1,0]")
                for q_ in R: e(f"v_exp_f32 v{102+6*q_}, v{102+6*q_}"); e(f"v_exp_f32 v{103+6*q_}, v{103+6*q_}")
                e.nop(1)
                for q_ in R: e(f"v_pk_add_f32 {Z[q_]}, {Z[q_]}, v[94:95]")
                for q_ in R: e(f"v_rcp_f32 v{102+6*q_}, v{102+6*q_}"); e(f"v_rcp_f32 v{103+6*q_}, v{103+6*q_}")
                e.nop(1)
                for q_, d in enumerate(dps):
                    A_ = f"v[{ACCB+d}:{ACCB+d+1}]"
                    if n == 0: e(f"v_pk_mul_f32 {A_}, {G[q_]}, {Z[q_]}")
                    else: e(f"v_pk_fma_f32 {A_}, {G[q_]}, {Z[q_]}, {A_}")
    stamp(3)
    e.nop(2)
    for k in range(16):
        e(f"v_permlane32_swap_b32 v{ACCB+k}, v{ACCB+16+k}")
    for k in range(16): e(f"v_add_f32 v{ACCB+k}, v{ACCB+k}, v{ACCB+16+k}")
    e.nop(1)
    for k in range(8): e(f"v_permlane16_swap_b32 v{ACCB+k}, v{ACCB+8+k}")
    for k in range(8): e(f"v_add_f32 v{ACCB+k}, v{ACCB+k}, v{ACCB+8+k}")
    for sh in (8, 4, 2, 1):
        e.nop(1)
        for k in range(8): e(f"v_add_f32_dpp v{ACCB+k}, v{ACCB+k}, v{ACCB+k} row_ror:{sh} {DPP}")
    e("s_lshl_b32 s57, s52, 7"); e(f"s_add_u32 s57, s57, {YP}"); e("v_lshlrev_b32 v24, 5, v2"); e("v_add_u32 v24, s57, v24")
    e("s_mov_b32 exec_lo, 0x00010001"); e("s_mov_b32 exec_hi, 0x00010001")
    e(f"ds_write_b128 v24, v[{ACCB}:{ACCB+3}]"); e(f"ds_write_b128 v24, v[{ACCB+4}:{ACCB+7}] offset:16")
    e("s_mov_b64 exec, -1")
    e("s_cmp_eq_u32 s52, 0"); e("s_cbranch_scc1 L_final")
    set_flag(F_G)
    e("s_waitcnt lgkmcnt(0)")
    dump_stamps()
    e("s_endpgm")
    e.label("L_final")
    tagbytes(60)
    e("s_mov_b32 s64, 0x07060500")
    for k in range(4): e(f"v_mov_b32 v{8+k}, s{60+k}")
    e("v_lshlrev_b32 v24, 2, v3"); e(f"v_add_u32 v24, {YP}, v24")
    wait_flags(F_G, 1, 28, extra=lambda: [e(f"ds_read_b32 v{96+i}, v24 offset:{64*i}") for i in range(4)])
    for k in range(4): e(f"v_perm_b32 v{4+k}, v{96+k}, v{8+k}, s64")
    e("s_lshl_b32 s56, s2, 8"); e(f"s_add_u32 s56, s56, {GB}")
    e("v_lshlrev_b32 v24, 4, v0")
    e("s_mov_b64 exec, 0xffff")
    e("buffer_store_dwordx4 v[4:7], v24, s[28:31], s56 offen sc1")
    e("s_mov_b64 exec, -1")
    stamp(4)
    e("s_lshr_b32 s53, s49, 3"); e("s_lshl_b32 s53, s53, 3"); e("s_add_u32 s53, s53, s48")
    e("s_and_b32 s54, s49, 7")
    e("s_lshr_b32 s55, s53, 1"); e("s_lshl_b32 s55, s55, 6"); e("s_and_b32 s56, s53, 1"); e("s_lshl_b32 s56, s56, 3"); e("s_add_u32 s55, s55, s56"); e("s_add_u32 s55, s55, s54")
    e("v_lshlrev_b32 v25, 5, v2"); e("s_lshl_b32 s55, s55, 1")
    e("buffer_load_ushort v12, v25, s[32:35], s55 offen")
    e("v_lshlrev_b32 v26, 2, v3"); e("v_add_u32 v26, v26, v2"); e("v_lshlrev_b32 v26, 8, v26")
    e("s_lshr_b32 s56, s53, 1"); e("s_lshl_b32 s56, s56, 12"); e("s_and_b32 s57, s53, 1"); e("s_lshl_b32 s57, s57, 3"); e("s_add_u32 s57, s57, s54"); e("s_lshl_b32 s57, s57, 4")
    e("s_add_u32 s57, s57, s56"); e(f"s_add_u32 s57, s57, {GB}")
    e("v_lshlrev_b32 v24, 7, v0")
    e("s_lshl_b32 s56, s53, 13"); e("s_lshl_b32 s58, s54, 4"); e("s_add_u32 s56, s56, s58"); e(f"s_add_u32 s56, s56, {FB}")
    srd(36, 24, 2048)
    wait_flags(F_MP, 2, 28, sleep=4)
    mpoll([dict(issue=lambda: e("buffer_load_dwordx4 v[32:35], v26, s[28:31], s57 offen sc1"), check=lambda: chk4(32, 60), mask=70, init=(0x000f000f, 0x000f000f))])
    reduce_scatter4(32); e("v_mov_b32 v96, v32"); e.nop(2)
    e(f"v_add_f32_dpp v96, v96, v96 quad_perm:[1,0,3,2] {DPP}"); e.nop(2)
    e(f"v_add_f32_dpp v96, v96, v96 quad_perm:[2,3,0,1] {DPP}")
    bf16r(96, 96)
    e("s_and_b32 s59, s59, 0xffff"); e("s_lshl_b32 s59, s59, 16")
    e("v_add_f32 v96, s59, v96"); bf16r(96, 96)
    e(f"v_mul_f32 v97, {f32bits(-math.log2(math.e)):#x}, v96"); e("v_exp_f32 v97, v97"); e.nop(1); e("v_add_f32 v97, 1.0, v97"); e("v_rcp_f32 v97, v97"); e.nop(1)
    e("v_mul_f32 v96, v96, v97"); bf16r(96, 96)
    e("v_lshlrev_b32 v14, 16, v12")
    stamp(1)
    wait_flags(F_PUB3, 1, 28, sleep=1)
    if o["prio"]: e("s_setprio 3")
    if o["dl3"]: e(f"s_sleep {o['dl3']}")
    stamp(5)
    mpoll([dict(issue=lambda: e("buffer_load_dwordx4 v[28:31], v24, s[28:31], s56 offen sc1"), check=lambda: chk4(28, 100), mask=70)], cnt=69)
    stamp(6)
    reduce_scatter4(28)
    allreduce_row16(28, "v_add_f32")
    bf16r(28, 28)
    e("v_mul_f32 v28, v28, v96"); bf16r(28, 28)
    e("v_add_f32 v28, v28, v14")
    e("v_cvt_pk_bf16_f32 v28, v28, v28")
    e("s_mov_b32 exec_lo, 0x00010001"); e("s_mov_b32 exec_hi, 0x00010001")
    e("buffer_store_short v28, v25, s[36:39], s55 offen")
    l = L("ne"); e("s_cmp_lg_u32 s2, 0"); e(f"s_cbranch_scc1 {l}")
    e("s_mov_b64 exec, 1")
    e(f"s_mul_i32 s57, s{sT}, {TINV:#x}"); e("v_mov_b32 v20, s57"); e("v_mov_b32 v23, 0")
    e("buffer_store_dword v20, v23, s[28:31], 0 offen sc1")
    e.label(l)
    e("s_mov_b64 exec, -1")
    stamp(7)
    dump_stamps(cnts=[(2, 69)])
    e("s_endpgm")
    e.label("L_abort")
    e("s_endpgm")
    e.label("L_exit")

    probs = check(a.lines)
    body = a.text()
    nv = 224
    hdr = open("cdna_kernels/" + KN + ".s.ref").read().split("; Override launch")[0]
    out = hdr + f"; Override launch geometry by editing the next line.\n; @launch grid=(256,1,1) block=(512,1,1) lds={LDS_BYTES}\n"
    out += f""".amdgcn_target "amdgcn-amd-amdhsa--gfx950"
.text
.globl {KN}_kernel
.p2align 8
.type {KN}_kernel,@function
{KN}_kernel:
{body}
    s_endpgm
.section .rodata,"a"
.p2align 6
.amdhsa_kernel {KN}_kernel
  .amdhsa_next_free_vgpr {nv}
  .amdhsa_next_free_sgpr 100
  .amdhsa_accum_offset {nv}
  .amdhsa_group_segment_fixed_size 0
  .amdhsa_kernarg_size 104
  .amdhsa_user_sgpr_count 2
  .amdhsa_user_sgpr_kernarg_segment_ptr 1
  .amdhsa_system_sgpr_workgroup_id_x 1
.end_amdhsa_kernel
"""
    return out, probs

if __name__ == "__main__":
    opt = {}
    name = sys.argv[1]
    for kv in sys.argv[2:]:
        k, v = kv.split("="); opt[k] = int(v, 0)
    s, probs = gen(opt)
    open(name, "w").write(s)
    for p in probs: print("HAZARD:", p)
```

```python
import sys, math, struct
from asmlib import Asm, check
KN = "recurrent_scan__sliding_block_cached__mixer_token_mlp__decode"
def f32bits(x): return struct.unpack("<I", struct.pack("<f", x))[0]

DEF = dict(stamps=0, nt=1, win=12, winkv=16, spinmax=1 << 20, prio=1, dl2=24, dl3=12, local=1, fb1=12, slp=1, bprio=1, bearly=1, bilp=2, wpre=3, cpf=1)

QB, QL, GB, OB, FB, STB = 0x10000, 0x20000, 0x30000, 0x40000, 0x100000, 0x200000
WQ, KL, VL, WO = 0, 32768, 65536, 98304
QF = 131072; OP = QF + 4096; ML = OP + 8192; FL = ML + 128; OX = FL + 128; SX = OX + 1024
XN = SX + 64; LNS = XN + 512; YP = LNS + 16; STL = YP + 256; LDS_BYTES = STL + 256
F_QF, F_O, F_OX, F_K, F_V, F_WO, F_VI, F_MP, F_G, F_XN, F_LN2, F_T, F_QPUB, F_PUB3, F_P1 = 0, 4, 8, 12, 14, 16, 18, 20, 22, 23, 24, 25, 26, 27, 28
KEY0 = 61440
TMUL = 0x9e3779b1
TINV = pow(TMUL, -1, 1 << 32)
vE1V, vE1L, vQFR, vKA, vVA, vOPW, vMLW, vOPR, vMLR, vMST, vL16, vWOA, vE3V, vOXW, vOXR, vFLW = 192, 194, 196, 197, 201, 209, 210, 211, 212, 213, 214, 216, 220, 221, 222, 223
vMASK = 112
sMS, sE2, sE3, sE1, sE1G = 40, 41, 42, 43, 44

def gen(opt):
    o = dict(DEF); o.update(opt)
    assert o["winkv"] <= 16
    NT = " nt" if o["nt"] else ""
    a = Asm(); e = a
    uid = [0]
    def L(p):
        uid[0] += 1; return f"L_{p}_{uid[0]}"
    sT, sCNT = 50, 51
    DPP = "row_mask:0xf bank_mask:0xf"
    def srd(d, lo, size):
        e(f"s_mov_b32 s{d}, s{lo}"); e(f"s_and_b32 s{d+1}, s{lo+1}, 0xffff"); e(f"s_mov_b32 s{d+2}, {size}"); e(f"s_mov_b32 s{d+3}, 0x20000")
    def stamp(k):
        if o["stamps"]: e(f"s_memrealtime s[{80+2*k}:{81+2*k}]")
    def dump_stamps(cnts=None, final=False):
        if not o["stamps"]: return
        if o["stamps"] == 3:
            e("s_waitcnt lgkmcnt(0)")
            e("s_mov_b64 exec, -1")
            e("s_lshl_b32 s76, s3, 5"); e(f"s_add_u32 s76, s76, {STL}"); e("v_mov_b32 v20, s76")
            for k in range(8): e(f"v_mov_b32 v{4+k}, s{80+2*k}")
            e("ds_write_b128 v20, v[4:7]"); e("ds_write_b128 v20, v[8:11] offset:16"); e("s_waitcnt lgkmcnt(0)")
            if final:
                e("s_sleep 20")
                e("s_load_dwordx2 s[76:77], s[0:1], 88"); e("s_waitcnt lgkmcnt(0)")
                e("s_mov_b32 s72, s76"); e("s_and_b32 s73, s77, 0xffff"); e("s_mov_b32 s74, 256"); e("s_mov_b32 s75, 0x20000")
                e(f"v_mov_b32 v20, {STL}"); e("v_mov_b32 v23, 0"); e("s_mov_b64 exec, 1")
                sel = [(2,0,1),(2,0,0),(4,1,0),(0,3,0),(0,5,0),(4,4,0),(2,6,0),(2,7,0),(0,0,0),(4,5,0),(2,2,0),(2,3,0),(6,4,0),(6,6,0),(6,7,0),(1,1,0)]
                for slot, (w, k, inv) in enumerate(sel):
                    e(f"ds_read_b32 v4, v20 offset:{w*32+k*4}"); e("s_waitcnt lgkmcnt(0)")
                    if inv: e("v_not_b32 v4, v4")
                    e(f"buffer_atomic_umax v4, v23, s[72:75], 0 offen offset:{4*slot}")
                e("s_waitcnt vmcnt(0)")
            return
        e("s_waitcnt lgkmcnt(0)")
        for (slot, sreg) in (cnts or []):
            e(f"s_mov_b32 s{80+2*slot}, s{sreg}"); e(f"s_mov_b32 s{81+2*slot}, 0")
        e("s_mov_b64 exec, -1")
        e("s_waitcnt vmcnt(0)")
        e("s_lshl_b32 s76, s2, 3"); e("s_add_u32 s76, s76, s3"); e("s_lshl_b32 s76, s76, 6"); e(f"s_add_u32 s76, s76, {STB}")
        for k in range(8):
            e(f"v_mov_b32 v{2*k+4}, s{80+2*k}"); e(f"v_mov_b32 v{2*k+5}, s{81+2*k}")
        e("v_mov_b32 v20, 0")
        e("s_mov_b64 exec, 1")
        for k in range(4):
            e(f"buffer_store_dwordx4 v[{4*k+4}:{4*k+7}], v20, s[28:31], s76 offen offset:{16*k}")
        e("s_waitcnt vmcnt(0)")
    def spin_tick():
        e(f"s_sub_u32 s{sCNT}, s{sCNT}, 1"); e("s_cbranch_scc1 L_abort")
    def and_flags(vt, n):
        if n == 2: e(f"v_and_b32 v{vt}, v{vt}, v{vt+1}")
        if n == 4:
            e(f"v_and_b32 v{vt}, v{vt}, v{vt+1}"); e(f"v_and_b32 v{vt+2}, v{vt+2}, v{vt+3}"); e(f"v_and_b32 v{vt}, v{vt}, v{vt+2}")
    def read_flags(first, n, vt):
        if n == 1: e(f"ds_read_b32 v{vt}, v21 offset:{first*4}")
        elif n == 2: e(f"ds_read_b64 v[{vt}:{vt+1}], v21 offset:{first*4}")
        else: e(f"ds_read_b128 v[{vt}:{vt+3}], v21 offset:{first*4}")
    def wait_flags(first, n, vt, extra=None, sleep=0, lowprio=None):
        if lowprio and o["prio"]: e(f"s_setprio {lowprio[0]}")
        l = L("wf"); e.label(l)
        read_flags(first, n, vt)
        if extra: extra()
        spin_tick()
        if sleep: e(f"s_sleep {sleep}")
        e("s_waitcnt lgkmcnt(0)")
        and_flags(vt, n)
        e(f"v_cmp_ne_u32 vcc, 0, v{vt}")
        e(f"s_cbranch_vccz {l}")
        if lowprio and o["prio"]: e(f"s_setprio {lowprio[1]}")
    def set_flag(idx, vaddr=21):
        e(f"ds_write_b32 v{vaddr}, v22 offset:{idx*4}")
    def bf16r(dst, src):
        e(f"v_cvt_pk_bf16_f32 v{dst}, v{src}, v{src}"); e(f"v_lshlrev_b32 v{dst}, 16, v{dst}")
    def allreduce_row16(v, op, shs=(8, 4, 2, 1)):
        for sh in shs:
            e.nop(2); e(f"{op}_dpp v{v}, v{v}, v{v} row_ror:{sh} {DPP}")
    def allreduce_xrow(v, t, op):
        e(f"v_mov_b32 v{t}, v{v}"); e.nop(2); e(f"v_permlane32_swap_b32 v{v}, v{t}"); e(f"{op} v{v}, v{v}, v{t}")
        e(f"v_mov_b32 v{t}, v{v}"); e.nop(2); e(f"v_permlane16_swap_b32 v{v}, v{t}"); e(f"{op} v{v}, v{v}, v{t}")
    def reduce_scatter4(b):
        e(f"v_permlane32_swap_b32 v{b}, v{b+2}"); e(f"v_permlane32_swap_b32 v{b+1}, v{b+3}")
        e(f"v_add_f32 v{b}, v{b}, v{b+2}"); e(f"v_add_f32 v{b+1}, v{b+1}, v{b+3}"); e.nop(2)
        e(f"v_permlane16_swap_b32 v{b}, v{b+1}"); e(f"v_add_f32 v{b}, v{b}, v{b+1}")
    def ln_stats(xf, t0, vm, vrs):
        s, t = t0, t0 + 1
        e(f"v_add_f32 v{s}, v{xf}, v{xf+1}"); e(f"v_add_f32 v{t}, v{xf+2}, v{xf+3}")
        for k in range(4, 16, 2):
            e(f"v_add_f32 v{s}, v{s}, v{xf+k}"); e(f"v_add_f32 v{t}, v{t}, v{xf+k+1}")
        e(f"v_add_f32 v{s}, v{s}, v{t}")
        allreduce_row16(s, "v_add_f32"); allreduce_xrow(s, t, "v_add_f32")
        e(f"v_mul_f32 v{s}, {f32bits(1/1024):#x}, v{s}")
        e(f"v_sub_f32 v{t}, v{xf}, v{s}"); e(f"v_sub_f32 v{t0+3}, v{xf+1}, v{s}")
        e(f"v_mul_f32 v{t0+2}, v{t}, v{t}"); e(f"v_mul_f32 v{t0+4}, v{t0+3}, v{t0+3}")
        for k in range(2, 16, 2):
            e(f"v_sub_f32 v{t}, v{xf+k}, v{s}"); e(f"v_sub_f32 v{t0+3}, v{xf+k+1}, v{s}")
            e(f"v_fmac_f32 v{t0+2}, v{t}, v{t}"); e(f"v_fmac_f32 v{t0+4}, v{t0+3}, v{t0+3}")
        e(f"v_add_f32 v{t0+2}, v{t0+2}, v{t0+4}")
        allreduce_row16(t0 + 2, "v_add_f32"); allreduce_xrow(t0 + 2, t, "v_add_f32")
        e(f"v_mul_f32 v{t0+2}, {f32bits(1/1024):#x}, v{t0+2}")
        bf16r(vm, s)
        bf16r(t, t0 + 2)
        e(f"v_add_f32 v{t}, {f32bits(1e-5):#x}, v{t}")
        bf16r(t, t)
        e(f"v_sqrt_f32 v{t}, v{t}"); e.nop(1)
        bf16r(t, t)
        e(f"v_rcp_f32 v{vrs}, v{t}"); e.nop(1)
    def unpack(dlo, dhi, src):
        e(f"v_lshlrev_b32 v{dlo}, 16, v{src}"); e(f"v_and_b32 v{dhi}, 0xffff0000, v{src}")
    def tagbytes(s0):
        for k in range(4):
            e(f"s_lshr_b32 s{s0+k}, s{sT}, {8*k}"); e(f"s_and_b32 s{s0+k}, s{s0+k}, 0xff")
    def chk4(b, t):
        e(f"v_xor_b32 v{t}, s60, v{b}"); e(f"v_bitop3_b32 v{t}, v{t}, v{b+1}, s61 bitop3:0xf6"); e(f"v_bitop3_b32 v{t}, v{t}, v{b+2}, s62 bitop3:0xf6")
        e(f"v_bitop3_b32 v{t}, v{t}, v{b+3}, s63 bitop3:0xf6"); e(f"v_and_b32 v{t}, 0xff, v{t}"); e(f"v_cmp_ne_u32 vcc, 0, v{t}")
    def mpoll(loads, cnt=None, pre=None, shadow=None):
        top = L("mp"); ent = L("me")
        for ld in loads:
            ini = ld.get('init', -1); m = ld['mask']
            if ini == -1: e(f"s_mov_b64 s[{m}:{m+1}], -1")
            else: e(f"s_mov_b32 s{m}, {ini[0]:#x}"); e(f"s_mov_b32 s{m+1}, {ini[1]:#x}")
        if cnt: e(f"s_mov_b32 s{cnt}, 0")
        for ld in loads:
            m = ld['mask']
            if ld.get('init', -1) != -1: e(f"s_mov_b64 exec, s[{m}:{m+1}]")
            ld['issue']()
            if ld.get('init', -1) != -1: e("s_mov_b64 exec, -1")
        if shadow: shadow()
        e(f"s_branch {ent}")
        e.label(top)
        spin_tick()
        if pre: pre()
        for ld in loads:
            sk = L("sk"); m = ld['mask']
            e(f"s_mov_b64 exec, s[{m}:{m+1}]"); e(f"s_cbranch_execz {sk}"); ld['issue'](); e.label(sk)
        e("s_mov_b64 exec, -1")
        e.label(ent)
        if cnt: e(f"s_add_u32 s{cnt}, s{cnt}, 1")
        e("s_waitcnt vmcnt(0)")
        e("s_mov_b64 s[66:67], 0")
        for ld in loads:
            sk = L("sc"); m = ld['mask']
            e(f"s_mov_b64 exec, s[{m}:{m+1}]"); e(f"s_cbranch_execz {sk}")
            ld['check']()
            if ld.get('take'):
                e("s_andn2_b64 exec, exec, vcc"); sk2 = L("sd"); e(f"s_cbranch_execz {sk2}"); ld['take'](); e.label(sk2)
            e(f"s_mov_b64 s[{m}:{m+1}], vcc"); e("s_or_b64 s[66:67], s[66:67], vcc")
            e.label(sk)
        e("s_mov_b64 exec, -1")
        e("s_cmp_lg_u64 s[66:67], 0"); e(f"s_cbranch_scc1 {top}")
    LOW = (0, 3)

    e("s_cmp_ge_u32 s2, 256"); e("s_cbranch_scc1 L_exit")
    stamp(0)
    e("s_load_dwordx16 s[4:19], s[0:1], 0")
    e("s_load_dwordx4 s[20:23], s[0:1], 64")
    e("s_load_dwordx2 s[24:25], s[0:1], 80")
    e("s_load_dwordx2 s[26:27], s[0:1], 96")
    e("v_lshrrev_b32 v1, 6, v0"); e("v_and_b32 v0, 63, v0")
    e("v_lshrrev_b32 v2, 4, v0"); e("v_and_b32 v3, 15, v0")
    e("v_readfirstlane_b32 s3, v1")
    e("s_and_b32 s48, s2, 7"); e("s_lshr_b32 s49, s2, 3")
    e(f"s_mov_b32 s{sCNT}, {o['spinmax']}")
    e(f"v_mov_b32 v21, {FL}"); e("v_mov_b32 v22, 1")
    e("s_lshl_b32 s46, s48, 3"); e("s_and_b32 s47, s49, 7"); e("s_add_u32 s46, s46, s47"); e("s_lshr_b32 s47, s49, 3")
    e("s_cmp_eq_u32 s3, 0"); e("s_cbranch_scc0 L_not0")
    e("v_lshrrev_b32 v24, 3, v0"); e("v_and_b32 v25, 7, v0")
    e("v_lshrrev_b32 v26, 1, v25"); e("v_bfe_u32 v27, v24, 1, 2"); e("v_xor_b32 v26, v26, v27")
    e("v_lshlrev_b32 v26, 1, v26"); e("v_and_b32 v25, 1, v25"); e("v_or_b32 v26, v26, v25"); e("v_lshlrev_b32 v26, 4, v26")
    e("v_lshl_add_u32 v24, v24, 13, v26")
    e("s_lshl_b32 s56, s47, 21"); e("s_lshl_b32 s57, s46, 7"); e("s_add_u32 s56, s56, s57")
    e(f"s_mov_b32 m0, {WQ}"); e("s_mov_b32 s57, 0")
    e("s_waitcnt lgkmcnt(0)")
    srd(36, 10, 8388608)
    e.label("L_wqloop")
    e(f"buffer_load_dwordx4 v24, s[36:39], s56 offen{NT} lds")
    e("s_add_u32 m0, m0, 1024"); e(f"s_add_u32 s56, s56, {8*8192}"); e("s_add_u32 s57, s57, 1"); e("s_cmp_lt_u32 s57, 32"); e("s_cbranch_scc1 L_wqloop")
    e("s_barrier")
    e("s_branch L_qproj")
    e.label("L_not0")
    e("s_cmp_eq_u32 s3, 1"); e("s_cbranch_scc0 L_not1")
    e("v_lshlrev_b32 v23, 5, v0"); e("v_mov_b32 v24, 0")
    e("s_waitcnt lgkmcnt(0)")
    srd(28, 26, 268435456); srd(32, 4, 2048)
    e("buffer_load_dwordx4 v[4:7], v23, s[32:35], 0 offen")
    e("buffer_load_dwordx4 v[8:11], v23, s[32:35], 0 offen offset:16")
    e("buffer_load_dword v20, v24, s[28:31], 0 offen sc1")
    e("s_barrier")
    e("s_branch L_ln")
    e.label("L_not1")
    e("s_cmp_ge_u32 s3, 6"); e("s_cbranch_scc1 L_bearly")
    e("s_cmp_ge_u32 s3, 4"); e("s_cbranch_scc1 L_learly")
    if o["cpf"]:
        lc = L("cpf"); e("s_cmp_eq_u32 s3, 2"); e(f"s_cbranch_scc0 {lc}")
        e("s_getpc_b64 s[54:55]")
        e.label("L_pc")
        e(f"s_sub_u32 s54, s54, L_pc-{KN}_kernel"); e("s_subb_u32 s55, s55, 0")
        e("s_mul_i32 s56, s49, 6"); e("v_add_u32 v24, s56, v0"); e("v_lshlrev_b32 v24, 7, v24")
        e(f"s_mov_b32 s56, L_exit-{KN}_kernel")
        e("v_cmp_gt_u32 vcc, s56, v24")
        e("s_and_b64 exec, vcc, 0x3f")
        lc2 = L("cpf"); e(f"s_cbranch_execz {lc2}")
        e("global_load_dword v150, v24, s[54:55]")
        e.label(lc2)
        e("s_mov_b64 exec, -1")
        e.label(lc)
    e("s_barrier")
    e("s_branch L_w23")
    e.label("L_learly")
    lz = L("nz"); e("s_cmp_eq_u32 s3, 4"); e(f"s_cbranch_scc0 {lz}")
    e("v_lshlrev_b32 v4, 2, v0"); e(f"v_add_u32 v4, {FL}, v4"); e("v_mov_b32 v5, 0")
    e("s_mov_b64 exec, 0xffffffff"); e("ds_write_b32 v4, v5"); e("s_mov_b64 exec, -1"); e("s_waitcnt lgkmcnt(0)")
    e.label(lz)
    e("s_barrier")
    e("s_branch L_loader")
    e.label("L_bearly")
    e("s_sub_u32 s52, s3, 6")
    e("s_lshr_b32 s53, s2, 4"); e("s_and_b32 s54, s2, 15")
    e("v_and_b32 v23, 31, v0"); e("v_lshlrev_b32 v23, 1, v23"); e("s_lshl_b32 s55, s53, 7"); e("s_lshl_b32 s56, s52, 6"); e("s_add_u32 s55, s55, s56")
    e("s_mul_i32 s56, s54, 448"); e("v_lshlrev_b32 v24, 1, v0")
    e("s_waitcnt lgkmcnt(0)")
    srd(28, 26, 268435456); srd(32, 4, 2048)
    srd(36, 16, 7168); srd(40, 18, 7168); srd(44, 20, 7168)
    e("buffer_load_ushort v12, v23, s[32:35], s55 offen")
    for n in range(4):
        e(f"buffer_load_ushort v{40+2*n}, v24, s[36:39], s56 offen offset:{128*n}")
        e(f"buffer_load_ushort v{41+2*n}, v24, s[40:43], s56 offen offset:{128*n}")
        e(f"buffer_load_ushort v{48+2*n}, v24, s[44:47], s56 offen offset:{128*n}")
    e("s_load_dword s59, s[22:23], 0")
    e("s_barrier")
    e("s_branch L_bbranch")

    def common_srd():
        e("s_waitcnt lgkmcnt(0)")
        srd(28, 26, 268435456)
        srd(32, 4, 2048)

    def prep():
        e("s_lshr_b32 s52, s48, 1"); e("s_lshl_b32 s52, s52, 3"); e("s_and_b32 s54, s49, 1"); e("s_lshl_b32 s54, s54, 2"); e("s_add_u32 s52, s52, s54")
        e("s_and_b32 s54, s48, 1"); e("s_lshl_b32 s54, s54, 4"); e("s_lshr_b32 s55, s49, 1"); e("s_add_u32 s55, s55, s54")
        e("s_lshl_b32 s57, s3, 2"); e(f"v_add_u32 v{vFLW}, s57, v21")
        e("v_lshrrev_b32 v28, 2, v3")
        for u in range(4):
            e(f"v_cmp_eq_u32 vcc, {u}, v28"); e.nop(2); e(f"v_cndmask_b32 v{vMASK+u}, 0, -1, vcc")
        e("v_lshrrev_b32 v28, 3, v0"); e("v_and_b32 v29, 7, v0")
        for i in range(2):
            e(f"v_add_u32 v30, {8*i}, v28")
            e("v_and_b32 v31, 3, v30"); e("v_lshlrev_b32 v31, 2, v31"); e(f"v_lshrrev_b32 v{vE1V+i}, 2, v30"); e(f"v_add_u32 v31, v31, v{vE1V+i}"); e("v_lshlrev_b32 v31, 9, v31")
            e(f"v_lshl_add_u32 v{vE1V+i}, v29, 4, v31")
            e("v_lshrrev_b32 v31, 1, v29"); e("v_lshl_add_u32 v31, v31, 4, v30"); e("v_lshlrev_b32 v31, 4, v31")
            e("v_and_b32 v30, 1, v29"); e("v_lshl_add_u32 v31, v30, 3, v31")
            e("s_lshl_b32 s57, s3, 10"); e(f"s_add_u32 s57, s57, {QF}"); e(f"v_add_u32 v{vE1L+i}, s57, v31")
        e(f"s_lshl_b32 s{sE1G}, s52, 11"); e("s_lshl_b32 s57, s3, 7"); e(f"s_add_u32 s{sE1G}, s{sE1G}, s57"); e(f"s_add_u32 s{sE1G}, s{sE1G}, {QB}")
        if o["local"]:
            e("s_xor_b32 s57, s48, s49"); e("s_and_b32 s57, s57, 1")
            e(f"s_mov_b32 s58, {QL - QB}"); e("s_cmp_eq_u32 s57, 0"); e("s_cselect_b32 s58, s58, 0"); e(f"s_add_u32 s{sE1}, s{sE1G}, s58")
        else: e(f"s_mov_b32 s{sE1}, s{sE1G}")
        e(f"v_lshlrev_b32 v{vL16}, 4, v0"); e(f"v_add_u32 v{vQFR}, {QF}, v{vL16}")
        e("s_lshl_b32 s57, s3, 13"); e(f"s_add_u32 s57, s57, {KL}")
        e("v_lshlrev_b32 v28, 8, v3"); e("v_add_u32 v28, s57, v28"); e("v_xor_b32 v29, v2, v3"); e(f"v_lshl_add_u32 v{vKA}, v29, 4, v28")
        for t in range(1, 4): e(f"v_xor_b32 v{vKA+t}, {t<<6}, v{vKA}")
        e("v_lshrrev_b32 v28, 2, v3"); e("v_lshl_add_u32 v28, v2, 2, v28")
        e("v_and_b32 v29, 7, v28"); e("v_lshlrev_b32 v29, 5, v29"); e("v_lshl_add_u32 v28, v28, 8, v29")
        e("v_and_b32 v29, 3, v3"); e("v_lshl_add_u32 v28, v29, 3, v28")
        e("s_lshl_b32 s57, s3, 13"); e(f"s_add_u32 s57, s57, {VL}"); e(f"v_add_u32 v{vVA}, s57, v28")
        for t in range(1, 8): e(f"v_xor_b32 v{vVA+t}, {t<<5}, v{vVA}")
        e("s_lshl_b32 s57, s3, 11"); e(f"s_add_u32 s57, s57, {OP}"); e(f"v_add_u32 v{vOPW}, s57, v{vL16}")
        e("s_lshl_b32 s57, s3, 3"); e(f"s_add_u32 s57, s57, {ML}"); e("v_lshlrev_b32 v28, 5, v3"); e(f"v_add_u32 v{vMLW}, s57, v28")
        e("s_and_b32 s57, s3, 1"); e("s_lshl_b32 s57, s57, 10"); e(f"s_add_u32 s57, s57, {OP}"); e(f"v_add_u32 v{vOPR}, s57, v{vL16}")
        e("v_and_b32 v28, 3, v3"); e("v_lshlrev_b32 v29, 5, v28"); e(f"v_add_u32 v{vMLR}, {ML}, v29")
        e("v_lshlrev_b32 v28, 14, v28"); e("v_lshrrev_b32 v29, 3, v3"); e("v_lshl_add_u32 v28, v29, 13, v28")
        e("v_bfe_u32 v29, v3, 2, 1"); e("v_lshl_add_u32 v29, v29, 2, v2"); e(f"v_lshl_add_u32 v{vMST}, v29, 4, v28")
        e(f"s_lshl_b32 s{sMS}, s52, 14"); e("s_lshl_b32 s57, s55, 8"); e(f"s_add_u32 s{sMS}, s{sMS}, s57"); e("s_and_b32 s57, s3, 1"); e("s_lshl_b32 s57, s57, 7")
        e(f"s_add_u32 s{sMS}, s{sMS}, s57"); e(f"s_add_u32 s{sMS}, s{sMS}, {OB}")
        e("s_lshr_b32 s56, s49, 2"); e("s_lshl_b32 s56, s56, 3"); e("s_add_u32 s56, s56, s48")
        e(f"s_lshl_b32 s{sE2}, s56, 13"); e("s_lshl_b32 s57, s3, 11"); e(f"s_add_u32 s{sE2}, s{sE2}, s57"); e(f"s_add_u32 s{sE2}, s{sE2}, {OB}")
        e("v_lshrrev_b32 v28, 2, v3"); e("v_lshl_add_u32 v29, v28, 2, v2"); e("v_lshlrev_b32 v29, 9, v29")
        e("v_and_b32 v30, 1, v2"); e("v_lshl_add_u32 v30, v30, 2, v28"); e("v_lshl_add_u32 v29, v30, 5, v29")
        e("v_and_b32 v30, 3, v3"); e("v_lshl_add_u32 v29, v30, 3, v29"); e(f"v_add_u32 v29, {WO}, v29")
        e("s_lshl_b32 s57, s3, 7"); e(f"v_xor_b32 v{vWOA}, s57, v29")
        for u in range(1, 4): e(f"v_xor_b32 v{vWOA+u}, {u<<5}, v{vWOA}")
        e("s_and_b32 s57, s49, 3"); e("s_lshl_b32 s57, s57, 3"); e("s_lshl_b32 s58, s3, 1"); e("s_add_u32 s57, s57, s58"); e(f"s_lshl_b32 s{sE3}, s57, 13")
        e("s_lshl_b32 s57, s56, 7"); e(f"s_add_u32 s{sE3}, s{sE3}, s57"); e(f"s_add_u32 s{sE3}, s{sE3}, {FB}")
        e("v_lshrrev_b32 v28, 3, v3"); e("v_lshlrev_b32 v28, 13, v28"); e("v_and_b32 v29, 7, v3"); e(f"v_lshl_add_u32 v{vE3V}, v29, 4, v28")
        e(f"v_add_u32 v{vOXR}, {OX}, v{vL16}"); e("s_lshl_b32 s57, s3, 2"); e(f"v_add_u32 v{vOXW}, s57, v{vOXR}")

    e.label("L_w23")
    if o["prio"]: e("s_setprio 3")
    common_srd()
    prep()
    wait_flags(F_XN, 1, 28, extra=lambda: e(f"ds_read_b32 v29, v21 offset:{F_T*4}"), sleep=o["slp"], lowprio=LOW)
    e(f"v_readfirstlane_b32 s{sT}, v29")
    e("s_branch L_attn")
    e.label("L_ln")
    if o["prio"]: e("s_setprio 3")
    e("s_lshl_b32 s54, s47, 4"); e("v_subrev_u32 v23, s54, v0"); e("v_lshlrev_b32 v23, 5, v23"); e(f"v_add_u32 v23, {XN}, v23")
    e("s_mov_b32 s56, 0xffff"); e("s_mov_b32 s57, 0"); e("s_lshl_b64 s[58:59], s[56:57], s54")
    e("s_waitcnt vmcnt(0)")
    stamp(2)
    e(f"v_readfirstlane_b32 s{sT}, v20")
    for k in range(8): unpack(24 + 2 * k, 25 + 2 * k, 4 + k)
    e(f"s_add_u32 s{sT}, s{sT}, 1"); e(f"s_mul_i32 s{sT}, s{sT}, {TMUL:#x}")
    ln_stats(24, 98, 104, 105)
    e(f"v_mov_b32 v20, s{sT}"); e(f"ds_write_b32 v21, v20 offset:{F_T*4}")
    for k in range(16): e(f"v_sub_f32 v{24+k}, v{24+k}, v104")
    for k in range(8): e(f"v_cvt_pk_bf16_f32 v{4+k}, v{24+2*k}, v{25+2*k}")
    for k in range(8): unpack(24 + 2 * k, 25 + 2 * k, 4 + k)
    for k in range(16): e(f"v_mul_f32 v{24+k}, v{24+k}, v105")
    for k in range(8): e(f"v_cvt_pk_bf16_f32 v{4+k}, v{24+2*k}, v{25+2*k}")
    e("s_mov_b64 exec, s[58:59]")
    e("ds_write_b128 v23, v[4:7]"); e("ds_write_b128 v23, v[8:11] offset:16")
    e("s_mov_b64 exec, -1")
    set_flag(F_XN)
    stamp(1)
    for k in range(8): unpack(24 + 2 * k, 25 + 2 * k, 4 + k)
    ln_stats(24, 98, 106, 107)
    e(f"v_mov_b32 v23, {LNS}"); e("ds_write_b128 v23, v[104:107]")
    set_flag(F_LN2)
    stamp(3)
    prep()
    e("s_branch L_attn")
    e.label("L_qproj")
    if o["prio"]: e("s_setprio 3")
    stamp(1)
    srd(28, 26, 268435456)
    prep()
    e("v_lshrrev_b32 v24, 2, v3"); e("v_and_b32 v25, 3, v3")
    e("v_lshlrev_b32 v26, 2, v2"); e("v_add_u32 v26, v26, v24")
    e("v_lshrrev_b32 v27, 1, v26"); e("v_and_b32 v27, 3, v27")
    e("v_lshlrev_b32 v26, 7, v26"); e("v_lshlrev_b32 v25, 3, v25"); e("v_add_u32 v26, v26, v25")
    e("v_lshlrev_b32 v27, 5, v27"); e("v_add_u32 v108, v26, v27")
    for u in range(1, 4): e(f"v_xor_b32 v{108+u}, {u<<5}, v108")
    e("s_lshr_b32 s57, s46, 1"); e("s_lshl_b32 s57, s57, 11"); e("s_and_b32 s58, s46, 1"); e("s_lshl_b32 s58, s58, 8"); e("s_add_u32 s57, s57, s58")
    e("s_lshl_b32 s58, s47, 9"); e("s_add_u32 s57, s57, s58"); e(f"s_add_u32 s46, s57, {QB}"); e(f"s_add_u32 s47, s57, {QL}")
    e("v_lshlrev_b32 v27, 2, v0")
    e("v_lshlrev_b32 v26, 3, v2"); e(f"v_add_u32 v26, {XN}, v26")
    def xn_extra():
        e(f"ds_read_b32 v29, v21 offset:{F_T*4}")
        for k in range(8): e(f"ds_read2_b64 v[{40+4*k}:{43+4*k}], v26 offset0:{8*k} offset1:{8*k+4}")
    wait_flags(F_XN, 1, 28, extra=xn_extra)
    e(f"v_readfirstlane_b32 s{sT}, v29")
    stamp(2)
    csc = math.log2(math.e) / math.sqrt(128.0)
    e(f"s_mov_b32 s58, {f32bits(csc):#x}")
    for k in range(8):
        A = 72 + 16 * (k & 1); B = 128 + 16 * (k & 1)
        for u in range(4):
            for m in range(4): e(f"v_and_b32 v{A+4*u+m}, v{40+4*k+m}, v{vMASK+u}")
        e(f"s_waitcnt vmcnt({28 - 4*k})")
        if k == 7: stamp(3)
        for u in range(4):
            for rho in range(2):
                r = B + 4 * u + 2 * rho
                e(f"ds_read_b64_tr_b16 v[{r}:{r+1}], v{108+u} offset:{k*4096 + rho*2048}")
        for u in range(4):
            e(f"s_waitcnt lgkmcnt({2*(3-u)})")
            c = "0" if (k == 0 and u == 0) else "v[104:107]"
            e(f"v_mfma_f32_16x16x32_bf16 v[104:107], v[{A+4*u}:{A+4*u+3}], v[{B+4*u}:{B+4*u+3}], {c}")
    e(f"v_mov_b32 v49, s{sT}"); e(f"v_mov_b32 v51, s{sT}")
    e("s_mov_b32 s56, 0x11111111"); e("s_mov_b32 s57, 0x11111111")
    e.nop(4)
    e("v_mul_f32 v104, s58, v104"); e.nop(2)
    e(f"v_mov_b32_dpp v105, v104 quad_perm:[1,0,3,2] {DPP}")
    e("v_cvt_pk_bf16_f32 v48, v104, v105"); e.nop(2)
    e(f"v_mov_b32_dpp v50, v48 quad_perm:[2,3,0,1] {DPP}")
    e("s_mov_b64 exec, s[56:57]")
    if o["local"]: e("buffer_store_dwordx4 v[48:51], v27, s[28:31], s47 offen")
    e("buffer_store_dwordx4 v[48:51], v27, s[28:31], s46 offen sc1")
    e("s_mov_b64 exec, -1")
    set_flag(F_QPUB)
    stamp(5)

    e.label("L_attn")
    wait_flags(F_QPUB, 1, 28, sleep=o["slp"], lowprio=LOW)
    wait_flags(F_VI, 2, 28, lowprio=LOW)
    PB = 128
    def mk_e1(i):
        b = PB + 4 * i
        return dict(issue=lambda: e(f"buffer_load_dwordx4 v[{b}:{b+3}], v{vE1V+i}, s[28:31], s{sE1} offen sc1"),
                    check=lambda: (e(f"v_xor_b32 v36, s{sT}, v{b+1}"), e(f"v_xor_b32 v37, s{sT}, v{b+3}"), e("v_or_b32 v36, v36, v37"), e("v_cmp_ne_u32 vcc, 0, v36")),
                    take=lambda: e(f"ds_write2_b32 v{vE1L+i}, v{b}, v{b+2} offset0:0 offset1:1"), mask=70 + 2 * i)
    def kreads():
        for kt in range(2):
            for t in range(4):
                r = 40 + 16 * kt + 4 * t
                e(f"ds_read_b128 v[{r}:{r+3}], v{vKA+t} offset:{kt*4096}")
    def e1_pre():
        if o["local"]: e(f"s_cmp_ge_u32 s68, {o['fb1']}"); e(f"s_cselect_b32 s{sE1}, s{sE1G}, s{sE1}")
    stamp(1)
    def e1_shadow():
        if o["wpre"]: e(f"ds_write_b32 v{vFLW}, v22 offset:{F_P1*4}")
        kreads()
    mpoll([mk_e1(0), mk_e1(1)], cnt=68, pre=e1_pre, shadow=e1_shadow)
    e(f"ds_write_b32 v{vFLW}, v22 offset:{F_QF*4}")
    stamp(6)
    VF = 160
    def vreads():
        for t in range(8):
            for rho in range(2):
                r = VF + 4 * t + 2 * rho
                e(f"ds_read_b64_tr_b16 v[{r}:{r+1}], v{vVA+t} offset:{rho*4096}")
    def qf_extra():
        e(f"ds_read_b64 v[32:33], v21 offset:{F_V*4}")
        for t in range(4): e(f"ds_read_b128 v[{72+4*t}:{75+4*t}], v{vQFR} offset:{t*1024}")
    wait_flags(F_QF, 4, 28, extra=qf_extra)
    for t in range(4):
        for kt in range(2):
            c = "0" if t == 0 else f"v[{88+4*kt}:{91+4*kt}]"
            e(f"v_mfma_f32_16x16x32_bf16 v[{88+4*kt}:{91+4*kt}], v[{40+16*kt+4*t}:{43+16*kt+4*t}], v[{72+4*t}:{75+4*t}], {c}")
    e("v_and_b32 v32, v32, v33"); e("v_cmp_ne_u32 vcc, 0, v32")
    e("s_mov_b32 s59, 0")
    lv = L("vlate"); e(f"s_cbranch_vccz {lv}")
    vreads(); e("s_mov_b32 s59, 1")
    e.label(lv)
    for m in range(4): e(f"v_mov_b32 v{44+m}, 0x3f803f80")
    e.nop(3)
    S = list(range(88, 96))
    for s_ in S: e(f"v_add_f32_dpp v{s_+8}, v{s_}, v{s_} row_ror:4 {DPP}")
    for s_ in S: e(f"v_add_f32_dpp v{s_}, v{s_+8}, v{s_+8} row_ror:8 {DPP}")
    e("v_max3_f32 v96, v88, v89, v90"); e("v_max3_f32 v97, v91, v92, v93"); e("v_max3_f32 v96, v96, v94, v95"); e("v_max_f32 v96, v96, v97")
    allreduce_xrow(96, 97, "v_max_f32")
    for s_ in S: e(f"v_sub_f32 v{s_}, v{s_}, v96")
    for s_ in S: e(f"v_exp_f32 v{s_}, v{s_}")
    e.nop(1)
    for m in range(4): e(f"v_cvt_pk_bf16_f32 v{100+m}, v{88+2*m}, v{89+2*m}")
    lw = L("vok"); e("s_cmp_lg_u32 s59, 0"); e(f"s_cbranch_scc1 {lw}")
    wait_flags(F_V, 2, 28); vreads()
    e.label(lw)
    for m in range(4): e(f"v_and_b32 v{72+m}, v{100+m}, v{vMASK}")
    for m in range(4): e(f"v_and_b32 v{76+m}, v{100+m}, v{vMASK+1}")
    e("s_waitcnt lgkmcnt(0)")
    first = [True, True]
    for t in range(8):
        ee = (t >> 1) & 1; u = 2 * (t >> 2) + (t & 1)
        c = "0" if first[ee] else f"v[{104+4*ee}:{107+4*ee}]"; first[ee] = False
        e(f"v_mfma_f32_16x16x32_bf16 v[{104+4*ee}:{107+4*ee}], v[{VF+4*t}:{VF+4*t+3}], v[{72+4*u}:{75+4*u}], {c}")
        if t in (0, 1):
            for m in range(4): e(f"v_and_b32 v{80+4*t+m}, v{100+m}, v{vMASK+2+t}")
    e("v_mfma_f32_16x16x32_bf16 v[92:95], v[44:47], v[100:103], 0")
    e.nop(6)
    e(f"ds_write_b128 v{vOPW}, v[104:107]")
    e(f"ds_write_b128 v{vOPW}, v[108:111] offset:1024")
    e("v_mov_b32 v97, v92")
    e("s_mov_b64 exec, 0xf")
    e(f"ds_write_b64 v{vMLW}, v[96:97]")
    e("s_mov_b64 exec, -1")
    e(f"ds_write_b32 v{vFLW}, v22 offset:{F_O*4}")
    stamp(7)
    tagbytes(60); e("s_mov_b32 s64, 0x07060500"); e("s_mov_b32 s59, 0")
    e("s_cmp_ge_u32 s3, 2"); e("s_cbranch_scc1 L_e2")
    e(f"v_mov_b32 v63, s{sT}")
    def mg_extra():
        for w in range(4): e(f"ds_read_b128 v[{32+4*w}:{35+4*w}], v{vOPR} offset:{w*2048}")
        e(f"ds_read_b128 v[48:51], v{vMLR}"); e(f"ds_read_b128 v[52:55], v{vMLR} offset:16")
    wait_flags(F_O, 4, 28, extra=mg_extra)
    e("v_max3_f32 v56, v48, v50, v52"); e("v_max_f32 v56, v56, v54")
    for w in range(4): e(f"v_sub_f32 v{48+2*w}, v{48+2*w}, v56")
    for w in range(4): e(f"v_exp_f32 v{48+2*w}, v{48+2*w}")
    e.nop(1)
    e("v_mul_f32 v57, v48, v49")
    for m in range(4): e(f"v_mul_f32 v{32+m}, v{32+m}, v48")
    for w in range(1, 4): e(f"v_fmac_f32 v57, v{48+2*w}, v{49+2*w}")
    for m in range(4): e(f"v_fmac_f32 v{32+m}, v{36+m}, v50")
    e("v_rcp_f32 v58, v57"); e("v_log_f32 v59, v57")
    for w in range(2, 4):
        for m in range(4): e(f"v_fmac_f32 v{32+m}, v{32+4*w+m}, v{48+2*w}")
    e("v_add_f32 v62, v56, v59")
    for m in range(4): e(f"v_mul_f32 v{32+m}, v{32+m}, v58")
    e("v_cvt_pk_bf16_f32 v60, v32, v33"); e("v_cvt_pk_bf16_f32 v61, v34, v35")
    e(f"buffer_store_dwordx4 v[60:63], v{vMST}, s[28:31], s{sMS} offen sc1")
    e(f"ds_write_b32 v{vFLW}, v22 offset:{F_MP*4}")
    if o["stamps"]: e("s_memrealtime s[80:81]")

    e.label("L_e2")
    def woreads():
        for u in range(4):
            for tp in range(4):
                r = 40 + 8 * u + 2 * tp
                e(f"ds_read_b64_tr_b16 v[{r}:{r+1}], v{vWOA+u} offset:{tp*8192}")
    def wo_try():
        lskip = L("wo"); e("s_cmp_lg_u32 s59, 0"); e(f"s_cbranch_scc1 {lskip}")
        e(f"ds_read_b64 v[28:29], v21 offset:{F_WO*4}"); e("s_waitcnt lgkmcnt(0)")
        e("v_and_b32 v28, v28, v29"); e("v_cmp_ne_u32 vcc, 0, v28"); e(f"s_cbranch_vccz {lskip}")
        woreads(); e("s_mov_b32 s59, 1")
        e.label(lskip)
    for k in range(4): e(f"v_mov_b32 v{8+k}, s{60+k}")
    e("v_mov_b32 v10, v10") if False else None
    wait_flags(F_MP, 2, 28, lowprio=LOW)
    if o["dl2"]: e(f"s_sleep {o['dl2']}")
    B2 = 128
    def mk_dat(n):
        b = B2 + 4 * n
        return dict(issue=lambda: e(f"buffer_load_dwordx4 v[{b}:{b+3}], v{vL16}, s[28:31], s{sE2} offen offset:{n*1024} sc1"),
                    check=lambda: e(f"v_cmp_ne_u32 vcc, s{sT}, v{b+3}"), mask=70 + 2 * n)
    if o["stamps"]: e("s_memrealtime s[82:83]")
    mpoll([mk_dat(0), mk_dat(1)], cnt=69, pre=wo_try, shadow=wo_try)
    if o["stamps"]: e("s_memrealtime s[84:85]")
    l0, l1 = B2 + 2, B2 + 6
    e(f"v_max_f32 v7, v{l0}, v{l1}")
    e("v_mov_b32 v20, 0xffff0000")
    e(f"v_lshlrev_b32 v16, 16, v{B2}"); e(f"v_and_b32 v17, v20, v{B2}")
    allreduce_xrow(7, 6, "v_max_f32")
    e(f"v_sub_f32 v{l0}, v{l0}, v7"); e(f"v_sub_f32 v{l1}, v{l1}, v7")
    e(f"v_lshlrev_b32 v18, 16, v{B2+1}"); e(f"v_and_b32 v19, v20, v{B2+1}")
    e(f"v_exp_f32 v{l0}, v{l0}"); e(f"v_exp_f32 v{l1}, v{l1}")
    e(f"v_lshlrev_b32 v24, 16, v{B2+4}"); e(f"v_and_b32 v25, v20, v{B2+4}"); e(f"v_lshlrev_b32 v26, 16, v{B2+5}"); e(f"v_and_b32 v27, v20, v{B2+5}")
    for i in range(4): e(f"v_mul_f32 v{12+i}, v{16+i}, v{l0}")
    e(f"v_add_f32 v5, v{l0}, v{l1}")
    for i in range(4): e(f"v_fmac_f32 v{12+i}, v{24+i}, v{l1}")
    e("v_mov_b32 v4, v7")
    allreduce_xrow(5, 6, "v_add_f32")
    reduce_scatter4(12)
    e(f"ds_write_b32 v{vOXW}, v12")
    e("s_lshl_b32 s57, s3, 3"); e(f"s_add_u32 s57, s57, {SX}"); e("v_mov_b32 v6, s57")
    e("s_mov_b64 exec, 1"); e("ds_write_b64 v6, v[4:5]"); e("s_mov_b64 exec, -1")
    e(f"ds_write_b32 v{vFLW}, v22 offset:{F_OX*4}")
    e(f"v_mov_b32 v6, {SX}")
    def ox_extra():
        e(f"ds_read_b128 v[12:15], v{vOXR}"); e("ds_read_b128 v[24:27], v6"); e("ds_read_b128 v[72:75], v6 offset:16")
    wait_flags(F_OX, 4, 28, extra=ox_extra)
    e("v_max3_f32 v7, v24, v26, v72"); e("v_max_f32 v7, v7, v74")
    e("v_sub_f32 v24, v24, v7"); e("v_sub_f32 v26, v26, v7"); e("v_sub_f32 v72, v72, v7"); e("v_sub_f32 v74, v74, v7")
    e("v_exp_f32 v24, v24"); e("v_exp_f32 v26, v26"); e("v_exp_f32 v72, v72"); e("v_exp_f32 v74, v74"); e.nop(1)
    e("v_mul_f32 v5, v24, v25"); e("v_mul_f32 v12, v12, v24"); e("v_fmac_f32 v5, v26, v27"); e("v_fmac_f32 v12, v13, v26")
    e("v_fmac_f32 v5, v72, v73"); e("v_fmac_f32 v12, v14, v72"); e("v_fmac_f32 v5, v74, v75"); e("v_fmac_f32 v12, v15, v74")
    e("v_rcp_f32 v5, v5"); e.nop(1); e("v_mul_f32 v12, v12, v5"); e.nop(2)
    e(f"v_mov_b32_dpp v13, v12 quad_perm:[1,0,3,2] {DPP}")
    e("v_cvt_pk_bf16_f32 v12, v12, v13"); e.nop(2)
    for m in range(8): e(f"v_mov_b32_dpp v{76+m}, v12 row_newbcast:{2*m} {DPP}")
    lw = L("wook"); e("s_cmp_lg_u32 s59, 0"); e(f"s_cbranch_scc1 {lw}")
    wait_flags(F_WO, 2, 28); woreads(); e("s_waitcnt lgkmcnt(0)")
    e.label(lw)
    AC = 136
    for k in range(2):
        for u in range(4):
            c = "0" if k == 0 else f"v[{AC+4*u}:{AC+4*u+3}]"
            e(f"v_mfma_f32_16x16x32_bf16 v[{AC+4*u}:{AC+4*u+3}], v[{76+4*k}:{79+4*k}], v[{40+8*u+4*k}:{43+8*u+4*k}], {c}")
    e("s_mov_b64 exec, 0xffff")
    e.nop(4)
    for i in range(4): e(f"v_perm_b32 v{4+i}, v{AC+4*i}, v{8+i}, s64")
    e(f"buffer_store_dwordx4 v[4:7], v{vE3V}, s[28:31], s{sE3} offen sc1")
    e("s_mov_b64 exec, -1")
    set_flag(F_PUB3)
    if o["stamps"] == 3:
        lsk = L("st3"); e("s_cmp_lt_u32 s3, 2"); e(f"s_cbranch_scc1 {lsk}"); e("s_memrealtime s[86:87]"); e.label(lsk)
    elif o["stamps"]: e("s_memrealtime s[86:87]")
    e("s_waitcnt lgkmcnt(0)")
    dump_stamps(cnts=([(4, 68), (5, 69)] if o["stamps"] != 3 else None))
    e("s_endpgm")

    e.label("L_loader")
    stamp(1)
    if o["prio"]: e("s_setprio 2")
    e("s_sub_u32 s52, s3, 4")
    e("s_lshr_b32 s53, s48, 1"); e("s_lshl_b32 s53, s53, 24"); e("s_and_b32 s54, s48, 1"); e("s_lshl_b32 s54, s54, 4"); e("s_lshr_b32 s55, s49, 1"); e("s_add_u32 s54, s54, s55")
    e("s_lshl_b32 s54, s54, 15"); e("s_add_u32 s53, s53, s54"); e(f"s_add_u32 s53, s53, {KEY0*256}")
    e("s_lshl_b32 s54, s52, 14"); e("s_add_u32 s53, s53, s54")
    e("s_lshr_b32 s55, s49, 2"); e("s_lshl_b32 s55, s55, 3"); e("s_add_u32 s55, s55, s48"); e("s_lshl_b32 s55, s55, 17")
    e("s_and_b32 s56, s49, 3"); e("s_lshl_b32 s56, s56, 9"); e("s_add_u32 s55, s55, s56")
    e("s_lshl_b32 s56, s52, 16"); e("s_add_u32 s55, s55, s56")
    e("s_lshl_b32 s57, s52, 14")
    for m in range(4):
        e(f"v_add_u32 v4, {4*m}, v2"); e("v_xor_b32 v4, v4, v3"); e("v_lshlrev_b32 v4, 4, v4"); e("v_lshlrev_b32 v5, 8, v2"); e(f"v_add_u32 v{8+m}, v4, v5")
    for m in range(2):
        e(f"v_add_u32 v4, {4*m}, v2"); e("v_lshrrev_b32 v5, 1, v3"); e("v_xor_b32 v4, v4, v5"); e("v_lshlrev_b32 v4, 1, v4"); e("v_and_b32 v5, 1, v3"); e("v_or_b32 v4, v4, v5")
        e("v_lshlrev_b32 v4, 4, v4"); e("v_lshlrev_b32 v5, 8, v2"); e(f"v_add_u32 v{12+m}, v4, v5")
    e("v_lshrrev_b32 v6, 5, v0"); e("v_and_b32 v7, 31, v0")
    for m in range(4):
        e("v_lshlrev_b32 v4, 2, v6"); e(f"v_add_u32 v4, {m}, v4"); e("v_lshrrev_b32 v5, 1, v7"); e("v_xor_b32 v4, v4, v5"); e("v_lshlrev_b32 v4, 1, v4")
        e("v_and_b32 v5, 1, v7"); e("v_or_b32 v4, v4, v5"); e("v_lshlrev_b32 v4, 4, v4"); e("v_lshlrev_b32 v5, 11, v6"); e(f"v_add_u32 v{16+m}, v4, v5")
    e("s_lshl_b32 s58, s52, 2"); e("v_add_u32 v20, s58, v21")
    e("s_waitcnt lgkmcnt(0)")
    srd(36, 6, 67108864); srd(40, 8, 67108864); srd(44, 12, 8388608)
    if o["stamps"]: srd(28, 26, 268435456)
    stamp(2)
    W = o["win"]; WKV = o["winkv"]
    seq = [("K", m) for m in range(16)] + [("V", m) for m in range(16)] + [("W", m) for m in range(16)]
    st = dict(landed=-1)
    def land(upto):
        for x in range(st["landed"] + 1, upto + 1):
            if x == 15: set_flag(F_K, 20); stamp(3)
            if x == 31: set_flag(F_V, 20); stamp(4)
        st["landed"] = max(st["landed"], upto)
    for i, (kind, m) in enumerate(seq):
        w_ = WKV if i < 32 else W
        skipwin = False
        if i == 32:
            assert st["landed"] >= 15
            set_flag(F_VI, 20)
            if o["wpre"]:
                wait_flags(F_P1, 4, 24)
            else:
                e("s_waitcnt vmcnt(0)"); land(31)
                wait_flags(F_QF, 4, 24)
        if o["wpre"] and 32 <= i < 32 + o["wpre"]:
            skipwin = True
        if o["wpre"] and i == 32 + o["wpre"]:
            e(f"s_waitcnt vmcnt({o['wpre']})"); land(31)
            wait_flags(F_QF, 4, 24)
        if not skipwin and i - st["landed"] - 1 > w_ - 1:
            e(f"s_waitcnt vmcnt({w_-1})"); land(i - w_)
        if kind == "K":
            e(f"s_add_u32 m0, s57, {KL + m*1024}"); e(f"s_add_u32 s58, s53, {m*1024}")
            e(f"buffer_load_dwordx4 v{8 + (m & 3)}, s[36:39], s58 offen{NT} lds")
        elif kind == "V":
            e(f"s_add_u32 m0, s57, {VL + m*1024}"); e(f"s_add_u32 s58, s53, {m*1024}")
            e(f"buffer_load_dwordx4 v{12 + (m & 1)}, s[40:43], s58 offen{NT} lds")
        else:
            e(f"s_add_u32 m0, s57, {WO + m*1024}"); e(f"s_add_u32 s58, s55, {m*4096}")
            e(f"buffer_load_dwordx4 v{16 + ((m >> 1) & 3)}, s[44:47], s58 offen{NT} lds")
    e("s_waitcnt vmcnt(0)"); set_flag(F_WO, 20); stamp(5)
    e("s_waitcnt lgkmcnt(0)")
    dump_stamps()
    e("s_endpgm")

    e.label("L_bbranch")
    if o["prio"]: e(f"s_setprio {o['bprio']}")
    e(f"v_mov_b32 v23, {LNS}")
    k1 = -2.0 * math.sqrt(2.0 / math.pi) * math.log2(math.e); k2 = k1 * 0.044715
    e(f"v_mov_b32 v92, {f32bits(k1):#x}"); e(f"v_mov_b32 v93, {f32bits(k2):#x}")
    wait_flags(F_LN2, 1, 28, extra=lambda: (e("ds_read_b128 v[32:35], v23"), e(f"ds_read_b32 v29, v21 offset:{F_T*4}")), sleep=2)
    e(f"v_readfirstlane_b32 s{sT}, v29")
    e("s_waitcnt vmcnt(0)")
    stamp(1)
    for k in range(8): e(f"v_lshlrev_b32 v{40+k}, 16, v{40+k}")
    for n in range(4): e(f"v_lshlrev_b32 v{48+2*n}, 16, v{48+2*n}")
    e("v_cmp_gt_u32 vcc, 32, v0"); e("v_mov_b32 v94, 1.0"); e("v_mov_b32 v95, 1.0"); e("v_cndmask_b32 v54, 0, v54, vcc")
    e("v_lshlrev_b32 v14, 16, v12")
    e("v_sub_f32 v16, v14, v32"); bf16r(16, 16); e("v_mul_f32 v16, v16, v33"); bf16r(16, 16)
    e("v_sub_f32 v16, v16, v34"); bf16r(16, 16); e("v_mul_f32 v16, v16, v35"); bf16r(16, 16)
    ACCB = 128
    for half in range(2):
        e.nop(1)
        for k in range(16): e(f"v_readlane_b32 s{64+k}, v16, {16*half+k}")
        e.nop(2)
        NI = o["bilp"]
        for k in range(0, 16, 2 * NI):
            dps = [16 * half + k + 2 * q_ for q_ in range(NI)]
            for n in range(4):
                R = range(NI)
                U = [f"v[{100+6*q_}:{101+6*q_}]" for q_ in R]; Z = [f"v[{102+6*q_}:{103+6*q_}]" for q_ in R]; G = [f"v[{104+6*q_}:{105+6*q_}]" for q_ in R]
                WB = f"v[{40+2*n}:{41+2*n}]"; W2 = f"v[{48+2*n}:{49+2*n}]"
                for q_, d in enumerate(dps): e(f"v_pk_fma_f32 {U[q_]}, s[{64+(d&15)}:{65+(d&15)}], {WB}, {WB} op_sel:[0,0,1] op_sel_hi:[1,0,1]")
                for q_ in R: e(f"v_pk_mul_f32 {Z[q_]}, {U[q_]}, {U[q_]}")
                for q_ in R: e(f"v_pk_fma_f32 {Z[q_]}, {Z[q_]}, v[92:93], v[92:93] op_sel:[0,1,0] op_sel_hi:[1,1,0]")
                for q_ in R: e(f"v_pk_mul_f32 {Z[q_]}, {Z[q_]}, {U[q_]}")
                for q_ in R: e(f"v_pk_mul_f32 {G[q_]}, {U[q_]}, {W2} op_sel_hi:[1,0]")
                for q_ in R: e(f"v_exp_f32 v{102+6*q_}, v{102+6*q_}"); e(f"v_exp_f32 v{103+6*q_}, v{103+6*q_}")
                e.nop(1)
                for q_ in R: e(f"v_pk_add_f32 {Z[q_]}, {Z[q_]}, v[94:95]")
                for q_ in R: e(f"v_rcp_f32 v{102+6*q_}, v{102+6*q_}"); e(f"v_rcp_f32 v{103+6*q_}, v{103+6*q_}")
                e.nop(1)
                for q_, d in enumerate(dps):
                    A_ = f"v[{ACCB+d}:{ACCB+d+1}]"
                    if n == 0: e(f"v_pk_mul_f32 {A_}, {G[q_]}, {Z[q_]}")
                    else: e(f"v_pk_fma_f32 {A_}, {G[q_]}, {Z[q_]}, {A_}")
    stamp(3)
    e.nop(2)
    for k in range(16):
        e(f"v_permlane32_swap_b32 v{ACCB+k}, v{ACCB+16+k}")
    for k in range(16): e(f"v_add_f32 v{ACCB+k}, v{ACCB+k}, v{ACCB+16+k}")
    e.nop(1)
    for k in range(8): e(f"v_permlane16_swap_b32 v{ACCB+k}, v{ACCB+8+k}")
    for k in range(8): e(f"v_add_f32 v{ACCB+k}, v{ACCB+k}, v{ACCB+8+k}")
    for sh in (8, 4, 2, 1):
        e.nop(1)
        for k in range(8): e(f"v_add_f32_dpp v{ACCB+k}, v{ACCB+k}, v{ACCB+k} row_ror:{sh} {DPP}")
    e("s_lshl_b32 s57, s52, 7"); e(f"s_add_u32 s57, s57, {YP}"); e("v_lshlrev_b32 v24, 5, v2"); e("v_add_u32 v24, s57, v24")
    e("s_mov_b32 exec_lo, 0x00010001"); e("s_mov_b32 exec_hi, 0x00010001")
    e(f"ds_write_b128 v24, v[{ACCB}:{ACCB+3}]"); e(f"ds_write_b128 v24, v[{ACCB+4}:{ACCB+7}] offset:16")
    e("s_mov_b64 exec, -1")
    e("s_cmp_eq_u32 s52, 0"); e("s_cbranch_scc1 L_final")
    set_flag(F_G)
    e("s_waitcnt lgkmcnt(0)")
    dump_stamps()
    e("s_endpgm")
    e.label("L_final")
    tagbytes(60)
    e("s_mov_b32 s64, 0x07060500")
    for k in range(4): e(f"v_mov_b32 v{8+k}, s{60+k}")
    e("v_lshlrev_b32 v24, 2, v3"); e(f"v_add_u32 v24, {YP}, v24")
    wait_flags(F_G, 1, 28, extra=lambda: [e(f"ds_read_b32 v{96+i}, v24 offset:{64*i}") for i in range(4)])
    for k in range(4): e(f"v_perm_b32 v{4+k}, v{96+k}, v{8+k}, s64")
    e("s_lshl_b32 s56, s2, 8"); e(f"s_add_u32 s56, s56, {GB}")
    e("v_lshlrev_b32 v24, 4, v0")
    e("s_mov_b64 exec, 0xffff")
    e("buffer_store_dwordx4 v[4:7], v24, s[28:31], s56 offen sc1")
    e("s_mov_b64 exec, -1")
    stamp(4)
    e("s_lshr_b32 s53, s49, 3"); e("s_lshl_b32 s53, s53, 3"); e("s_add_u32 s53, s53, s48")
    e("s_and_b32 s54, s49, 7")
    e("s_lshr_b32 s55, s53, 1"); e("s_lshl_b32 s55, s55, 6"); e("s_and_b32 s56, s53, 1"); e("s_lshl_b32 s56, s56, 3"); e("s_add_u32 s55, s55, s56"); e("s_add_u32 s55, s55, s54")
    e("v_lshlrev_b32 v25, 5, v2"); e("s_lshl_b32 s55, s55, 1")
    e("buffer_load_ushort v12, v25, s[32:35], s55 offen")
    e("v_lshlrev_b32 v26, 2, v3"); e("v_add_u32 v26, v26, v2"); e("v_lshlrev_b32 v26, 8, v26")
    e("s_lshr_b32 s56, s53, 1"); e("s_lshl_b32 s56, s56, 12"); e("s_and_b32 s57, s53, 1"); e("s_lshl_b32 s57, s57, 3"); e("s_add_u32 s57, s57, s54"); e("s_lshl_b32 s57, s57, 4")
    e("s_add_u32 s57, s57, s56"); e(f"s_add_u32 s57, s57, {GB}")
    e("v_lshlrev_b32 v24, 7, v0")
    e("s_lshl_b32 s56, s53, 13"); e("s_lshl_b32 s58, s54, 4"); e("s_add_u32 s56, s56, s58"); e(f"s_add_u32 s56, s56, {FB}")
    srd(36, 24, 2048)
    wait_flags(F_MP, 2, 28, sleep=4)
    mpoll([dict(issue=lambda: e("buffer_load_dwordx4 v[32:35], v26, s[28:31], s57 offen sc1"), check=lambda: chk4(32, 60), mask=70, init=(0x000f000f, 0x000f000f))])
    reduce_scatter4(32); e("v_mov_b32 v96, v32"); e.nop(2)
    e(f"v_add_f32_dpp v96, v96, v96 quad_perm:[1,0,3,2] {DPP}"); e.nop(2)
    e(f"v_add_f32_dpp v96, v96, v96 quad_perm:[2,3,0,1] {DPP}")
    bf16r(96, 96)
    e("s_and_b32 s59, s59, 0xffff"); e("s_lshl_b32 s59, s59, 16")
    e("v_add_f32 v96, s59, v96"); bf16r(96, 96)
    e(f"v_mul_f32 v97, {f32bits(-math.log2(math.e)):#x}, v96"); e("v_exp_f32 v97, v97"); e.nop(1); e("v_add_f32 v97, 1.0, v97"); e("v_rcp_f32 v97, v97"); e.nop(1)
    e("v_mul_f32 v96, v96, v97"); bf16r(96, 96)
    e("v_lshlrev_b32 v14, 16, v12")
    stamp(1)
    wait_flags(F_PUB3, 1, 28, sleep=1)
    if o["prio"]: e("s_setprio 3")
    if o["dl3"]: e(f"s_sleep {o['dl3']}")
    stamp(5)
    mpoll([dict(issue=lambda: e("buffer_load_dwordx4 v[28:31], v24, s[28:31], s56 offen sc1"), check=lambda: chk4(28, 100), mask=70)], cnt=69)
    stamp(6)
    reduce_scatter4(28)
    allreduce_row16(28, "v_add_f32")
    bf16r(28, 28)
    e("v_mul_f32 v28, v28, v96"); bf16r(28, 28)
    e("v_add_f32 v28, v28, v14")
    e("v_cvt_pk_bf16_f32 v28, v28, v28")
    e("s_mov_b32 exec_lo, 0x00010001"); e("s_mov_b32 exec_hi, 0x00010001")
    e("buffer_store_short v28, v25, s[36:39], s55 offen")
    l = L("ne"); e("s_cmp_lg_u32 s2, 0"); e(f"s_cbranch_scc1 {l}")
    e("s_mov_b64 exec, 1")
    e(f"s_mul_i32 s57, s{sT}, {TINV:#x}"); e("v_mov_b32 v20, s57"); e("v_mov_b32 v23, 0")
    e("buffer_store_dword v20, v23, s[28:31], 0 offen sc1")
    e.label(l)
    e("s_mov_b64 exec, -1")
    stamp(7)
    dump_stamps(cnts=[(2, 69)], final=True)
    e("s_endpgm")
    e.label("L_abort")
    e("s_endpgm")
    e.label("L_exit")

    probs = check(a.lines)
    body = a.text()
    nv = 224
    hdr = open("cdna_kernels/" + KN + ".s.ref").read().split("; Override launch")[0]
    out = hdr + f"; Override launch geometry by editing the next line.\n; @launch grid=(256,1,1) block=(512,1,1) lds={LDS_BYTES}\n"
    out += f""".amdgcn_target "amdgcn-amd-amdhsa--gfx950"
.text
.globl {KN}_kernel
.p2align 8
.type {KN}_kernel,@function
{KN}_kernel:
{body}
    s_endpgm
.section .rodata,"a"
.p2align 6
.amdhsa_kernel {KN}_kernel
  .amdhsa_next_free_vgpr {nv}
  .amdhsa_next_free_sgpr 100
  .amdhsa_accum_offset {nv}
  .amdhsa_group_segment_fixed_size 0
  .amdhsa_kernarg_size 104
  .amdhsa_user_sgpr_count 2
  .amdhsa_user_sgpr_kernarg_segment_ptr 1
  .amdhsa_system_sgpr_workgroup_id_x 1
.end_amdhsa_kernel
"""
    return out, probs

if __name__ == "__main__":
    opt = {}
    name = sys.argv[1]
    for kv in sys.argv[2:]:
        k, v = kv.split("="); opt[k] = int(v, 0)
    s, probs = gen(opt)
    open(name, "w").write(s)
    for p in probs: print("HAZARD:", p)
```

```python
import sys, math, struct
from asmlib import Asm, check
KN = "recurrent_scan__sliding_block_cached__mixer_token_mlp__decode"
def f32bits(x): return struct.unpack("<I", struct.pack("<f", x))[0]

DEF = dict(stamps=0, nt=1, win=12, winkv=16, spinmax=1 << 20, prio=1, dl2=24, dl3=12, local=1, fb1=12, slp=1, bprio=1, bearly=1, bilp=2, wpre=3, cpf=1, tlb=1)

QB, QL, GB, OB, FB, STB = 0x10000, 0x20000, 0x30000, 0x40000, 0x100000, 0x200000
WQ, KL, VL, WO = 0, 32768, 65536, 98304
QF = 131072; OP = QF + 4096; ML = OP + 8192; FL = ML + 128; OX = FL + 128; SX = OX + 1024
XN = SX + 64; LNS = XN + 512; YP = LNS + 16; STL = YP + 256; LDS_BYTES = STL + 256
F_QF, F_O, F_OX, F_K, F_V, F_WO, F_VI, F_MP, F_G, F_XN, F_LN2, F_T, F_QPUB, F_PUB3, F_P1 = 0, 4, 8, 12, 14, 16, 18, 20, 22, 23, 24, 25, 26, 27, 28
KEY0 = 61440
TMUL = 0x9e3779b1
TINV = pow(TMUL, -1, 1 << 32)
vE1V, vE1L, vQFR, vKA, vVA, vOPW, vMLW, vOPR, vMLR, vMST, vL16, vWOA, vE3V, vOXW, vOXR, vFLW = 192, 194, 196, 197, 201, 209, 210, 211, 212, 213, 214, 216, 220, 221, 222, 223
vMASK = 112
sMS, sE2, sE3, sE1, sE1G = 40, 41, 42, 43, 44

def gen(opt):
    o = dict(DEF); o.update(opt)
    assert o["winkv"] <= 16
    NT = " nt" if o["nt"] else ""
    a = Asm(); e = a
    uid = [0]
    def L(p):
        uid[0] += 1; return f"L_{p}_{uid[0]}"
    sT, sCNT = 50, 51
    DPP = "row_mask:0xf bank_mask:0xf"
    def srd(d, lo, size):
        e(f"s_mov_b32 s{d}, s{lo}"); e(f"s_and_b32 s{d+1}, s{lo+1}, 0xffff"); e(f"s_mov_b32 s{d+2}, {size}"); e(f"s_mov_b32 s{d+3}, 0x20000")
    def stamp(k):
        if o["stamps"]: e(f"s_memrealtime s[{80+2*k}:{81+2*k}]")
    def dump_stamps(cnts=None, final=False):
        if not o["stamps"]: return
        if o["stamps"] == 3:
            e("s_waitcnt lgkmcnt(0)")
            e("s_mov_b64 exec, -1")
            e("s_lshl_b32 s76, s3, 5"); e(f"s_add_u32 s76, s76, {STL}"); e("v_mov_b32 v20, s76")
            for k in range(8): e(f"v_mov_b32 v{4+k}, s{80+2*k}")
            e("ds_write_b128 v20, v[4:7]"); e("ds_write_b128 v20, v[8:11] offset:16"); e("s_waitcnt lgkmcnt(0)")
            if final:
                e("s_sleep 20")
                e("s_load_dwordx2 s[76:77], s[0:1], 88"); e("s_waitcnt lgkmcnt(0)")
                e("s_mov_b32 s72, s76"); e("s_and_b32 s73, s77, 0xffff"); e("s_mov_b32 s74, 256"); e("s_mov_b32 s75, 0x20000")
                e(f"v_mov_b32 v20, {STL}"); e("v_mov_b32 v23, 0"); e("s_mov_b64 exec, 1")
                sel = [(2,0,1),(2,0,0),(4,1,0),(0,3,0),(0,5,0),(4,4,0),(2,6,0),(2,7,0),(0,0,0),(4,5,0),(2,2,0),(2,3,0),(6,4,0),(6,6,0),(6,7,0),(1,1,0)]
                for slot, (w, k, inv) in enumerate(sel):
                    e(f"ds_read_b32 v4, v20 offset:{w*32+k*4}"); e("s_waitcnt lgkmcnt(0)")
                    if inv: e("v_not_b32 v4, v4")
                    e(f"buffer_atomic_umax v4, v23, s[72:75], 0 offen offset:{4*slot}")
                e("s_waitcnt vmcnt(0)")
            return
        e("s_waitcnt lgkmcnt(0)")
        for (slot, sreg) in (cnts or []):
            e(f"s_mov_b32 s{80+2*slot}, s{sreg}"); e(f"s_mov_b32 s{81+2*slot}, 0")
        e("s_mov_b64 exec, -1")
        e("s_waitcnt vmcnt(0)")
        e("s_lshl_b32 s76, s2, 3"); e("s_add_u32 s76, s76, s3"); e("s_lshl_b32 s76, s76, 6"); e(f"s_add_u32 s76, s76, {STB}")
        for k in range(8):
            e(f"v_mov_b32 v{2*k+4}, s{80+2*k}"); e(f"v_mov_b32 v{2*k+5}, s{81+2*k}")
        e("v_mov_b32 v20, 0")
        e("s_mov_b64 exec, 1")
        for k in range(4):
            e(f"buffer_store_dwordx4 v[{4*k+4}:{4*k+7}], v20, s[28:31], s76 offen offset:{16*k}")
        e("s_waitcnt vmcnt(0)")
    def spin_tick():
        e(f"s_sub_u32 s{sCNT}, s{sCNT}, 1"); e("s_cbranch_scc1 L_abort")
    def and_flags(vt, n):
        if n == 2: e(f"v_and_b32 v{vt}, v{vt}, v{vt+1}")
        if n == 4:
            e(f"v_and_b32 v{vt}, v{vt}, v{vt+1}"); e(f"v_and_b32 v{vt+2}, v{vt+2}, v{vt+3}"); e(f"v_and_b32 v{vt}, v{vt}, v{vt+2}")
    def read_flags(first, n, vt):
        if n == 1: e(f"ds_read_b32 v{vt}, v21 offset:{first*4}")
        elif n == 2: e(f"ds_read_b64 v[{vt}:{vt+1}], v21 offset:{first*4}")
        else: e(f"ds_read_b128 v[{vt}:{vt+3}], v21 offset:{first*4}")
    def wait_flags(first, n, vt, extra=None, sleep=0, lowprio=None):
        if lowprio and o["prio"]: e(f"s_setprio {lowprio[0]}")
        l = L("wf"); e.label(l)
        read_flags(first, n, vt)
        if extra: extra()
        spin_tick()
        if sleep: e(f"s_sleep {sleep}")
        e("s_waitcnt lgkmcnt(0)")
        and_flags(vt, n)
        e(f"v_cmp_ne_u32 vcc, 0, v{vt}")
        e(f"s_cbranch_vccz {l}")
        if lowprio and o["prio"]: e(f"s_setprio {lowprio[1]}")
    def set_flag(idx, vaddr=21):
        e(f"ds_write_b32 v{vaddr}, v22 offset:{idx*4}")
    def bf16r(dst, src):
        e(f"v_cvt_pk_bf16_f32 v{dst}, v{src}, v{src}"); e(f"v_lshlrev_b32 v{dst}, 16, v{dst}")
    def allreduce_row16(v, op, shs=(8, 4, 2, 1)):
        for sh in shs:
            e.nop(2); e(f"{op}_dpp v{v}, v{v}, v{v} row_ror:{sh} {DPP}")
    def allreduce_xrow(v, t, op):
        e(f"v_mov_b32 v{t}, v{v}"); e.nop(2); e(f"v_permlane32_swap_b32 v{v}, v{t}"); e(f"{op} v{v}, v{v}, v{t}")
        e(f"v_mov_b32 v{t}, v{v}"); e.nop(2); e(f"v_permlane16_swap_b32 v{v}, v{t}"); e(f"{op} v{v}, v{v}, v{t}")
    def reduce_scatter4(b):
        e(f"v_permlane32_swap_b32 v{b}, v{b+2}"); e(f"v_permlane32_swap_b32 v{b+1}, v{b+3}")
        e(f"v_add_f32 v{b}, v{b}, v{b+2}"); e(f"v_add_f32 v{b+1}, v{b+1}, v{b+3}"); e.nop(2)
        e(f"v_permlane16_swap_b32 v{b}, v{b+1}"); e(f"v_add_f32 v{b}, v{b}, v{b+1}")
    def ln_stats(xf, t0, vm, vrs):
        s, t = t0, t0 + 1
        e(f"v_add_f32 v{s}, v{xf}, v{xf+1}"); e(f"v_add_f32 v{t}, v{xf+2}, v{xf+3}")
        for k in range(4, 16, 2):
            e(f"v_add_f32 v{s}, v{s}, v{xf+k}"); e(f"v_add_f32 v{t}, v{t}, v{xf+k+1}")
        e(f"v_add_f32 v{s}, v{s}, v{t}")
        allreduce_row16(s, "v_add_f32"); allreduce_xrow(s, t, "v_add_f32")
        e(f"v_mul_f32 v{s}, {f32bits(1/1024):#x}, v{s}")
        e(f"v_sub_f32 v{t}, v{xf}, v{s}"); e(f"v_sub_f32 v{t0+3}, v{xf+1}, v{s}")
        e(f"v_mul_f32 v{t0+2}, v{t}, v{t}"); e(f"v_mul_f32 v{t0+4}, v{t0+3}, v{t0+3}")
        for k in range(2, 16, 2):
            e(f"v_sub_f32 v{t}, v{xf+k}, v{s}"); e(f"v_sub_f32 v{t0+3}, v{xf+k+1}, v{s}")
            e(f"v_fmac_f32 v{t0+2}, v{t}, v{t}"); e(f"v_fmac_f32 v{t0+4}, v{t0+3}, v{t0+3}")
        e(f"v_add_f32 v{t0+2}, v{t0+2}, v{t0+4}")
        allreduce_row16(t0 + 2, "v_add_f32"); allreduce_xrow(t0 + 2, t, "v_add_f32")
        e(f"v_mul_f32 v{t0+2}, {f32bits(1/1024):#x}, v{t0+2}")
        bf16r(vm, s)
        bf16r(t, t0 + 2)
        e(f"v_add_f32 v{t}, {f32bits(1e-5):#x}, v{t}")
        bf16r(t, t)
        e(f"v_sqrt_f32 v{t}, v{t}"); e.nop(1)
        bf16r(t, t)
        e(f"v_rcp_f32 v{vrs}, v{t}"); e.nop(1)
    def unpack(dlo, dhi, src):
        e(f"v_lshlrev_b32 v{dlo}, 16, v{src}"); e(f"v_and_b32 v{dhi}, 0xffff0000, v{src}")
    def tagbytes(s0):
        for k in range(4):
            e(f"s_lshr_b32 s{s0+k}, s{sT}, {8*k}"); e(f"s_and_b32 s{s0+k}, s{s0+k}, 0xff")
    def chk4(b, t):
        e(f"v_xor_b32 v{t}, s60, v{b}"); e(f"v_bitop3_b32 v{t}, v{t}, v{b+1}, s61 bitop3:0xf6"); e(f"v_bitop3_b32 v{t}, v{t}, v{b+2}, s62 bitop3:0xf6")
        e(f"v_bitop3_b32 v{t}, v{t}, v{b+3}, s63 bitop3:0xf6"); e(f"v_and_b32 v{t}, 0xff, v{t}"); e(f"v_cmp_ne_u32 vcc, 0, v{t}")
    def mpoll(loads, cnt=None, pre=None, shadow=None):
        top = L("mp"); ent = L("me")
        for ld in loads:
            ini = ld.get('init', -1); m = ld['mask']
            if ini == -1: e(f"s_mov_b64 s[{m}:{m+1}], -1")
            else: e(f"s_mov_b32 s{m}, {ini[0]:#x}"); e(f"s_mov_b32 s{m+1}, {ini[1]:#x}")
        if cnt: e(f"s_mov_b32 s{cnt}, 0")
        for ld in loads:
            m = ld['mask']
            if ld.get('init', -1) != -1: e(f"s_mov_b64 exec, s[{m}:{m+1}]")
            ld['issue']()
            if ld.get('init', -1) != -1: e("s_mov_b64 exec, -1")
        if shadow: shadow()
        e(f"s_branch {ent}")
        e.label(top)
        spin_tick()
        if pre: pre()
        for ld in loads:
            sk = L("sk"); m = ld['mask']
            e(f"s_mov_b64 exec, s[{m}:{m+1}]"); e(f"s_cbranch_execz {sk}"); ld['issue'](); e.label(sk)
        e("s_mov_b64 exec, -1")
        e.label(ent)
        if cnt: e(f"s_add_u32 s{cnt}, s{cnt}, 1")
        e("s_waitcnt vmcnt(0)")
        e("s_mov_b64 s[66:67], 0")
        for ld in loads:
            sk = L("sc"); m = ld['mask']
            e(f"s_mov_b64 exec, s[{m}:{m+1}]"); e(f"s_cbranch_execz {sk}")
            ld['check']()
            if ld.get('take'):
                e("s_andn2_b64 exec, exec, vcc"); sk2 = L("sd"); e(f"s_cbranch_execz {sk2}"); ld['take'](); e.label(sk2)
            e(f"s_mov_b64 s[{m}:{m+1}], vcc"); e("s_or_b64 s[66:67], s[66:67], vcc")
            e.label(sk)
        e("s_mov_b64 exec, -1")
        e("s_cmp_lg_u64 s[66:67], 0"); e(f"s_cbranch_scc1 {top}")
    LOW = (0, 3)

    e("s_cmp_ge_u32 s2, 256"); e("s_cbranch_scc1 L_exit")
    stamp(0)
    e("s_load_dwordx16 s[4:19], s[0:1], 0")
    e("s_load_dwordx4 s[20:23], s[0:1], 64")
    e("s_load_dwordx2 s[24:25], s[0:1], 80")
    e("s_load_dwordx2 s[26:27], s[0:1], 96")
    e("v_lshrrev_b32 v1, 6, v0"); e("v_and_b32 v0, 63, v0")
    e("v_lshrrev_b32 v2, 4, v0"); e("v_and_b32 v3, 15, v0")
    e("v_readfirstlane_b32 s3, v1")
    e("s_and_b32 s48, s2, 7"); e("s_lshr_b32 s49, s2, 3")
    e(f"s_mov_b32 s{sCNT}, {o['spinmax']}")
    e(f"v_mov_b32 v21, {FL}"); e("v_mov_b32 v22, 1")
    e("s_lshl_b32 s46, s48, 3"); e("s_and_b32 s47, s49, 7"); e("s_add_u32 s46, s46, s47"); e("s_lshr_b32 s47, s49, 3")
    e("s_cmp_eq_u32 s3, 0"); e("s_cbranch_scc0 L_not0")
    e("v_lshrrev_b32 v24, 3, v0"); e("v_and_b32 v25, 7, v0")
    e("v_lshrrev_b32 v26, 1, v25"); e("v_bfe_u32 v27, v24, 1, 2"); e("v_xor_b32 v26, v26, v27")
    e("v_lshlrev_b32 v26, 1, v26"); e("v_and_b32 v25, 1, v25"); e("v_or_b32 v26, v26, v25"); e("v_lshlrev_b32 v26, 4, v26")
    e("v_lshl_add_u32 v24, v24, 13, v26")
    e("s_lshl_b32 s56, s47, 21"); e("s_lshl_b32 s57, s46, 7"); e("s_add_u32 s56, s56, s57")
    e(f"s_mov_b32 m0, {WQ}"); e("s_mov_b32 s57, 0")
    e("s_waitcnt lgkmcnt(0)")
    srd(36, 10, 8388608)
    e.label("L_wqloop")
    e(f"buffer_load_dwordx4 v24, s[36:39], s56 offen{NT} lds")
    e("s_add_u32 m0, m0, 1024"); e(f"s_add_u32 s56, s56, {8*8192}"); e("s_add_u32 s57, s57, 1"); e("s_cmp_lt_u32 s57, 32"); e("s_cbranch_scc1 L_wqloop")
    e("s_barrier")
    e("s_branch L_qproj")
    e.label("L_not0")
    e("s_cmp_eq_u32 s3, 1"); e("s_cbranch_scc0 L_not1")
    e("v_lshlrev_b32 v23, 5, v0"); e("v_mov_b32 v24, 0")
    e("s_waitcnt lgkmcnt(0)")
    srd(28, 26, 268435456); srd(32, 4, 2048)
    e("buffer_load_dwordx4 v[4:7], v23, s[32:35], 0 offen")
    e("buffer_load_dwordx4 v[8:11], v23, s[32:35], 0 offen offset:16")
    e("buffer_load_dword v20, v24, s[28:31], 0 offen sc1")
    e("s_barrier")
    e("s_branch L_ln")
    e.label("L_not1")
    e("s_cmp_ge_u32 s3, 6"); e("s_cbranch_scc1 L_bearly")
    e("s_cmp_ge_u32 s3, 4"); e("s_cbranch_scc1 L_learly")
    if o["cpf"]:
        lc = L("cpf"); e("s_cmp_eq_u32 s3, 2"); e(f"s_cbranch_scc0 {lc}")
        e("s_getpc_b64 s[54:55]")
        e.label("L_pc")
        e(f"s_sub_u32 s54, s54, L_pc-{KN}_kernel"); e("s_subb_u32 s55, s55, 0")
        e("s_mul_i32 s56, s49, 6"); e("v_add_u32 v24, s56, v0"); e("v_lshlrev_b32 v24, 7, v24")
        e(f"s_mov_b32 s56, L_exit-{KN}_kernel")
        e("v_cmp_gt_u32 vcc, s56, v24")
        e("s_and_b64 exec, vcc, 0x3f")
        lc2 = L("cpf"); e(f"s_cbranch_execz {lc2}")
        e("global_load_dword v150, v24, s[54:55]")
        e.label(lc2)
        e("s_mov_b64 exec, -1")
        e.label(lc)
    if o["tlb"]:
        lt = L("tlb"); e("s_cmp_eq_u32 s3, 3"); e(f"s_cbranch_scc0 {lt}")
        e("s_lshr_b32 s53, s48, 1"); e("s_lshl_b32 s53, s53, 24"); e("s_and_b32 s54, s48, 1"); e("s_lshl_b32 s54, s54, 4"); e("s_lshr_b32 s55, s49, 1"); e("s_add_u32 s54, s54, s55")
        e("s_lshl_b32 s54, s54, 15"); e("s_add_u32 s53, s53, s54"); e(f"s_add_u32 s53, s53, {KEY0*256}")
        e("s_lshr_b32 s55, s49, 2"); e("s_lshl_b32 s55, s55, 3"); e("s_add_u32 s55, s55, s48"); e("s_lshl_b32 s55, s55, 17")
        e("v_mov_b32 v24, s53"); e("v_mov_b32 v25, s55"); e("v_mov_b32 v26, 0")
        e("s_waitcnt lgkmcnt(0)")
        e("s_mov_b64 exec, 1")
        e("global_load_dword v151, v24, s[8:9]" + NT); e("global_load_dword v152, v25, s[12:13]" + NT)
        e("global_load_dword v153, v24, s[6:7]" + NT); e("global_load_dword v154, v26, s[24:25]")
        e("s_mov_b64 exec, -1")
        e.label(lt)
    e("s_barrier")
    e("s_branch L_w23")
    e.label("L_learly")
    lz = L("nz"); e("s_cmp_eq_u32 s3, 4"); e(f"s_cbranch_scc0 {lz}")
    e("v_lshlrev_b32 v4, 2, v0"); e(f"v_add_u32 v4, {FL}, v4"); e("v_mov_b32 v5, 0")
    e("s_mov_b64 exec, 0xffffffff"); e("ds_write_b32 v4, v5"); e("s_mov_b64 exec, -1"); e("s_waitcnt lgkmcnt(0)")
    e.label(lz)
    e("s_barrier")
    e("s_branch L_loader")
    e.label("L_bearly")
    e("s_sub_u32 s52, s3, 6")
    e("s_lshr_b32 s53, s2, 4"); e("s_and_b32 s54, s2, 15")
    e("v_and_b32 v23, 31, v0"); e("v_lshlrev_b32 v23, 1, v23"); e("s_lshl_b32 s55, s53, 7"); e("s_lshl_b32 s56, s52, 6"); e("s_add_u32 s55, s55, s56")
    e("s_mul_i32 s56, s54, 448"); e("v_lshlrev_b32 v24, 1, v0")
    e("s_waitcnt lgkmcnt(0)")
    srd(28, 26, 268435456); srd(32, 4, 2048)
    srd(36, 16, 7168); srd(40, 18, 7168); srd(44, 20, 7168)
    e("buffer_load_ushort v12, v23, s[32:35], s55 offen")
    for n in range(4):
        e(f"buffer_load_ushort v{40+2*n}, v24, s[36:39], s56 offen offset:{128*n}")
        e(f"buffer_load_ushort v{41+2*n}, v24, s[40:43], s56 offen offset:{128*n}")
        e(f"buffer_load_ushort v{48+2*n}, v24, s[44:47], s56 offen offset:{128*n}")
    e("s_load_dword s59, s[22:23], 0")
    e("s_barrier")
    e("s_branch L_bbranch")

    def common_srd():
        e("s_waitcnt lgkmcnt(0)")
        srd(28, 26, 268435456)
        srd(32, 4, 2048)

    def prep():
        e("s_lshr_b32 s52, s48, 1"); e("s_lshl_b32 s52, s52, 3"); e("s_and_b32 s54, s49, 1"); e("s_lshl_b32 s54, s54, 2"); e("s_add_u32 s52, s52, s54")
        e("s_and_b32 s54, s48, 1"); e("s_lshl_b32 s54, s54, 4"); e("s_lshr_b32 s55, s49, 1"); e("s_add_u32 s55, s55, s54")
        e("s_lshl_b32 s57, s3, 2"); e(f"v_add_u32 v{vFLW}, s57, v21")
        e("v_lshrrev_b32 v28, 2, v3")
        for u in range(4):
            e(f"v_cmp_eq_u32 vcc, {u}, v28"); e.nop(2); e(f"v_cndmask_b32 v{vMASK+u}, 0, -1, vcc")
        e("v_lshrrev_b32 v28, 3, v0"); e("v_and_b32 v29, 7, v0")
        for i in range(2):
            e(f"v_add_u32 v30, {8*i}, v28")
            e("v_and_b32 v31, 3, v30"); e("v_lshlrev_b32 v31, 2, v31"); e(f"v_lshrrev_b32 v{vE1V+i}, 2, v30"); e(f"v_add_u32 v31, v31, v{vE1V+i}"); e("v_lshlrev_b32 v31, 9, v31")
            e(f"v_lshl_add_u32 v{vE1V+i}, v29, 4, v31")
            e("v_lshrrev_b32 v31, 1, v29"); e("v_lshl_add_u32 v31, v31, 4, v30"); e("v_lshlrev_b32 v31, 4, v31")
            e("v_and_b32 v30, 1, v29"); e("v_lshl_add_u32 v31, v30, 3, v31")
            e("s_lshl_b32 s57, s3, 10"); e(f"s_add_u32 s57, s57, {QF}"); e(f"v_add_u32 v{vE1L+i}, s57, v31")
        e(f"s_lshl_b32 s{sE1G}, s52, 11"); e("s_lshl_b32 s57, s3, 7"); e(f"s_add_u32 s{sE1G}, s{sE1G}, s57"); e(f"s_add_u32 s{sE1G}, s{sE1G}, {QB}")
        if o["local"]:
            e("s_xor_b32 s57, s48, s49"); e("s_and_b32 s57, s57, 1")
            e(f"s_mov_b32 s58, {QL - QB}"); e("s_cmp_eq_u32 s57, 0"); e("s_cselect_b32 s58, s58, 0"); e(f"s_add_u32 s{sE1}, s{sE1G}, s58")
        else: e(f"s_mov_b32 s{sE1}, s{sE1G}")
        e(f"v_lshlrev_b32 v{vL16}, 4, v0"); e(f"v_add_u32 v{vQFR}, {QF}, v{vL16}")
        e("s_lshl_b32 s57, s3, 13"); e(f"s_add_u32 s57, s57, {KL}")
        e("v_lshlrev_b32 v28, 8, v3"); e("v_add_u32 v28, s57, v28"); e("v_xor_b32 v29, v2, v3"); e(f"v_lshl_add_u32 v{vKA}, v29, 4, v28")
        for t in range(1, 4): e(f"v_xor_b32 v{vKA+t}, {t<<6}, v{vKA}")
        e("v_lshrrev_b32 v28, 2, v3"); e("v_lshl_add_u32 v28, v2, 2, v28")
        e("v_and_b32 v29, 7, v28"); e("v_lshlrev_b32 v29, 5, v29"); e("v_lshl_add_u32 v28, v28, 8, v29")
        e("v_and_b32 v29, 3, v3"); e("v_lshl_add_u32 v28, v29, 3, v28")
        e("s_lshl_b32 s57, s3, 13"); e(f"s_add_u32 s57, s57, {VL}"); e(f"v_add_u32 v{vVA}, s57, v28")
        for t in range(1, 8): e(f"v_xor_b32 v{vVA+t}, {t<<5}, v{vVA}")
        e("s_lshl_b32 s57, s3, 11"); e(f"s_add_u32 s57, s57, {OP}"); e(f"v_add_u32 v{vOPW}, s57, v{vL16}")
        e("s_lshl_b32 s57, s3, 3"); e(f"s_add_u32 s57, s57, {ML}"); e("v_lshlrev_b32 v28, 5, v3"); e(f"v_add_u32 v{vMLW}, s57, v28")
        e("s_and_b32 s57, s3, 1"); e("s_lshl_b32 s57, s57, 10"); e(f"s_add_u32 s57, s57, {OP}"); e(f"v_add_u32 v{vOPR}, s57, v{vL16}")
        e("v_and_b32 v28, 3, v3"); e("v_lshlrev_b32 v29, 5, v28"); e(f"v_add_u32 v{vMLR}, {ML}, v29")
        e("v_lshlrev_b32 v28, 14, v28"); e("v_lshrrev_b32 v29, 3, v3"); e("v_lshl_add_u32 v28, v29, 13, v28")
        e("v_bfe_u32 v29, v3, 2, 1"); e("v_lshl_add_u32 v29, v29, 2, v2"); e(f"v_lshl_add_u32 v{vMST}, v29, 4, v28")
        e(f"s_lshl_b32 s{sMS}, s52, 14"); e("s_lshl_b32 s57, s55, 8"); e(f"s_add_u32 s{sMS}, s{sMS}, s57"); e("s_and_b32 s57, s3, 1"); e("s_lshl_b32 s57, s57, 7")
        e(f"s_add_u32 s{sMS}, s{sMS}, s57"); e(f"s_add_u32 s{sMS}, s{sMS}, {OB}")
        e("s_lshr_b32 s56, s49, 2"); e("s_lshl_b32 s56, s56, 3"); e("s_add_u32 s56, s56, s48")
        e(f"s_lshl_b32 s{sE2}, s56, 13"); e("s_lshl_b32 s57, s3, 11"); e(f"s_add_u32 s{sE2}, s{sE2}, s57"); e(f"s_add_u32 s{sE2}, s{sE2}, {OB}")
        e("v_lshrrev_b32 v28, 2, v3"); e("v_lshl_add_u32 v29, v28, 2, v2"); e("v_lshlrev_b32 v29, 9, v29")
        e("v_and_b32 v30, 1, v2"); e("v_lshl_add_u32 v30, v30, 2, v28"); e("v_lshl_add_u32 v29, v30, 5, v29")
        e("v_and_b32 v30, 3, v3"); e("v_lshl_add_u32 v29, v30, 3, v29"); e(f"v_add_u32 v29, {WO}, v29")
        e("s_lshl_b32 s57, s3, 7"); e(f"v_xor_b32 v{vWOA}, s57, v29")
        for u in range(1, 4): e(f"v_xor_b32 v{vWOA+u}, {u<<5}, v{vWOA}")
        e("s_and_b32 s57, s49, 3"); e("s_lshl_b32 s57, s57, 3"); e("s_lshl_b32 s58, s3, 1"); e("s_add_u32 s57, s57, s58"); e(f"s_lshl_b32 s{sE3}, s57, 13")
        e("s_lshl_b32 s57, s56, 7"); e(f"s_add_u32 s{sE3}, s{sE3}, s57"); e(f"s_add_u32 s{sE3}, s{sE3}, {FB}")
        e("v_lshrrev_b32 v28, 3, v3"); e("v_lshlrev_b32 v28, 13, v28"); e("v_and_b32 v29, 7, v3"); e(f"v_lshl_add_u32 v{vE3V}, v29, 4, v28")
        e(f"v_add_u32 v{vOXR}, {OX}, v{vL16}"); e("s_lshl_b32 s57, s3, 2"); e(f"v_add_u32 v{vOXW}, s57, v{vOXR}")

    e.label("L_w23")
    if o["prio"]: e("s_setprio 3")
    common_srd()
    prep()
    wait_flags(F_XN, 1, 28, extra=lambda: e(f"ds_read_b32 v29, v21 offset:{F_T*4}"), sleep=o["slp"], lowprio=LOW)
    e(f"v_readfirstlane_b32 s{sT}, v29")
    e("s_branch L_attn")
    e.label("L_ln")
    if o["prio"]: e("s_setprio 3")
    e("s_lshl_b32 s54, s47, 4"); e("v_subrev_u32 v23, s54, v0"); e("v_lshlrev_b32 v23, 5, v23"); e(f"v_add_u32 v23, {XN}, v23")
    e("s_mov_b32 s56, 0xffff"); e("s_mov_b32 s57, 0"); e("s_lshl_b64 s[58:59], s[56:57], s54")
    e("s_waitcnt vmcnt(0)")
    stamp(2)
    e(f"v_readfirstlane_b32 s{sT}, v20")
    for k in range(8): unpack(24 + 2 * k, 25 + 2 * k, 4 + k)
    e(f"s_add_u32 s{sT}, s{sT}, 1"); e(f"s_mul_i32 s{sT}, s{sT}, {TMUL:#x}")
    ln_stats(24, 98, 104, 105)
    e(f"v_mov_b32 v20, s{sT}"); e(f"ds_write_b32 v21, v20 offset:{F_T*4}")
    for k in range(16): e(f"v_sub_f32 v{24+k}, v{24+k}, v104")
    for k in range(8): e(f"v_cvt_pk_bf16_f32 v{4+k}, v{24+2*k}, v{25+2*k}")
    for k in range(8): unpack(24 + 2 * k, 25 + 2 * k, 4 + k)
    for k in range(16): e(f"v_mul_f32 v{24+k}, v{24+k}, v105")
    for k in range(8): e(f"v_cvt_pk_bf16_f32 v{4+k}, v{24+2*k}, v{25+2*k}")
    e("s_mov_b64 exec, s[58:59]")
    e("ds_write_b128 v23, v[4:7]"); e("ds_write_b128 v23, v[8:11] offset:16")
    e("s_mov_b64 exec, -1")
    set_flag(F_XN)
    stamp(1)
    for k in range(8): unpack(24 + 2 * k, 25 + 2 * k, 4 + k)
    ln_stats(24, 98, 106, 107)
    e(f"v_mov_b32 v23, {LNS}"); e("ds_write_b128 v23, v[104:107]")
    set_flag(F_LN2)
    stamp(3)
    prep()
    e("s_branch L_attn")
    e.label("L_qproj")
    if o["prio"]: e("s_setprio 3")
    stamp(1)
    srd(28, 26, 268435456)
    prep()
    e("v_lshrrev_b32 v24, 2, v3"); e("v_and_b32 v25, 3, v3")
    e("v_lshlrev_b32 v26, 2, v2"); e("v_add_u32 v26, v26, v24")
    e("v_lshrrev_b32 v27, 1, v26"); e("v_and_b32 v27, 3, v27")
    e("v_lshlrev_b32 v26, 7, v26"); e("v_lshlrev_b32 v25, 3, v25"); e("v_add_u32 v26, v26, v25")
    e("v_lshlrev_b32 v27, 5, v27"); e("v_add_u32 v108, v26, v27")
    for u in range(1, 4): e(f"v_xor_b32 v{108+u}, {u<<5}, v108")
    e("s_lshr_b32 s57, s46, 1"); e("s_lshl_b32 s57, s57, 11"); e("s_and_b32 s58, s46, 1"); e("s_lshl_b32 s58, s58, 8"); e("s_add_u32 s57, s57, s58")
    e("s_lshl_b32 s58, s47, 9"); e("s_add_u32 s57, s57, s58"); e(f"s_add_u32 s46, s57, {QB}"); e(f"s_add_u32 s47, s57, {QL}")
    e("v_lshlrev_b32 v27, 2, v0")
    e("v_lshlrev_b32 v26, 3, v2"); e(f"v_add_u32 v26, {XN}, v26")
    def xn_extra():
        e(f"ds_read_b32 v29, v21 offset:{F_T*4}")
        for k in range(8): e(f"ds_read2_b64 v[{40+4*k}:{43+4*k}], v26 offset0:{8*k} offset1:{8*k+4}")
    wait_flags(F_XN, 1, 28, extra=xn_extra)
    e(f"v_readfirstlane_b32 s{sT}, v29")
    stamp(2)
    csc = math.log2(math.e) / math.sqrt(128.0)
    e(f"s_mov_b32 s58, {f32bits(csc):#x}")
    for k in range(8):
        A = 72 + 16 * (k & 1); B = 128 + 16 * (k & 1)
        for u in range(4):
            for m in range(4): e(f"v_and_b32 v{A+4*u+m}, v{40+4*k+m}, v{vMASK+u}")
        e(f"s_waitcnt vmcnt({28 - 4*k})")
        if k == 7: stamp(3)
        for u in range(4):
            for rho in range(2):
                r = B + 4 * u + 2 * rho
                e(f"ds_read_b64_tr_b16 v[{r}:{r+1}], v{108+u} offset:{k*4096 + rho*2048}")
        for u in range(4):
            e(f"s_waitcnt lgkmcnt({2*(3-u)})")
            c = "0" if (k == 0 and u == 0) else "v[104:107]"
            e(f"v_mfma_f32_16x16x32_bf16 v[104:107], v[{A+4*u}:{A+4*u+3}], v[{B+4*u}:{B+4*u+3}], {c}")
    e(f"v_mov_b32 v49, s{sT}"); e(f"v_mov_b32 v51, s{sT}")
    e("s_mov_b32 s56, 0x11111111"); e("s_mov_b32 s57, 0x11111111")
    e.nop(4)
    e("v_mul_f32 v104, s58, v104"); e.nop(2)
    e(f"v_mov_b32_dpp v105, v104 quad_perm:[1,0,3,2] {DPP}")
    e("v_cvt_pk_bf16_f32 v48, v104, v105"); e.nop(2)
    e(f"v_mov_b32_dpp v50, v48 quad_perm:[2,3,0,1] {DPP}")
    e("s_mov_b64 exec, s[56:57]")
    if o["local"]: e("buffer_store_dwordx4 v[48:51], v27, s[28:31], s47 offen")
    e("buffer_store_dwordx4 v[48:51], v27, s[28:31], s46 offen sc1")
    e("s_mov_b64 exec, -1")
    set_flag(F_QPUB)
    stamp(5)

    e.label("L_attn")
    wait_flags(F_QPUB, 1, 28, sleep=o["slp"], lowprio=LOW)
    wait_flags(F_VI, 2, 28, lowprio=LOW)
    PB = 128
    def mk_e1(i):
        b = PB + 4 * i
        return dict(issue=lambda: e(f"buffer_load_dwordx4 v[{b}:{b+3}], v{vE1V+i}, s[28:31], s{sE1} offen sc1"),
                    check=lambda: (e(f"v_xor_b32 v36, s{sT}, v{b+1}"), e(f"v_xor_b32 v37, s{sT}, v{b+3}"), e("v_or_b32 v36, v36, v37"), e("v_cmp_ne_u32 vcc, 0, v36")),
                    take=lambda: e(f"ds_write2_b32 v{vE1L+i}, v{b}, v{b+2} offset0:0 offset1:1"), mask=70 + 2 * i)
    def kreads():
        for kt in range(2):
            for t in range(4):
                r = 40 + 16 * kt + 4 * t
                e(f"ds_read_b128 v[{r}:{r+3}], v{vKA+t} offset:{kt*4096}")
    def e1_pre():
        if o["local"]: e(f"s_cmp_ge_u32 s68, {o['fb1']}"); e(f"s_cselect_b32 s{sE1}, s{sE1G}, s{sE1}")
    stamp(1)
    def e1_shadow():
        if o["wpre"]: e(f"ds_write_b32 v{vFLW}, v22 offset:{F_P1*4}")
        kreads()
    mpoll([mk_e1(0), mk_e1(1)], cnt=68, pre=e1_pre, shadow=e1_shadow)
    e(f"ds_write_b32 v{vFLW}, v22 offset:{F_QF*4}")
    stamp(6)
    VF = 160
    def vreads():
        for t in range(8):
            for rho in range(2):
                r = VF + 4 * t + 2 * rho
                e(f"ds_read_b64_tr_b16 v[{r}:{r+1}], v{vVA+t} offset:{rho*4096}")
    def qf_extra():
        e(f"ds_read_b64 v[32:33], v21 offset:{F_V*4}")
        for t in range(4): e(f"ds_read_b128 v[{72+4*t}:{75+4*t}], v{vQFR} offset:{t*1024}")
    wait_flags(F_QF, 4, 28, extra=qf_extra)
    for t in range(4):
        for kt in range(2):
            c = "0" if t == 0 else f"v[{88+4*kt}:{91+4*kt}]"
            e(f"v_mfma_f32_16x16x32_bf16 v[{88+4*kt}:{91+4*kt}], v[{40+16*kt+4*t}:{43+16*kt+4*t}], v[{72+4*t}:{75+4*t}], {c}")
    e("v_and_b32 v32, v32, v33"); e("v_cmp_ne_u32 vcc, 0, v32")
    e("s_mov_b32 s59, 0")
    lv = L("vlate"); e(f"s_cbranch_vccz {lv}")
    vreads(); e("s_mov_b32 s59, 1")
    e.label(lv)
    for m in range(4): e(f"v_mov_b32 v{44+m}, 0x3f803f80")
    e.nop(3)
    S = list(range(88, 96))
    for s_ in S: e(f"v_add_f32_dpp v{s_+8}, v{s_}, v{s_} row_ror:4 {DPP}")
    for s_ in S: e(f"v_add_f32_dpp v{s_}, v{s_+8}, v{s_+8} row_ror:8 {DPP}")
    e("v_max3_f32 v96, v88, v89, v90"); e("v_max3_f32 v97, v91, v92, v93"); e("v_max3_f32 v96, v96, v94, v95"); e("v_max_f32 v96, v96, v97")
    allreduce_xrow(96, 97, "v_max_f32")
    for s_ in S: e(f"v_sub_f32 v{s_}, v{s_}, v96")
    for s_ in S: e(f"v_exp_f32 v{s_}, v{s_}")
    e.nop(1)
    for m in range(4): e(f"v_cvt_pk_bf16_f32 v{100+m}, v{88+2*m}, v{89+2*m}")
    lw = L("vok"); e("s_cmp_lg_u32 s59, 0"); e(f"s_cbranch_scc1 {lw}")
    wait_flags(F_V, 2, 28); vreads()
    e.label(lw)
    for m in range(4): e(f"v_and_b32 v{72+m}, v{100+m}, v{vMASK}")
    for m in range(4): e(f"v_and_b32 v{76+m}, v{100+m}, v{vMASK+1}")
    e("s_waitcnt lgkmcnt(0)")
    first = [True, True]
    for t in range(8):
        ee = (t >> 1) & 1; u = 2 * (t >> 2) + (t & 1)
        c = "0" if first[ee] else f"v[{104+4*ee}:{107+4*ee}]"; first[ee] = False
        e(f"v_mfma_f32_16x16x32_bf16 v[{104+4*ee}:{107+4*ee}], v[{VF+4*t}:{VF+4*t+3}], v[{72+4*u}:{75+4*u}], {c}")
        if t in (0, 1):
            for m in range(4): e(f"v_and_b32 v{80+4*t+m}, v{100+m}, v{vMASK+2+t}")
    e("v_mfma_f32_16x16x32_bf16 v[92:95], v[44:47], v[100:103], 0")
    e.nop(6)
    e(f"ds_write_b128 v{vOPW}, v[104:107]")
    e(f"ds_write_b128 v{vOPW}, v[108:111] offset:1024")
    e("v_mov_b32 v97, v92")
    e("s_mov_b64 exec, 0xf")
    e(f"ds_write_b64 v{vMLW}, v[96:97]")
    e("s_mov_b64 exec, -1")
    e(f"ds_write_b32 v{vFLW}, v22 offset:{F_O*4}")
    stamp(7)
    tagbytes(60); e("s_mov_b32 s64, 0x07060500"); e("s_mov_b32 s59, 0")
    e("s_cmp_ge_u32 s3, 2"); e("s_cbranch_scc1 L_e2")
    e(f"v_mov_b32 v63, s{sT}")
    def mg_extra():
        for w in range(4): e(f"ds_read_b128 v[{32+4*w}:{35+4*w}], v{vOPR} offset:{w*2048}")
        e(f"ds_read_b128 v[48:51], v{vMLR}"); e(f"ds_read_b128 v[52:55], v{vMLR} offset:16")
    wait_flags(F_O, 4, 28, extra=mg_extra)
    e("v_max3_f32 v56, v48, v50, v52"); e("v_max_f32 v56, v56, v54")
    for w in range(4): e(f"v_sub_f32 v{48+2*w}, v{48+2*w}, v56")
    for w in range(4): e(f"v_exp_f32 v{48+2*w}, v{48+2*w}")
    e.nop(1)
    e("v_mul_f32 v57, v48, v49")
    for m in range(4): e(f"v_mul_f32 v{32+m}, v{32+m}, v48")
    for w in range(1, 4): e(f"v_fmac_f32 v57, v{48+2*w}, v{49+2*w}")
    for m in range(4): e(f"v_fmac_f32 v{32+m}, v{36+m}, v50")
    e("v_rcp_f32 v58, v57"); e("v_log_f32 v59, v57")
    for w in range(2, 4):
        for m in range(4): e(f"v_fmac_f32 v{32+m}, v{32+4*w+m}, v{48+2*w}")
    e("v_add_f32 v62, v56, v59")
    for m in range(4): e(f"v_mul_f32 v{32+m}, v{32+m}, v58")
    e("v_cvt_pk_bf16_f32 v60, v32, v33"); e("v_cvt_pk_bf16_f32 v61, v34, v35")
    e(f"buffer_store_dwordx4 v[60:63], v{vMST}, s[28:31], s{sMS} offen sc1")
    e(f"ds_write_b32 v{vFLW}, v22 offset:{F_MP*4}")
    if o["stamps"]: e("s_memrealtime s[80:81]")

    e.label("L_e2")
    def woreads():
        for u in range(4):
            for tp in range(4):
                r = 40 + 8 * u + 2 * tp
                e(f"ds_read_b64_tr_b16 v[{r}:{r+1}], v{vWOA+u} offset:{tp*8192}")
    def wo_try():
        lskip = L("wo"); e("s_cmp_lg_u32 s59, 0"); e(f"s_cbranch_scc1 {lskip}")
        e(f"ds_read_b64 v[28:29], v21 offset:{F_WO*4}"); e("s_waitcnt lgkmcnt(0)")
        e("v_and_b32 v28, v28, v29"); e("v_cmp_ne_u32 vcc, 0, v28"); e(f"s_cbranch_vccz {lskip}")
        woreads(); e("s_mov_b32 s59, 1")
        e.label(lskip)
    for k in range(4): e(f"v_mov_b32 v{8+k}, s{60+k}")
    e("v_mov_b32 v10, v10") if False else None
    wait_flags(F_MP, 2, 28, lowprio=LOW)
    if o["dl2"]: e(f"s_sleep {o['dl2']}")
    B2 = 128
    def mk_dat(n):
        b = B2 + 4 * n
        return dict(issue=lambda: e(f"buffer_load_dwordx4 v[{b}:{b+3}], v{vL16}, s[28:31], s{sE2} offen offset:{n*1024} sc1"),
                    check=lambda: e(f"v_cmp_ne_u32 vcc, s{sT}, v{b+3}"), mask=70 + 2 * n)
    if o["stamps"]: e("s_memrealtime s[82:83]")
    mpoll([mk_dat(0), mk_dat(1)], cnt=69, pre=wo_try, shadow=wo_try)
    if o["stamps"]: e("s_memrealtime s[84:85]")
    l0, l1 = B2 + 2, B2 + 6
    e(f"v_max_f32 v7, v{l0}, v{l1}")
    e("v_mov_b32 v20, 0xffff0000")
    e(f"v_lshlrev_b32 v16, 16, v{B2}"); e(f"v_and_b32 v17, v20, v{B2}")
    allreduce_xrow(7, 6, "v_max_f32")
    e(f"v_sub_f32 v{l0}, v{l0}, v7"); e(f"v_sub_f32 v{l1}, v{l1}, v7")
    e(f"v_lshlrev_b32 v18, 16, v{B2+1}"); e(f"v_and_b32 v19, v20, v{B2+1}")
    e(f"v_exp_f32 v{l0}, v{l0}"); e(f"v_exp_f32 v{l1}, v{l1}")
    e(f"v_lshlrev_b32 v24, 16, v{B2+4}"); e(f"v_and_b32 v25, v20, v{B2+4}"); e(f"v_lshlrev_b32 v26, 16, v{B2+5}"); e(f"v_and_b32 v27, v20, v{B2+5}")
    for i in range(4): e(f"v_mul_f32 v{12+i}, v{16+i}, v{l0}")
    e(f"v_add_f32 v5, v{l0}, v{l1}")
    for i in range(4): e(f"v_fmac_f32 v{12+i}, v{24+i}, v{l1}")
    e("v_mov_b32 v4, v7")
    allreduce_xrow(5, 6, "v_add_f32")
    reduce_scatter4(12)
    e(f"ds_write_b32 v{vOXW}, v12")
    e("s_lshl_b32 s57, s3, 3"); e(f"s_add_u32 s57, s57, {SX}"); e("v_mov_b32 v6, s57")
    e("s_mov_b64 exec, 1"); e("ds_write_b64 v6, v[4:5]"); e("s_mov_b64 exec, -1")
    e(f"ds_write_b32 v{vFLW}, v22 offset:{F_OX*4}")
    e(f"v_mov_b32 v6, {SX}")
    def ox_extra():
        e(f"ds_read_b128 v[12:15], v{vOXR}"); e("ds_read_b128 v[24:27], v6"); e("ds_read_b128 v[72:75], v6 offset:16")
    wait_flags(F_OX, 4, 28, extra=ox_extra)
    e("v_max3_f32 v7, v24, v26, v72"); e("v_max_f32 v7, v7, v74")
    e("v_sub_f32 v24, v24, v7"); e("v_sub_f32 v26, v26, v7"); e("v_sub_f32 v72, v72, v7"); e("v_sub_f32 v74, v74, v7")
    e("v_exp_f32 v24, v24"); e("v_exp_f32 v26, v26"); e("v_exp_f32 v72, v72"); e("v_exp_f32 v74, v74"); e.nop(1)
    e("v_mul_f32 v5, v24, v25"); e("v_mul_f32 v12, v12, v24"); e("v_fmac_f32 v5, v26, v27"); e("v_fmac_f32 v12, v13, v26")
    e("v_fmac_f32 v5, v72, v73"); e("v_fmac_f32 v12, v14, v72"); e("v_fmac_f32 v5, v74, v75"); e("v_fmac_f32 v12, v15, v74")
    e("v_rcp_f32 v5, v5"); e.nop(1); e("v_mul_f32 v12, v12, v5"); e.nop(2)
    e(f"v_mov_b32_dpp v13, v12 quad_perm:[1,0,3,2] {DPP}")
    e("v_cvt_pk_bf16_f32 v12, v12, v13"); e.nop(2)
    for m in range(8): e(f"v_mov_b32_dpp v{76+m}, v12 row_newbcast:{2*m} {DPP}")
    lw = L("wook"); e("s_cmp_lg_u32 s59, 0"); e(f"s_cbranch_scc1 {lw}")
    wait_flags(F_WO, 2, 28); woreads(); e("s_waitcnt lgkmcnt(0)")
    e.label(lw)
    AC = 136
    for k in range(2):
        for u in range(4):
            c = "0" if k == 0 else f"v[{AC+4*u}:{AC+4*u+3}]"
            e(f"v_mfma_f32_16x16x32_bf16 v[{AC+4*u}:{AC+4*u+3}], v[{76+4*k}:{79+4*k}], v[{40+8*u+4*k}:{43+8*u+4*k}], {c}")
    e("s_mov_b64 exec, 0xffff")
    e.nop(4)
    for i in range(4): e(f"v_perm_b32 v{4+i}, v{AC+4*i}, v{8+i}, s64")
    e(f"buffer_store_dwordx4 v[4:7], v{vE3V}, s[28:31], s{sE3} offen sc1")
    e("s_mov_b64 exec, -1")
    set_flag(F_PUB3)
    if o["stamps"] == 3:
        lsk = L("st3"); e("s_cmp_lt_u32 s3, 2"); e(f"s_cbranch_scc1 {lsk}"); e("s_memrealtime s[86:87]"); e.label(lsk)
    elif o["stamps"]: e("s_memrealtime s[86:87]")
    e("s_waitcnt lgkmcnt(0)")
    dump_stamps(cnts=([(4, 68), (5, 69)] if o["stamps"] != 3 else None))
    e("s_endpgm")

    e.label("L_loader")
    stamp(1)
    if o["prio"]: e("s_setprio 2")
    e("s_sub_u32 s52, s3, 4")
    e("s_lshr_b32 s53, s48, 1"); e("s_lshl_b32 s53, s53, 24"); e("s_and_b32 s54, s48, 1"); e("s_lshl_b32 s54, s54, 4"); e("s_lshr_b32 s55, s49, 1"); e("s_add_u32 s54, s54, s55")
    e("s_lshl_b32 s54, s54, 15"); e("s_add_u32 s53, s53, s54"); e(f"s_add_u32 s53, s53, {KEY0*256}")
    e("s_lshl_b32 s54, s52, 14"); e("s_add_u32 s53, s53, s54")
    e("s_lshr_b32 s55, s49, 2"); e("s_lshl_b32 s55, s55, 3"); e("s_add_u32 s55, s55, s48"); e("s_lshl_b32 s55, s55, 17")
    e("s_and_b32 s56, s49, 3"); e("s_lshl_b32 s56, s56, 9"); e("s_add_u32 s55, s55, s56")
    e("s_lshl_b32 s56, s52, 16"); e("s_add_u32 s55, s55, s56")
    e("s_lshl_b32 s57, s52, 14")
    for m in range(4):
        e(f"v_add_u32 v4, {4*m}, v2"); e("v_xor_b32 v4, v4, v3"); e("v_lshlrev_b32 v4, 4, v4"); e("v_lshlrev_b32 v5, 8, v2"); e(f"v_add_u32 v{8+m}, v4, v5")
    for m in range(2):
        e(f"v_add_u32 v4, {4*m}, v2"); e("v_lshrrev_b32 v5, 1, v3"); e("v_xor_b32 v4, v4, v5"); e("v_lshlrev_b32 v4, 1, v4"); e("v_and_b32 v5, 1, v3"); e("v_or_b32 v4, v4, v5")
        e("v_lshlrev_b32 v4, 4, v4"); e("v_lshlrev_b32 v5, 8, v2"); e(f"v_add_u32 v{12+m}, v4, v5")
    e("v_lshrrev_b32 v6, 5, v0"); e("v_and_b32 v7, 31, v0")
    for m in range(4):
        e("v_lshlrev_b32 v4, 2, v6"); e(f"v_add_u32 v4, {m}, v4"); e("v_lshrrev_b32 v5, 1, v7"); e("v_xor_b32 v4, v4, v5"); e("v_lshlrev_b32 v4, 1, v4")
        e("v_and_b32 v5, 1, v7"); e("v_or_b32 v4, v4, v5"); e("v_lshlrev_b32 v4, 4, v4"); e("v_lshlrev_b32 v5, 11, v6"); e(f"v_add_u32 v{16+m}, v4, v5")
    e("s_lshl_b32 s58, s52, 2"); e("v_add_u32 v20, s58, v21")
    e("s_waitcnt lgkmcnt(0)")
    srd(36, 6, 67108864); srd(40, 8, 67108864); srd(44, 12, 8388608)
    if o["stamps"]: srd(28, 26, 268435456)
    stamp(2)
    W = o["win"]; WKV = o["winkv"]
    seq = [("K", m) for m in range(16)] + [("V", m) for m in range(16)] + [("W", m) for m in range(16)]
    st = dict(landed=-1)
    def land(upto):
        for x in range(st["landed"] + 1, upto + 1):
            if x == 15: set_flag(F_K, 20); stamp(3)
            if x == 31: set_flag(F_V, 20); stamp(4)
        st["landed"] = max(st["landed"], upto)
    for i, (kind, m) in enumerate(seq):
        w_ = WKV if i < 32 else W
        skipwin = False
        if i == 32:
            assert st["landed"] >= 15
            set_flag(F_VI, 20)
            if o["wpre"]:
                wait_flags(F_P1, 4, 24)
            else:
                e("s_waitcnt vmcnt(0)"); land(31)
                wait_flags(F_QF, 4, 24)
        if o["wpre"] and 32 <= i < 32 + o["wpre"]:
            skipwin = True
        if o["wpre"] and i == 32 + o["wpre"]:
            e(f"s_waitcnt vmcnt({o['wpre']})"); land(31)
            wait_flags(F_QF, 4, 24)
        if not skipwin and i - st["landed"] - 1 > w_ - 1:
            e(f"s_waitcnt vmcnt({w_-1})"); land(i - w_)
        if kind == "K":
            e(f"s_add_u32 m0, s57, {KL + m*1024}"); e(f"s_add_u32 s58, s53, {m*1024}")
            e(f"buffer_load_dwordx4 v{8 + (m & 3)}, s[36:39], s58 offen{NT} lds")
        elif kind == "V":
            e(f"s_add_u32 m0, s57, {VL + m*1024}"); e(f"s_add_u32 s58, s53, {m*1024}")
            e(f"buffer_load_dwordx4 v{12 + (m & 1)}, s[40:43], s58 offen{NT} lds")
        else:
            e(f"s_add_u32 m0, s57, {WO + m*1024}"); e(f"s_add_u32 s58, s55, {m*4096}")
            e(f"buffer_load_dwordx4 v{16 + ((m >> 1) & 3)}, s[44:47], s58 offen{NT} lds")
    e("s_waitcnt vmcnt(0)"); set_flag(F_WO, 20); stamp(5)
    e("s_waitcnt lgkmcnt(0)")
    dump_stamps()
    e("s_endpgm")

    e.label("L_bbranch")
    if o["prio"]: e(f"s_setprio {o['bprio']}")
    e(f"v_mov_b32 v23, {LNS}")
    k1 = -2.0 * math.sqrt(2.0 / math.pi) * math.log2(math.e); k2 = k1 * 0.044715
    e(f"v_mov_b32 v92, {f32bits(k1):#x}"); e(f"v_mov_b32 v93, {f32bits(k2):#x}")
    wait_flags(F_LN2, 1, 28, extra=lambda: (e("ds_read_b128 v[32:35], v23"), e(f"ds_read_b32 v29, v21 offset:{F_T*4}")), sleep=2)
    e(f"v_readfirstlane_b32 s{sT}, v29")
    e("s_waitcnt vmcnt(0)")
    stamp(1)
    for k in range(8): e(f"v_lshlrev_b32 v{40+k}, 16, v{40+k}")
    for n in range(4): e(f"v_lshlrev_b32 v{48+2*n}, 16, v{48+2*n}")
    e("v_cmp_gt_u32 vcc, 32, v0"); e("v_mov_b32 v94, 1.0"); e("v_mov_b32 v95, 1.0"); e("v_cndmask_b32 v54, 0, v54, vcc")
    e("v_lshlrev_b32 v14, 16, v12")
    e("v_sub_f32 v16, v14, v32"); bf16r(16, 16); e("v_mul_f32 v16, v16, v33"); bf16r(16, 16)
    e("v_sub_f32 v16, v16, v34"); bf16r(16, 16); e("v_mul_f32 v16, v16, v35"); bf16r(16, 16)
    ACCB = 128
    for half in range(2):
        e.nop(1)
        for k in range(16): e(f"v_readlane_b32 s{64+k}, v16, {16*half+k}")
        e.nop(2)
        NI = o["bilp"]
        for k in range(0, 16, 2 * NI):
            dps = [16 * half + k + 2 * q_ for q_ in range(NI)]
            for n in range(4):
                R = range(NI)
                U = [f"v[{100+6*q_}:{101+6*q_}]" for q_ in R]; Z = [f"v[{102+6*q_}:{103+6*q_}]" for q_ in R]; G = [f"v[{104+6*q_}:{105+6*q_}]" for q_ in R]
                WB = f"v[{40+2*n}:{41+2*n}]"; W2 = f"v[{48+2*n}:{49+2*n}]"
                for q_, d in enumerate(dps): e(f"v_pk_fma_f32 {U[q_]}, s[{64+(d&15)}:{65+(d&15)}], {WB}, {WB} op_sel:[0,0,1] op_sel_hi:[1,0,1]")
                for q_ in R: e(f"v_pk_mul_f32 {Z[q_]}, {U[q_]}, {U[q_]}")
                for q_ in R: e(f"v_pk_fma_f32 {Z[q_]}, {Z[q_]}, v[92:93], v[92:93] op_sel:[0,1,0] op_sel_hi:[1,1,0]")
                for q_ in R: e(f"v_pk_mul_f32 {Z[q_]}, {Z[q_]}, {U[q_]}")
                for q_ in R: e(f"v_pk_mul_f32 {G[q_]}, {U[q_]}, {W2} op_sel_hi:[1,0]")
                for q_ in R: e(f"v_exp_f32 v{102+6*q_}, v{102+6*q_}"); e(f"v_exp_f32 v{103+6*q_}, v{103+6*q_}")
                e.nop(1)
                for q_ in R: e(f"v_pk_add_f32 {Z[q_]}, {Z[q_]}, v[94:95]")
                for q_ in R: e(f"v_rcp_f32 v{102+6*q_}, v{102+6*q_}"); e(f"v_rcp_f32 v{103+6*q_}, v{103+6*q_}")
                e.nop(1)
                for q_, d in enumerate(dps):
                    A_ = f"v[{ACCB+d}:{ACCB+d+1}]"
                    if n == 0: e(f"v_pk_mul_f32 {A_}, {G[q_]}, {Z[q_]}")
                    else: e(f"v_pk_fma_f32 {A_}, {G[q_]}, {Z[q_]}, {A_}")
    stamp(3)
    e.nop(2)
    for k in range(16):
        e(f"v_permlane32_swap_b32 v{ACCB+k}, v{ACCB+16+k}")
    for k in range(16): e(f"v_add_f32 v{ACCB+k}, v{ACCB+k}, v{ACCB+16+k}")
    e.nop(1)
    for k in range(8): e(f"v_permlane16_swap_b32 v{ACCB+k}, v{ACCB+8+k}")
    for k in range(8): e(f"v_add_f32 v{ACCB+k}, v{ACCB+k}, v{ACCB+8+k}")
    for sh in (8, 4, 2, 1):
        e.nop(1)
        for k in range(8): e(f"v_add_f32_dpp v{ACCB+k}, v{ACCB+k}, v{ACCB+k} row_ror:{sh} {DPP}")
    e("s_lshl_b32 s57, s52, 7"); e(f"s_add_u32 s57, s57, {YP}"); e("v_lshlrev_b32 v24, 5, v2"); e("v_add_u32 v24, s57, v24")
    e("s_mov_b32 exec_lo, 0x00010001"); e("s_mov_b32 exec_hi, 0x00010001")
    e(f"ds_write_b128 v24, v[{ACCB}:{ACCB+3}]"); e(f"ds_write_b128 v24, v[{ACCB+4}:{ACCB+7}] offset:16")
    e("s_mov_b64 exec, -1")
    e("s_cmp_eq_u32 s52, 0"); e("s_cbranch_scc1 L_final")
    set_flag(F_G)
    e("s_waitcnt lgkmcnt(0)")
    dump_stamps()
    e("s_endpgm")
    e.label("L_final")
    tagbytes(60)
    e("s_mov_b32 s64, 0x07060500")
    for k in range(4): e(f"v_mov_b32 v{8+k}, s{60+k}")
    e("v_lshlrev_b32 v24, 2, v3"); e(f"v_add_u32 v24, {YP}, v24")
    wait_flags(F_G, 1, 28, extra=lambda: [e(f"ds_read_b32 v{96+i}, v24 offset:{64*i}") for i in range(4)])
    for k in range(4): e(f"v_perm_b32 v{4+k}, v{96+k}, v{8+k}, s64")
    e("s_lshl_b32 s56, s2, 8"); e(f"s_add_u32 s56, s56, {GB}")
    e("v_lshlrev_b32 v24, 4, v0")
    e("s_mov_b64 exec, 0xffff")
    e("buffer_store_dwordx4 v[4:7], v24, s[28:31], s56 offen sc1")
    e("s_mov_b64 exec, -1")
    stamp(4)
    e("s_lshr_b32 s53, s49, 3"); e("s_lshl_b32 s53, s53, 3"); e("s_add_u32 s53, s53, s48")
    e("s_and_b32 s54, s49, 7")
    e("s_lshr_b32 s55, s53, 1"); e("s_lshl_b32 s55, s55, 6"); e("s_and_b32 s56, s53, 1"); e("s_lshl_b32 s56, s56, 3"); e("s_add_u32 s55, s55, s56"); e("s_add_u32 s55, s55, s54")
    e("v_lshlrev_b32 v25, 5, v2"); e("s_lshl_b32 s55, s55, 1")
    e("buffer_load_ushort v12, v25, s[32:35], s55 offen")
    e("v_lshlrev_b32 v26, 2, v3"); e("v_add_u32 v26, v26, v2"); e("v_lshlrev_b32 v26, 8, v26")
    e("s_lshr_b32 s56, s53, 1"); e("s_lshl_b32 s56, s56, 12"); e("s_and_b32 s57, s53, 1"); e("s_lshl_b32 s57, s57, 3"); e("s_add_u32 s57, s57, s54"); e("s_lshl_b32 s57, s57, 4")
    e("s_add_u32 s57, s57, s56"); e(f"s_add_u32 s57, s57, {GB}")
    e("v_lshlrev_b32 v24, 7, v0")
    e("s_lshl_b32 s56, s53, 13"); e("s_lshl_b32 s58, s54, 4"); e("s_add_u32 s56, s56, s58"); e(f"s_add_u32 s56, s56, {FB}")
    srd(36, 24, 2048)
    wait_flags(F_MP, 2, 28, sleep=4)
    mpoll([dict(issue=lambda: e("buffer_load_dwordx4 v[32:35], v26, s[28:31], s57 offen sc1"), check=lambda: chk4(32, 60), mask=70, init=(0x000f000f, 0x000f000f))])
    reduce_scatter4(32); e("v_mov_b32 v96, v32"); e.nop(2)
    e(f"v_add_f32_dpp v96, v96, v96 quad_perm:[1,0,3,2] {DPP}"); e.nop(2)
    e(f"v_add_f32_dpp v96, v96, v96 quad_perm:[2,3,0,1] {DPP}")
    bf16r(96, 96)
    e("s_and_b32 s59, s59, 0xffff"); e("s_lshl_b32 s59, s59, 16")
    e("v_add_f32 v96, s59, v96"); bf16r(96, 96)
    e(f"v_mul_f32 v97, {f32bits(-math.log2(math.e)):#x}, v96"); e("v_exp_f32 v97, v97"); e.nop(1); e("v_add_f32 v97, 1.0, v97"); e("v_rcp_f32 v97, v97"); e.nop(1)
    e("v_mul_f32 v96, v96, v97"); bf16r(96, 96)
    e("v_lshlrev_b32 v14, 16, v12")
    stamp(1)
    wait_flags(F_PUB3, 1, 28, sleep=1)
    if o["prio"]: e("s_setprio 3")
    if o["dl3"]: e(f"s_sleep {o['dl3']}")
    stamp(5)
    mpoll([dict(issue=lambda: e("buffer_load_dwordx4 v[28:31], v24, s[28:31], s56 offen sc1"), check=lambda: chk4(28, 100), mask=70)], cnt=69)
    stamp(6)
    reduce_scatter4(28)
    allreduce_row16(28, "v_add_f32")
    bf16r(28, 28)
    e("v_mul_f32 v28, v28, v96"); bf16r(28, 28)
    e("v_add_f32 v28, v28, v14")
    e("v_cvt_pk_bf16_f32 v28, v28, v28")
    e("s_mov_b32 exec_lo, 0x00010001"); e("s_mov_b32 exec_hi, 0x00010001")
    e("buffer_store_short v28, v25, s[36:39], s55 offen")
    l = L("ne"); e("s_cmp_lg_u32 s2, 0"); e(f"s_cbranch_scc1 {l}")
    e("s_mov_b64 exec, 1")
    e(f"s_mul_i32 s57, s{sT}, {TINV:#x}"); e("v_mov_b32 v20, s57"); e("v_mov_b32 v23, 0")
    e("buffer_store_dword v20, v23, s[28:31], 0 offen sc1")
    e.label(l)
    e("s_mov_b64 exec, -1")
    stamp(7)
    dump_stamps(cnts=[(2, 69)], final=True)
    e("s_endpgm")
    e.label("L_abort")
    e("s_endpgm")
    e.label("L_exit")

    probs = check(a.lines)
    body = a.text()
    nv = 224
    hdr = open("cdna_kernels/" + KN + ".s.ref").read().split("; Override launch")[0]
    out = hdr + f"; Override launch geometry by editing the next line.\n; @launch grid=(256,1,1) block=(512,1,1) lds={LDS_BYTES}\n"
    out += f""".amdgcn_target "amdgcn-amd-amdhsa--gfx950"
.text
.globl {KN}_kernel
.p2align 8
.type {KN}_kernel,@function
{KN}_kernel:
{body}
    s_endpgm
.section .rodata,"a"
.p2align 6
.amdhsa_kernel {KN}_kernel
  .amdhsa_next_free_vgpr {nv}
  .amdhsa_next_free_sgpr 100
  .amdhsa_accum_offset {nv}
  .amdhsa_group_segment_fixed_size 0
  .amdhsa_kernarg_size 104
  .amdhsa_user_sgpr_count 2
  .amdhsa_user_sgpr_kernarg_segment_ptr 1
  .amdhsa_system_sgpr_workgroup_id_x 1
.end_amdhsa_kernel
"""
    return out, probs

if __name__ == "__main__":
    opt = {}
    name = sys.argv[1]
    for kv in sys.argv[2:]:
        k, v = kv.split("="); opt[k] = int(v, 0)
    s, probs = gen(opt)
    open(name, "w").write(s)
    for p in probs: print("HAZARD:", p)
```

```python
import sys, math, struct
from asmlib import Asm, check
KN = "recurrent_scan__sliding_block_cached__mixer_token_mlp__decode"
def f32bits(x): return struct.unpack("<I", struct.pack("<f", x))[0]

DEF = dict(stamps=0, nt=1, win=12, winkv=16, spinmax=1 << 20, prio=1, dl2=24, dl3=12, local=1, fb1=12, slp=1, bprio=1, bearly=1, bilp=2, wpre=3, cpf=1, tlb=0, early=0, vh=16, dl1=0, ntkv=-1)

QB, QL, GB, OB, FB, STB = 0x10000, 0x20000, 0x30000, 0x40000, 0x100000, 0x200000
WQ, KL, VL, WO = 0, 32768, 65536, 98304
QF = 131072; OP = QF + 4096; ML = OP + 8192; FL = ML + 128; OX = FL + 128; SX = OX + 1024
XN = SX + 64; LNS = XN + 512; YP = LNS + 16; STL = YP + 256; LDS_BYTES = STL + 256
F_QF, F_O, F_OX, F_K, F_V, F_WO, F_VI, F_MP, F_G, F_XN, F_LN2, F_T, F_QPUB, F_PUB3, F_P1 = 0, 4, 8, 12, 14, 16, 18, 20, 22, 23, 24, 25, 26, 27, 28
KEY0 = 61440
TMUL = 0x9e3779b1
TINV = pow(TMUL, -1, 1 << 32)
vE1V, vE1L, vQFR, vKA, vVA, vOPW, vMLW, vOPR, vMLR, vMST, vL16, vWOA, vE3V, vOXW, vOXR, vFLW = 192, 194, 196, 197, 201, 209, 210, 211, 212, 213, 214, 216, 220, 221, 222, 223
vMASK = 112
sMS, sE2, sE3, sE1, sE1G = 40, 41, 42, 43, 44

def gen(opt):
    o = dict(DEF); o.update(opt)
    assert o["winkv"] <= 16
    NT = " nt" if o["nt"] else ""
    NTKV = NT if o["ntkv"] < 0 else (" nt" if o["ntkv"] else "")
    a = Asm(); e = a
    uid = [0]
    def L(p):
        uid[0] += 1; return f"L_{p}_{uid[0]}"
    sT, sCNT = 50, 51
    DPP = "row_mask:0xf bank_mask:0xf"
    def srd(d, lo, size):
        e(f"s_mov_b32 s{d}, s{lo}"); e(f"s_and_b32 s{d+1}, s{lo+1}, 0xffff"); e(f"s_mov_b32 s{d+2}, {size}"); e(f"s_mov_b32 s{d+3}, 0x20000")
    def stamp(k):
        if o["stamps"]: e(f"s_memrealtime s[{80+2*k}:{81+2*k}]")
    def dump_stamps(cnts=None, final=False):
        if not o["stamps"]: return
        if o["stamps"] == 3:
            e("s_waitcnt lgkmcnt(0)")
            e("s_mov_b64 exec, -1")
            e("s_lshl_b32 s76, s3, 5"); e(f"s_add_u32 s76, s76, {STL}"); e("v_mov_b32 v20, s76")
            for k in range(8): e(f"v_mov_b32 v{4+k}, s{80+2*k}")
            e("ds_write_b128 v20, v[4:7]"); e("ds_write_b128 v20, v[8:11] offset:16"); e("s_waitcnt lgkmcnt(0)")
            if final:
                e("s_sleep 20")
                e("s_load_dwordx2 s[76:77], s[0:1], 88"); e("s_waitcnt lgkmcnt(0)")
                e("s_mov_b32 s72, s76"); e("s_and_b32 s73, s77, 0xffff"); e("s_mov_b32 s74, 256"); e("s_mov_b32 s75, 0x20000")
                e(f"v_mov_b32 v20, {STL}"); e("v_mov_b32 v23, 0"); e("s_mov_b64 exec, 1")
                sel = [(2,0,1),(2,0,0),(4,1,0),(0,3,0),(0,5,0),(4,4,0),(2,6,0),(2,7,0),(0,0,0),(4,5,0),(2,2,0),(2,3,0),(6,4,0),(6,6,0),(6,7,0),(1,1,0)]
                for slot, (w, k, inv) in enumerate(sel):
                    e(f"ds_read_b32 v4, v20 offset:{w*32+k*4}"); e("s_waitcnt lgkmcnt(0)")
                    if inv: e("v_not_b32 v4, v4")
                    e(f"buffer_atomic_umax v4, v23, s[72:75], 0 offen offset:{4*slot}")
                e("s_waitcnt vmcnt(0)")
            return
        e("s_waitcnt lgkmcnt(0)")
        for (slot, sreg) in (cnts or []):
            e(f"s_mov_b32 s{80+2*slot}, s{sreg}"); e(f"s_mov_b32 s{81+2*slot}, 0")
        e("s_mov_b64 exec, -1")
        e("s_waitcnt vmcnt(0)")
        e("s_lshl_b32 s76, s2, 3"); e("s_add_u32 s76, s76, s3"); e("s_lshl_b32 s76, s76, 6"); e(f"s_add_u32 s76, s76, {STB}")
        for k in range(8):
            e(f"v_mov_b32 v{2*k+4}, s{80+2*k}"); e(f"v_mov_b32 v{2*k+5}, s{81+2*k}")
        e("v_mov_b32 v20, 0")
        e("s_mov_b64 exec, 1")
        for k in range(4):
            e(f"buffer_store_dwordx4 v[{4*k+4}:{4*k+7}], v20, s[28:31], s76 offen offset:{16*k}")
        e("s_waitcnt vmcnt(0)")
    def spin_tick():
        e(f"s_sub_u32 s{sCNT}, s{sCNT}, 1"); e("s_cbranch_scc1 L_abort")
    def and_flags(vt, n):
        if n == 2: e(f"v_and_b32 v{vt}, v{vt}, v{vt+1}")
        if n == 4:
            e(f"v_and_b32 v{vt}, v{vt}, v{vt+1}"); e(f"v_and_b32 v{vt+2}, v{vt+2}, v{vt+3}"); e(f"v_and_b32 v{vt}, v{vt}, v{vt+2}")
    def read_flags(first, n, vt):
        if n == 1: e(f"ds_read_b32 v{vt}, v21 offset:{first*4}")
        elif n == 2: e(f"ds_read_b64 v[{vt}:{vt+1}], v21 offset:{first*4}")
        else: e(f"ds_read_b128 v[{vt}:{vt+3}], v21 offset:{first*4}")
    def wait_flags(first, n, vt, extra=None, sleep=0, lowprio=None):
        if lowprio and o["prio"]: e(f"s_setprio {lowprio[0]}")
        l = L("wf"); e.label(l)
        read_flags(first, n, vt)
        if extra: extra()
        spin_tick()
        if sleep: e(f"s_sleep {sleep}")
        e("s_waitcnt lgkmcnt(0)")
        and_flags(vt, n)
        e(f"v_cmp_ne_u32 vcc, 0, v{vt}")
        e(f"s_cbranch_vccz {l}")
        if lowprio and o["prio"]: e(f"s_setprio {lowprio[1]}")
    def set_flag(idx, vaddr=21):
        e(f"ds_write_b32 v{vaddr}, v22 offset:{idx*4}")
    def bf16r(dst, src):
        e(f"v_cvt_pk_bf16_f32 v{dst}, v{src}, v{src}"); e(f"v_lshlrev_b32 v{dst}, 16, v{dst}")
    def allreduce_row16(v, op, shs=(8, 4, 2, 1)):
        for sh in shs:
            e.nop(2); e(f"{op}_dpp v{v}, v{v}, v{v} row_ror:{sh} {DPP}")
    def allreduce_xrow(v, t, op):
        e(f"v_mov_b32 v{t}, v{v}"); e.nop(2); e(f"v_permlane32_swap_b32 v{v}, v{t}"); e(f"{op} v{v}, v{v}, v{t}")
        e(f"v_mov_b32 v{t}, v{v}"); e.nop(2); e(f"v_permlane16_swap_b32 v{v}, v{t}"); e(f"{op} v{v}, v{v}, v{t}")
    def reduce_scatter4(b):
        e(f"v_permlane32_swap_b32 v{b}, v{b+2}"); e(f"v_permlane32_swap_b32 v{b+1}, v{b+3}")
        e(f"v_add_f32 v{b}, v{b}, v{b+2}"); e(f"v_add_f32 v{b+1}, v{b+1}, v{b+3}"); e.nop(2)
        e(f"v_permlane16_swap_b32 v{b}, v{b+1}"); e(f"v_add_f32 v{b}, v{b}, v{b+1}")
    def ln_stats(xf, t0, vm, vrs):
        s, t = t0, t0 + 1
        e(f"v_add_f32 v{s}, v{xf}, v{xf+1}"); e(f"v_add_f32 v{t}, v{xf+2}, v{xf+3}")
        for k in range(4, 16, 2):
            e(f"v_add_f32 v{s}, v{s}, v{xf+k}"); e(f"v_add_f32 v{t}, v{t}, v{xf+k+1}")
        e(f"v_add_f32 v{s}, v{s}, v{t}")
        allreduce_row16(s, "v_add_f32"); allreduce_xrow(s, t, "v_add_f32")
        e(f"v_mul_f32 v{s}, {f32bits(1/1024):#x}, v{s}")
        e(f"v_sub_f32 v{t}, v{xf}, v{s}"); e(f"v_sub_f32 v{t0+3}, v{xf+1}, v{s}")
        e(f"v_mul_f32 v{t0+2}, v{t}, v{t}"); e(f"v_mul_f32 v{t0+4}, v{t0+3}, v{t0+3}")
        for k in range(2, 16, 2):
            e(f"v_sub_f32 v{t}, v{xf+k}, v{s}"); e(f"v_sub_f32 v{t0+3}, v{xf+k+1}, v{s}")
            e(f"v_fmac_f32 v{t0+2}, v{t}, v{t}"); e(f"v_fmac_f32 v{t0+4}, v{t0+3}, v{t0+3}")
        e(f"v_add_f32 v{t0+2}, v{t0+2}, v{t0+4}")
        allreduce_row16(t0 + 2, "v_add_f32"); allreduce_xrow(t0 + 2, t, "v_add_f32")
        e(f"v_mul_f32 v{t0+2}, {f32bits(1/1024):#x}, v{t0+2}")
        bf16r(vm, s)
        bf16r(t, t0 + 2)
        e(f"v_add_f32 v{t}, {f32bits(1e-5):#x}, v{t}")
        bf16r(t, t)
        e(f"v_sqrt_f32 v{t}, v{t}"); e.nop(1)
        bf16r(t, t)
        e(f"v_rcp_f32 v{vrs}, v{t}"); e.nop(1)
    def unpack(dlo, dhi, src):
        e(f"v_lshlrev_b32 v{dlo}, 16, v{src}"); e(f"v_and_b32 v{dhi}, 0xffff0000, v{src}")
    def tagbytes(s0):
        for k in range(4):
            e(f"s_lshr_b32 s{s0+k}, s{sT}, {8*k}"); e(f"s_and_b32 s{s0+k}, s{s0+k}, 0xff")
    def chk4(b, t):
        e(f"v_xor_b32 v{t}, s60, v{b}"); e(f"v_bitop3_b32 v{t}, v{t}, v{b+1}, s61 bitop3:0xf6"); e(f"v_bitop3_b32 v{t}, v{t}, v{b+2}, s62 bitop3:0xf6")
        e(f"v_bitop3_b32 v{t}, v{t}, v{b+3}, s63 bitop3:0xf6"); e(f"v_and_b32 v{t}, 0xff, v{t}"); e(f"v_cmp_ne_u32 vcc, 0, v{t}")
    def mpoll(loads, cnt=None, pre=None, shadow=None):
        top = L("mp"); ent = L("me")
        for ld in loads:
            ini = ld.get('init', -1); m = ld['mask']
            if ini == -1: e(f"s_mov_b64 s[{m}:{m+1}], -1")
            else: e(f"s_mov_b32 s{m}, {ini[0]:#x}"); e(f"s_mov_b32 s{m+1}, {ini[1]:#x}")
        if cnt: e(f"s_mov_b32 s{cnt}, 0")
        for ld in loads:
            m = ld['mask']
            if ld.get('init', -1) != -1: e(f"s_mov_b64 exec, s[{m}:{m+1}]")
            ld['issue']()
            if ld.get('init', -1) != -1: e("s_mov_b64 exec, -1")
        if shadow: shadow()
        e(f"s_branch {ent}")
        e.label(top)
        spin_tick()
        if pre: pre()
        for ld in loads:
            sk = L("sk"); m = ld['mask']
            e(f"s_mov_b64 exec, s[{m}:{m+1}]"); e(f"s_cbranch_execz {sk}"); ld['issue'](); e.label(sk)
        e("s_mov_b64 exec, -1")
        e.label(ent)
        if cnt: e(f"s_add_u32 s{cnt}, s{cnt}, 1")
        e("s_waitcnt vmcnt(0)")
        e("s_mov_b64 s[66:67], 0")
        for ld in loads:
            sk = L("sc"); m = ld['mask']
            e(f"s_mov_b64 exec, s[{m}:{m+1}]"); e(f"s_cbranch_execz {sk}")
            ld['check']()
            if ld.get('take'):
                e("s_andn2_b64 exec, exec, vcc"); sk2 = L("sd"); e(f"s_cbranch_execz {sk2}"); ld['take'](); e.label(sk2)
            e(f"s_mov_b64 s[{m}:{m+1}], vcc"); e("s_or_b64 s[66:67], s[66:67], vcc")
            e.label(sk)
        e("s_mov_b64 exec, -1")
        e("s_cmp_lg_u64 s[66:67], 0"); e(f"s_cbranch_scc1 {top}")
    LOW = (0, 3)

    e("s_cmp_ge_u32 s2, 256"); e("s_cbranch_scc1 L_exit")
    stamp(0)
    e("s_load_dwordx16 s[4:19], s[0:1], 0")
    e("s_load_dwordx4 s[20:23], s[0:1], 64")
    e("s_load_dwordx2 s[24:25], s[0:1], 80")
    e("s_load_dwordx2 s[26:27], s[0:1], 96")
    e("v_lshrrev_b32 v1, 6, v0"); e("v_and_b32 v0, 63, v0")
    e("v_lshrrev_b32 v2, 4, v0"); e("v_and_b32 v3, 15, v0")
    e("v_readfirstlane_b32 s3, v1")
    e("s_and_b32 s48, s2, 7"); e("s_lshr_b32 s49, s2, 3")
    e(f"s_mov_b32 s{sCNT}, {o['spinmax']}")
    e(f"v_mov_b32 v21, {FL}"); e("v_mov_b32 v22, 1")
    e("s_lshl_b32 s46, s48, 3"); e("s_and_b32 s47, s49, 7"); e("s_add_u32 s46, s46, s47"); e("s_lshr_b32 s47, s49, 3")
    e("s_cmp_eq_u32 s3, 0"); e("s_cbranch_scc0 L_not0")
    e("v_lshrrev_b32 v24, 3, v0"); e("v_and_b32 v25, 7, v0")
    e("v_lshrrev_b32 v26, 1, v25"); e("v_bfe_u32 v27, v24, 1, 2"); e("v_xor_b32 v26, v26, v27")
    e("v_lshlrev_b32 v26, 1, v26"); e("v_and_b32 v25, 1, v25"); e("v_or_b32 v26, v26, v25"); e("v_lshlrev_b32 v26, 4, v26")
    e("v_lshl_add_u32 v24, v24, 13, v26")
    e("s_lshl_b32 s56, s47, 21"); e("s_lshl_b32 s57, s46, 7"); e("s_add_u32 s56, s56, s57")
    e(f"s_mov_b32 m0, {WQ}"); e("s_mov_b32 s57, 0")
    e("s_waitcnt lgkmcnt(0)")
    srd(36, 10, 8388608)
    e.label("L_wqloop")
    e(f"buffer_load_dwordx4 v24, s[36:39], s56 offen{NT} lds")
    e("s_add_u32 m0, m0, 1024"); e(f"s_add_u32 s56, s56, {8*8192}"); e("s_add_u32 s57, s57, 1"); e("s_cmp_lt_u32 s57, 32"); e("s_cbranch_scc1 L_wqloop")
    if o["early"]: stamp(4)
    e("s_barrier")
    e("s_branch L_qproj")
    e.label("L_not0")
    e("s_cmp_eq_u32 s3, 1"); e("s_cbranch_scc0 L_not1")
    e("v_lshlrev_b32 v23, 5, v0"); e("v_mov_b32 v24, 0")
    e("s_waitcnt lgkmcnt(0)")
    srd(28, 26, 268435456); srd(32, 4, 2048)
    e("buffer_load_dwordx4 v[4:7], v23, s[32:35], 0 offen")
    e("buffer_load_dwordx4 v[8:11], v23, s[32:35], 0 offen offset:16")
    e("buffer_load_dword v20, v24, s[28:31], 0 offen sc1")
    e("s_barrier")
    e("s_branch L_ln")
    e.label("L_not1")
    e("s_cmp_ge_u32 s3, 6"); e("s_cbranch_scc1 L_bearly")
    e("s_cmp_ge_u32 s3, 4"); e("s_cbranch_scc1 L_learly")
    if o["cpf"]:
        lc = L("cpf"); e("s_cmp_eq_u32 s3, 2"); e(f"s_cbranch_scc0 {lc}")
        e("s_getpc_b64 s[54:55]")
        e.label("L_pc")
        e(f"s_sub_u32 s54, s54, L_pc-{KN}_kernel"); e("s_subb_u32 s55, s55, 0")
        e("s_mul_i32 s56, s49, 6"); e("v_add_u32 v24, s56, v0"); e("v_lshlrev_b32 v24, 7, v24")
        e(f"s_mov_b32 s56, L_exit-{KN}_kernel")
        e("v_cmp_gt_u32 vcc, s56, v24")
        e("s_and_b64 exec, vcc, 0x3f")
        lc2 = L("cpf"); e(f"s_cbranch_execz {lc2}")
        e("global_load_dword v150, v24, s[54:55]")
        e.label(lc2)
        e("s_mov_b64 exec, -1")
        e.label(lc)
    if o["tlb"]:
        lt = L("tlb"); e("s_cmp_eq_u32 s3, 3"); e(f"s_cbranch_scc0 {lt}")
        e("s_lshr_b32 s53, s48, 1"); e("s_lshl_b32 s53, s53, 24"); e("s_and_b32 s54, s48, 1"); e("s_lshl_b32 s54, s54, 4"); e("s_lshr_b32 s55, s49, 1"); e("s_add_u32 s54, s54, s55")
        e("s_lshl_b32 s54, s54, 15"); e("s_add_u32 s53, s53, s54"); e(f"s_add_u32 s53, s53, {KEY0*256}")
        e("s_lshr_b32 s55, s49, 2"); e("s_lshl_b32 s55, s55, 3"); e("s_add_u32 s55, s55, s48"); e("s_lshl_b32 s55, s55, 17")
        e("v_mov_b32 v24, s53"); e("v_mov_b32 v25, s55"); e("v_mov_b32 v26, 0")
        e("s_waitcnt lgkmcnt(0)")
        e("s_mov_b64 exec, 1")
        e("global_load_dword v151, v24, s[8:9]" + NT); e("global_load_dword v152, v25, s[12:13]" + NT)
        e("global_load_dword v153, v24, s[6:7]" + NT); e("global_load_dword v154, v26, s[24:25]")
        e("s_mov_b64 exec, -1")
        e.label(lt)
    e("s_barrier")
    e("s_branch L_w23")
    e.label("L_learly")
    lz = L("nz"); e("s_cmp_eq_u32 s3, 4"); e(f"s_cbranch_scc0 {lz}")
    e("v_lshlrev_b32 v4, 2, v0"); e(f"v_add_u32 v4, {FL}, v4"); e("v_mov_b32 v5, 0")
    e("s_mov_b64 exec, 0xffffffff"); e("ds_write_b32 v4, v5"); e("s_mov_b64 exec, -1"); e("s_waitcnt lgkmcnt(0)")
    e.label(lz)
    e("s_barrier")
    e("s_branch L_loader")
    e.label("L_bearly")
    e("s_sub_u32 s52, s3, 6")
    e("s_lshr_b32 s53, s2, 4"); e("s_and_b32 s54, s2, 15")
    e("v_and_b32 v23, 31, v0"); e("v_lshlrev_b32 v23, 1, v23"); e("s_lshl_b32 s55, s53, 7"); e("s_lshl_b32 s56, s52, 6"); e("s_add_u32 s55, s55, s56")
    e("s_mul_i32 s56, s54, 448"); e("v_lshlrev_b32 v24, 1, v0")
    e("s_waitcnt lgkmcnt(0)")
    srd(28, 26, 268435456); srd(32, 4, 2048)
    srd(36, 16, 7168); srd(40, 18, 7168); srd(44, 20, 7168)
    e("buffer_load_ushort v12, v23, s[32:35], s55 offen")
    for n in range(4):
        e(f"buffer_load_ushort v{40+2*n}, v24, s[36:39], s56 offen offset:{128*n}")
        e(f"buffer_load_ushort v{41+2*n}, v24, s[40:43], s56 offen offset:{128*n}")
        e(f"buffer_load_ushort v{48+2*n}, v24, s[44:47], s56 offen offset:{128*n}")
    e("s_load_dword s59, s[22:23], 0")
    e("s_barrier")
    e("s_branch L_bbranch")

    def common_srd():
        e("s_waitcnt lgkmcnt(0)")
        srd(28, 26, 268435456)
        srd(32, 4, 2048)

    def prep():
        e("s_lshr_b32 s52, s48, 1"); e("s_lshl_b32 s52, s52, 3"); e("s_and_b32 s54, s49, 1"); e("s_lshl_b32 s54, s54, 2"); e("s_add_u32 s52, s52, s54")
        e("s_and_b32 s54, s48, 1"); e("s_lshl_b32 s54, s54, 4"); e("s_lshr_b32 s55, s49, 1"); e("s_add_u32 s55, s55, s54")
        e("s_lshl_b32 s57, s3, 2"); e(f"v_add_u32 v{vFLW}, s57, v21")
        e("v_lshrrev_b32 v28, 2, v3")
        for u in range(4):
            e(f"v_cmp_eq_u32 vcc, {u}, v28"); e.nop(2); e(f"v_cndmask_b32 v{vMASK+u}, 0, -1, vcc")
        e("v_lshrrev_b32 v28, 3, v0"); e("v_and_b32 v29, 7, v0")
        for i in range(2):
            e(f"v_add_u32 v30, {8*i}, v28")
            e("v_and_b32 v31, 3, v30"); e("v_lshlrev_b32 v31, 2, v31"); e(f"v_lshrrev_b32 v{vE1V+i}, 2, v30"); e(f"v_add_u32 v31, v31, v{vE1V+i}"); e("v_lshlrev_b32 v31, 9, v31")
            e(f"v_lshl_add_u32 v{vE1V+i}, v29, 4, v31")
            e("v_lshrrev_b32 v31, 1, v29"); e("v_lshl_add_u32 v31, v31, 4, v30"); e("v_lshlrev_b32 v31, 4, v31")
            e("v_and_b32 v30, 1, v29"); e("v_lshl_add_u32 v31, v30, 3, v31")
            e("s_lshl_b32 s57, s3, 10"); e(f"s_add_u32 s57, s57, {QF}"); e(f"v_add_u32 v{vE1L+i}, s57, v31")
        e(f"s_lshl_b32 s{sE1G}, s52, 11"); e("s_lshl_b32 s57, s3, 7"); e(f"s_add_u32 s{sE1G}, s{sE1G}, s57"); e(f"s_add_u32 s{sE1G}, s{sE1G}, {QB}")
        if o["local"]:
            e("s_xor_b32 s57, s48, s49"); e("s_and_b32 s57, s57, 1")
            e(f"s_mov_b32 s58, {QL - QB}"); e("s_cmp_eq_u32 s57, 0"); e("s_cselect_b32 s58, s58, 0"); e(f"s_add_u32 s{sE1}, s{sE1G}, s58")
        else: e(f"s_mov_b32 s{sE1}, s{sE1G}")
        e(f"v_lshlrev_b32 v{vL16}, 4, v0"); e(f"v_add_u32 v{vQFR}, {QF}, v{vL16}")
        e("s_lshl_b32 s57, s3, 13"); e(f"s_add_u32 s57, s57, {KL}")
        e("v_lshlrev_b32 v28, 8, v3"); e("v_add_u32 v28, s57, v28"); e("v_xor_b32 v29, v2, v3"); e(f"v_lshl_add_u32 v{vKA}, v29, 4, v28")
        for t in range(1, 4): e(f"v_xor_b32 v{vKA+t}, {t<<6}, v{vKA}")
        e("v_lshrrev_b32 v28, 2, v3"); e("v_lshl_add_u32 v28, v2, 2, v28")
        e("v_and_b32 v29, 7, v28"); e("v_lshlrev_b32 v29, 5, v29"); e("v_lshl_add_u32 v28, v28, 8, v29")
        e("v_and_b32 v29, 3, v3"); e("v_lshl_add_u32 v28, v29, 3, v28")
        e("s_lshl_b32 s57, s3, 13"); e(f"s_add_u32 s57, s57, {VL}"); e(f"v_add_u32 v{vVA}, s57, v28")
        for t in range(1, 8): e(f"v_xor_b32 v{vVA+t}, {t<<5}, v{vVA}")
        e("s_lshl_b32 s57, s3, 11"); e(f"s_add_u32 s57, s57, {OP}"); e(f"v_add_u32 v{vOPW}, s57, v{vL16}")
        e("s_lshl_b32 s57, s3, 3"); e(f"s_add_u32 s57, s57, {ML}"); e("v_lshlrev_b32 v28, 5, v3"); e(f"v_add_u32 v{vMLW}, s57, v28")
        e("s_and_b32 s57, s3, 1"); e("s_lshl_b32 s57, s57, 10"); e(f"s_add_u32 s57, s57, {OP}"); e(f"v_add_u32 v{vOPR}, s57, v{vL16}")
        e("v_and_b32 v28, 3, v3"); e("v_lshlrev_b32 v29, 5, v28"); e(f"v_add_u32 v{vMLR}, {ML}, v29")
        e("v_lshlrev_b32 v28, 14, v28"); e("v_lshrrev_b32 v29, 3, v3"); e("v_lshl_add_u32 v28, v29, 13, v28")
        e("v_bfe_u32 v29, v3, 2, 1"); e("v_lshl_add_u32 v29, v29, 2, v2"); e(f"v_lshl_add_u32 v{vMST}, v29, 4, v28")
        e(f"s_lshl_b32 s{sMS}, s52, 14"); e("s_lshl_b32 s57, s55, 8"); e(f"s_add_u32 s{sMS}, s{sMS}, s57"); e("s_and_b32 s57, s3, 1"); e("s_lshl_b32 s57, s57, 7")
        e(f"s_add_u32 s{sMS}, s{sMS}, s57"); e(f"s_add_u32 s{sMS}, s{sMS}, {OB}")
        e("s_lshr_b32 s56, s49, 2"); e("s_lshl_b32 s56, s56, 3"); e("s_add_u32 s56, s56, s48")
        e(f"s_lshl_b32 s{sE2}, s56, 13"); e("s_lshl_b32 s57, s3, 11"); e(f"s_add_u32 s{sE2}, s{sE2}, s57"); e(f"s_add_u32 s{sE2}, s{sE2}, {OB}")
        e("v_lshrrev_b32 v28, 2, v3"); e("v_lshl_add_u32 v29, v28, 2, v2"); e("v_lshlrev_b32 v29, 9, v29")
        e("v_and_b32 v30, 1, v2"); e("v_lshl_add_u32 v30, v30, 2, v28"); e("v_lshl_add_u32 v29, v30, 5, v29")
        e("v_and_b32 v30, 3, v3"); e("v_lshl_add_u32 v29, v30, 3, v29"); e(f"v_add_u32 v29, {WO}, v29")
        e("s_lshl_b32 s57, s3, 7"); e(f"v_xor_b32 v{vWOA}, s57, v29")
        for u in range(1, 4): e(f"v_xor_b32 v{vWOA+u}, {u<<5}, v{vWOA}")
        e("s_and_b32 s57, s49, 3"); e("s_lshl_b32 s57, s57, 3"); e("s_lshl_b32 s58, s3, 1"); e("s_add_u32 s57, s57, s58"); e(f"s_lshl_b32 s{sE3}, s57, 13")
        e("s_lshl_b32 s57, s56, 7"); e(f"s_add_u32 s{sE3}, s{sE3}, s57"); e(f"s_add_u32 s{sE3}, s{sE3}, {FB}")
        e("v_lshrrev_b32 v28, 3, v3"); e("v_lshlrev_b32 v28, 13, v28"); e("v_and_b32 v29, 7, v3"); e(f"v_lshl_add_u32 v{vE3V}, v29, 4, v28")
        e(f"v_add_u32 v{vOXR}, {OX}, v{vL16}"); e("s_lshl_b32 s57, s3, 2"); e(f"v_add_u32 v{vOXW}, s57, v{vOXR}")

    e.label("L_w23")
    if o["prio"]: e("s_setprio 3")
    common_srd()
    prep()
    wait_flags(F_XN, 1, 28, extra=lambda: e(f"ds_read_b32 v29, v21 offset:{F_T*4}"), sleep=o["slp"], lowprio=LOW)
    e(f"v_readfirstlane_b32 s{sT}, v29")
    e("s_branch L_attn")
    e.label("L_ln")
    if o["prio"]: e("s_setprio 3")
    e("s_lshl_b32 s54, s47, 4"); e("v_subrev_u32 v23, s54, v0"); e("v_lshlrev_b32 v23, 5, v23"); e(f"v_add_u32 v23, {XN}, v23")
    e("s_mov_b32 s56, 0xffff"); e("s_mov_b32 s57, 0"); e("s_lshl_b64 s[58:59], s[56:57], s54")
    e("s_waitcnt vmcnt(0)")
    stamp(2)
    e(f"v_readfirstlane_b32 s{sT}, v20")
    for k in range(8): unpack(24 + 2 * k, 25 + 2 * k, 4 + k)
    e(f"s_add_u32 s{sT}, s{sT}, 1"); e(f"s_mul_i32 s{sT}, s{sT}, {TMUL:#x}")
    ln_stats(24, 98, 104, 105)
    e(f"v_mov_b32 v20, s{sT}"); e(f"ds_write_b32 v21, v20 offset:{F_T*4}")
    for k in range(16): e(f"v_sub_f32 v{24+k}, v{24+k}, v104")
    for k in range(8): e(f"v_cvt_pk_bf16_f32 v{4+k}, v{24+2*k}, v{25+2*k}")
    for k in range(8): unpack(24 + 2 * k, 25 + 2 * k, 4 + k)
    for k in range(16): e(f"v_mul_f32 v{24+k}, v{24+k}, v105")
    for k in range(8): e(f"v_cvt_pk_bf16_f32 v{4+k}, v{24+2*k}, v{25+2*k}")
    e("s_mov_b64 exec, s[58:59]")
    e("ds_write_b128 v23, v[4:7]"); e("ds_write_b128 v23, v[8:11] offset:16")
    e("s_mov_b64 exec, -1")
    set_flag(F_XN)
    stamp(1)
    for k in range(8): unpack(24 + 2 * k, 25 + 2 * k, 4 + k)
    ln_stats(24, 98, 106, 107)
    e(f"v_mov_b32 v23, {LNS}"); e("ds_write_b128 v23, v[104:107]")
    set_flag(F_LN2)
    stamp(3)
    prep()
    e("s_branch L_attn")
    e.label("L_qproj")
    if o["prio"]: e("s_setprio 3")
    stamp(1)
    srd(28, 26, 268435456)
    prep()
    e("v_lshrrev_b32 v24, 2, v3"); e("v_and_b32 v25, 3, v3")
    e("v_lshlrev_b32 v26, 2, v2"); e("v_add_u32 v26, v26, v24")
    e("v_lshrrev_b32 v27, 1, v26"); e("v_and_b32 v27, 3, v27")
    e("v_lshlrev_b32 v26, 7, v26"); e("v_lshlrev_b32 v25, 3, v25"); e("v_add_u32 v26, v26, v25")
    e("v_lshlrev_b32 v27, 5, v27"); e("v_add_u32 v108, v26, v27")
    for u in range(1, 4): e(f"v_xor_b32 v{108+u}, {u<<5}, v108")
    e("s_lshr_b32 s57, s46, 1"); e("s_lshl_b32 s57, s57, 11"); e("s_and_b32 s58, s46, 1"); e("s_lshl_b32 s58, s58, 8"); e("s_add_u32 s57, s57, s58")
    e("s_lshl_b32 s58, s47, 9"); e("s_add_u32 s57, s57, s58"); e(f"s_add_u32 s46, s57, {QB}"); e(f"s_add_u32 s47, s57, {QL}")
    e("v_lshlrev_b32 v27, 2, v0")
    e("v_lshlrev_b32 v26, 3, v2"); e(f"v_add_u32 v26, {XN}, v26")
    def xn_extra():
        e(f"ds_read_b32 v29, v21 offset:{F_T*4}")
        for k in range(8): e(f"ds_read2_b64 v[{40+4*k}:{43+4*k}], v26 offset0:{8*k} offset1:{8*k+4}")
    wait_flags(F_XN, 1, 28, extra=xn_extra)
    e(f"v_readfirstlane_b32 s{sT}, v29")
    stamp(2)
    csc = math.log2(math.e) / math.sqrt(128.0)
    e(f"s_mov_b32 s58, {f32bits(csc):#x}")
    for k in range(8):
        A = 72 + 16 * (k & 1); B = 128 + 16 * (k & 1)
        for u in range(4):
            for m in range(4): e(f"v_and_b32 v{A+4*u+m}, v{40+4*k+m}, v{vMASK+u}")
        e(f"s_waitcnt vmcnt({28 - 4*k})")
        if k == 7: stamp(3)
        for u in range(4):
            for rho in range(2):
                r = B + 4 * u + 2 * rho
                e(f"ds_read_b64_tr_b16 v[{r}:{r+1}], v{108+u} offset:{k*4096 + rho*2048}")
        for u in range(4):
            e(f"s_waitcnt lgkmcnt({2*(3-u)})")
            c = "0" if (k == 0 and u == 0) else "v[104:107]"
            e(f"v_mfma_f32_16x16x32_bf16 v[104:107], v[{A+4*u}:{A+4*u+3}], v[{B+4*u}:{B+4*u+3}], {c}")
    e(f"v_mov_b32 v49, s{sT}"); e(f"v_mov_b32 v51, s{sT}")
    e("s_mov_b32 s56, 0x11111111"); e("s_mov_b32 s57, 0x11111111")
    e.nop(4)
    e("v_mul_f32 v104, s58, v104"); e.nop(2)
    e(f"v_mov_b32_dpp v105, v104 quad_perm:[1,0,3,2] {DPP}")
    e("v_cvt_pk_bf16_f32 v48, v104, v105"); e.nop(2)
    e(f"v_mov_b32_dpp v50, v48 quad_perm:[2,3,0,1] {DPP}")
    e("s_mov_b64 exec, s[56:57]")
    if o["local"]: e("buffer_store_dwordx4 v[48:51], v27, s[28:31], s47 offen")
    e("buffer_store_dwordx4 v[48:51], v27, s[28:31], s46 offen sc1")
    e("s_mov_b64 exec, -1")
    set_flag(F_QPUB)
    stamp(5)

    e.label("L_attn")
    wait_flags(F_QPUB, 1, 28, sleep=o["slp"], lowprio=LOW)
    if o["dl1"]: e(f"s_sleep {o['dl1']}")
    wait_flags(F_VI, 2, 28, lowprio=LOW)
    PB = 128
    def mk_e1(i):
        b = PB + 4 * i
        return dict(issue=lambda: e(f"buffer_load_dwordx4 v[{b}:{b+3}], v{vE1V+i}, s[28:31], s{sE1} offen sc1"),
                    check=lambda: (e(f"v_xor_b32 v36, s{sT}, v{b+1}"), e(f"v_xor_b32 v37, s{sT}, v{b+3}"), e("v_or_b32 v36, v36, v37"), e("v_cmp_ne_u32 vcc, 0, v36")),
                    take=lambda: e(f"ds_write2_b32 v{vE1L+i}, v{b}, v{b+2} offset0:0 offset1:1"), mask=70 + 2 * i)
    def kreads():
        for kt in range(2):
            for t in range(4):
                r = 40 + 16 * kt + 4 * t
                e(f"ds_read_b128 v[{r}:{r+3}], v{vKA+t} offset:{kt*4096}")
    def e1_pre():
        if o["local"]: e(f"s_cmp_ge_u32 s68, {o['fb1']}"); e(f"s_cselect_b32 s{sE1}, s{sE1G}, s{sE1}")
    if not o["early"]: stamp(1)
    def e1_shadow():
        if o["wpre"] or o["vh"] < 16: e(f"ds_write_b32 v{vFLW}, v22 offset:{F_P1*4}")
        kreads()
    mpoll([mk_e1(0), mk_e1(1)], cnt=68, pre=e1_pre, shadow=e1_shadow)
    e(f"ds_write_b32 v{vFLW}, v22 offset:{F_QF*4}")
    stamp(6)
    VF = 160
    def vreads():
        for t in range(8):
            for rho in range(2):
                r = VF + 4 * t + 2 * rho
                e(f"ds_read_b64_tr_b16 v[{r}:{r+1}], v{vVA+t} offset:{rho*4096}")
    def qf_extra():
        e(f"ds_read_b64 v[32:33], v21 offset:{F_V*4}")
        for t in range(4): e(f"ds_read_b128 v[{72+4*t}:{75+4*t}], v{vQFR} offset:{t*1024}")
    wait_flags(F_QF, 4, 28, extra=qf_extra)
    for t in range(4):
        for kt in range(2):
            c = "0" if t == 0 else f"v[{88+4*kt}:{91+4*kt}]"
            e(f"v_mfma_f32_16x16x32_bf16 v[{88+4*kt}:{91+4*kt}], v[{40+16*kt+4*t}:{43+16*kt+4*t}], v[{72+4*t}:{75+4*t}], {c}")
    e("v_and_b32 v32, v32, v33"); e("v_cmp_ne_u32 vcc, 0, v32")
    e("s_mov_b32 s59, 0")
    lv = L("vlate"); e(f"s_cbranch_vccz {lv}")
    vreads(); e("s_mov_b32 s59, 1")
    e.label(lv)
    for m in range(4): e(f"v_mov_b32 v{44+m}, 0x3f803f80")
    e.nop(3)
    S = list(range(88, 96))
    for s_ in S: e(f"v_add_f32_dpp v{s_+8}, v{s_}, v{s_} row_ror:4 {DPP}")
    for s_ in S: e(f"v_add_f32_dpp v{s_}, v{s_+8}, v{s_+8} row_ror:8 {DPP}")
    e("v_max3_f32 v96, v88, v89, v90"); e("v_max3_f32 v97, v91, v92, v93"); e("v_max3_f32 v96, v96, v94, v95"); e("v_max_f32 v96, v96, v97")
    allreduce_xrow(96, 97, "v_max_f32")
    for s_ in S: e(f"v_sub_f32 v{s_}, v{s_}, v96")
    for s_ in S: e(f"v_exp_f32 v{s_}, v{s_}")
    e.nop(1)
    for m in range(4): e(f"v_cvt_pk_bf16_f32 v{100+m}, v{88+2*m}, v{89+2*m}")
    lw = L("vok"); e("s_cmp_lg_u32 s59, 0"); e(f"s_cbranch_scc1 {lw}")
    wait_flags(F_V, 2, 28); vreads()
    e.label(lw)
    for m in range(4): e(f"v_and_b32 v{72+m}, v{100+m}, v{vMASK}")
    for m in range(4): e(f"v_and_b32 v{76+m}, v{100+m}, v{vMASK+1}")
    e("s_waitcnt lgkmcnt(0)")
    first = [True, True]
    for t in range(8):
        ee = (t >> 1) & 1; u = 2 * (t >> 2) + (t & 1)
        c = "0" if first[ee] else f"v[{104+4*ee}:{107+4*ee}]"; first[ee] = False
        e(f"v_mfma_f32_16x16x32_bf16 v[{104+4*ee}:{107+4*ee}], v[{VF+4*t}:{VF+4*t+3}], v[{72+4*u}:{75+4*u}], {c}")
        if t in (0, 1):
            for m in range(4): e(f"v_and_b32 v{80+4*t+m}, v{100+m}, v{vMASK+2+t}")
    e("v_mfma_f32_16x16x32_bf16 v[92:95], v[44:47], v[100:103], 0")
    e.nop(6)
    e(f"ds_write_b128 v{vOPW}, v[104:107]")
    e(f"ds_write_b128 v{vOPW}, v[108:111] offset:1024")
    e("v_mov_b32 v97, v92")
    e("s_mov_b64 exec, 0xf")
    e(f"ds_write_b64 v{vMLW}, v[96:97]")
    e("s_mov_b64 exec, -1")
    e(f"ds_write_b32 v{vFLW}, v22 offset:{F_O*4}")
    stamp(7)
    tagbytes(60); e("s_mov_b32 s64, 0x07060500"); e("s_mov_b32 s59, 0")
    e("s_cmp_ge_u32 s3, 2"); e("s_cbranch_scc1 L_e2")
    e(f"v_mov_b32 v63, s{sT}")
    def mg_extra():
        for w in range(4): e(f"ds_read_b128 v[{32+4*w}:{35+4*w}], v{vOPR} offset:{w*2048}")
        e(f"ds_read_b128 v[48:51], v{vMLR}"); e(f"ds_read_b128 v[52:55], v{vMLR} offset:16")
    wait_flags(F_O, 4, 28, extra=mg_extra)
    e("v_max3_f32 v56, v48, v50, v52"); e("v_max_f32 v56, v56, v54")
    for w in range(4): e(f"v_sub_f32 v{48+2*w}, v{48+2*w}, v56")
    for w in range(4): e(f"v_exp_f32 v{48+2*w}, v{48+2*w}")
    e.nop(1)
    e("v_mul_f32 v57, v48, v49")
    for m in range(4): e(f"v_mul_f32 v{32+m}, v{32+m}, v48")
    for w in range(1, 4): e(f"v_fmac_f32 v57, v{48+2*w}, v{49+2*w}")
    for m in range(4): e(f"v_fmac_f32 v{32+m}, v{36+m}, v50")
    e("v_rcp_f32 v58, v57"); e("v_log_f32 v59, v57")
    for w in range(2, 4):
        for m in range(4): e(f"v_fmac_f32 v{32+m}, v{32+4*w+m}, v{48+2*w}")
    e("v_add_f32 v62, v56, v59")
    for m in range(4): e(f"v_mul_f32 v{32+m}, v{32+m}, v58")
    e("v_cvt_pk_bf16_f32 v60, v32, v33"); e("v_cvt_pk_bf16_f32 v61, v34, v35")
    e(f"buffer_store_dwordx4 v[60:63], v{vMST}, s[28:31], s{sMS} offen sc1")
    e(f"ds_write_b32 v{vFLW}, v22 offset:{F_MP*4}")
    if o["stamps"]: e("s_memrealtime s[80:81]")

    e.label("L_e2")
    def woreads():
        for u in range(4):
            for tp in range(4):
                r = 40 + 8 * u + 2 * tp
                e(f"ds_read_b64_tr_b16 v[{r}:{r+1}], v{vWOA+u} offset:{tp*8192}")
    def wo_try():
        lskip = L("wo"); e("s_cmp_lg_u32 s59, 0"); e(f"s_cbranch_scc1 {lskip}")
        e(f"ds_read_b64 v[28:29], v21 offset:{F_WO*4}"); e("s_waitcnt lgkmcnt(0)")
        e("v_and_b32 v28, v28, v29"); e("v_cmp_ne_u32 vcc, 0, v28"); e(f"s_cbranch_vccz {lskip}")
        woreads(); e("s_mov_b32 s59, 1")
        e.label(lskip)
    for k in range(4): e(f"v_mov_b32 v{8+k}, s{60+k}")
    e("v_mov_b32 v10, v10") if False else None
    wait_flags(F_MP, 2, 28, lowprio=LOW)
    if o["dl2"]: e(f"s_sleep {o['dl2']}")
    B2 = 128
    def mk_dat(n):
        b = B2 + 4 * n
        return dict(issue=lambda: e(f"buffer_load_dwordx4 v[{b}:{b+3}], v{vL16}, s[28:31], s{sE2} offen offset:{n*1024} sc1"),
                    check=lambda: e(f"v_cmp_ne_u32 vcc, s{sT}, v{b+3}"), mask=70 + 2 * n)
    def st23(sl):
        if not o["stamps"]: return
        if o["early"]:
            lsk = L("se"); e("s_cmp_lt_u32 s3, 2"); e(f"s_cbranch_scc1 {lsk}"); e(f"s_memrealtime s[{80+2*sl}:{81+2*sl}]"); e.label(lsk)
        else: e(f"s_memrealtime s[{80+2*sl}:{81+2*sl}]")
    st23(1)
    mpoll([mk_dat(0), mk_dat(1)], cnt=69, pre=wo_try, shadow=wo_try)
    st23(2)
    l0, l1 = B2 + 2, B2 + 6
    e(f"v_max_f32 v7, v{l0}, v{l1}")
    e("v_mov_b32 v20, 0xffff0000")
    e(f"v_lshlrev_b32 v16, 16, v{B2}"); e(f"v_and_b32 v17, v20, v{B2}")
    allreduce_xrow(7, 6, "v_max_f32")
    e(f"v_sub_f32 v{l0}, v{l0}, v7"); e(f"v_sub_f32 v{l1}, v{l1}, v7")
    e(f"v_lshlrev_b32 v18, 16, v{B2+1}"); e(f"v_and_b32 v19, v20, v{B2+1}")
    e(f"v_exp_f32 v{l0}, v{l0}"); e(f"v_exp_f32 v{l1}, v{l1}")
    e(f"v_lshlrev_b32 v24, 16, v{B2+4}"); e(f"v_and_b32 v25, v20, v{B2+4}"); e(f"v_lshlrev_b32 v26, 16, v{B2+5}"); e(f"v_and_b32 v27, v20, v{B2+5}")
    for i in range(4): e(f"v_mul_f32 v{12+i}, v{16+i}, v{l0}")
    e(f"v_add_f32 v5, v{l0}, v{l1}")
    for i in range(4): e(f"v_fmac_f32 v{12+i}, v{24+i}, v{l1}")
    e("v_mov_b32 v4, v7")
    allreduce_xrow(5, 6, "v_add_f32")
    reduce_scatter4(12)
    e(f"ds_write_b32 v{vOXW}, v12")
    e("s_lshl_b32 s57, s3, 3"); e(f"s_add_u32 s57, s57, {SX}"); e("v_mov_b32 v6, s57")
    e("s_mov_b64 exec, 1"); e("ds_write_b64 v6, v[4:5]"); e("s_mov_b64 exec, -1")
    e(f"ds_write_b32 v{vFLW}, v22 offset:{F_OX*4}")
    e(f"v_mov_b32 v6, {SX}")
    def ox_extra():
        e(f"ds_read_b128 v[12:15], v{vOXR}"); e("ds_read_b128 v[24:27], v6"); e("ds_read_b128 v[72:75], v6 offset:16")
    wait_flags(F_OX, 4, 28, extra=ox_extra)
    e("v_max3_f32 v7, v24, v26, v72"); e("v_max_f32 v7, v7, v74")
    e("v_sub_f32 v24, v24, v7"); e("v_sub_f32 v26, v26, v7"); e("v_sub_f32 v72, v72, v7"); e("v_sub_f32 v74, v74, v7")
    e("v_exp_f32 v24, v24"); e("v_exp_f32 v26, v26"); e("v_exp_f32 v72, v72"); e("v_exp_f32 v74, v74"); e.nop(1)
    e("v_mul_f32 v5, v24, v25"); e("v_mul_f32 v12, v12, v24"); e("v_fmac_f32 v5, v26, v27"); e("v_fmac_f32 v12, v13, v26")
    e("v_fmac_f32 v5, v72, v73"); e("v_fmac_f32 v12, v14, v72"); e("v_fmac_f32 v5, v74, v75"); e("v_fmac_f32 v12, v15, v74")
    e("v_rcp_f32 v5, v5"); e.nop(1); e("v_mul_f32 v12, v12, v5"); e.nop(2)
    e(f"v_mov_b32_dpp v13, v12 quad_perm:[1,0,3,2] {DPP}")
    e("v_cvt_pk_bf16_f32 v12, v12, v13"); e.nop(2)
    for m in range(8): e(f"v_mov_b32_dpp v{76+m}, v12 row_newbcast:{2*m} {DPP}")
    lw = L("wook"); e("s_cmp_lg_u32 s59, 0"); e(f"s_cbranch_scc1 {lw}")
    wait_flags(F_WO, 2, 28); woreads(); e("s_waitcnt lgkmcnt(0)")
    e.label(lw)
    AC = 136
    for k in range(2):
        for u in range(4):
            c = "0" if k == 0 else f"v[{AC+4*u}:{AC+4*u+3}]"
            e(f"v_mfma_f32_16x16x32_bf16 v[{AC+4*u}:{AC+4*u+3}], v[{76+4*k}:{79+4*k}], v[{40+8*u+4*k}:{43+8*u+4*k}], {c}")
    e("s_mov_b64 exec, 0xffff")
    e.nop(4)
    for i in range(4): e(f"v_perm_b32 v{4+i}, v{AC+4*i}, v{8+i}, s64")
    e(f"buffer_store_dwordx4 v[4:7], v{vE3V}, s[28:31], s{sE3} offen sc1")
    e("s_mov_b64 exec, -1")
    set_flag(F_PUB3)
    if o["stamps"] == 3 or o["early"]:
        lsk = L("st3"); e("s_cmp_lt_u32 s3, 2"); e(f"s_cbranch_scc1 {lsk}"); e("s_memrealtime s[86:87]"); e.label(lsk)
    elif o["stamps"]: e("s_memrealtime s[86:87]")
    e("s_waitcnt lgkmcnt(0)")
    dump_stamps(cnts=([(4, 68), (5, 69)] if (o["stamps"] != 3 and not o["early"]) else None))
    e("s_endpgm")

    e.label("L_loader")
    stamp(1)
    if o["prio"]: e("s_setprio 2")
    e("s_sub_u32 s52, s3, 4")
    e("s_lshr_b32 s53, s48, 1"); e("s_lshl_b32 s53, s53, 24"); e("s_and_b32 s54, s48, 1"); e("s_lshl_b32 s54, s54, 4"); e("s_lshr_b32 s55, s49, 1"); e("s_add_u32 s54, s54, s55")
    e("s_lshl_b32 s54, s54, 15"); e("s_add_u32 s53, s53, s54"); e(f"s_add_u32 s53, s53, {KEY0*256}")
    e("s_lshl_b32 s54, s52, 14"); e("s_add_u32 s53, s53, s54")
    e("s_lshr_b32 s55, s49, 2"); e("s_lshl_b32 s55, s55, 3"); e("s_add_u32 s55, s55, s48"); e("s_lshl_b32 s55, s55, 17")
    e("s_and_b32 s56, s49, 3"); e("s_lshl_b32 s56, s56, 9"); e("s_add_u32 s55, s55, s56")
    e("s_lshl_b32 s56, s52, 16"); e("s_add_u32 s55, s55, s56")
    e("s_lshl_b32 s57, s52, 14")
    for m in range(4):
        e(f"v_add_u32 v4, {4*m}, v2"); e("v_xor_b32 v4, v4, v3"); e("v_lshlrev_b32 v4, 4, v4"); e("v_lshlrev_b32 v5, 8, v2"); e(f"v_add_u32 v{8+m}, v4, v5")
    for m in range(2):
        e(f"v_add_u32 v4, {4*m}, v2"); e("v_lshrrev_b32 v5, 1, v3"); e("v_xor_b32 v4, v4, v5"); e("v_lshlrev_b32 v4, 1, v4"); e("v_and_b32 v5, 1, v3"); e("v_or_b32 v4, v4, v5")
        e("v_lshlrev_b32 v4, 4, v4"); e("v_lshlrev_b32 v5, 8, v2"); e(f"v_add_u32 v{12+m}, v4, v5")
    e("v_lshrrev_b32 v6, 5, v0"); e("v_and_b32 v7, 31, v0")
    for m in range(4):
        e("v_lshlrev_b32 v4, 2, v6"); e(f"v_add_u32 v4, {m}, v4"); e("v_lshrrev_b32 v5, 1, v7"); e("v_xor_b32 v4, v4, v5"); e("v_lshlrev_b32 v4, 1, v4")
        e("v_and_b32 v5, 1, v7"); e("v_or_b32 v4, v4, v5"); e("v_lshlrev_b32 v4, 4, v4"); e("v_lshlrev_b32 v5, 11, v6"); e(f"v_add_u32 v{16+m}, v4, v5")
    e("s_lshl_b32 s58, s52, 2"); e("v_add_u32 v20, s58, v21")
    e("s_waitcnt lgkmcnt(0)")
    srd(36, 6, 67108864); srd(40, 8, 67108864); srd(44, 12, 8388608)
    if o["stamps"]: srd(28, 26, 268435456)
    stamp(2)
    W = o["win"]; WKV = o["winkv"]
    seq = [("K", m) for m in range(16)] + [("V", m) for m in range(16)] + [("W", m) for m in range(16)]
    st = dict(landed=-1)
    def land(upto):
        for x in range(st["landed"] + 1, upto + 1):
            if x == 15: set_flag(F_K, 20); stamp(3)
            if x == 31: set_flag(F_V, 20); stamp(4)
        st["landed"] = max(st["landed"], upto)
    for i, (kind, m) in enumerate(seq):
        w_ = WKV if i < 32 else W
        skipwin = False
        if o["vh"] < 16 and i == 16 + o["vh"]:
            if st["landed"] < 15: e(f"s_waitcnt vmcnt({i - 16})"); land(15)
            set_flag(F_VI, 20)
            wait_flags(F_P1, 4, 24)
        if i == 32:
            assert st["landed"] >= 15
            if o["vh"] >= 16:
                set_flag(F_VI, 20)
                if o["wpre"]: wait_flags(F_P1, 4, 24)
            if not o["wpre"]:
                e("s_waitcnt vmcnt(0)"); land(31)
                wait_flags(F_QF, 4, 24)
        if o["wpre"] and 32 <= i < 32 + o["wpre"]:
            skipwin = True
        if o["wpre"] and i == 32 + o["wpre"]:
            e(f"s_waitcnt vmcnt({o['wpre']})"); land(31)
            wait_flags(F_QF, 4, 24)
        if not skipwin and i - st["landed"] - 1 > w_ - 1:
            e(f"s_waitcnt vmcnt({w_-1})"); land(i - w_)
        if kind == "K":
            e(f"s_add_u32 m0, s57, {KL + m*1024}"); e(f"s_add_u32 s58, s53, {m*1024}")
            e(f"buffer_load_dwordx4 v{8 + (m & 3)}, s[36:39], s58 offen{NTKV} lds")
        elif kind == "V":
            e(f"s_add_u32 m0, s57, {VL + m*1024}"); e(f"s_add_u32 s58, s53, {m*1024}")
            e(f"buffer_load_dwordx4 v{12 + (m & 1)}, s[40:43], s58 offen{NTKV} lds")
        else:
            e(f"s_add_u32 m0, s57, {WO + m*1024}"); e(f"s_add_u32 s58, s55, {m*4096}")
            e(f"buffer_load_dwordx4 v{16 + ((m >> 1) & 3)}, s[44:47], s58 offen{NT} lds")
    e("s_waitcnt vmcnt(0)"); set_flag(F_WO, 20); stamp(5)
    e("s_waitcnt lgkmcnt(0)")
    dump_stamps()
    e("s_endpgm")

    e.label("L_bbranch")
    if o["prio"]: e(f"s_setprio {o['bprio']}")
    e(f"v_mov_b32 v23, {LNS}")
    k1 = -2.0 * math.sqrt(2.0 / math.pi) * math.log2(math.e); k2 = k1 * 0.044715
    e(f"v_mov_b32 v92, {f32bits(k1):#x}"); e(f"v_mov_b32 v93, {f32bits(k2):#x}")
    wait_flags(F_LN2, 1, 28, extra=lambda: (e("ds_read_b128 v[32:35], v23"), e(f"ds_read_b32 v29, v21 offset:{F_T*4}")), sleep=2)
    e(f"v_readfirstlane_b32 s{sT}, v29")
    e("s_waitcnt vmcnt(0)")
    stamp(1)
    for k in range(8): e(f"v_lshlrev_b32 v{40+k}, 16, v{40+k}")
    for n in range(4): e(f"v_lshlrev_b32 v{48+2*n}, 16, v{48+2*n}")
    e("v_cmp_gt_u32 vcc, 32, v0"); e("v_mov_b32 v94, 1.0"); e("v_mov_b32 v95, 1.0"); e("v_cndmask_b32 v54, 0, v54, vcc")
    e("v_lshlrev_b32 v14, 16, v12")
    e("v_sub_f32 v16, v14, v32"); bf16r(16, 16); e("v_mul_f32 v16, v16, v33"); bf16r(16, 16)
    e("v_sub_f32 v16, v16, v34"); bf16r(16, 16); e("v_mul_f32 v16, v16, v35"); bf16r(16, 16)
    ACCB = 128
    for half in range(2):
        e.nop(1)
        for k in range(16): e(f"v_readlane_b32 s{64+k}, v16, {16*half+k}")
        e.nop(2)
        NI = o["bilp"]
        for k in range(0, 16, 2 * NI):
            dps = [16 * half + k + 2 * q_ for q_ in range(NI)]
            for n in range(4):
                R = range(NI)
                U = [f"v[{100+6*q_}:{101+6*q_}]" for q_ in R]; Z = [f"v[{102+6*q_}:{103+6*q_}]" for q_ in R]; G = [f"v[{104+6*q_}:{105+6*q_}]" for q_ in R]
                WB = f"v[{40+2*n}:{41+2*n}]"; W2 = f"v[{48+2*n}:{49+2*n}]"
                for q_, d in enumerate(dps): e(f"v_pk_fma_f32 {U[q_]}, s[{64+(d&15)}:{65+(d&15)}], {WB}, {WB} op_sel:[0,0,1] op_sel_hi:[1,0,1]")
                for q_ in R: e(f"v_pk_mul_f32 {Z[q_]}, {U[q_]}, {U[q_]}")
                for q_ in R: e(f"v_pk_fma_f32 {Z[q_]}, {Z[q_]}, v[92:93], v[92:93] op_sel:[0,1,0] op_sel_hi:[1,1,0]")
                for q_ in R: e(f"v_pk_mul_f32 {Z[q_]}, {Z[q_]}, {U[q_]}")
                for q_ in R: e(f"v_pk_mul_f32 {G[q_]}, {U[q_]}, {W2} op_sel_hi:[1,0]")
                for q_ in R: e(f"v_exp_f32 v{102+6*q_}, v{102+6*q_}"); e(f"v_exp_f32 v{103+6*q_}, v{103+6*q_}")
                e.nop(1)
                for q_ in R: e(f"v_pk_add_f32 {Z[q_]}, {Z[q_]}, v[94:95]")
                for q_ in R: e(f"v_rcp_f32 v{102+6*q_}, v{102+6*q_}"); e(f"v_rcp_f32 v{103+6*q_}, v{103+6*q_}")
                e.nop(1)
                for q_, d in enumerate(dps):
                    A_ = f"v[{ACCB+d}:{ACCB+d+1}]"
                    if n == 0: e(f"v_pk_mul_f32 {A_}, {G[q_]}, {Z[q_]}")
                    else: e(f"v_pk_fma_f32 {A_}, {G[q_]}, {Z[q_]}, {A_}")
    stamp(3)
    e.nop(2)
    for k in range(16):
        e(f"v_permlane32_swap_b32 v{ACCB+k}, v{ACCB+16+k}")
    for k in range(16): e(f"v_add_f32 v{ACCB+k}, v{ACCB+k}, v{ACCB+16+k}")
    e.nop(1)
    for k in range(8): e(f"v_permlane16_swap_b32 v{ACCB+k}, v{ACCB+8+k}")
    for k in range(8): e(f"v_add_f32 v{ACCB+k}, v{ACCB+k}, v{ACCB+8+k}")
    for sh in (8, 4, 2, 1):
        e.nop(1)
        for k in range(8): e(f"v_add_f32_dpp v{ACCB+k}, v{ACCB+k}, v{ACCB+k} row_ror:{sh} {DPP}")
    e("s_lshl_b32 s57, s52, 7"); e(f"s_add_u32 s57, s57, {YP}"); e("v_lshlrev_b32 v24, 5, v2"); e("v_add_u32 v24, s57, v24")
    e("s_mov_b32 exec_lo, 0x00010001"); e("s_mov_b32 exec_hi, 0x00010001")
    e(f"ds_write_b128 v24, v[{ACCB}:{ACCB+3}]"); e(f"ds_write_b128 v24, v[{ACCB+4}:{ACCB+7}] offset:16")
    e("s_mov_b64 exec, -1")
    e("s_cmp_eq_u32 s52, 0"); e("s_cbranch_scc1 L_final")
    set_flag(F_G)
    e("s_waitcnt lgkmcnt(0)")
    dump_stamps()
    e("s_endpgm")
    e.label("L_final")
    tagbytes(60)
    e("s_mov_b32 s64, 0x07060500")
    for k in range(4): e(f"v_mov_b32 v{8+k}, s{60+k}")
    e("v_lshlrev_b32 v24, 2, v3"); e(f"v_add_u32 v24, {YP}, v24")
    wait_flags(F_G, 1, 28, extra=lambda: [e(f"ds_read_b32 v{96+i}, v24 offset:{64*i}") for i in range(4)])
    for k in range(4): e(f"v_perm_b32 v{4+k}, v{96+k}, v{8+k}, s64")
    e("s_lshl_b32 s56, s2, 8"); e(f"s_add_u32 s56, s56, {GB}")
    e("v_lshlrev_b32 v24, 4, v0")
    e("s_mov_b64 exec, 0xffff")
    e("buffer_store_dwordx4 v[4:7], v24, s[28:31], s56 offen sc1")
    e("s_mov_b64 exec, -1")
    stamp(4)
    e("s_lshr_b32 s53, s49, 3"); e("s_lshl_b32 s53, s53, 3"); e("s_add_u32 s53, s53, s48")
    e("s_and_b32 s54, s49, 7")
    e("s_lshr_b32 s55, s53, 1"); e("s_lshl_b32 s55, s55, 6"); e("s_and_b32 s56, s53, 1"); e("s_lshl_b32 s56, s56, 3"); e("s_add_u32 s55, s55, s56"); e("s_add_u32 s55, s55, s54")
    e("v_lshlrev_b32 v25, 5, v2"); e("s_lshl_b32 s55, s55, 1")
    e("buffer_load_ushort v12, v25, s[32:35], s55 offen")
    e("v_lshlrev_b32 v26, 2, v3"); e("v_add_u32 v26, v26, v2"); e("v_lshlrev_b32 v26, 8, v26")
    e("s_lshr_b32 s56, s53, 1"); e("s_lshl_b32 s56, s56, 12"); e("s_and_b32 s57, s53, 1"); e("s_lshl_b32 s57, s57, 3"); e("s_add_u32 s57, s57, s54"); e("s_lshl_b32 s57, s57, 4")
    e("s_add_u32 s57, s57, s56"); e(f"s_add_u32 s57, s57, {GB}")
    e("v_lshlrev_b32 v24, 7, v0")
    e("s_lshl_b32 s56, s53, 13"); e("s_lshl_b32 s58, s54, 4"); e("s_add_u32 s56, s56, s58"); e(f"s_add_u32 s56, s56, {FB}")
    srd(36, 24, 2048)
    wait_flags(F_MP, 2, 28, sleep=4)
    mpoll([dict(issue=lambda: e("buffer_load_dwordx4 v[32:35], v26, s[28:31], s57 offen sc1"), check=lambda: chk4(32, 60), mask=70, init=(0x000f000f, 0x000f000f))])
    reduce_scatter4(32); e("v_mov_b32 v96, v32"); e.nop(2)
    e(f"v_add_f32_dpp v96, v96, v96 quad_perm:[1,0,3,2] {DPP}"); e.nop(2)
    e(f"v_add_f32_dpp v96, v96, v96 quad_perm:[2,3,0,1] {DPP}")
    bf16r(96, 96)
    e("s_and_b32 s59, s59, 0xffff"); e("s_lshl_b32 s59, s59, 16")
    e("v_add_f32 v96, s59, v96"); bf16r(96, 96)
    e(f"v_mul_f32 v97, {f32bits(-math.log2(math.e)):#x}, v96"); e("v_exp_f32 v97, v97"); e.nop(1); e("v_add_f32 v97, 1.0, v97"); e("v_rcp_f32 v97, v97"); e.nop(1)
    e("v_mul_f32 v96, v96, v97"); bf16r(96, 96)
    e("v_lshlrev_b32 v14, 16, v12")
    stamp(1)
    wait_flags(F_PUB3, 1, 28, sleep=1)
    if o["prio"]: e("s_setprio 3")
    if o["dl3"]: e(f"s_sleep {o['dl3']}")
    stamp(5)
    mpoll([dict(issue=lambda: e("buffer_load_dwordx4 v[28:31], v24, s[28:31], s56 offen sc1"), check=lambda: chk4(28, 100), mask=70)], cnt=69)
    stamp(6)
    reduce_scatter4(28)
    allreduce_row16(28, "v_add_f32")
    bf16r(28, 28)
    e("v_mul_f32 v28, v28, v96"); bf16r(28, 28)
    e("v_add_f32 v28, v28, v14")
    e("v_cvt_pk_bf16_f32 v28, v28, v28")
    e("s_mov_b32 exec_lo, 0x00010001"); e("s_mov_b32 exec_hi, 0x00010001")
    e("buffer_store_short v28, v25, s[36:39], s55 offen")
    l = L("ne"); e("s_cmp_lg_u32 s2, 0"); e(f"s_cbranch_scc1 {l}")
    e("s_mov_b64 exec, 1")
    e(f"s_mul_i32 s57, s{sT}, {TINV:#x}"); e("v_mov_b32 v20, s57"); e("v_mov_b32 v23, 0")
    e("buffer_store_dword v20, v23, s[28:31], 0 offen sc1")
    e.label(l)
    e("s_mov_b64 exec, -1")
    stamp(7)
    dump_stamps(cnts=[(2, 69)], final=True)
    e("s_endpgm")
    e.label("L_abort")
    e("s_endpgm")
    e.label("L_exit")

    probs = check(a.lines)
    body = a.text()
    nv = 224
    hdr = open("cdna_kernels/" + KN + ".s.ref").read().split("; Override launch")[0]
    out = hdr + f"; Override launch geometry by editing the next line.\n; @launch grid=(256,1,1) block=(512,1,1) lds={LDS_BYTES}\n"
    out += f""".amdgcn_target "amdgcn-amd-amdhsa--gfx950"
.text
.globl {KN}_kernel
.p2align 8
.type {KN}_kernel,@function
{KN}_kernel:
{body}
    s_endpgm
.section .rodata,"a"
.p2align 6
.amdhsa_kernel {KN}_kernel
  .amdhsa_next_free_vgpr {nv}
  .amdhsa_next_free_sgpr 100
  .amdhsa_accum_offset {nv}
  .amdhsa_group_segment_fixed_size 0
  .amdhsa_kernarg_size 104
  .amdhsa_user_sgpr_count 2
  .amdhsa_user_sgpr_kernarg_segment_ptr 1
  .amdhsa_system_sgpr_workgroup_id_x 1
.end_amdhsa_kernel
"""
    return out, probs

if __name__ == "__main__":
    opt = {}
    name = sys.argv[1]
    for kv in sys.argv[2:]:
        k, v = kv.split("="); opt[k] = int(v, 0)
    s, probs = gen(opt)
    open(name, "w").write(s)
    for p in probs: print("HAZARD:", p)
```

```python
import sys, math, struct
from asmlib import Asm, check
KN = "recurrent_scan__sliding_block_cached__mixer_token_mlp__decode"
def f32bits(x): return struct.unpack("<I", struct.pack("<f", x))[0]

DEF = dict(stamps=0, nt=1, win=12, winkv=16, spinmax=1 << 20, prio=1, dl2=24, dl3=18, local=1, fb1=12, slp=1, bprio=1, bearly=1, bilp=2, wpre=3, cpf=1, tlb=0, early=0, vh=16, dl1=0, ntkv=-1, wqun=1, vi=16, gmap=1, bafter=0, lbar=0, pgal=0)

QB, QL, GB, OB, FB, STB = 0x10000, 0x20000, 0x30000, 0x40000, 0x100000, 0x200000
WQ, KL, VL, WO = 0, 32768, 65536, 98304
QF = 131072; OP = QF + 4096; ML = OP + 8192; FL = ML + 128; OX = FL + 128; SX = OX + 1024
XN = SX + 64; LNS = XN + 512; YP = LNS + 16; STL = YP + 256; LDS_BYTES = STL + 256
F_QF, F_O, F_OX, F_K, F_V, F_WO, F_VI, F_MP, F_G, F_XN, F_LN2, F_T, F_QPUB, F_PUB3, F_P1 = 0, 4, 8, 12, 14, 16, 18, 20, 22, 23, 24, 25, 26, 27, 28
KEY0 = 61440
TMUL = 0x9e3779b1
TINV = pow(TMUL, -1, 1 << 32)
vE1V, vE1L, vQFR, vKA, vVA, vOPW, vMLW, vOPR, vMLR, vMST, vL16, vWOA, vE3V, vOXW, vOXR, vFLW = 192, 194, 196, 197, 201, 209, 210, 211, 212, 213, 214, 216, 220, 221, 222, 223
vMASK = 112
sMS, sE2, sE3, sE1, sE1G = 40, 41, 42, 43, 44

DOC = r"""
; ---------------------------------------------------------------------------------------------------------------
; ---------------------------------------------------------------------------------------------------------------
"""

def gen(opt):
    o = dict(DEF); o.update(opt)
    assert o["winkv"] <= 16
    NT = " nt" if o["nt"] else ""
    NTKV = NT if o["ntkv"] < 0 else (" nt" if o["ntkv"] else "")
    a = Asm(); e = a
    uid = [0]
    def L(p):
        uid[0] += 1; return f"L_{p}_{uid[0]}"
    sT, sCNT = 50, 51
    DPP = "row_mask:0xf bank_mask:0xf"
    def srd(d, lo, size):
        e(f"s_mov_b32 s{d}, s{lo}"); e(f"s_and_b32 s{d+1}, s{lo+1}, 0xffff"); e(f"s_mov_b32 s{d+2}, {size}"); e(f"s_mov_b32 s{d+3}, 0x20000")
    def stamp(k):
        if o["stamps"]: e(f"s_memrealtime s[{80+2*k}:{81+2*k}]")
    def dump_stamps(cnts=None, final=False):
        if not o["stamps"]: return
        if o["stamps"] == 3:
            e("s_waitcnt lgkmcnt(0)")
            e("s_mov_b64 exec, -1")
            e("s_lshl_b32 s76, s3, 5"); e(f"s_add_u32 s76, s76, {STL}"); e("v_mov_b32 v20, s76")
            for k in range(8): e(f"v_mov_b32 v{4+k}, s{80+2*k}")
            e("ds_write_b128 v20, v[4:7]"); e("ds_write_b128 v20, v[8:11] offset:16"); e("s_waitcnt lgkmcnt(0)")
            if final:
                e("s_sleep 20")
                e("s_load_dwordx2 s[76:77], s[0:1], 88"); e("s_waitcnt lgkmcnt(0)")
                e("s_mov_b32 s72, s76"); e("s_and_b32 s73, s77, 0xffff"); e("s_mov_b32 s74, 256"); e("s_mov_b32 s75, 0x20000")
                e(f"v_mov_b32 v20, {STL}"); e("v_mov_b32 v23, 0"); e("s_mov_b64 exec, 1")
                sel = [(2,0,1),(2,0,0),(4,1,0),(0,3,0),(0,5,0),(4,4,0),(2,6,0),(2,7,0),(0,0,0),(4,5,0),(2,2,0),(2,3,0),(6,4,0),(6,6,0),(6,7,0),(1,1,0)]
                for slot, (w, k, inv) in enumerate(sel):
                    e(f"ds_read_b32 v4, v20 offset:{w*32+k*4}"); e("s_waitcnt lgkmcnt(0)")
                    if inv: e("v_not_b32 v4, v4")
                    e(f"buffer_atomic_umax v4, v23, s[72:75], 0 offen offset:{4*slot}")
                e("s_waitcnt vmcnt(0)")
            return
        e("s_waitcnt lgkmcnt(0)")
        for (slot, sreg) in (cnts or []):
            e(f"s_mov_b32 s{80+2*slot}, s{sreg}"); e(f"s_mov_b32 s{81+2*slot}, 0")
        e("s_mov_b64 exec, -1")
        e("s_waitcnt vmcnt(0)")
        e("s_lshl_b32 s76, s2, 3"); e("s_add_u32 s76, s76, s3"); e("s_lshl_b32 s76, s76, 6"); e(f"s_add_u32 s76, s76, {STB}")
        for k in range(8):
            e(f"v_mov_b32 v{2*k+4}, s{80+2*k}"); e(f"v_mov_b32 v{2*k+5}, s{81+2*k}")
        e("v_mov_b32 v20, 0")
        e("s_mov_b64 exec, 1")
        for k in range(4):
            e(f"buffer_store_dwordx4 v[{4*k+4}:{4*k+7}], v20, s[28:31], s76 offen offset:{16*k}")
        e("s_waitcnt vmcnt(0)")
    def spin_tick():
        e(f"s_sub_u32 s{sCNT}, s{sCNT}, 1"); e("s_cbranch_scc1 L_abort")
    def and_flags(vt, n):
        if n == 2: e(f"v_and_b32 v{vt}, v{vt}, v{vt+1}")
        if n == 4:
            e(f"v_and_b32 v{vt}, v{vt}, v{vt+1}"); e(f"v_and_b32 v{vt+2}, v{vt+2}, v{vt+3}"); e(f"v_and_b32 v{vt}, v{vt}, v{vt+2}")
    def read_flags(first, n, vt):
        if n == 1: e(f"ds_read_b32 v{vt}, v21 offset:{first*4}")
        elif n == 2: e(f"ds_read_b64 v[{vt}:{vt+1}], v21 offset:{first*4}")
        else: e(f"ds_read_b128 v[{vt}:{vt+3}], v21 offset:{first*4}")
    def wait_flags(first, n, vt, extra=None, sleep=0, lowprio=None):
        if lowprio and o["prio"]: e(f"s_setprio {lowprio[0]}")
        l = L("wf"); e.label(l)
        read_flags(first, n, vt)
        if extra: extra()
        spin_tick()
        if sleep: e(f"s_sleep {sleep}")
        e("s_waitcnt lgkmcnt(0)")
        and_flags(vt, n)
        e(f"v_cmp_ne_u32 vcc, 0, v{vt}")
        e(f"s_cbranch_vccz {l}")
        if lowprio and o["prio"]: e(f"s_setprio {lowprio[1]}")
    def set_flag(idx, vaddr=21):
        e(f"ds_write_b32 v{vaddr}, v22 offset:{idx*4}")
    def bf16r(dst, src):
        e(f"v_cvt_pk_bf16_f32 v{dst}, v{src}, v{src}"); e(f"v_lshlrev_b32 v{dst}, 16, v{dst}")
    def allreduce_row16(v, op, shs=(8, 4, 2, 1)):
        for sh in shs:
            e.nop(2); e(f"{op}_dpp v{v}, v{v}, v{v} row_ror:{sh} {DPP}")
    def allreduce_xrow(v, t, op):
        e(f"v_mov_b32 v{t}, v{v}"); e.nop(2); e(f"v_permlane32_swap_b32 v{v}, v{t}"); e(f"{op} v{v}, v{v}, v{t}")
        e(f"v_mov_b32 v{t}, v{v}"); e.nop(2); e(f"v_permlane16_swap_b32 v{v}, v{t}"); e(f"{op} v{v}, v{v}, v{t}")
    def reduce_scatter4(b):
        e(f"v_permlane32_swap_b32 v{b}, v{b+2}"); e(f"v_permlane32_swap_b32 v{b+1}, v{b+3}")
        e(f"v_add_f32 v{b}, v{b}, v{b+2}"); e(f"v_add_f32 v{b+1}, v{b+1}, v{b+3}"); e.nop(2)
        e(f"v_permlane16_swap_b32 v{b}, v{b+1}"); e(f"v_add_f32 v{b}, v{b}, v{b+1}")
    def ln_stats(xf, t0, vm, vrs):
        s, t = t0, t0 + 1
        e(f"v_add_f32 v{s}, v{xf}, v{xf+1}"); e(f"v_add_f32 v{t}, v{xf+2}, v{xf+3}")
        for k in range(4, 16, 2):
            e(f"v_add_f32 v{s}, v{s}, v{xf+k}"); e(f"v_add_f32 v{t}, v{t}, v{xf+k+1}")
        e(f"v_add_f32 v{s}, v{s}, v{t}")
        allreduce_row16(s, "v_add_f32"); allreduce_xrow(s, t, "v_add_f32")
        e(f"v_mul_f32 v{s}, {f32bits(1/1024):#x}, v{s}")
        e(f"v_sub_f32 v{t}, v{xf}, v{s}"); e(f"v_sub_f32 v{t0+3}, v{xf+1}, v{s}")
        e(f"v_mul_f32 v{t0+2}, v{t}, v{t}"); e(f"v_mul_f32 v{t0+4}, v{t0+3}, v{t0+3}")
        for k in range(2, 16, 2):
            e(f"v_sub_f32 v{t}, v{xf+k}, v{s}"); e(f"v_sub_f32 v{t0+3}, v{xf+k+1}, v{s}")
            e(f"v_fmac_f32 v{t0+2}, v{t}, v{t}"); e(f"v_fmac_f32 v{t0+4}, v{t0+3}, v{t0+3}")
        e(f"v_add_f32 v{t0+2}, v{t0+2}, v{t0+4}")
        allreduce_row16(t0 + 2, "v_add_f32"); allreduce_xrow(t0 + 2, t, "v_add_f32")
        e(f"v_mul_f32 v{t0+2}, {f32bits(1/1024):#x}, v{t0+2}")
        bf16r(vm, s)
        bf16r(t, t0 + 2)
        e(f"v_add_f32 v{t}, {f32bits(1e-5):#x}, v{t}")
        bf16r(t, t)
        e(f"v_sqrt_f32 v{t}, v{t}"); e.nop(1)
        bf16r(t, t)
        e(f"v_rcp_f32 v{vrs}, v{t}"); e.nop(1)
    def unpack(dlo, dhi, src):
        e(f"v_lshlrev_b32 v{dlo}, 16, v{src}"); e(f"v_and_b32 v{dhi}, 0xffff0000, v{src}")
    def tagbytes(s0):
        for k in range(4):
            e(f"s_lshr_b32 s{s0+k}, s{sT}, {8*k}"); e(f"s_and_b32 s{s0+k}, s{s0+k}, 0xff")
    def chk4(b, t):
        e(f"v_xor_b32 v{t}, s60, v{b}"); e(f"v_bitop3_b32 v{t}, v{t}, v{b+1}, s61 bitop3:0xf6"); e(f"v_bitop3_b32 v{t}, v{t}, v{b+2}, s62 bitop3:0xf6")
        e(f"v_bitop3_b32 v{t}, v{t}, v{b+3}, s63 bitop3:0xf6"); e(f"v_and_b32 v{t}, 0xff, v{t}"); e(f"v_cmp_ne_u32 vcc, 0, v{t}")
    def mpoll(loads, cnt=None, pre=None, shadow=None):
        top = L("mp"); ent = L("me")
        for ld in loads:
            ini = ld.get('init', -1); m = ld['mask']
            if ini == -1: e(f"s_mov_b64 s[{m}:{m+1}], -1")
            else: e(f"s_mov_b32 s{m}, {ini[0]:#x}"); e(f"s_mov_b32 s{m+1}, {ini[1]:#x}")
        if cnt: e(f"s_mov_b32 s{cnt}, 0")
        for ld in loads:
            m = ld['mask']
            if ld.get('init', -1) != -1: e(f"s_mov_b64 exec, s[{m}:{m+1}]")
            ld['issue']()
            if ld.get('init', -1) != -1: e("s_mov_b64 exec, -1")
        if shadow: shadow()
        e(f"s_branch {ent}")
        e.label(top)
        spin_tick()
        if pre: pre()
        for ld in loads:
            sk = L("sk"); m = ld['mask']
            e(f"s_mov_b64 exec, s[{m}:{m+1}]"); e(f"s_cbranch_execz {sk}"); ld['issue'](); e.label(sk)
        e("s_mov_b64 exec, -1")
        e.label(ent)
        if cnt: e(f"s_add_u32 s{cnt}, s{cnt}, 1")
        e("s_waitcnt vmcnt(0)")
        e("s_mov_b64 s[66:67], 0")
        for ld in loads:
            sk = L("sc"); m = ld['mask']
            e(f"s_mov_b64 exec, s[{m}:{m+1}]"); e(f"s_cbranch_execz {sk}")
            ld['check']()
            if ld.get('take'):
                e("s_andn2_b64 exec, exec, vcc"); sk2 = L("sd"); e(f"s_cbranch_execz {sk2}"); ld['take'](); e.label(sk2)
            e(f"s_mov_b64 s[{m}:{m+1}], vcc"); e("s_or_b64 s[66:67], s[66:67], vcc")
            e.label(sk)
        e("s_mov_b64 exec, -1")
        e("s_cmp_lg_u64 s[66:67], 0"); e(f"s_cbranch_scc1 {top}")
    LOW = (0, 3)

    e("s_cmp_ge_u32 s2, 256"); e("s_cbranch_scc1 L_exit")
    stamp(0)
    e("s_load_dwordx16 s[4:19], s[0:1], 0")
    e("s_load_dwordx4 s[20:23], s[0:1], 64")
    e("s_load_dwordx2 s[24:25], s[0:1], 80")
    e("s_load_dwordx2 s[26:27], s[0:1], 96")
    e("v_lshrrev_b32 v1, 6, v0"); e("v_and_b32 v0, 63, v0")
    e("v_lshrrev_b32 v2, 4, v0"); e("v_and_b32 v3, 15, v0")
    e("v_readfirstlane_b32 s3, v1")
    e("s_and_b32 s48, s2, 7"); e("s_lshr_b32 s49, s2, 3")
    e(f"s_mov_b32 s{sCNT}, {o['spinmax']}")
    e(f"v_mov_b32 v21, {FL}"); e("v_mov_b32 v22, 1")
    e("s_lshl_b32 s46, s48, 3"); e("s_and_b32 s47, s49, 7"); e("s_add_u32 s46, s46, s47"); e("s_lshr_b32 s47, s49, 3")
    e("s_cmp_eq_u32 s3, 0"); e("s_cbranch_scc0 L_not0")
    e("v_lshrrev_b32 v24, 3, v0"); e("v_and_b32 v25, 7, v0")
    e("v_lshrrev_b32 v26, 1, v25"); e("v_bfe_u32 v27, v24, 1, 2"); e("v_xor_b32 v26, v26, v27")
    e("v_lshlrev_b32 v26, 1, v26"); e("v_and_b32 v25, 1, v25"); e("v_or_b32 v26, v26, v25"); e("v_lshlrev_b32 v26, 4, v26")
    e("v_lshl_add_u32 v24, v24, 13, v26")
    e("s_lshl_b32 s56, s47, 21"); e("s_lshl_b32 s57, s46, 7"); e("s_add_u32 s56, s56, s57")
    e(f"s_mov_b32 m0, {WQ}"); e("s_mov_b32 s57, 0")
    e("s_waitcnt lgkmcnt(0)")
    srd(36, 10, 8388608)
    UN = o["wqun"]
    e.label("L_wqloop")
    for u_ in range(UN):
        e(f"buffer_load_dwordx4 v24, s[36:39], s56 offen{NT} lds")
        e("s_add_u32 m0, m0, 1024"); e(f"s_add_u32 s56, s56, {8*8192}")
    if UN < 32:
        e(f"s_add_u32 s57, s57, {UN}"); e("s_cmp_lt_u32 s57, 32"); e("s_cbranch_scc1 L_wqloop")
    if o["early"]: stamp(4)
    e("s_barrier")
    e("s_branch L_qproj")
    e.label("L_not0")
    e("s_cmp_eq_u32 s3, 1"); e("s_cbranch_scc0 L_not1")
    e("v_lshlrev_b32 v23, 5, v0"); e("v_mov_b32 v24, 0")
    e("s_waitcnt lgkmcnt(0)")
    srd(28, 26, 268435456); srd(32, 4, 2048)
    e("buffer_load_dwordx4 v[4:7], v23, s[32:35], 0 offen")
    e("buffer_load_dwordx4 v[8:11], v23, s[32:35], 0 offen offset:16")
    e("buffer_load_dword v20, v24, s[28:31], 0 offen sc1")
    e("s_barrier")
    e("s_branch L_ln")
    e.label("L_not1")
    e("s_cmp_ge_u32 s3, 6"); e("s_cbranch_scc1 L_bearly")
    e("s_cmp_ge_u32 s3, 4"); e("s_cbranch_scc1 L_learly")
    if o["cpf"]:
        lc = L("cpf"); e("s_cmp_eq_u32 s3, 2"); e(f"s_cbranch_scc0 {lc}")
        e("s_getpc_b64 s[54:55]")
        e.label("L_pc")
        e(f"s_sub_u32 s54, s54, L_pc-{KN}_kernel"); e("s_subb_u32 s55, s55, 0")
        e("s_mul_i32 s56, s49, 6"); e("v_add_u32 v24, s56, v0"); e("v_lshlrev_b32 v24, 7, v24")
        e(f"s_mov_b32 s56, L_exit-{KN}_kernel")
        e("v_cmp_gt_u32 vcc, s56, v24")
        e("s_and_b64 exec, vcc, 0x3f")
        lc2 = L("cpf"); e(f"s_cbranch_execz {lc2}")
        e("global_load_dword v150, v24, s[54:55]")
        e.label(lc2)
        e("s_mov_b64 exec, -1")
        e.label(lc)
    if o["tlb"]:
        lt = L("tlb"); e("s_cmp_eq_u32 s3, 3"); e(f"s_cbranch_scc0 {lt}")
        e("s_lshr_b32 s53, s48, 1"); e("s_lshl_b32 s53, s53, 24"); e("s_and_b32 s54, s48, 1"); e("s_lshl_b32 s54, s54, 4"); e("s_lshr_b32 s55, s49, 1"); e("s_add_u32 s54, s54, s55")
        e("s_lshl_b32 s54, s54, 15"); e("s_add_u32 s53, s53, s54"); e(f"s_add_u32 s53, s53, {KEY0*256}")
        e("s_lshr_b32 s55, s49, 2"); e("s_lshl_b32 s55, s55, 3"); e("s_add_u32 s55, s55, s48"); e("s_lshl_b32 s55, s55, 17")
        e("v_mov_b32 v24, s53"); e("v_mov_b32 v25, s55"); e("v_mov_b32 v26, 0")
        e("s_waitcnt lgkmcnt(0)")
        e("s_mov_b64 exec, 1")
        e("global_load_dword v151, v24, s[8:9]" + NT); e("global_load_dword v152, v25, s[12:13]" + NT)
        e("global_load_dword v153, v24, s[6:7]" + NT); e("global_load_dword v154, v26, s[24:25]")
        e("s_mov_b64 exec, -1")
        e.label(lt)
    e("s_barrier")
    e("s_branch L_w23")
    e.label("L_learly")
    lz = L("nz"); e("s_cmp_eq_u32 s3, 4"); e(f"s_cbranch_scc0 {lz}")
    e("v_lshlrev_b32 v4, 2, v0"); e(f"v_add_u32 v4, {FL}, v4"); e("v_mov_b32 v5, 0")
    e("s_mov_b64 exec, 0xffffffff"); e("ds_write_b32 v4, v5"); e("s_mov_b64 exec, -1"); e("s_waitcnt lgkmcnt(0)")
    e.label(lz)
    if not o["lbar"]: e("s_barrier")
    e("s_branch L_loader")
    e.label("L_bearly")
    e("s_sub_u32 s52, s3, 6")
    e("s_lshr_b32 s53, s2, 4"); e("s_and_b32 s54, s2, 15")
    e("v_and_b32 v23, 31, v0"); e("v_lshlrev_b32 v23, 1, v23"); e("s_lshl_b32 s55, s53, 7"); e("s_lshl_b32 s56, s52, 6"); e("s_add_u32 s55, s55, s56")
    e("s_mul_i32 s56, s54, 448"); e("v_lshlrev_b32 v24, 1, v0")
    e("s_waitcnt lgkmcnt(0)")
    srd(28, 26, 268435456); srd(32, 4, 2048)
    srd(36, 16, 7168); srd(40, 18, 7168); srd(44, 20, 7168)
    if o["bafter"]: e("s_barrier")
    e("buffer_load_ushort v12, v23, s[32:35], s55 offen")
    for n in range(4):
        e(f"buffer_load_ushort v{40+2*n}, v24, s[36:39], s56 offen offset:{128*n}")
        e(f"buffer_load_ushort v{41+2*n}, v24, s[40:43], s56 offen offset:{128*n}")
        e(f"buffer_load_ushort v{48+2*n}, v24, s[44:47], s56 offen offset:{128*n}")
    e("s_load_dword s59, s[22:23], 0")
    if not o["bafter"]: e("s_barrier")
    e("s_branch L_bbranch")

    def common_srd():
        e("s_waitcnt lgkmcnt(0)")
        srd(28, 26, 268435456)
        srd(32, 4, 2048)

    def prep():
        e("s_lshr_b32 s52, s48, 1"); e("s_lshl_b32 s52, s52, 3"); e("s_and_b32 s54, s49, 1"); e("s_lshl_b32 s54, s54, 2"); e("s_add_u32 s52, s52, s54")
        e("s_and_b32 s54, s48, 1"); e("s_lshl_b32 s54, s54, 4"); e("s_lshr_b32 s55, s49, 1"); e("s_add_u32 s55, s55, s54")
        e("s_lshl_b32 s57, s3, 2"); e(f"v_add_u32 v{vFLW}, s57, v21")
        e("v_lshrrev_b32 v28, 2, v3")
        for u in range(4):
            e(f"v_cmp_eq_u32 vcc, {u}, v28"); e.nop(2); e(f"v_cndmask_b32 v{vMASK+u}, 0, -1, vcc")
        e("v_lshrrev_b32 v28, 3, v0"); e("v_and_b32 v29, 7, v0")
        for i in range(2):
            e(f"v_add_u32 v30, {8*i}, v28")
            e("v_and_b32 v31, 3, v30"); e("v_lshlrev_b32 v31, 2, v31"); e(f"v_lshrrev_b32 v{vE1V+i}, 2, v30"); e(f"v_add_u32 v31, v31, v{vE1V+i}"); e("v_lshlrev_b32 v31, 9, v31")
            e(f"v_lshl_add_u32 v{vE1V+i}, v29, 4, v31")
            e("v_lshrrev_b32 v31, 1, v29"); e("v_lshl_add_u32 v31, v31, 4, v30"); e("v_lshlrev_b32 v31, 4, v31")
            e("v_and_b32 v30, 1, v29"); e("v_lshl_add_u32 v31, v30, 3, v31")
            e("s_lshl_b32 s57, s3, 10"); e(f"s_add_u32 s57, s57, {QF}"); e(f"v_add_u32 v{vE1L+i}, s57, v31")
        e(f"s_lshl_b32 s{sE1G}, s52, 11"); e("s_lshl_b32 s57, s3, 7"); e(f"s_add_u32 s{sE1G}, s{sE1G}, s57"); e(f"s_add_u32 s{sE1G}, s{sE1G}, {QB}")
        if o["local"]:
            e("s_xor_b32 s57, s48, s49"); e("s_and_b32 s57, s57, 1")
            e(f"s_mov_b32 s58, {QL - QB}"); e("s_cmp_eq_u32 s57, 0"); e("s_cselect_b32 s58, s58, 0"); e(f"s_add_u32 s{sE1}, s{sE1G}, s58")
        else: e(f"s_mov_b32 s{sE1}, s{sE1G}")
        e(f"v_lshlrev_b32 v{vL16}, 4, v0"); e(f"v_add_u32 v{vQFR}, {QF}, v{vL16}")
        e("s_lshl_b32 s57, s3, 13"); e(f"s_add_u32 s57, s57, {KL}")
        e("v_lshlrev_b32 v28, 8, v3"); e("v_add_u32 v28, s57, v28"); e("v_xor_b32 v29, v2, v3"); e(f"v_lshl_add_u32 v{vKA}, v29, 4, v28")
        for t in range(1, 4): e(f"v_xor_b32 v{vKA+t}, {t<<6}, v{vKA}")
        e("v_lshrrev_b32 v28, 2, v3"); e("v_lshl_add_u32 v28, v2, 2, v28")
        e("v_and_b32 v29, 7, v28"); e("v_lshlrev_b32 v29, 5, v29"); e("v_lshl_add_u32 v28, v28, 8, v29")
        e("v_and_b32 v29, 3, v3"); e("v_lshl_add_u32 v28, v29, 3, v28")
        e("s_lshl_b32 s57, s3, 13"); e(f"s_add_u32 s57, s57, {VL}"); e(f"v_add_u32 v{vVA}, s57, v28")
        for t in range(1, 8): e(f"v_xor_b32 v{vVA+t}, {t<<5}, v{vVA}")
        e("s_lshl_b32 s57, s3, 11"); e(f"s_add_u32 s57, s57, {OP}"); e(f"v_add_u32 v{vOPW}, s57, v{vL16}")
        e("s_lshl_b32 s57, s3, 3"); e(f"s_add_u32 s57, s57, {ML}"); e("v_lshlrev_b32 v28, 5, v3"); e(f"v_add_u32 v{vMLW}, s57, v28")
        e("s_and_b32 s57, s3, 1"); e("s_lshl_b32 s57, s57, 10"); e(f"s_add_u32 s57, s57, {OP}"); e(f"v_add_u32 v{vOPR}, s57, v{vL16}")
        e("v_and_b32 v28, 3, v3"); e("v_lshlrev_b32 v29, 5, v28"); e(f"v_add_u32 v{vMLR}, {ML}, v29")
        e("v_lshlrev_b32 v28, 14, v28"); e("v_lshrrev_b32 v29, 3, v3"); e("v_lshl_add_u32 v28, v29, 13, v28")
        e("v_bfe_u32 v29, v3, 2, 1"); e("v_lshl_add_u32 v29, v29, 2, v2"); e(f"v_lshl_add_u32 v{vMST}, v29, 4, v28")
        e(f"s_lshl_b32 s{sMS}, s52, 14"); e("s_lshl_b32 s57, s55, 8"); e(f"s_add_u32 s{sMS}, s{sMS}, s57"); e("s_and_b32 s57, s3, 1"); e("s_lshl_b32 s57, s57, 7")
        e(f"s_add_u32 s{sMS}, s{sMS}, s57"); e(f"s_add_u32 s{sMS}, s{sMS}, {OB}")
        if o["gmap"]: e("s_lshr_b32 s56, s49, 2"); e("s_lshl_b32 s57, s48, 3"); e("s_add_u32 s56, s56, s57")
        else: e("s_lshr_b32 s56, s49, 2"); e("s_lshl_b32 s56, s56, 3"); e("s_add_u32 s56, s56, s48")
        e(f"s_lshl_b32 s{sE2}, s56, 13"); e("s_lshl_b32 s57, s3, 11"); e(f"s_add_u32 s{sE2}, s{sE2}, s57"); e(f"s_add_u32 s{sE2}, s{sE2}, {OB}")
        e("v_lshrrev_b32 v28, 2, v3"); e("v_lshl_add_u32 v29, v28, 2, v2"); e("v_lshlrev_b32 v29, 9, v29")
        e("v_and_b32 v30, 1, v2"); e("v_lshl_add_u32 v30, v30, 2, v28"); e("v_lshl_add_u32 v29, v30, 5, v29")
        e("v_and_b32 v30, 3, v3"); e("v_lshl_add_u32 v29, v30, 3, v29"); e(f"v_add_u32 v29, {WO}, v29")
        e("s_lshl_b32 s57, s3, 7"); e(f"v_xor_b32 v{vWOA}, s57, v29")
        for u in range(1, 4): e(f"v_xor_b32 v{vWOA+u}, {u<<5}, v{vWOA}")
        e("s_and_b32 s57, s49, 3"); e("s_lshl_b32 s57, s57, 3"); e("s_lshl_b32 s58, s3, 1"); e("s_add_u32 s57, s57, s58"); e(f"s_lshl_b32 s{sE3}, s57, 13")
        e("s_lshl_b32 s57, s56, 7"); e(f"s_add_u32 s{sE3}, s{sE3}, s57"); e(f"s_add_u32 s{sE3}, s{sE3}, {FB}")
        e("v_lshrrev_b32 v28, 3, v3"); e("v_lshlrev_b32 v28, 13, v28"); e("v_and_b32 v29, 7, v3"); e(f"v_lshl_add_u32 v{vE3V}, v29, 4, v28")
        e(f"v_add_u32 v{vOXR}, {OX}, v{vL16}"); e("s_lshl_b32 s57, s3, 2"); e(f"v_add_u32 v{vOXW}, s57, v{vOXR}")

    e.label("L_w23")
    if o["prio"]: e("s_setprio 3")
    common_srd()
    prep()
    wait_flags(F_XN, 1, 28, extra=lambda: e(f"ds_read_b32 v29, v21 offset:{F_T*4}"), sleep=o["slp"], lowprio=LOW)
    e(f"v_readfirstlane_b32 s{sT}, v29")
    e("s_branch L_attn")
    e.label("L_ln")
    if o["prio"]: e("s_setprio 3")
    e("s_lshl_b32 s54, s47, 4"); e("v_subrev_u32 v23, s54, v0"); e("v_lshlrev_b32 v23, 5, v23"); e(f"v_add_u32 v23, {XN}, v23")
    e("s_mov_b32 s56, 0xffff"); e("s_mov_b32 s57, 0"); e("s_lshl_b64 s[58:59], s[56:57], s54")
    e("s_waitcnt vmcnt(0)")
    stamp(2)
    e(f"v_readfirstlane_b32 s{sT}, v20")
    for k in range(8): unpack(24 + 2 * k, 25 + 2 * k, 4 + k)
    e(f"s_add_u32 s{sT}, s{sT}, 1"); e(f"s_mul_i32 s{sT}, s{sT}, {TMUL:#x}")
    ln_stats(24, 98, 104, 105)
    e(f"v_mov_b32 v20, s{sT}"); e(f"ds_write_b32 v21, v20 offset:{F_T*4}")
    for k in range(16): e(f"v_sub_f32 v{24+k}, v{24+k}, v104")
    for k in range(8): e(f"v_cvt_pk_bf16_f32 v{4+k}, v{24+2*k}, v{25+2*k}")
    for k in range(8): unpack(24 + 2 * k, 25 + 2 * k, 4 + k)
    for k in range(16): e(f"v_mul_f32 v{24+k}, v{24+k}, v105")
    for k in range(8): e(f"v_cvt_pk_bf16_f32 v{4+k}, v{24+2*k}, v{25+2*k}")
    e("s_mov_b64 exec, s[58:59]")
    e("ds_write_b128 v23, v[4:7]"); e("ds_write_b128 v23, v[8:11] offset:16")
    e("s_mov_b64 exec, -1")
    set_flag(F_XN)
    stamp(1)
    for k in range(8): unpack(24 + 2 * k, 25 + 2 * k, 4 + k)
    ln_stats(24, 98, 106, 107)
    e(f"v_mov_b32 v23, {LNS}"); e("ds_write_b128 v23, v[104:107]")
    set_flag(F_LN2)
    stamp(3)
    prep()
    e("s_branch L_attn")
    e.label("L_qproj")
    if o["prio"]: e("s_setprio 3")
    stamp(1)
    srd(28, 26, 268435456)
    prep()
    e("v_lshrrev_b32 v24, 2, v3"); e("v_and_b32 v25, 3, v3")
    e("v_lshlrev_b32 v26, 2, v2"); e("v_add_u32 v26, v26, v24")
    e("v_lshrrev_b32 v27, 1, v26"); e("v_and_b32 v27, 3, v27")
    e("v_lshlrev_b32 v26, 7, v26"); e("v_lshlrev_b32 v25, 3, v25"); e("v_add_u32 v26, v26, v25")
    e("v_lshlrev_b32 v27, 5, v27"); e("v_add_u32 v108, v26, v27")
    for u in range(1, 4): e(f"v_xor_b32 v{108+u}, {u<<5}, v108")
    e("s_lshr_b32 s57, s46, 1"); e("s_lshl_b32 s57, s57, 11"); e("s_and_b32 s58, s46, 1"); e("s_lshl_b32 s58, s58, 8"); e("s_add_u32 s57, s57, s58")
    e("s_lshl_b32 s58, s47, 9"); e("s_add_u32 s57, s57, s58"); e(f"s_add_u32 s46, s57, {QB}"); e(f"s_add_u32 s47, s57, {QL}")
    e("v_lshlrev_b32 v27, 2, v0")
    e("v_lshlrev_b32 v26, 3, v2"); e(f"v_add_u32 v26, {XN}, v26")
    def xn_extra():
        e(f"ds_read_b32 v29, v21 offset:{F_T*4}")
        for k in range(8): e(f"ds_read2_b64 v[{40+4*k}:{43+4*k}], v26 offset0:{8*k} offset1:{8*k+4}")
    wait_flags(F_XN, 1, 28, extra=xn_extra)
    e(f"v_readfirstlane_b32 s{sT}, v29")
    stamp(2)
    csc = math.log2(math.e) / math.sqrt(128.0)
    e(f"s_mov_b32 s58, {f32bits(csc):#x}")
    def wq_reads(k):
        B = 128 + 16 * (k & 1)
        for u in range(4):
            for rho in range(2):
                r = B + 4 * u + 2 * rho
                e(f"ds_read_b64_tr_b16 v[{r}:{r+1}], v{108+u} offset:{k*4096 + rho*2048}")
    e("s_waitcnt vmcnt(28)")
    wq_reads(0)
    for k in range(8):
        B = 128 + 16 * (k & 1)
        if k < 7:
            e(f"s_waitcnt vmcnt({24 - 4*k})")
            if k == 6: stamp(3)
            wq_reads(k + 1)
            e("s_waitcnt lgkmcnt(8)")
        else:
            e("s_waitcnt lgkmcnt(0)")
        for u in range(4):
            c = "0" if k == 0 else f"v[{72+4*u}:{75+4*u}]"
            e(f"v_mfma_f32_16x16x32_bf16 v[{72+4*u}:{75+4*u}], v[{40+4*k}:{43+4*k}], v[{B+4*u}:{B+4*u+3}], {c}")
    e(f"v_mov_b32 v49, s{sT}"); e(f"v_mov_b32 v51, s{sT}")
    e("s_mov_b32 s56, 0x11111111"); e("s_mov_b32 s57, 0x11111111")
    e("s_mov_b32 s60, 0xffff0000"); e("s_mov_b32 s61, 0"); e("s_mov_b32 s62, 0"); e("s_mov_b32 s63, 0xffff"); e("s_mov_b32 s64, 0"); e("s_mov_b32 s65, 0xffff0000")
    e.nop(2)
    e("v_cndmask_b32 v104, v72, v76, s[60:61]"); e("v_cndmask_b32 v104, v104, v80, s[62:63]"); e("v_cndmask_b32 v104, v104, v84, s[64:65]")
    e("v_mul_f32 v104, s58, v104"); e.nop(2)
    e(f"v_mov_b32_dpp v105, v104 quad_perm:[1,0,3,2] {DPP}")
    e("v_cvt_pk_bf16_f32 v48, v104, v105"); e.nop(2)
    e(f"v_mov_b32_dpp v50, v48 quad_perm:[2,3,0,1] {DPP}")
    e("s_mov_b64 exec, s[56:57]")
    if o["local"]: e("buffer_store_dwordx4 v[48:51], v27, s[28:31], s47 offen")
    e("buffer_store_dwordx4 v[48:51], v27, s[28:31], s46 offen sc1")
    e("s_mov_b64 exec, -1")
    set_flag(F_QPUB)
    stamp(5)

    e.label("L_attn")
    wait_flags(F_QPUB, 1, 28, sleep=o["slp"], lowprio=LOW)
    if o["dl1"]: e(f"s_sleep {o['dl1']}")
    wait_flags(F_VI, 2, 28, lowprio=LOW)
    PB = 128
    def mk_e1(i):
        b = PB + 4 * i
        return dict(issue=lambda: e(f"buffer_load_dwordx4 v[{b}:{b+3}], v{vE1V+i}, s[28:31], s{sE1} offen sc1"),
                    check=lambda: (e(f"v_xor_b32 v36, s{sT}, v{b+1}"), e(f"v_xor_b32 v37, s{sT}, v{b+3}"), e("v_or_b32 v36, v36, v37"), e("v_cmp_ne_u32 vcc, 0, v36")),
                    take=lambda: e(f"ds_write2_b32 v{vE1L+i}, v{b}, v{b+2} offset0:0 offset1:1"), mask=70 + 2 * i)
    def kreads():
        for kt in range(2):
            for t in range(4):
                r = 40 + 16 * kt + 4 * t
                e(f"ds_read_b128 v[{r}:{r+3}], v{vKA+t} offset:{kt*4096}")
    def e1_pre():
        if o["local"]: e(f"s_cmp_ge_u32 s68, {o['fb1']}"); e(f"s_cselect_b32 s{sE1}, s{sE1G}, s{sE1}")
    if not o["early"]: stamp(1)
    def e1_shadow():
        if o["wpre"] or o["vh"] < 16: e(f"ds_write_b32 v{vFLW}, v22 offset:{F_P1*4}")
        if o["vi"] >= 16: kreads()
    mpoll([mk_e1(0), mk_e1(1)], cnt=68, pre=e1_pre, shadow=e1_shadow)
    e(f"ds_write_b32 v{vFLW}, v22 offset:{F_QF*4}")
    stamp(6)
    if o["vi"] < 16:
        wait_flags(F_K, 2, 28); kreads()
    VF = 160
    def vreads():
        for t in range(8):
            for rho in range(2):
                r = VF + 4 * t + 2 * rho
                e(f"ds_read_b64_tr_b16 v[{r}:{r+1}], v{vVA+t} offset:{rho*4096}")
    def qf_extra():
        e(f"ds_read_b64 v[32:33], v21 offset:{F_V*4}")
        for t in range(4): e(f"ds_read_b128 v[{72+4*t}:{75+4*t}], v{vQFR} offset:{t*1024}")
    wait_flags(F_QF, 4, 28, extra=qf_extra)
    for t in range(4):
        for kt in range(2):
            c = "0" if t == 0 else f"v[{88+4*kt}:{91+4*kt}]"
            e(f"v_mfma_f32_16x16x32_bf16 v[{88+4*kt}:{91+4*kt}], v[{40+16*kt+4*t}:{43+16*kt+4*t}], v[{72+4*t}:{75+4*t}], {c}")
    e("v_and_b32 v32, v32, v33"); e("v_cmp_ne_u32 vcc, 0, v32")
    e("s_mov_b32 s59, 0")
    lv = L("vlate"); e(f"s_cbranch_vccz {lv}")
    vreads(); e("s_mov_b32 s59, 1")
    e.label(lv)
    for m in range(4): e(f"v_mov_b32 v{44+m}, 0x3f803f80")
    e.nop(3)
    S = list(range(88, 96))
    for s_ in S: e(f"v_add_f32_dpp v{s_+8}, v{s_}, v{s_} row_ror:4 {DPP}")
    for s_ in S: e(f"v_add_f32_dpp v{s_}, v{s_+8}, v{s_+8} row_ror:8 {DPP}")
    e("v_max3_f32 v96, v88, v89, v90"); e("v_max3_f32 v97, v91, v92, v93"); e("v_max3_f32 v96, v96, v94, v95"); e("v_max_f32 v96, v96, v97")
    allreduce_xrow(96, 97, "v_max_f32")
    for s_ in S: e(f"v_sub_f32 v{s_}, v{s_}, v96")
    for s_ in S: e(f"v_exp_f32 v{s_}, v{s_}")
    e.nop(1)
    for m in range(4): e(f"v_cvt_pk_bf16_f32 v{100+m}, v{88+2*m}, v{89+2*m}")
    lw = L("vok"); e("s_cmp_lg_u32 s59, 0"); e(f"s_cbranch_scc1 {lw}")
    wait_flags(F_V, 2, 28); vreads()
    e.label(lw)
    for m in range(4): e(f"v_and_b32 v{72+m}, v{100+m}, v{vMASK}")
    for m in range(4): e(f"v_and_b32 v{76+m}, v{100+m}, v{vMASK+1}")
    e("s_waitcnt lgkmcnt(0)")
    first = [True, True]
    for t in range(8):
        ee = (t >> 1) & 1; u = 2 * (t >> 2) + (t & 1)
        c = "0" if first[ee] else f"v[{104+4*ee}:{107+4*ee}]"; first[ee] = False
        e(f"v_mfma_f32_16x16x32_bf16 v[{104+4*ee}:{107+4*ee}], v[{VF+4*t}:{VF+4*t+3}], v[{72+4*u}:{75+4*u}], {c}")
        if t in (0, 1):
            for m in range(4): e(f"v_and_b32 v{80+4*t+m}, v{100+m}, v{vMASK+2+t}")
    e("v_mfma_f32_16x16x32_bf16 v[92:95], v[44:47], v[100:103], 0")
    e.nop(6)
    e(f"ds_write_b128 v{vOPW}, v[104:107]")
    e(f"ds_write_b128 v{vOPW}, v[108:111] offset:1024")
    e("v_mov_b32 v97, v92")
    e("s_mov_b64 exec, 0xf")
    e(f"ds_write_b64 v{vMLW}, v[96:97]")
    e("s_mov_b64 exec, -1")
    e(f"ds_write_b32 v{vFLW}, v22 offset:{F_O*4}")
    stamp(7)
    tagbytes(60); e("s_mov_b32 s64, 0x07060500"); e("s_mov_b32 s59, 0")
    e("s_cmp_ge_u32 s3, 2"); e("s_cbranch_scc1 L_e2")
    e(f"v_mov_b32 v63, s{sT}")
    def mg_extra():
        for w in range(4): e(f"ds_read_b128 v[{32+4*w}:{35+4*w}], v{vOPR} offset:{w*2048}")
        e(f"ds_read_b128 v[48:51], v{vMLR}"); e(f"ds_read_b128 v[52:55], v{vMLR} offset:16")
    wait_flags(F_O, 4, 28, extra=mg_extra)
    e("v_max3_f32 v56, v48, v50, v52"); e("v_max_f32 v56, v56, v54")
    for w in range(4): e(f"v_sub_f32 v{48+2*w}, v{48+2*w}, v56")
    for w in range(4): e(f"v_exp_f32 v{48+2*w}, v{48+2*w}")
    e.nop(1)
    e("v_mul_f32 v57, v48, v49")
    for m in range(4): e(f"v_mul_f32 v{32+m}, v{32+m}, v48")
    for w in range(1, 4): e(f"v_fmac_f32 v57, v{48+2*w}, v{49+2*w}")
    for m in range(4): e(f"v_fmac_f32 v{32+m}, v{36+m}, v50")
    e("v_rcp_f32 v58, v57"); e("v_log_f32 v59, v57")
    for w in range(2, 4):
        for m in range(4): e(f"v_fmac_f32 v{32+m}, v{32+4*w+m}, v{48+2*w}")
    e("v_add_f32 v62, v56, v59")
    for m in range(4): e(f"v_mul_f32 v{32+m}, v{32+m}, v58")
    e("v_cvt_pk_bf16_f32 v60, v32, v33"); e("v_cvt_pk_bf16_f32 v61, v34, v35")
    e(f"buffer_store_dwordx4 v[60:63], v{vMST}, s[28:31], s{sMS} offen sc1")
    e(f"ds_write_b32 v{vFLW}, v22 offset:{F_MP*4}")
    if o["stamps"]: e("s_memrealtime s[80:81]")

    e.label("L_e2")
    def woreads():
        for u in range(4):
            for tp in range(4):
                r = 40 + 8 * u + 2 * tp
                e(f"ds_read_b64_tr_b16 v[{r}:{r+1}], v{vWOA+u} offset:{tp*8192}")
    def wo_try():
        lskip = L("wo"); e("s_cmp_lg_u32 s59, 0"); e(f"s_cbranch_scc1 {lskip}")
        e(f"ds_read_b64 v[28:29], v21 offset:{F_WO*4}"); e("s_waitcnt lgkmcnt(0)")
        e("v_and_b32 v28, v28, v29"); e("v_cmp_ne_u32 vcc, 0, v28"); e(f"s_cbranch_vccz {lskip}")
        woreads(); e("s_mov_b32 s59, 1")
        e.label(lskip)
    for k in range(4): e(f"v_mov_b32 v{8+k}, s{60+k}")
    e("v_mov_b32 v10, v10") if False else None
    wait_flags(F_MP, 2, 28, lowprio=LOW)
    if o["dl2"]: e(f"s_sleep {o['dl2']}")
    B2 = 128
    def mk_dat(n):
        b = B2 + 4 * n
        return dict(issue=lambda: e(f"buffer_load_dwordx4 v[{b}:{b+3}], v{vL16}, s[28:31], s{sE2} offen offset:{n*1024} sc1"),
                    check=lambda: e(f"v_cmp_ne_u32 vcc, s{sT}, v{b+3}"), mask=70 + 2 * n)
    def st23(sl):
        if not o["stamps"]: return
        if o["early"]:
            lsk = L("se"); e("s_cmp_lt_u32 s3, 2"); e(f"s_cbranch_scc1 {lsk}"); e(f"s_memrealtime s[{80+2*sl}:{81+2*sl}]"); e.label(lsk)
        else: e(f"s_memrealtime s[{80+2*sl}:{81+2*sl}]")
    st23(1)
    mpoll([mk_dat(0), mk_dat(1)], cnt=69, pre=wo_try, shadow=wo_try)
    st23(2)
    l0, l1 = B2 + 2, B2 + 6
    e(f"v_max_f32 v7, v{l0}, v{l1}")
    e("v_mov_b32 v20, 0xffff0000")
    e(f"v_lshlrev_b32 v16, 16, v{B2}"); e(f"v_and_b32 v17, v20, v{B2}")
    allreduce_xrow(7, 6, "v_max_f32")
    e(f"v_sub_f32 v{l0}, v{l0}, v7"); e(f"v_sub_f32 v{l1}, v{l1}, v7")
    e(f"v_lshlrev_b32 v18, 16, v{B2+1}"); e(f"v_and_b32 v19, v20, v{B2+1}")
    e(f"v_exp_f32 v{l0}, v{l0}"); e(f"v_exp_f32 v{l1}, v{l1}")
    e(f"v_lshlrev_b32 v24, 16, v{B2+4}"); e(f"v_and_b32 v25, v20, v{B2+4}"); e(f"v_lshlrev_b32 v26, 16, v{B2+5}"); e(f"v_and_b32 v27, v20, v{B2+5}")
    for i in range(4): e(f"v_mul_f32 v{12+i}, v{16+i}, v{l0}")
    e(f"v_add_f32 v5, v{l0}, v{l1}")
    for i in range(4): e(f"v_fmac_f32 v{12+i}, v{24+i}, v{l1}")
    e("v_mov_b32 v4, v7")
    allreduce_xrow(5, 6, "v_add_f32")
    reduce_scatter4(12)
    e(f"ds_write_b32 v{vOXW}, v12")
    e("s_lshl_b32 s57, s3, 3"); e(f"s_add_u32 s57, s57, {SX}"); e("v_mov_b32 v6, s57")
    e("s_mov_b64 exec, 1"); e("ds_write_b64 v6, v[4:5]"); e("s_mov_b64 exec, -1")
    e(f"ds_write_b32 v{vFLW}, v22 offset:{F_OX*4}")
    e(f"v_mov_b32 v6, {SX}")
    def ox_extra():
        e(f"ds_read_b128 v[12:15], v{vOXR}"); e("ds_read_b128 v[24:27], v6"); e("ds_read_b128 v[72:75], v6 offset:16")
    wait_flags(F_OX, 4, 28, extra=ox_extra)
    e("v_max3_f32 v7, v24, v26, v72"); e("v_max_f32 v7, v7, v74")
    e("v_sub_f32 v24, v24, v7"); e("v_sub_f32 v26, v26, v7"); e("v_sub_f32 v72, v72, v7"); e("v_sub_f32 v74, v74, v7")
    e("v_exp_f32 v24, v24"); e("v_exp_f32 v26, v26"); e("v_exp_f32 v72, v72"); e("v_exp_f32 v74, v74"); e.nop(1)
    e("v_mul_f32 v5, v24, v25"); e("v_mul_f32 v12, v12, v24"); e("v_fmac_f32 v5, v26, v27"); e("v_fmac_f32 v12, v13, v26")
    e("v_fmac_f32 v5, v72, v73"); e("v_fmac_f32 v12, v14, v72"); e("v_fmac_f32 v5, v74, v75"); e("v_fmac_f32 v12, v15, v74")
    e("v_rcp_f32 v5, v5"); e.nop(1); e("v_mul_f32 v12, v12, v5"); e.nop(2)
    e(f"v_mov_b32_dpp v13, v12 quad_perm:[1,0,3,2] {DPP}")
    e("v_cvt_pk_bf16_f32 v12, v12, v13"); e.nop(2)
    for m in range(8): e(f"v_mov_b32_dpp v{76+m}, v12 row_newbcast:{2*m} {DPP}")
    lw = L("wook"); e("s_cmp_lg_u32 s59, 0"); e(f"s_cbranch_scc1 {lw}")
    wait_flags(F_WO, 2, 28); woreads(); e("s_waitcnt lgkmcnt(0)")
    e.label(lw)
    AC = 136
    for k in range(2):
        for u in range(4):
            c = "0" if k == 0 else f"v[{AC+4*u}:{AC+4*u+3}]"
            e(f"v_mfma_f32_16x16x32_bf16 v[{AC+4*u}:{AC+4*u+3}], v[{76+4*k}:{79+4*k}], v[{40+8*u+4*k}:{43+8*u+4*k}], {c}")
    e("s_mov_b64 exec, 0xffff")
    e.nop(4)
    for i in range(4): e(f"v_perm_b32 v{4+i}, v{AC+4*i}, v{8+i}, s64")
    e(f"buffer_store_dwordx4 v[4:7], v{vE3V}, s[28:31], s{sE3} offen sc1")
    e("s_mov_b64 exec, -1")
    set_flag(F_PUB3)
    if o["stamps"] == 3 or o["early"]:
        lsk = L("st3"); e("s_cmp_lt_u32 s3, 2"); e(f"s_cbranch_scc1 {lsk}"); e("s_memrealtime s[86:87]"); e.label(lsk)
    elif o["stamps"]: e("s_memrealtime s[86:87]")
    e("s_waitcnt lgkmcnt(0)")
    dump_stamps(cnts=([(4, 68), (5, 69)] if (o["stamps"] != 3 and not o["early"]) else None))
    e("s_endpgm")

    e.label("L_loader")
    stamp(1)
    if o["prio"]: e("s_setprio 2")
    e("s_sub_u32 s52, s3, 4")
    e("s_lshr_b32 s53, s48, 1"); e("s_lshl_b32 s53, s53, 24"); e("s_and_b32 s54, s48, 1"); e("s_lshl_b32 s54, s54, 4"); e("s_lshr_b32 s55, s49, 1"); e("s_add_u32 s54, s54, s55")
    e("s_lshl_b32 s54, s54, 15"); e("s_add_u32 s53, s53, s54"); e(f"s_add_u32 s53, s53, {KEY0*256}")
    e("s_lshl_b32 s54, s52, 14"); e("s_add_u32 s53, s53, s54")
    if o["gmap"]: e("s_lshr_b32 s55, s49, 2"); e("s_lshl_b32 s56, s48, 3"); e("s_add_u32 s55, s55, s56"); e("s_lshl_b32 s55, s55, 17")
    else: e("s_lshr_b32 s55, s49, 2"); e("s_lshl_b32 s55, s55, 3"); e("s_add_u32 s55, s55, s48"); e("s_lshl_b32 s55, s55, 17")
    e("s_and_b32 s56, s49, 3"); e("s_lshl_b32 s56, s56, 9"); e("s_add_u32 s55, s55, s56")
    e("s_lshl_b32 s56, s52, 16"); e("s_add_u32 s55, s55, s56")
    e("s_lshl_b32 s57, s52, 14")
    for m in range(4):
        e(f"v_add_u32 v4, {4*m}, v2"); e("v_xor_b32 v4, v4, v3"); e("v_lshlrev_b32 v4, 4, v4"); e("v_lshlrev_b32 v5, 8, v2"); e(f"v_add_u32 v{8+m}, v4, v5")
    for m in range(2):
        e(f"v_add_u32 v4, {4*m}, v2"); e("v_lshrrev_b32 v5, 1, v3"); e("v_xor_b32 v4, v4, v5"); e("v_lshlrev_b32 v4, 1, v4"); e("v_and_b32 v5, 1, v3"); e("v_or_b32 v4, v4, v5")
        e("v_lshlrev_b32 v4, 4, v4"); e("v_lshlrev_b32 v5, 8, v2"); e(f"v_add_u32 v{12+m}, v4, v5")
    e("v_lshrrev_b32 v6, 5, v0"); e("v_and_b32 v7, 31, v0")
    for m in range(4):
        e("v_lshlrev_b32 v4, 2, v6"); e(f"v_add_u32 v4, {m}, v4"); e("v_lshrrev_b32 v5, 1, v7"); e("v_xor_b32 v4, v4, v5"); e("v_lshlrev_b32 v4, 1, v4")
        e("v_and_b32 v5, 1, v7"); e("v_or_b32 v4, v4, v5"); e("v_lshlrev_b32 v4, 4, v4"); e("v_lshlrev_b32 v5, 11, v6"); e(f"v_add_u32 v{16+m}, v4, v5")
    e("s_lshl_b32 s58, s52, 2"); e("v_add_u32 v20, s58, v21")
    e("s_waitcnt lgkmcnt(0)")
    srd(36, 6, 67108864); srd(40, 8, 67108864); srd(44, 12, 8388608)
    if o["stamps"]: srd(28, 26, 268435456)
    if o["lbar"]: e("s_barrier")
    stamp(2)
    W = o["win"]; WKV = o["winkv"]
    seq = [("K", m) for m in range(16)] + [("V", m) for m in range(16)] + [("W", m) for m in range(16)]
    st = dict(landed=-1)
    def land(upto):
        for x in range(st["landed"] + 1, upto + 1):
            if x == 15: set_flag(F_K, 20); stamp(3)
            if x == 31: set_flag(F_V, 20); stamp(4)
        st["landed"] = max(st["landed"], upto)
    for i, (kind, m) in enumerate(seq):
        w_ = WKV if i < 32 else W
        skipwin = False
        if o["vi"] < 16 and i == 16 + o["vi"]: set_flag(F_VI, 20)
        if o["vh"] < 16 and i == 16 + o["vh"]:
            if st["landed"] < 15: e(f"s_waitcnt vmcnt({i - 16})"); land(15)
            set_flag(F_VI, 20)
            wait_flags(F_P1, 4, 24)
        if i == 32:
            assert st["landed"] >= 15
            if o["vh"] >= 16:
                if o["vi"] >= 16: set_flag(F_VI, 20)
                if o["wpre"]: wait_flags(F_P1, 4, 24)
            if not o["wpre"]:
                e("s_waitcnt vmcnt(0)"); land(31)
                wait_flags(F_QF, 4, 24)
        if o["wpre"] and 32 <= i < 32 + o["wpre"]:
            skipwin = True
        if o["wpre"] and i == 32 + o["wpre"]:
            e(f"s_waitcnt vmcnt({o['wpre']})"); land(31)
            wait_flags(F_QF, 4, 24)
        if not skipwin and i - st["landed"] - 1 > w_ - 1:
            e(f"s_waitcnt vmcnt({w_-1})"); land(i - w_)
        if kind == "K":
            e(f"s_add_u32 m0, s57, {KL + m*1024}"); e(f"s_add_u32 s58, s53, {m*1024}")
            e(f"buffer_load_dwordx4 v{8 + (m & 3)}, s[36:39], s58 offen{NTKV} lds")
        elif kind == "V":
            e(f"s_add_u32 m0, s57, {VL + m*1024}"); e(f"s_add_u32 s58, s53, {m*1024}")
            e(f"buffer_load_dwordx4 v{12 + (m & 1)}, s[40:43], s58 offen{NTKV} lds")
        else:
            e(f"s_add_u32 m0, s57, {WO + m*1024}"); e(f"s_add_u32 s58, s55, {m*4096}")
            e(f"buffer_load_dwordx4 v{16 + ((m >> 1) & 3)}, s[44:47], s58 offen{NT} lds")
    e("s_waitcnt vmcnt(0)"); set_flag(F_WO, 20); stamp(5)
    e("s_waitcnt lgkmcnt(0)")
    dump_stamps()
    e("s_endpgm")

    e.label("L_bbranch")
    if o["prio"]: e(f"s_setprio {o['bprio']}")
    e(f"v_mov_b32 v23, {LNS}")
    k1 = -2.0 * math.sqrt(2.0 / math.pi) * math.log2(math.e); k2 = k1 * 0.044715
    e(f"v_mov_b32 v92, {f32bits(k1):#x}"); e(f"v_mov_b32 v93, {f32bits(k2):#x}")
    wait_flags(F_LN2, 1, 28, extra=lambda: (e("ds_read_b128 v[32:35], v23"), e(f"ds_read_b32 v29, v21 offset:{F_T*4}")), sleep=2)
    e(f"v_readfirstlane_b32 s{sT}, v29")
    e("s_waitcnt vmcnt(0)")
    stamp(1)
    for k in range(8): e(f"v_lshlrev_b32 v{40+k}, 16, v{40+k}")
    for n in range(4): e(f"v_lshlrev_b32 v{48+2*n}, 16, v{48+2*n}")
    e("v_cmp_gt_u32 vcc, 32, v0"); e("v_mov_b32 v94, 1.0"); e("v_mov_b32 v95, 1.0"); e("v_cndmask_b32 v54, 0, v54, vcc")
    e("v_lshlrev_b32 v14, 16, v12")
    e("v_sub_f32 v16, v14, v32"); bf16r(16, 16); e("v_mul_f32 v16, v16, v33"); bf16r(16, 16)
    e("v_sub_f32 v16, v16, v34"); bf16r(16, 16); e("v_mul_f32 v16, v16, v35"); bf16r(16, 16)
    ACCB = 128
    for half in range(2):
        e.nop(1)
        for k in range(16): e(f"v_readlane_b32 s{64+k}, v16, {16*half+k}")
        e.nop(2)
        NI = o["bilp"]
        for k in range(0, 16, 2 * NI):
            dps = [16 * half + k + 2 * q_ for q_ in range(NI)]
            for n in range(4):
                R = range(NI)
                U = [f"v[{100+6*q_}:{101+6*q_}]" for q_ in R]; Z = [f"v[{102+6*q_}:{103+6*q_}]" for q_ in R]; G = [f"v[{104+6*q_}:{105+6*q_}]" for q_ in R]
                WB = f"v[{40+2*n}:{41+2*n}]"; W2 = f"v[{48+2*n}:{49+2*n}]"
                for q_, d in enumerate(dps): e(f"v_pk_fma_f32 {U[q_]}, s[{64+(d&15)}:{65+(d&15)}], {WB}, {WB} op_sel:[0,0,1] op_sel_hi:[1,0,1]")
                for q_ in R: e(f"v_pk_mul_f32 {Z[q_]}, {U[q_]}, {U[q_]}")
                for q_ in R: e(f"v_pk_fma_f32 {Z[q_]}, {Z[q_]}, v[92:93], v[92:93] op_sel:[0,1,0] op_sel_hi:[1,1,0]")
                for q_ in R: e(f"v_pk_mul_f32 {Z[q_]}, {Z[q_]}, {U[q_]}")
                for q_ in R: e(f"v_pk_mul_f32 {G[q_]}, {U[q_]}, {W2} op_sel_hi:[1,0]")
                for q_ in R: e(f"v_exp_f32 v{102+6*q_}, v{102+6*q_}"); e(f"v_exp_f32 v{103+6*q_}, v{103+6*q_}")
                e.nop(1)
                for q_ in R: e(f"v_pk_add_f32 {Z[q_]}, {Z[q_]}, v[94:95]")
                for q_ in R: e(f"v_rcp_f32 v{102+6*q_}, v{102+6*q_}"); e(f"v_rcp_f32 v{103+6*q_}, v{103+6*q_}")
                e.nop(1)
                for q_, d in enumerate(dps):
                    A_ = f"v[{ACCB+d}:{ACCB+d+1}]"
                    if n == 0: e(f"v_pk_mul_f32 {A_}, {G[q_]}, {Z[q_]}")
                    else: e(f"v_pk_fma_f32 {A_}, {G[q_]}, {Z[q_]}, {A_}")
    stamp(3)
    e.nop(2)
    for k in range(16):
        e(f"v_permlane32_swap_b32 v{ACCB+k}, v{ACCB+16+k}")
    for k in range(16): e(f"v_add_f32 v{ACCB+k}, v{ACCB+k}, v{ACCB+16+k}")
    e.nop(1)
    for k in range(8): e(f"v_permlane16_swap_b32 v{ACCB+k}, v{ACCB+8+k}")
    for k in range(8): e(f"v_add_f32 v{ACCB+k}, v{ACCB+k}, v{ACCB+8+k}")
    for sh in (8, 4, 2, 1):
        e.nop(1)
        for k in range(8): e(f"v_add_f32_dpp v{ACCB+k}, v{ACCB+k}, v{ACCB+k} row_ror:{sh} {DPP}")
    e("s_lshl_b32 s57, s52, 7"); e(f"s_add_u32 s57, s57, {YP}"); e("v_lshlrev_b32 v24, 5, v2"); e("v_add_u32 v24, s57, v24")
    e("s_mov_b32 exec_lo, 0x00010001"); e("s_mov_b32 exec_hi, 0x00010001")
    e(f"ds_write_b128 v24, v[{ACCB}:{ACCB+3}]"); e(f"ds_write_b128 v24, v[{ACCB+4}:{ACCB+7}] offset:16")
    e("s_mov_b64 exec, -1")
    e("s_cmp_eq_u32 s52, 0"); e("s_cbranch_scc1 L_final")
    set_flag(F_G)
    e("s_waitcnt lgkmcnt(0)")
    dump_stamps()
    e("s_endpgm")
    e.label("L_final")
    tagbytes(60)
    e("s_mov_b32 s64, 0x07060500")
    for k in range(4): e(f"v_mov_b32 v{8+k}, s{60+k}")
    e("v_lshlrev_b32 v24, 2, v3"); e(f"v_add_u32 v24, {YP}, v24")
    wait_flags(F_G, 1, 28, extra=lambda: [e(f"ds_read_b32 v{96+i}, v24 offset:{64*i}") for i in range(4)])
    for k in range(4): e(f"v_perm_b32 v{4+k}, v{96+k}, v{8+k}, s64")
    e("s_lshl_b32 s56, s2, 8"); e(f"s_add_u32 s56, s56, {GB}")
    e("v_lshlrev_b32 v24, 4, v0")
    e("s_mov_b64 exec, 0xffff")
    e("buffer_store_dwordx4 v[4:7], v24, s[28:31], s56 offen sc1")
    e("s_mov_b64 exec, -1")
    stamp(4)
    e("s_lshr_b32 s53, s49, 3"); e("s_lshl_b32 s53, s53, 3"); e("s_add_u32 s53, s53, s48")
    e("s_and_b32 s54, s49, 7")
    e("s_lshr_b32 s55, s53, 1"); e("s_lshl_b32 s55, s55, 6"); e("s_and_b32 s56, s53, 1"); e("s_lshl_b32 s56, s56, 3"); e("s_add_u32 s55, s55, s56"); e("s_add_u32 s55, s55, s54")
    e("v_lshlrev_b32 v25, 5, v2"); e("s_lshl_b32 s55, s55, 1")
    e("buffer_load_ushort v12, v25, s[32:35], s55 offen")
    e("v_lshlrev_b32 v26, 2, v3"); e("v_add_u32 v26, v26, v2"); e("v_lshlrev_b32 v26, 8, v26")
    e("s_lshr_b32 s56, s53, 1"); e("s_lshl_b32 s56, s56, 12"); e("s_and_b32 s57, s53, 1"); e("s_lshl_b32 s57, s57, 3"); e("s_add_u32 s57, s57, s54"); e("s_lshl_b32 s57, s57, 4")
    e("s_add_u32 s57, s57, s56"); e(f"s_add_u32 s57, s57, {GB}")
    e("v_lshlrev_b32 v24, 7, v0")
    e("s_lshl_b32 s56, s53, 13"); e("s_lshl_b32 s58, s54, 4"); e("s_add_u32 s56, s56, s58"); e(f"s_add_u32 s56, s56, {FB}")
    srd(36, 24, 2048)
    wait_flags(F_MP, 2, 28, sleep=4)
    mpoll([dict(issue=lambda: e("buffer_load_dwordx4 v[32:35], v26, s[28:31], s57 offen sc1"), check=lambda: chk4(32, 60), mask=70, init=(0x000f000f, 0x000f000f))])
    reduce_scatter4(32); e("v_mov_b32 v96, v32"); e.nop(2)
    e(f"v_add_f32_dpp v96, v96, v96 quad_perm:[1,0,3,2] {DPP}"); e.nop(2)
    e(f"v_add_f32_dpp v96, v96, v96 quad_perm:[2,3,0,1] {DPP}")
    bf16r(96, 96)
    e("s_and_b32 s59, s59, 0xffff"); e("s_lshl_b32 s59, s59, 16")
    e("v_add_f32 v96, s59, v96"); bf16r(96, 96)
    e(f"v_mul_f32 v97, {f32bits(-math.log2(math.e)):#x}, v96"); e("v_exp_f32 v97, v97"); e.nop(1); e("v_add_f32 v97, 1.0, v97"); e("v_rcp_f32 v97, v97"); e.nop(1)
    e("v_mul_f32 v96, v96, v97"); bf16r(96, 96)
    e("v_lshlrev_b32 v14, 16, v12")
    stamp(1)
    wait_flags(F_PUB3, 1, 28, sleep=1)
    if o["prio"]: e("s_setprio 3")
    if o["dl3"]: e(f"s_sleep {o['dl3']}")
    stamp(5)
    mpoll([dict(issue=lambda: e("buffer_load_dwordx4 v[28:31], v24, s[28:31], s56 offen sc1"), check=lambda: chk4(28, 100), mask=70)], cnt=69)
    stamp(6)
    reduce_scatter4(28)
    allreduce_row16(28, "v_add_f32")
    bf16r(28, 28)
    e("v_mul_f32 v28, v28, v96"); bf16r(28, 28)
    e("v_add_f32 v28, v28, v14")
    e("v_cvt_pk_bf16_f32 v28, v28, v28")
    e("s_mov_b32 exec_lo, 0x00010001"); e("s_mov_b32 exec_hi, 0x00010001")
    e("buffer_store_short v28, v25, s[36:39], s55 offen")
    l = L("ne"); e("s_cmp_lg_u32 s2, 0"); e(f"s_cbranch_scc1 {l}")
    e("s_mov_b64 exec, 1")
    e(f"s_mul_i32 s57, s{sT}, {TINV:#x}"); e("v_mov_b32 v20, s57"); e("v_mov_b32 v23, 0")
    e("buffer_store_dword v20, v23, s[28:31], 0 offen sc1")
    e.label(l)
    e("s_mov_b64 exec, -1")
    stamp(7)
    dump_stamps(cnts=[(2, 69)], final=True)
    e("s_endpgm")
    e.label("L_abort")
    e("s_endpgm")
    e.label("L_exit")

    probs = check(a.lines)
    body = a.text()
    nv = 224
    PAD = ".p2align 12\n.fill 832, 4, 0xbf810000\n" if o["pgal"] else ""
    hdr = open("cdna_kernels/" + KN + ".s.ref").read().split("; Override launch")[0]
    out = hdr + f"; Override launch geometry by editing the next line.\n; @launch grid=(256,1,1) block=(512,1,1) lds={LDS_BYTES}\n" + DOC.lstrip("\n")
    out += f""".amdgcn_target "amdgcn-amd-amdhsa--gfx950"
.text
.globl {KN}_kernel
{PAD}.p2align 8
.type {KN}_kernel,@function
{KN}_kernel:
{body}
    s_endpgm
.section .rodata,"a"
.p2align 6
.amdhsa_kernel {KN}_kernel
  .amdhsa_next_free_vgpr {nv}
  .amdhsa_next_free_sgpr 100
  .amdhsa_accum_offset {nv}
  .amdhsa_group_segment_fixed_size 0
  .amdhsa_kernarg_size 104
  .amdhsa_user_sgpr_count 2
  .amdhsa_user_sgpr_kernarg_segment_ptr 1
  .amdhsa_system_sgpr_workgroup_id_x 1
.end_amdhsa_kernel
"""
    return out, probs

if __name__ == "__main__":
    opt = {}
    name = sys.argv[1]
    for kv in sys.argv[2:]:
        k, v = kv.split("="); opt[k] = int(v, 0)
    s, probs = gen(opt)
    open(name, "w").write(s)
    for p in probs: print("HAZARD:", p)
```

```python
import sys, math, struct
from asmlib import Asm, check
KN = "recurrent_scan__sliding_block_cached__mixer_token_mlp__decode"
def f32bits(x): return struct.unpack("<I", struct.pack("<f", x))[0]

DEF = dict(stamps=0, nt=1, win=12, winkv=16, spinmax=1 << 20, prio=1, dl2=24, dl3=18, local=1, fb1=12, slp=1, bprio=1, bearly=1, bilp=2, wpre=3, cpf=1, tlb=0, early=0, vh=16, dl1=0, ntkv=-1, wqun=1, vi=16, gmap=1, bafter=0, lbar=0, pgal=1, pages=1)

QB, QL, GB, OB, FB, STB = 0x10000, 0x20000, 0x30000, 0x40000, 0x100000, 0x200000
WQ, KL, VL, WO = 0, 32768, 65536, 98304
QF = 131072; OP = QF + 4096; ML = OP + 8192; FL = ML + 128; OX = FL + 128; SX = OX + 1024
XN = SX + 64; LNS = XN + 512; YP = LNS + 16; STL = YP + 256; LDS_BYTES = STL + 256
F_QF, F_O, F_OX, F_K, F_V, F_WO, F_VI, F_MP, F_G, F_XN, F_LN2, F_T, F_QPUB, F_PUB3, F_P1 = 0, 4, 8, 12, 14, 16, 18, 20, 22, 23, 24, 25, 26, 27, 28
KEY0 = 61440
TMUL = 0x9e3779b1
TINV = pow(TMUL, -1, 1 << 32)
vE1V, vE1L, vQFR, vKA, vVA, vOPW, vMLW, vOPR, vMLR, vMST, vL16, vWOA, vE3V, vOXW, vOXR, vFLW = 192, 194, 196, 197, 201, 209, 210, 211, 212, 213, 214, 216, 220, 221, 222, 223
vMASK = 112
sMS, sE2, sE3, sE1, sE1G = 40, 41, 42, 43, 44

DOC = r"""
; ---------------------------------------------------------------------------------------------------------------
; ---------------------------------------------------------------------------------------------------------------
"""

def gen(opt):
    o = dict(DEF); o.update(opt)
    assert o["winkv"] <= 16
    NT = " nt" if o["nt"] else ""
    NTKV = NT if o["ntkv"] < 0 else (" nt" if o["ntkv"] else "")
    a = Asm(); e = a
    uid = [0]
    def L(p):
        uid[0] += 1; return f"L_{p}_{uid[0]}"
    sT, sCNT = 50, 51
    DPP = "row_mask:0xf bank_mask:0xf"
    def srd(d, lo, size):
        e(f"s_mov_b32 s{d}, s{lo}"); e(f"s_and_b32 s{d+1}, s{lo+1}, 0xffff"); e(f"s_mov_b32 s{d+2}, {size}"); e(f"s_mov_b32 s{d+3}, 0x20000")
    def stamp(k):
        if o["stamps"]: e(f"s_memrealtime s[{80+2*k}:{81+2*k}]")
    def dump_stamps(cnts=None, final=False):
        if not o["stamps"]: return
        if o["stamps"] == 3:
            e("s_waitcnt lgkmcnt(0)")
            e("s_mov_b64 exec, -1")
            e("s_lshl_b32 s76, s3, 5"); e(f"s_add_u32 s76, s76, {STL}"); e("v_mov_b32 v20, s76")
            for k in range(8): e(f"v_mov_b32 v{4+k}, s{80+2*k}")
            e("ds_write_b128 v20, v[4:7]"); e("ds_write_b128 v20, v[8:11] offset:16"); e("s_waitcnt lgkmcnt(0)")
            if final:
                e("s_sleep 20")
                e("s_load_dwordx2 s[76:77], s[0:1], 88"); e("s_waitcnt lgkmcnt(0)")
                e("s_mov_b32 s72, s76"); e("s_and_b32 s73, s77, 0xffff"); e("s_mov_b32 s74, 256"); e("s_mov_b32 s75, 0x20000")
                e(f"v_mov_b32 v20, {STL}"); e("v_mov_b32 v23, 0"); e("s_mov_b64 exec, 1")
                sel = [(2,0,1),(2,0,0),(4,1,0),(0,3,0),(0,5,0),(4,4,0),(2,6,0),(2,7,0),(0,0,0),(4,5,0),(2,2,0),(2,3,0),(6,4,0),(6,6,0),(6,7,0),(1,1,0)]
                for slot, (w, k, inv) in enumerate(sel):
                    e(f"ds_read_b32 v4, v20 offset:{w*32+k*4}"); e("s_waitcnt lgkmcnt(0)")
                    if inv: e("v_not_b32 v4, v4")
                    e(f"buffer_atomic_umax v4, v23, s[72:75], 0 offen offset:{4*slot}")
                e("s_waitcnt vmcnt(0)")
            return
        e("s_waitcnt lgkmcnt(0)")
        for (slot, sreg) in (cnts or []):
            e(f"s_mov_b32 s{80+2*slot}, s{sreg}"); e(f"s_mov_b32 s{81+2*slot}, 0")
        e("s_mov_b64 exec, -1")
        e("s_waitcnt vmcnt(0)")
        e("s_lshl_b32 s76, s2, 3"); e("s_add_u32 s76, s76, s3"); e("s_lshl_b32 s76, s76, 6"); e(f"s_add_u32 s76, s76, {STB}")
        for k in range(8):
            e(f"v_mov_b32 v{2*k+4}, s{80+2*k}"); e(f"v_mov_b32 v{2*k+5}, s{81+2*k}")
        e("v_mov_b32 v20, 0")
        e("s_mov_b64 exec, 1")
        for k in range(4):
            e(f"buffer_store_dwordx4 v[{4*k+4}:{4*k+7}], v20, s[28:31], s76 offen offset:{16*k}")
        e("s_waitcnt vmcnt(0)")
    def spin_tick():
        e(f"s_sub_u32 s{sCNT}, s{sCNT}, 1"); e("s_cbranch_scc1 L_abort")
    def and_flags(vt, n):
        if n == 2: e(f"v_and_b32 v{vt}, v{vt}, v{vt+1}")
        if n == 4:
            e(f"v_and_b32 v{vt}, v{vt}, v{vt+1}"); e(f"v_and_b32 v{vt+2}, v{vt+2}, v{vt+3}"); e(f"v_and_b32 v{vt}, v{vt}, v{vt+2}")
    def read_flags(first, n, vt):
        if n == 1: e(f"ds_read_b32 v{vt}, v21 offset:{first*4}")
        elif n == 2: e(f"ds_read_b64 v[{vt}:{vt+1}], v21 offset:{first*4}")
        else: e(f"ds_read_b128 v[{vt}:{vt+3}], v21 offset:{first*4}")
    def wait_flags(first, n, vt, extra=None, sleep=0, lowprio=None):
        if lowprio and o["prio"]: e(f"s_setprio {lowprio[0]}")
        l = L("wf"); e.label(l)
        read_flags(first, n, vt)
        if extra: extra()
        spin_tick()
        if sleep: e(f"s_sleep {sleep}")
        e("s_waitcnt lgkmcnt(0)")
        and_flags(vt, n)
        e(f"v_cmp_ne_u32 vcc, 0, v{vt}")
        e(f"s_cbranch_vccz {l}")
        if lowprio and o["prio"]: e(f"s_setprio {lowprio[1]}")
    def set_flag(idx, vaddr=21):
        e(f"ds_write_b32 v{vaddr}, v22 offset:{idx*4}")
    def bf16r(dst, src):
        e(f"v_cvt_pk_bf16_f32 v{dst}, v{src}, v{src}"); e(f"v_lshlrev_b32 v{dst}, 16, v{dst}")
    def allreduce_row16(v, op, shs=(8, 4, 2, 1)):
        for sh in shs:
            e.nop(2); e(f"{op}_dpp v{v}, v{v}, v{v} row_ror:{sh} {DPP}")
    def allreduce_xrow(v, t, op):
        e(f"v_mov_b32 v{t}, v{v}"); e.nop(2); e(f"v_permlane32_swap_b32 v{v}, v{t}"); e(f"{op} v{v}, v{v}, v{t}")
        e(f"v_mov_b32 v{t}, v{v}"); e.nop(2); e(f"v_permlane16_swap_b32 v{v}, v{t}"); e(f"{op} v{v}, v{v}, v{t}")
    def reduce_scatter4(b):
        e(f"v_permlane32_swap_b32 v{b}, v{b+2}"); e(f"v_permlane32_swap_b32 v{b+1}, v{b+3}")
        e(f"v_add_f32 v{b}, v{b}, v{b+2}"); e(f"v_add_f32 v{b+1}, v{b+1}, v{b+3}"); e.nop(2)
        e(f"v_permlane16_swap_b32 v{b}, v{b+1}"); e(f"v_add_f32 v{b}, v{b}, v{b+1}")
    def ln_stats(xf, t0, vm, vrs):
        s, t = t0, t0 + 1
        e(f"v_add_f32 v{s}, v{xf}, v{xf+1}"); e(f"v_add_f32 v{t}, v{xf+2}, v{xf+3}")
        for k in range(4, 16, 2):
            e(f"v_add_f32 v{s}, v{s}, v{xf+k}"); e(f"v_add_f32 v{t}, v{t}, v{xf+k+1}")
        e(f"v_add_f32 v{s}, v{s}, v{t}")
        allreduce_row16(s, "v_add_f32"); allreduce_xrow(s, t, "v_add_f32")
        e(f"v_mul_f32 v{s}, {f32bits(1/1024):#x}, v{s}")
        e(f"v_sub_f32 v{t}, v{xf}, v{s}"); e(f"v_sub_f32 v{t0+3}, v{xf+1}, v{s}")
        e(f"v_mul_f32 v{t0+2}, v{t}, v{t}"); e(f"v_mul_f32 v{t0+4}, v{t0+3}, v{t0+3}")
        for k in range(2, 16, 2):
            e(f"v_sub_f32 v{t}, v{xf+k}, v{s}"); e(f"v_sub_f32 v{t0+3}, v{xf+k+1}, v{s}")
            e(f"v_fmac_f32 v{t0+2}, v{t}, v{t}"); e(f"v_fmac_f32 v{t0+4}, v{t0+3}, v{t0+3}")
        e(f"v_add_f32 v{t0+2}, v{t0+2}, v{t0+4}")
        allreduce_row16(t0 + 2, "v_add_f32"); allreduce_xrow(t0 + 2, t, "v_add_f32")
        e(f"v_mul_f32 v{t0+2}, {f32bits(1/1024):#x}, v{t0+2}")
        bf16r(vm, s)
        bf16r(t, t0 + 2)
        e(f"v_add_f32 v{t}, {f32bits(1e-5):#x}, v{t}")
        bf16r(t, t)
        e(f"v_sqrt_f32 v{t}, v{t}"); e.nop(1)
        bf16r(t, t)
        e(f"v_rcp_f32 v{vrs}, v{t}"); e.nop(1)
    def unpack(dlo, dhi, src):
        e(f"v_lshlrev_b32 v{dlo}, 16, v{src}"); e(f"v_and_b32 v{dhi}, 0xffff0000, v{src}")
    def tagbytes(s0):
        for k in range(4):
            e(f"s_lshr_b32 s{s0+k}, s{sT}, {8*k}"); e(f"s_and_b32 s{s0+k}, s{s0+k}, 0xff")
    def chk4(b, t):
        e(f"v_xor_b32 v{t}, s60, v{b}"); e(f"v_bitop3_b32 v{t}, v{t}, v{b+1}, s61 bitop3:0xf6"); e(f"v_bitop3_b32 v{t}, v{t}, v{b+2}, s62 bitop3:0xf6")
        e(f"v_bitop3_b32 v{t}, v{t}, v{b+3}, s63 bitop3:0xf6"); e(f"v_and_b32 v{t}, 0xff, v{t}"); e(f"v_cmp_ne_u32 vcc, 0, v{t}")
    def mpoll(loads, cnt=None, pre=None, shadow=None):
        top = L("mp"); ent = L("me")
        for ld in loads:
            ini = ld.get('init', -1); m = ld['mask']
            if ini == -1: e(f"s_mov_b64 s[{m}:{m+1}], -1")
            else: e(f"s_mov_b32 s{m}, {ini[0]:#x}"); e(f"s_mov_b32 s{m+1}, {ini[1]:#x}")
        if cnt: e(f"s_mov_b32 s{cnt}, 0")
        for ld in loads:
            m = ld['mask']
            if ld.get('init', -1) != -1: e(f"s_mov_b64 exec, s[{m}:{m+1}]")
            ld['issue']()
            if ld.get('init', -1) != -1: e("s_mov_b64 exec, -1")
        if shadow: shadow()
        e(f"s_branch {ent}")
        e.label(top)
        spin_tick()
        if pre: pre()
        for ld in loads:
            sk = L("sk"); m = ld['mask']
            e(f"s_mov_b64 exec, s[{m}:{m+1}]"); e(f"s_cbranch_execz {sk}"); ld['issue'](); e.label(sk)
        e("s_mov_b64 exec, -1")
        e.label(ent)
        if cnt: e(f"s_add_u32 s{cnt}, s{cnt}, 1")
        e("s_waitcnt vmcnt(0)")
        e("s_mov_b64 s[66:67], 0")
        for ld in loads:
            sk = L("sc"); m = ld['mask']
            e(f"s_mov_b64 exec, s[{m}:{m+1}]"); e(f"s_cbranch_execz {sk}")
            ld['check']()
            if ld.get('take'):
                e("s_andn2_b64 exec, exec, vcc"); sk2 = L("sd"); e(f"s_cbranch_execz {sk2}"); ld['take'](); e.label(sk2)
            e(f"s_mov_b64 s[{m}:{m+1}], vcc"); e("s_or_b64 s[66:67], s[66:67], vcc")
            e.label(sk)
        e("s_mov_b64 exec, -1")
        e("s_cmp_lg_u64 s[66:67], 0"); e(f"s_cbranch_scc1 {top}")
    LOW = (0, 3)

    e("s_cmp_ge_u32 s2, 256"); e("s_cbranch_scc1 L_exit")
    stamp(0)
    e("s_load_dwordx16 s[4:19], s[0:1], 0")
    e("s_load_dwordx4 s[20:23], s[0:1], 64")
    e("s_load_dwordx2 s[24:25], s[0:1], 80")
    e("s_load_dwordx2 s[26:27], s[0:1], 96")
    e("v_lshrrev_b32 v1, 6, v0"); e("v_and_b32 v0, 63, v0")
    e("v_lshrrev_b32 v2, 4, v0"); e("v_and_b32 v3, 15, v0")
    e("v_readfirstlane_b32 s3, v1")
    e("s_and_b32 s48, s2, 7"); e("s_lshr_b32 s49, s2, 3")
    e(f"s_mov_b32 s{sCNT}, {o['spinmax']}")
    e(f"v_mov_b32 v21, {FL}"); e("v_mov_b32 v22, 1")
    e("s_lshl_b32 s46, s48, 3"); e("s_and_b32 s47, s49, 7"); e("s_add_u32 s46, s46, s47"); e("s_lshr_b32 s47, s49, 3")
    e("s_cmp_eq_u32 s3, 0"); e("s_cbranch_scc0 L_not0")
    e("v_lshrrev_b32 v24, 3, v0"); e("v_and_b32 v25, 7, v0")
    e("v_lshrrev_b32 v26, 1, v25"); e("v_bfe_u32 v27, v24, 1, 2"); e("v_xor_b32 v26, v26, v27")
    e("v_lshlrev_b32 v26, 1, v26"); e("v_and_b32 v25, 1, v25"); e("v_or_b32 v26, v26, v25"); e("v_lshlrev_b32 v26, 4, v26")
    e("v_lshl_add_u32 v24, v24, 13, v26")
    e("s_lshl_b32 s56, s47, 21"); e("s_lshl_b32 s57, s46, 7"); e("s_add_u32 s56, s56, s57")
    e(f"s_mov_b32 m0, {WQ}"); e("s_mov_b32 s57, 0")
    e("s_waitcnt lgkmcnt(0)")
    srd(36, 10, 8388608)
    UN = o["wqun"]
    e.label("L_wqloop")
    for u_ in range(UN):
        e(f"buffer_load_dwordx4 v24, s[36:39], s56 offen{NT} lds")
        e("s_add_u32 m0, m0, 1024"); e(f"s_add_u32 s56, s56, {8*8192}")
    if UN < 32:
        e(f"s_add_u32 s57, s57, {UN}"); e("s_cmp_lt_u32 s57, 32"); e("s_cbranch_scc1 L_wqloop")
    if o["early"]: stamp(4)
    e("s_barrier")
    e("s_branch L_qproj")
    e.label("L_not0")
    e("s_cmp_eq_u32 s3, 1"); e("s_cbranch_scc0 L_not1")
    e("v_lshlrev_b32 v23, 5, v0"); e("v_mov_b32 v24, 0")
    e("s_waitcnt lgkmcnt(0)")
    srd(28, 26, 268435456); srd(32, 4, 2048)
    e("buffer_load_dwordx4 v[4:7], v23, s[32:35], 0 offen")
    e("buffer_load_dwordx4 v[8:11], v23, s[32:35], 0 offen offset:16")
    e("buffer_load_dword v20, v24, s[28:31], 0 offen sc1")
    e("s_barrier")
    e("s_branch L_ln")
    e.label("L_not1")
    e("s_cmp_ge_u32 s3, 6"); e("s_cbranch_scc1 L_bearly")
    e("s_cmp_ge_u32 s3, 4"); e("s_cbranch_scc1 L_learly")
    if o["cpf"]:
        lc = L("cpf"); e("s_cmp_eq_u32 s3, 2"); e(f"s_cbranch_scc0 {lc}")
        e("s_getpc_b64 s[54:55]")
        e.label("L_pc")
        e(f"s_sub_u32 s54, s54, L_pc-{KN}_kernel"); e("s_subb_u32 s55, s55, 0")
        e("s_mul_i32 s56, s49, 6"); e("v_add_u32 v24, s56, v0"); e("v_lshlrev_b32 v24, 7, v24")
        e(f"s_mov_b32 s56, L_exit-{KN}_kernel")
        e("v_cmp_gt_u32 vcc, s56, v24")
        e("s_and_b64 exec, vcc, 0x3f")
        lc2 = L("cpf"); e(f"s_cbranch_execz {lc2}")
        e("global_load_dword v150, v24, s[54:55]")
        e.label(lc2)
        e("s_mov_b64 exec, -1")
        e.label(lc)
    if o["tlb"]:
        lt = L("tlb"); e("s_cmp_eq_u32 s3, 3"); e(f"s_cbranch_scc0 {lt}")
        e("s_lshr_b32 s53, s48, 1"); e("s_lshl_b32 s53, s53, 24"); e("s_and_b32 s54, s48, 1"); e("s_lshl_b32 s54, s54, 4"); e("s_lshr_b32 s55, s49, 1"); e("s_add_u32 s54, s54, s55")
        e("s_lshl_b32 s54, s54, 15"); e("s_add_u32 s53, s53, s54"); e(f"s_add_u32 s53, s53, {KEY0*256}")
        e("s_lshr_b32 s55, s49, 2"); e("s_lshl_b32 s55, s55, 3"); e("s_add_u32 s55, s55, s48"); e("s_lshl_b32 s55, s55, 17")
        e("v_mov_b32 v24, s53"); e("v_mov_b32 v25, s55"); e("v_mov_b32 v26, 0")
        e("s_waitcnt lgkmcnt(0)")
        e("s_mov_b64 exec, 1")
        e("global_load_dword v151, v24, s[8:9]" + NT); e("global_load_dword v152, v25, s[12:13]" + NT)
        e("global_load_dword v153, v24, s[6:7]" + NT); e("global_load_dword v154, v26, s[24:25]")
        e("s_mov_b64 exec, -1")
        e.label(lt)
    e("s_barrier")
    e("s_branch L_w23")
    e.label("L_learly")
    lz = L("nz"); e("s_cmp_eq_u32 s3, 4"); e(f"s_cbranch_scc0 {lz}")
    e("v_lshlrev_b32 v4, 2, v0"); e(f"v_add_u32 v4, {FL}, v4"); e("v_mov_b32 v5, 0")
    e("s_mov_b64 exec, 0xffffffff"); e("ds_write_b32 v4, v5"); e("s_mov_b64 exec, -1"); e("s_waitcnt lgkmcnt(0)")
    e.label(lz)
    if not o["lbar"]: e("s_barrier")
    e("s_branch L_loader")
    e.label("L_bearly")
    e("s_sub_u32 s52, s3, 6")
    e("s_lshr_b32 s53, s2, 4"); e("s_and_b32 s54, s2, 15")
    e("v_and_b32 v23, 31, v0"); e("v_lshlrev_b32 v23, 1, v23"); e("s_lshl_b32 s55, s53, 7"); e("s_lshl_b32 s56, s52, 6"); e("s_add_u32 s55, s55, s56")
    e("s_mul_i32 s56, s54, 448"); e("v_lshlrev_b32 v24, 1, v0")
    e("s_waitcnt lgkmcnt(0)")
    srd(28, 26, 268435456); srd(32, 4, 2048)
    srd(36, 16, 7168); srd(40, 18, 7168); srd(44, 20, 7168)
    if o["bafter"]: e("s_barrier")
    e("buffer_load_ushort v12, v23, s[32:35], s55 offen")
    for n in range(4):
        e(f"buffer_load_ushort v{40+2*n}, v24, s[36:39], s56 offen offset:{128*n}")
        e(f"buffer_load_ushort v{41+2*n}, v24, s[40:43], s56 offen offset:{128*n}")
        e(f"buffer_load_ushort v{48+2*n}, v24, s[44:47], s56 offen offset:{128*n}")
    e("s_load_dword s59, s[22:23], 0")
    if not o["bafter"]: e("s_barrier")
    e("s_branch L_bbranch")

    def common_srd():
        e("s_waitcnt lgkmcnt(0)")
        srd(28, 26, 268435456)
        srd(32, 4, 2048)

    def prep():
        e("s_lshr_b32 s52, s48, 1"); e("s_lshl_b32 s52, s52, 3"); e("s_and_b32 s54, s49, 1"); e("s_lshl_b32 s54, s54, 2"); e("s_add_u32 s52, s52, s54")
        e("s_and_b32 s54, s48, 1"); e("s_lshl_b32 s54, s54, 4"); e("s_lshr_b32 s55, s49, 1"); e("s_add_u32 s55, s55, s54")
        e("s_lshl_b32 s57, s3, 2"); e(f"v_add_u32 v{vFLW}, s57, v21")
        e("v_lshrrev_b32 v28, 2, v3")
        for u in range(4):
            e(f"v_cmp_eq_u32 vcc, {u}, v28"); e.nop(2); e(f"v_cndmask_b32 v{vMASK+u}, 0, -1, vcc")
        e("v_lshrrev_b32 v28, 3, v0"); e("v_and_b32 v29, 7, v0")
        for i in range(2):
            e(f"v_add_u32 v30, {8*i}, v28")
            e("v_and_b32 v31, 3, v30"); e("v_lshlrev_b32 v31, 2, v31"); e(f"v_lshrrev_b32 v{vE1V+i}, 2, v30"); e(f"v_add_u32 v31, v31, v{vE1V+i}"); e("v_lshlrev_b32 v31, 9, v31")
            e(f"v_lshl_add_u32 v{vE1V+i}, v29, 4, v31")
            e("v_lshrrev_b32 v31, 1, v29"); e("v_lshl_add_u32 v31, v31, 4, v30"); e("v_lshlrev_b32 v31, 4, v31")
            e("v_and_b32 v30, 1, v29"); e("v_lshl_add_u32 v31, v30, 3, v31")
            e("s_lshl_b32 s57, s3, 10"); e(f"s_add_u32 s57, s57, {QF}"); e(f"v_add_u32 v{vE1L+i}, s57, v31")
        e(f"s_lshl_b32 s{sE1G}, s52, 11"); e("s_lshl_b32 s57, s3, 7"); e(f"s_add_u32 s{sE1G}, s{sE1G}, s57"); e(f"s_add_u32 s{sE1G}, s{sE1G}, {QB}")
        if o["local"]:
            e("s_xor_b32 s57, s48, s49"); e("s_and_b32 s57, s57, 1")
            e(f"s_mov_b32 s58, {QL - QB}"); e("s_cmp_eq_u32 s57, 0"); e("s_cselect_b32 s58, s58, 0"); e(f"s_add_u32 s{sE1}, s{sE1G}, s58")
        else: e(f"s_mov_b32 s{sE1}, s{sE1G}")
        e(f"v_lshlrev_b32 v{vL16}, 4, v0"); e(f"v_add_u32 v{vQFR}, {QF}, v{vL16}")
        e("s_lshl_b32 s57, s3, 13"); e(f"s_add_u32 s57, s57, {KL}")
        e("v_lshlrev_b32 v28, 8, v3"); e("v_add_u32 v28, s57, v28"); e("v_xor_b32 v29, v2, v3"); e(f"v_lshl_add_u32 v{vKA}, v29, 4, v28")
        for t in range(1, 4): e(f"v_xor_b32 v{vKA+t}, {t<<6}, v{vKA}")
        e("v_lshrrev_b32 v28, 2, v3"); e("v_lshl_add_u32 v28, v2, 2, v28")
        e("v_and_b32 v29, 7, v28"); e("v_lshlrev_b32 v29, 5, v29"); e("v_lshl_add_u32 v28, v28, 8, v29")
        e("v_and_b32 v29, 3, v3"); e("v_lshl_add_u32 v28, v29, 3, v28")
        e("s_lshl_b32 s57, s3, 13"); e(f"s_add_u32 s57, s57, {VL}"); e(f"v_add_u32 v{vVA}, s57, v28")
        for t in range(1, 8): e(f"v_xor_b32 v{vVA+t}, {t<<5}, v{vVA}")
        e("s_lshl_b32 s57, s3, 11"); e(f"s_add_u32 s57, s57, {OP}"); e(f"v_add_u32 v{vOPW}, s57, v{vL16}")
        e("s_lshl_b32 s57, s3, 3"); e(f"s_add_u32 s57, s57, {ML}"); e("v_lshlrev_b32 v28, 5, v3"); e(f"v_add_u32 v{vMLW}, s57, v28")
        e("s_and_b32 s57, s3, 1"); e("s_lshl_b32 s57, s57, 10"); e(f"s_add_u32 s57, s57, {OP}"); e(f"v_add_u32 v{vOPR}, s57, v{vL16}")
        e("v_and_b32 v28, 3, v3"); e("v_lshlrev_b32 v29, 5, v28"); e(f"v_add_u32 v{vMLR}, {ML}, v29")
        e("v_lshlrev_b32 v28, 14, v28"); e("v_lshrrev_b32 v29, 3, v3"); e("v_lshl_add_u32 v28, v29, 13, v28")
        e("v_bfe_u32 v29, v3, 2, 1"); e("v_lshl_add_u32 v29, v29, 2, v2"); e(f"v_lshl_add_u32 v{vMST}, v29, 4, v28")
        e(f"s_lshl_b32 s{sMS}, s52, 14"); e("s_lshl_b32 s57, s55, 8"); e(f"s_add_u32 s{sMS}, s{sMS}, s57"); e("s_and_b32 s57, s3, 1"); e("s_lshl_b32 s57, s57, 7")
        e(f"s_add_u32 s{sMS}, s{sMS}, s57"); e(f"s_add_u32 s{sMS}, s{sMS}, {OB}")
        if o["gmap"]: e("s_lshr_b32 s56, s49, 2"); e("s_lshl_b32 s57, s48, 3"); e("s_add_u32 s56, s56, s57")
        else: e("s_lshr_b32 s56, s49, 2"); e("s_lshl_b32 s56, s56, 3"); e("s_add_u32 s56, s56, s48")
        e(f"s_lshl_b32 s{sE2}, s56, 13"); e("s_lshl_b32 s57, s3, 11"); e(f"s_add_u32 s{sE2}, s{sE2}, s57"); e(f"s_add_u32 s{sE2}, s{sE2}, {OB}")
        e("v_lshrrev_b32 v28, 2, v3"); e("v_lshl_add_u32 v29, v28, 2, v2"); e("v_lshlrev_b32 v29, 9, v29")
        e("v_and_b32 v30, 1, v2"); e("v_lshl_add_u32 v30, v30, 2, v28"); e("v_lshl_add_u32 v29, v30, 5, v29")
        e("v_and_b32 v30, 3, v3"); e("v_lshl_add_u32 v29, v30, 3, v29"); e(f"v_add_u32 v29, {WO}, v29")
        e("s_lshl_b32 s57, s3, 7"); e(f"v_xor_b32 v{vWOA}, s57, v29")
        for u in range(1, 4): e(f"v_xor_b32 v{vWOA+u}, {u<<5}, v{vWOA}")
        e("s_and_b32 s57, s49, 3"); e("s_lshl_b32 s57, s57, 3"); e("s_lshl_b32 s58, s3, 1"); e("s_add_u32 s57, s57, s58"); e(f"s_lshl_b32 s{sE3}, s57, 13")
        e("s_lshl_b32 s57, s56, 7"); e(f"s_add_u32 s{sE3}, s{sE3}, s57"); e(f"s_add_u32 s{sE3}, s{sE3}, {FB}")
        e("v_lshrrev_b32 v28, 3, v3"); e("v_lshlrev_b32 v28, 13, v28"); e("v_and_b32 v29, 7, v3"); e(f"v_lshl_add_u32 v{vE3V}, v29, 4, v28")
        e(f"v_add_u32 v{vOXR}, {OX}, v{vL16}"); e("s_lshl_b32 s57, s3, 2"); e(f"v_add_u32 v{vOXW}, s57, v{vOXR}")

    e.label("L_ln")
    if o["prio"]: e("s_setprio 3")
    e("s_lshl_b32 s54, s47, 4"); e("v_subrev_u32 v23, s54, v0"); e("v_lshlrev_b32 v23, 5, v23"); e(f"v_add_u32 v23, {XN}, v23")
    e("s_mov_b32 s56, 0xffff"); e("s_mov_b32 s57, 0"); e("s_lshl_b64 s[58:59], s[56:57], s54")
    e("s_waitcnt vmcnt(0)")
    stamp(2)
    e(f"v_readfirstlane_b32 s{sT}, v20")
    for k in range(8): unpack(24 + 2 * k, 25 + 2 * k, 4 + k)
    e(f"s_add_u32 s{sT}, s{sT}, 1"); e(f"s_mul_i32 s{sT}, s{sT}, {TMUL:#x}")
    ln_stats(24, 98, 104, 105)
    e(f"v_mov_b32 v20, s{sT}"); e(f"ds_write_b32 v21, v20 offset:{F_T*4}")
    for k in range(16): e(f"v_sub_f32 v{24+k}, v{24+k}, v104")
    for k in range(8): e(f"v_cvt_pk_bf16_f32 v{4+k}, v{24+2*k}, v{25+2*k}")
    for k in range(8): unpack(24 + 2 * k, 25 + 2 * k, 4 + k)
    for k in range(16): e(f"v_mul_f32 v{24+k}, v{24+k}, v105")
    for k in range(8): e(f"v_cvt_pk_bf16_f32 v{4+k}, v{24+2*k}, v{25+2*k}")
    e("s_mov_b64 exec, s[58:59]")
    e("ds_write_b128 v23, v[4:7]"); e("ds_write_b128 v23, v[8:11] offset:16")
    e("s_mov_b64 exec, -1")
    set_flag(F_XN)
    stamp(1)
    for k in range(8): unpack(24 + 2 * k, 25 + 2 * k, 4 + k)
    ln_stats(24, 98, 106, 107)
    e(f"v_mov_b32 v23, {LNS}"); e("ds_write_b128 v23, v[104:107]")
    set_flag(F_LN2)
    stamp(3)
    e("s_branch L_prep")
    e.label("L_qproj")
    if o["prio"]: e("s_setprio 3")
    stamp(1)
    srd(28, 26, 268435456)
    e("s_branch L_prep")
    e.label("L_qproj2")
    e("v_lshrrev_b32 v24, 2, v3"); e("v_and_b32 v25, 3, v3")
    e("v_lshlrev_b32 v26, 2, v2"); e("v_add_u32 v26, v26, v24")
    e("v_lshrrev_b32 v27, 1, v26"); e("v_and_b32 v27, 3, v27")
    e("v_lshlrev_b32 v26, 7, v26"); e("v_lshlrev_b32 v25, 3, v25"); e("v_add_u32 v26, v26, v25")
    e("v_lshlrev_b32 v27, 5, v27"); e("v_add_u32 v108, v26, v27")
    for u in range(1, 4): e(f"v_xor_b32 v{108+u}, {u<<5}, v108")
    e("s_lshr_b32 s57, s46, 1"); e("s_lshl_b32 s57, s57, 11"); e("s_and_b32 s58, s46, 1"); e("s_lshl_b32 s58, s58, 8"); e("s_add_u32 s57, s57, s58")
    e("s_lshl_b32 s58, s47, 9"); e("s_add_u32 s57, s57, s58"); e(f"s_add_u32 s46, s57, {QB}"); e(f"s_add_u32 s47, s57, {QL}")
    e("v_lshlrev_b32 v27, 2, v0")
    e("v_lshlrev_b32 v26, 3, v2"); e(f"v_add_u32 v26, {XN}, v26")
    def xn_extra():
        e(f"ds_read_b32 v29, v21 offset:{F_T*4}")
        for k in range(8): e(f"ds_read2_b64 v[{40+4*k}:{43+4*k}], v26 offset0:{8*k} offset1:{8*k+4}")
    wait_flags(F_XN, 1, 28, extra=xn_extra)
    e(f"v_readfirstlane_b32 s{sT}, v29")
    stamp(2)
    csc = math.log2(math.e) / math.sqrt(128.0)
    e(f"s_mov_b32 s58, {f32bits(csc):#x}")
    def wq_reads(k):
        B = 128 + 16 * (k & 1)
        for u in range(4):
            for rho in range(2):
                r = B + 4 * u + 2 * rho
                e(f"ds_read_b64_tr_b16 v[{r}:{r+1}], v{108+u} offset:{k*4096 + rho*2048}")
    e("s_waitcnt vmcnt(28)")
    wq_reads(0)
    for k in range(8):
        B = 128 + 16 * (k & 1)
        if k < 7:
            e(f"s_waitcnt vmcnt({24 - 4*k})")
            if k == 6: stamp(3)
            wq_reads(k + 1)
            e("s_waitcnt lgkmcnt(8)")
        else:
            e("s_waitcnt lgkmcnt(0)")
        for u in range(4):
            c = "0" if k == 0 else f"v[{72+4*u}:{75+4*u}]"
            e(f"v_mfma_f32_16x16x32_bf16 v[{72+4*u}:{75+4*u}], v[{40+4*k}:{43+4*k}], v[{B+4*u}:{B+4*u+3}], {c}")
    e(f"v_mov_b32 v49, s{sT}"); e(f"v_mov_b32 v51, s{sT}")
    e("s_mov_b32 s56, 0x11111111"); e("s_mov_b32 s57, 0x11111111")
    e("s_mov_b32 s60, 0xffff0000"); e("s_mov_b32 s61, 0"); e("s_mov_b32 s62, 0"); e("s_mov_b32 s63, 0xffff"); e("s_mov_b32 s64, 0"); e("s_mov_b32 s65, 0xffff0000")
    e.nop(2)
    e("v_cndmask_b32 v104, v72, v76, s[60:61]"); e("v_cndmask_b32 v104, v104, v80, s[62:63]"); e("v_cndmask_b32 v104, v104, v84, s[64:65]")
    e("v_mul_f32 v104, s58, v104"); e.nop(2)
    e(f"v_mov_b32_dpp v105, v104 quad_perm:[1,0,3,2] {DPP}")
    e("v_cvt_pk_bf16_f32 v48, v104, v105"); e.nop(2)
    e(f"v_mov_b32_dpp v50, v48 quad_perm:[2,3,0,1] {DPP}")
    e("s_mov_b64 exec, s[56:57]")
    if o["local"]: e("buffer_store_dwordx4 v[48:51], v27, s[28:31], s47 offen")
    e("buffer_store_dwordx4 v[48:51], v27, s[28:31], s46 offen sc1")
    e("s_mov_b64 exec, -1")
    set_flag(F_QPUB)
    stamp(5)
    e("s_branch L_attn")

    if o["pages"]: e(".p2align 12")
    e.label("L_w23")
    if o["prio"]: e("s_setprio 3")
    common_srd()
    e.label("L_prep")
    prep()
    e("s_cmp_eq_u32 s3, 0"); e("s_cbranch_scc1 L_qproj2")
    e("s_cmp_eq_u32 s3, 1"); e("s_cbranch_scc1 L_attn")
    wait_flags(F_XN, 1, 28, extra=lambda: e(f"ds_read_b32 v29, v21 offset:{F_T*4}"), sleep=o["slp"], lowprio=LOW)
    e(f"v_readfirstlane_b32 s{sT}, v29")
    e.label("L_attn")
    wait_flags(F_QPUB, 1, 28, sleep=o["slp"], lowprio=LOW)
    if o["dl1"]: e(f"s_sleep {o['dl1']}")
    wait_flags(F_VI, 2, 28, lowprio=LOW)
    PB = 128
    def mk_e1(i):
        b = PB + 4 * i
        return dict(issue=lambda: e(f"buffer_load_dwordx4 v[{b}:{b+3}], v{vE1V+i}, s[28:31], s{sE1} offen sc1"),
                    check=lambda: (e(f"v_xor_b32 v36, s{sT}, v{b+1}"), e(f"v_xor_b32 v37, s{sT}, v{b+3}"), e("v_or_b32 v36, v36, v37"), e("v_cmp_ne_u32 vcc, 0, v36")),
                    take=lambda: e(f"ds_write2_b32 v{vE1L+i}, v{b}, v{b+2} offset0:0 offset1:1"), mask=70 + 2 * i)
    def kreads():
        for kt in range(2):
            for t in range(4):
                r = 40 + 16 * kt + 4 * t
                e(f"ds_read_b128 v[{r}:{r+3}], v{vKA+t} offset:{kt*4096}")
    def e1_pre():
        if o["local"]: e(f"s_cmp_ge_u32 s68, {o['fb1']}"); e(f"s_cselect_b32 s{sE1}, s{sE1G}, s{sE1}")
    if not o["early"]: stamp(1)
    def e1_shadow():
        if o["wpre"] or o["vh"] < 16: e(f"ds_write_b32 v{vFLW}, v22 offset:{F_P1*4}")
        if o["vi"] >= 16: kreads()
    mpoll([mk_e1(0), mk_e1(1)], cnt=68, pre=e1_pre, shadow=e1_shadow)
    e(f"ds_write_b32 v{vFLW}, v22 offset:{F_QF*4}")
    stamp(6)
    if o["vi"] < 16:
        wait_flags(F_K, 2, 28); kreads()
    VF = 160
    def vreads():
        for t in range(8):
            for rho in range(2):
                r = VF + 4 * t + 2 * rho
                e(f"ds_read_b64_tr_b16 v[{r}:{r+1}], v{vVA+t} offset:{rho*4096}")
    def qf_extra():
        e(f"ds_read_b64 v[32:33], v21 offset:{F_V*4}")
        for t in range(4): e(f"ds_read_b128 v[{72+4*t}:{75+4*t}], v{vQFR} offset:{t*1024}")
    wait_flags(F_QF, 4, 28, extra=qf_extra)
    for t in range(4):
        for kt in range(2):
            c = "0" if t == 0 else f"v[{88+4*kt}:{91+4*kt}]"
            e(f"v_mfma_f32_16x16x32_bf16 v[{88+4*kt}:{91+4*kt}], v[{40+16*kt+4*t}:{43+16*kt+4*t}], v[{72+4*t}:{75+4*t}], {c}")
    e("v_and_b32 v32, v32, v33"); e("v_cmp_ne_u32 vcc, 0, v32")
    e("s_mov_b32 s59, 0")
    lv = L("vlate"); e(f"s_cbranch_vccz {lv}")
    vreads(); e("s_mov_b32 s59, 1")
    e.label(lv)
    for m in range(4): e(f"v_mov_b32 v{44+m}, 0x3f803f80")
    e.nop(3)
    S = list(range(88, 96))
    for s_ in S: e(f"v_add_f32_dpp v{s_+8}, v{s_}, v{s_} row_ror:4 {DPP}")
    for s_ in S: e(f"v_add_f32_dpp v{s_}, v{s_+8}, v{s_+8} row_ror:8 {DPP}")
    e("v_max3_f32 v96, v88, v89, v90"); e("v_max3_f32 v97, v91, v92, v93"); e("v_max3_f32 v96, v96, v94, v95"); e("v_max_f32 v96, v96, v97")
    allreduce_xrow(96, 97, "v_max_f32")
    for s_ in S: e(f"v_sub_f32 v{s_}, v{s_}, v96")
    for s_ in S: e(f"v_exp_f32 v{s_}, v{s_}")
    e.nop(1)
    for m in range(4): e(f"v_cvt_pk_bf16_f32 v{100+m}, v{88+2*m}, v{89+2*m}")
    lw = L("vok"); e("s_cmp_lg_u32 s59, 0"); e(f"s_cbranch_scc1 {lw}")
    wait_flags(F_V, 2, 28); vreads()
    e.label(lw)
    for m in range(4): e(f"v_and_b32 v{72+m}, v{100+m}, v{vMASK}")
    for m in range(4): e(f"v_and_b32 v{76+m}, v{100+m}, v{vMASK+1}")
    e("s_waitcnt lgkmcnt(0)")
    first = [True, True]
    for t in range(8):
        ee = (t >> 1) & 1; u = 2 * (t >> 2) + (t & 1)
        c = "0" if first[ee] else f"v[{104+4*ee}:{107+4*ee}]"; first[ee] = False
        e(f"v_mfma_f32_16x16x32_bf16 v[{104+4*ee}:{107+4*ee}], v[{VF+4*t}:{VF+4*t+3}], v[{72+4*u}:{75+4*u}], {c}")
        if t in (0, 1):
            for m in range(4): e(f"v_and_b32 v{80+4*t+m}, v{100+m}, v{vMASK+2+t}")
    e("v_mfma_f32_16x16x32_bf16 v[92:95], v[44:47], v[100:103], 0")
    e.nop(6)
    e(f"ds_write_b128 v{vOPW}, v[104:107]")
    e(f"ds_write_b128 v{vOPW}, v[108:111] offset:1024")
    e("v_mov_b32 v97, v92")
    e("s_mov_b64 exec, 0xf")
    e(f"ds_write_b64 v{vMLW}, v[96:97]")
    e("s_mov_b64 exec, -1")
    e(f"ds_write_b32 v{vFLW}, v22 offset:{F_O*4}")
    stamp(7)
    tagbytes(60); e("s_mov_b32 s64, 0x07060500"); e("s_mov_b32 s59, 0")
    e("s_cmp_ge_u32 s3, 2"); e("s_cbranch_scc1 L_e2")
    e(f"v_mov_b32 v63, s{sT}")
    def mg_extra():
        for w in range(4): e(f"ds_read_b128 v[{32+4*w}:{35+4*w}], v{vOPR} offset:{w*2048}")
        e(f"ds_read_b128 v[48:51], v{vMLR}"); e(f"ds_read_b128 v[52:55], v{vMLR} offset:16")
    wait_flags(F_O, 4, 28, extra=mg_extra)
    e("v_max3_f32 v56, v48, v50, v52"); e("v_max_f32 v56, v56, v54")
    for w in range(4): e(f"v_sub_f32 v{48+2*w}, v{48+2*w}, v56")
    for w in range(4): e(f"v_exp_f32 v{48+2*w}, v{48+2*w}")
    e.nop(1)
    e("v_mul_f32 v57, v48, v49")
    for m in range(4): e(f"v_mul_f32 v{32+m}, v{32+m}, v48")
    for w in range(1, 4): e(f"v_fmac_f32 v57, v{48+2*w}, v{49+2*w}")
    for m in range(4): e(f"v_fmac_f32 v{32+m}, v{36+m}, v50")
    e("v_rcp_f32 v58, v57"); e("v_log_f32 v59, v57")
    for w in range(2, 4):
        for m in range(4): e(f"v_fmac_f32 v{32+m}, v{32+4*w+m}, v{48+2*w}")
    e("v_add_f32 v62, v56, v59")
    for m in range(4): e(f"v_mul_f32 v{32+m}, v{32+m}, v58")
    e("v_cvt_pk_bf16_f32 v60, v32, v33"); e("v_cvt_pk_bf16_f32 v61, v34, v35")
    e(f"buffer_store_dwordx4 v[60:63], v{vMST}, s[28:31], s{sMS} offen sc1")
    e(f"ds_write_b32 v{vFLW}, v22 offset:{F_MP*4}")
    if o["stamps"]: e("s_memrealtime s[80:81]")

    e.label("L_e2")
    def woreads():
        for u in range(4):
            for tp in range(4):
                r = 40 + 8 * u + 2 * tp
                e(f"ds_read_b64_tr_b16 v[{r}:{r+1}], v{vWOA+u} offset:{tp*8192}")
    def wo_try():
        lskip = L("wo"); e("s_cmp_lg_u32 s59, 0"); e(f"s_cbranch_scc1 {lskip}")
        e(f"ds_read_b64 v[28:29], v21 offset:{F_WO*4}"); e("s_waitcnt lgkmcnt(0)")
        e("v_and_b32 v28, v28, v29"); e("v_cmp_ne_u32 vcc, 0, v28"); e(f"s_cbranch_vccz {lskip}")
        woreads(); e("s_mov_b32 s59, 1")
        e.label(lskip)
    for k in range(4): e(f"v_mov_b32 v{8+k}, s{60+k}")
    e("v_mov_b32 v10, v10") if False else None
    wait_flags(F_MP, 2, 28, lowprio=LOW)
    if o["dl2"]: e(f"s_sleep {o['dl2']}")
    B2 = 128
    def mk_dat(n):
        b = B2 + 4 * n
        return dict(issue=lambda: e(f"buffer_load_dwordx4 v[{b}:{b+3}], v{vL16}, s[28:31], s{sE2} offen offset:{n*1024} sc1"),
                    check=lambda: e(f"v_cmp_ne_u32 vcc, s{sT}, v{b+3}"), mask=70 + 2 * n)
    def st23(sl):
        if not o["stamps"]: return
        if o["early"]:
            lsk = L("se"); e("s_cmp_lt_u32 s3, 2"); e(f"s_cbranch_scc1 {lsk}"); e(f"s_memrealtime s[{80+2*sl}:{81+2*sl}]"); e.label(lsk)
        else: e(f"s_memrealtime s[{80+2*sl}:{81+2*sl}]")
    st23(1)
    mpoll([mk_dat(0), mk_dat(1)], cnt=69, pre=wo_try, shadow=wo_try)
    st23(2)
    l0, l1 = B2 + 2, B2 + 6
    e(f"v_max_f32 v7, v{l0}, v{l1}")
    e("v_mov_b32 v20, 0xffff0000")
    e(f"v_lshlrev_b32 v16, 16, v{B2}"); e(f"v_and_b32 v17, v20, v{B2}")
    allreduce_xrow(7, 6, "v_max_f32")
    e(f"v_sub_f32 v{l0}, v{l0}, v7"); e(f"v_sub_f32 v{l1}, v{l1}, v7")
    e(f"v_lshlrev_b32 v18, 16, v{B2+1}"); e(f"v_and_b32 v19, v20, v{B2+1}")
    e(f"v_exp_f32 v{l0}, v{l0}"); e(f"v_exp_f32 v{l1}, v{l1}")
    e(f"v_lshlrev_b32 v24, 16, v{B2+4}"); e(f"v_and_b32 v25, v20, v{B2+4}"); e(f"v_lshlrev_b32 v26, 16, v{B2+5}"); e(f"v_and_b32 v27, v20, v{B2+5}")
    for i in range(4): e(f"v_mul_f32 v{12+i}, v{16+i}, v{l0}")
    e(f"v_add_f32 v5, v{l0}, v{l1}")
    for i in range(4): e(f"v_fmac_f32 v{12+i}, v{24+i}, v{l1}")
    e("v_mov_b32 v4, v7")
    allreduce_xrow(5, 6, "v_add_f32")
    reduce_scatter4(12)
    e(f"ds_write_b32 v{vOXW}, v12")
    e("s_lshl_b32 s57, s3, 3"); e(f"s_add_u32 s57, s57, {SX}"); e("v_mov_b32 v6, s57")
    e("s_mov_b64 exec, 1"); e("ds_write_b64 v6, v[4:5]"); e("s_mov_b64 exec, -1")
    e(f"ds_write_b32 v{vFLW}, v22 offset:{F_OX*4}")
    e(f"v_mov_b32 v6, {SX}")
    def ox_extra():
        e(f"ds_read_b128 v[12:15], v{vOXR}"); e("ds_read_b128 v[24:27], v6"); e("ds_read_b128 v[72:75], v6 offset:16")
    wait_flags(F_OX, 4, 28, extra=ox_extra)
    e("v_max3_f32 v7, v24, v26, v72"); e("v_max_f32 v7, v7, v74")
    e("v_sub_f32 v24, v24, v7"); e("v_sub_f32 v26, v26, v7"); e("v_sub_f32 v72, v72, v7"); e("v_sub_f32 v74, v74, v7")
    e("v_exp_f32 v24, v24"); e("v_exp_f32 v26, v26"); e("v_exp_f32 v72, v72"); e("v_exp_f32 v74, v74"); e.nop(1)
    e("v_mul_f32 v5, v24, v25"); e("v_mul_f32 v12, v12, v24"); e("v_fmac_f32 v5, v26, v27"); e("v_fmac_f32 v12, v13, v26")
    e("v_fmac_f32 v5, v72, v73"); e("v_fmac_f32 v12, v14, v72"); e("v_fmac_f32 v5, v74, v75"); e("v_fmac_f32 v12, v15, v74")
    e("v_rcp_f32 v5, v5"); e.nop(1); e("v_mul_f32 v12, v12, v5"); e.nop(2)
    e(f"v_mov_b32_dpp v13, v12 quad_perm:[1,0,3,2] {DPP}")
    e("v_cvt_pk_bf16_f32 v12, v12, v13"); e.nop(2)
    for m in range(8): e(f"v_mov_b32_dpp v{76+m}, v12 row_newbcast:{2*m} {DPP}")
    lw = L("wook"); e("s_cmp_lg_u32 s59, 0"); e(f"s_cbranch_scc1 {lw}")
    wait_flags(F_WO, 2, 28); woreads(); e("s_waitcnt lgkmcnt(0)")
    e.label(lw)
    AC = 136
    for k in range(2):
        for u in range(4):
            c = "0" if k == 0 else f"v[{AC+4*u}:{AC+4*u+3}]"
            e(f"v_mfma_f32_16x16x32_bf16 v[{AC+4*u}:{AC+4*u+3}], v[{76+4*k}:{79+4*k}], v[{40+8*u+4*k}:{43+8*u+4*k}], {c}")
    e("s_mov_b64 exec, 0xffff")
    e.nop(4)
    for i in range(4): e(f"v_perm_b32 v{4+i}, v{AC+4*i}, v{8+i}, s64")
    e(f"buffer_store_dwordx4 v[4:7], v{vE3V}, s[28:31], s{sE3} offen sc1")
    e("s_mov_b64 exec, -1")
    set_flag(F_PUB3)
    if o["stamps"] == 3 or o["early"]:
        lsk = L("st3"); e("s_cmp_lt_u32 s3, 2"); e(f"s_cbranch_scc1 {lsk}"); e("s_memrealtime s[86:87]"); e.label(lsk)
    elif o["stamps"]: e("s_memrealtime s[86:87]")
    e("s_waitcnt lgkmcnt(0)")
    dump_stamps(cnts=([(4, 68), (5, 69)] if (o["stamps"] != 3 and not o["early"]) else None))
    e("s_endpgm")

    e.label("L_loader")
    stamp(1)
    if o["prio"]: e("s_setprio 2")
    e("s_sub_u32 s52, s3, 4")
    e("s_lshr_b32 s53, s48, 1"); e("s_lshl_b32 s53, s53, 24"); e("s_and_b32 s54, s48, 1"); e("s_lshl_b32 s54, s54, 4"); e("s_lshr_b32 s55, s49, 1"); e("s_add_u32 s54, s54, s55")
    e("s_lshl_b32 s54, s54, 15"); e("s_add_u32 s53, s53, s54"); e(f"s_add_u32 s53, s53, {KEY0*256}")
    e("s_lshl_b32 s54, s52, 14"); e("s_add_u32 s53, s53, s54")
    if o["gmap"]: e("s_lshr_b32 s55, s49, 2"); e("s_lshl_b32 s56, s48, 3"); e("s_add_u32 s55, s55, s56"); e("s_lshl_b32 s55, s55, 17")
    else: e("s_lshr_b32 s55, s49, 2"); e("s_lshl_b32 s55, s55, 3"); e("s_add_u32 s55, s55, s48"); e("s_lshl_b32 s55, s55, 17")
    e("s_and_b32 s56, s49, 3"); e("s_lshl_b32 s56, s56, 9"); e("s_add_u32 s55, s55, s56")
    e("s_lshl_b32 s56, s52, 16"); e("s_add_u32 s55, s55, s56")
    e("s_lshl_b32 s57, s52, 14")
    for m in range(4):
        e(f"v_add_u32 v4, {4*m}, v2"); e("v_xor_b32 v4, v4, v3"); e("v_lshlrev_b32 v4, 4, v4"); e("v_lshlrev_b32 v5, 8, v2"); e(f"v_add_u32 v{8+m}, v4, v5")
    for m in range(2):
        e(f"v_add_u32 v4, {4*m}, v2"); e("v_lshrrev_b32 v5, 1, v3"); e("v_xor_b32 v4, v4, v5"); e("v_lshlrev_b32 v4, 1, v4"); e("v_and_b32 v5, 1, v3"); e("v_or_b32 v4, v4, v5")
        e("v_lshlrev_b32 v4, 4, v4"); e("v_lshlrev_b32 v5, 8, v2"); e(f"v_add_u32 v{12+m}, v4, v5")
    e("v_lshrrev_b32 v6, 5, v0"); e("v_and_b32 v7, 31, v0")
    for m in range(4):
        e("v_lshlrev_b32 v4, 2, v6"); e(f"v_add_u32 v4, {m}, v4"); e("v_lshrrev_b32 v5, 1, v7"); e("v_xor_b32 v4, v4, v5"); e("v_lshlrev_b32 v4, 1, v4")
        e("v_and_b32 v5, 1, v7"); e("v_or_b32 v4, v4, v5"); e("v_lshlrev_b32 v4, 4, v4"); e("v_lshlrev_b32 v5, 11, v6"); e(f"v_add_u32 v{16+m}, v4, v5")
    e("s_lshl_b32 s58, s52, 2"); e("v_add_u32 v20, s58, v21")
    e("s_waitcnt lgkmcnt(0)")
    srd(36, 6, 67108864); srd(40, 8, 67108864); srd(44, 12, 8388608)
    if o["stamps"]: srd(28, 26, 268435456)
    if o["lbar"]: e("s_barrier")
    stamp(2)
    W = o["win"]; WKV = o["winkv"]
    seq = [("K", m) for m in range(16)] + [("V", m) for m in range(16)] + [("W", m) for m in range(16)]
    st = dict(landed=-1)
    def land(upto):
        for x in range(st["landed"] + 1, upto + 1):
            if x == 15: set_flag(F_K, 20); stamp(3)
            if x == 31: set_flag(F_V, 20); stamp(4)
        st["landed"] = max(st["landed"], upto)
    for i, (kind, m) in enumerate(seq):
        w_ = WKV if i < 32 else W
        skipwin = False
        if o["vi"] < 16 and i == 16 + o["vi"]: set_flag(F_VI, 20)
        if o["vh"] < 16 and i == 16 + o["vh"]:
            if st["landed"] < 15: e(f"s_waitcnt vmcnt({i - 16})"); land(15)
            set_flag(F_VI, 20)
            wait_flags(F_P1, 4, 24)
        if i == 32:
            assert st["landed"] >= 15
            if o["vh"] >= 16:
                if o["vi"] >= 16: set_flag(F_VI, 20)
                if o["wpre"]: wait_flags(F_P1, 4, 24)
            if not o["wpre"]:
                e("s_waitcnt vmcnt(0)"); land(31)
                wait_flags(F_QF, 4, 24)
        if o["wpre"] and 32 <= i < 32 + o["wpre"]:
            skipwin = True
        if o["wpre"] and i == 32 + o["wpre"]:
            e(f"s_waitcnt vmcnt({o['wpre']})"); land(31)
            wait_flags(F_QF, 4, 24)
        if not skipwin and i - st["landed"] - 1 > w_ - 1:
            e(f"s_waitcnt vmcnt({w_-1})"); land(i - w_)
        if kind == "K":
            e(f"s_add_u32 m0, s57, {KL + m*1024}"); e(f"s_add_u32 s58, s53, {m*1024}")
            e(f"buffer_load_dwordx4 v{8 + (m & 3)}, s[36:39], s58 offen{NTKV} lds")
        elif kind == "V":
            e(f"s_add_u32 m0, s57, {VL + m*1024}"); e(f"s_add_u32 s58, s53, {m*1024}")
            e(f"buffer_load_dwordx4 v{12 + (m & 1)}, s[40:43], s58 offen{NTKV} lds")
        else:
            e(f"s_add_u32 m0, s57, {WO + m*1024}"); e(f"s_add_u32 s58, s55, {m*4096}")
            e(f"buffer_load_dwordx4 v{16 + ((m >> 1) & 3)}, s[44:47], s58 offen{NT} lds")
    e("s_waitcnt vmcnt(0)"); set_flag(F_WO, 20); stamp(5)
    e("s_waitcnt lgkmcnt(0)")
    dump_stamps()
    e("s_endpgm")

    e.label("L_final")
    tagbytes(60)
    e("s_mov_b32 s64, 0x07060500")
    for k in range(4): e(f"v_mov_b32 v{8+k}, s{60+k}")
    e("v_lshlrev_b32 v24, 2, v3"); e(f"v_add_u32 v24, {YP}, v24")
    wait_flags(F_G, 1, 28, extra=lambda: [e(f"ds_read_b32 v{96+i}, v24 offset:{64*i}") for i in range(4)])
    for k in range(4): e(f"v_perm_b32 v{4+k}, v{96+k}, v{8+k}, s64")
    e("s_lshl_b32 s56, s2, 8"); e(f"s_add_u32 s56, s56, {GB}")
    e("v_lshlrev_b32 v24, 4, v0")
    e("s_mov_b64 exec, 0xffff")
    e("buffer_store_dwordx4 v[4:7], v24, s[28:31], s56 offen sc1")
    e("s_mov_b64 exec, -1")
    stamp(4)
    e("s_lshr_b32 s53, s49, 3"); e("s_lshl_b32 s53, s53, 3"); e("s_add_u32 s53, s53, s48")
    e("s_and_b32 s54, s49, 7")
    e("s_lshr_b32 s55, s53, 1"); e("s_lshl_b32 s55, s55, 6"); e("s_and_b32 s56, s53, 1"); e("s_lshl_b32 s56, s56, 3"); e("s_add_u32 s55, s55, s56"); e("s_add_u32 s55, s55, s54")
    e("v_lshlrev_b32 v25, 5, v2"); e("s_lshl_b32 s55, s55, 1")
    e("buffer_load_ushort v12, v25, s[32:35], s55 offen")
    e("v_lshlrev_b32 v26, 2, v3"); e("v_add_u32 v26, v26, v2"); e("v_lshlrev_b32 v26, 8, v26")
    e("s_lshr_b32 s56, s53, 1"); e("s_lshl_b32 s56, s56, 12"); e("s_and_b32 s57, s53, 1"); e("s_lshl_b32 s57, s57, 3"); e("s_add_u32 s57, s57, s54"); e("s_lshl_b32 s57, s57, 4")
    e("s_add_u32 s57, s57, s56"); e(f"s_add_u32 s57, s57, {GB}")
    e("v_lshlrev_b32 v24, 7, v0")
    e("s_lshl_b32 s56, s53, 13"); e("s_lshl_b32 s58, s54, 4"); e("s_add_u32 s56, s56, s58"); e(f"s_add_u32 s56, s56, {FB}")
    srd(36, 24, 2048)
    wait_flags(F_MP, 2, 28, sleep=4)
    mpoll([dict(issue=lambda: e("buffer_load_dwordx4 v[32:35], v26, s[28:31], s57 offen sc1"), check=lambda: chk4(32, 60), mask=70, init=(0x000f000f, 0x000f000f))])
    reduce_scatter4(32); e("v_mov_b32 v96, v32"); e.nop(2)
    e(f"v_add_f32_dpp v96, v96, v96 quad_perm:[1,0,3,2] {DPP}"); e.nop(2)
    e(f"v_add_f32_dpp v96, v96, v96 quad_perm:[2,3,0,1] {DPP}")
    bf16r(96, 96)
    e("s_and_b32 s59, s59, 0xffff"); e("s_lshl_b32 s59, s59, 16")
    e("v_add_f32 v96, s59, v96"); bf16r(96, 96)
    e(f"v_mul_f32 v97, {f32bits(-math.log2(math.e)):#x}, v96"); e("v_exp_f32 v97, v97"); e.nop(1); e("v_add_f32 v97, 1.0, v97"); e("v_rcp_f32 v97, v97"); e.nop(1)
    e("v_mul_f32 v96, v96, v97"); bf16r(96, 96)
    e("v_lshlrev_b32 v14, 16, v12")
    stamp(1)
    wait_flags(F_PUB3, 1, 28, sleep=1)
    if o["prio"]: e("s_setprio 3")
    if o["dl3"]: e(f"s_sleep {o['dl3']}")
    stamp(5)
    mpoll([dict(issue=lambda: e("buffer_load_dwordx4 v[28:31], v24, s[28:31], s56 offen sc1"), check=lambda: chk4(28, 100), mask=70)], cnt=69)
    stamp(6)
    reduce_scatter4(28)
    allreduce_row16(28, "v_add_f32")
    bf16r(28, 28)
    e("v_mul_f32 v28, v28, v96"); bf16r(28, 28)
    e("v_add_f32 v28, v28, v14")
    e("v_cvt_pk_bf16_f32 v28, v28, v28")
    e("s_mov_b32 exec_lo, 0x00010001"); e("s_mov_b32 exec_hi, 0x00010001")
    e("buffer_store_short v28, v25, s[36:39], s55 offen")
    l = L("ne"); e("s_cmp_lg_u32 s2, 0"); e(f"s_cbranch_scc1 {l}")
    e("s_mov_b64 exec, 1")
    e(f"s_mul_i32 s57, s{sT}, {TINV:#x}"); e("v_mov_b32 v20, s57"); e("v_mov_b32 v23, 0")
    e("buffer_store_dword v20, v23, s[28:31], 0 offen sc1")
    e.label(l)
    e("s_mov_b64 exec, -1")
    stamp(7)
    dump_stamps(cnts=[(2, 69)], final=True)
    e("s_endpgm")
    if o["pages"]: e(".p2align 12")
    e.label("L_bbranch")
    if o["prio"]: e(f"s_setprio {o['bprio']}")
    e(f"v_mov_b32 v23, {LNS}")
    k1 = -2.0 * math.sqrt(2.0 / math.pi) * math.log2(math.e); k2 = k1 * 0.044715
    e(f"v_mov_b32 v92, {f32bits(k1):#x}"); e(f"v_mov_b32 v93, {f32bits(k2):#x}")
    wait_flags(F_LN2, 1, 28, extra=lambda: (e("ds_read_b128 v[32:35], v23"), e(f"ds_read_b32 v29, v21 offset:{F_T*4}")), sleep=2)
    e(f"v_readfirstlane_b32 s{sT}, v29")
    e("s_waitcnt vmcnt(0)")
    stamp(1)
    for k in range(8): e(f"v_lshlrev_b32 v{40+k}, 16, v{40+k}")
    for n in range(4): e(f"v_lshlrev_b32 v{48+2*n}, 16, v{48+2*n}")
    e("v_cmp_gt_u32 vcc, 32, v0"); e("v_mov_b32 v94, 1.0"); e("v_mov_b32 v95, 1.0"); e("v_cndmask_b32 v54, 0, v54, vcc")
    e("v_lshlrev_b32 v14, 16, v12")
    e("v_sub_f32 v16, v14, v32"); bf16r(16, 16); e("v_mul_f32 v16, v16, v33"); bf16r(16, 16)
    e("v_sub_f32 v16, v16, v34"); bf16r(16, 16); e("v_mul_f32 v16, v16, v35"); bf16r(16, 16)
    ACCB = 128
    for half in range(2):
        e.nop(1)
        for k in range(16): e(f"v_readlane_b32 s{64+k}, v16, {16*half+k}")
        e.nop(2)
        NI = o["bilp"]
        for k in range(0, 16, 2 * NI):
            dps = [16 * half + k + 2 * q_ for q_ in range(NI)]
            for n in range(4):
                R = range(NI)
                U = [f"v[{100+6*q_}:{101+6*q_}]" for q_ in R]; Z = [f"v[{102+6*q_}:{103+6*q_}]" for q_ in R]; G = [f"v[{104+6*q_}:{105+6*q_}]" for q_ in R]
                WB = f"v[{40+2*n}:{41+2*n}]"; W2 = f"v[{48+2*n}:{49+2*n}]"
                for q_, d in enumerate(dps): e(f"v_pk_fma_f32 {U[q_]}, s[{64+(d&15)}:{65+(d&15)}], {WB}, {WB} op_sel:[0,0,1] op_sel_hi:[1,0,1]")
                for q_ in R: e(f"v_pk_mul_f32 {Z[q_]}, {U[q_]}, {U[q_]}")
                for q_ in R: e(f"v_pk_fma_f32 {Z[q_]}, {Z[q_]}, v[92:93], v[92:93] op_sel:[0,1,0] op_sel_hi:[1,1,0]")
                for q_ in R: e(f"v_pk_mul_f32 {Z[q_]}, {Z[q_]}, {U[q_]}")
                for q_ in R: e(f"v_pk_mul_f32 {G[q_]}, {U[q_]}, {W2} op_sel_hi:[1,0]")
                for q_ in R: e(f"v_exp_f32 v{102+6*q_}, v{102+6*q_}"); e(f"v_exp_f32 v{103+6*q_}, v{103+6*q_}")
                e.nop(1)
                for q_ in R: e(f"v_pk_add_f32 {Z[q_]}, {Z[q_]}, v[94:95]")
                for q_ in R: e(f"v_rcp_f32 v{102+6*q_}, v{102+6*q_}"); e(f"v_rcp_f32 v{103+6*q_}, v{103+6*q_}")
                e.nop(1)
                for q_, d in enumerate(dps):
                    A_ = f"v[{ACCB+d}:{ACCB+d+1}]"
                    if n == 0: e(f"v_pk_mul_f32 {A_}, {G[q_]}, {Z[q_]}")
                    else: e(f"v_pk_fma_f32 {A_}, {G[q_]}, {Z[q_]}, {A_}")
    stamp(3)
    e.nop(2)
    for k in range(16):
        e(f"v_permlane32_swap_b32 v{ACCB+k}, v{ACCB+16+k}")
    for k in range(16): e(f"v_add_f32 v{ACCB+k}, v{ACCB+k}, v{ACCB+16+k}")
    e.nop(1)
    for k in range(8): e(f"v_permlane16_swap_b32 v{ACCB+k}, v{ACCB+8+k}")
    for k in range(8): e(f"v_add_f32 v{ACCB+k}, v{ACCB+k}, v{ACCB+8+k}")
    for sh in (8, 4, 2, 1):
        e.nop(1)
        for k in range(8): e(f"v_add_f32_dpp v{ACCB+k}, v{ACCB+k}, v{ACCB+k} row_ror:{sh} {DPP}")
    e("s_lshl_b32 s57, s52, 7"); e(f"s_add_u32 s57, s57, {YP}"); e("v_lshlrev_b32 v24, 5, v2"); e("v_add_u32 v24, s57, v24")
    e("s_mov_b32 exec_lo, 0x00010001"); e("s_mov_b32 exec_hi, 0x00010001")
    e(f"ds_write_b128 v24, v[{ACCB}:{ACCB+3}]"); e(f"ds_write_b128 v24, v[{ACCB+4}:{ACCB+7}] offset:16")
    e("s_mov_b64 exec, -1")
    e("s_cmp_eq_u32 s52, 0"); e("s_cbranch_scc1 L_final")
    set_flag(F_G)
    e("s_waitcnt lgkmcnt(0)")
    dump_stamps()
    e("s_endpgm")
    e.label("L_abort")
    e("s_endpgm")
    e.label("L_exit")

    probs = check(a.lines)
    body = a.text()
    nv = 224
    PAD = ".p2align 12\n.fill 832, 4, 0xbf810000\n" if o["pgal"] else ""
    hdr = open("cdna_kernels/" + KN + ".s.ref").read().split("; Override launch")[0]
    out = hdr + f"; Override launch geometry by editing the next line.\n; @launch grid=(256,1,1) block=(512,1,1) lds={LDS_BYTES}\n" + DOC.lstrip("\n")
    out += f""".amdgcn_target "amdgcn-amd-amdhsa--gfx950"
.text
.globl {KN}_kernel
{PAD}.p2align 8
.type {KN}_kernel,@function
{KN}_kernel:
{body}
    s_endpgm
.section .rodata,"a"
.p2align 6
.amdhsa_kernel {KN}_kernel
  .amdhsa_next_free_vgpr {nv}
  .amdhsa_next_free_sgpr 100
  .amdhsa_accum_offset {nv}
  .amdhsa_group_segment_fixed_size 0
  .amdhsa_kernarg_size 104
  .amdhsa_user_sgpr_count 2
  .amdhsa_user_sgpr_kernarg_segment_ptr 1
  .amdhsa_system_sgpr_workgroup_id_x 1
.end_amdhsa_kernel
"""
    return out, probs

if __name__ == "__main__":
    opt = {}
    name = sys.argv[1]
    for kv in sys.argv[2:]:
        k, v = kv.split("="); opt[k] = int(v, 0)
    s, probs = gen(opt)
    open(name, "w").write(s)
    for p in probs: print("HAZARD:", p)
```

```python
import sys, math, struct
from asmlib import Asm, check
KN = "recurrent_scan__sliding_block_cached__mixer_token_mlp__decode"
def f32bits(x): return struct.unpack("<I", struct.pack("<f", x))[0]

DEF = dict(stamps=0, nt=1, win=12, winkv=16, spinmax=1 << 20, prio=1, dl2=24, dl3=18, local=1, fb1=12, slp=1, bprio=1, bearly=1, bilp=2, wpre=3, cpf=1, tlb=0, early=0, vh=16, dl1=0, ntkv=-1, wqun=1, vi=16, gmap=1, bafter=0, lbar=0, pgal=1, pages=1)

QB, QL, GB, OB, FB, STB = 0x10000, 0x20000, 0x30000, 0x40000, 0x100000, 0x200000
WQ, KL, VL, WO = 0, 32768, 65536, 98304
QF = 131072; OP = QF + 4096; ML = OP + 8192; FL = ML + 128; OX = FL + 128; SX = OX + 1024
XN = SX + 64; LNS = XN + 512; YP = LNS + 16; STL = YP + 256; LDS_BYTES = STL + 256
F_QF, F_O, F_OX, F_K, F_V, F_WO, F_VI, F_MP, F_G, F_XN, F_LN2, F_T, F_QPUB, F_PUB3, F_P1 = 0, 4, 8, 12, 14, 16, 18, 20, 22, 23, 24, 25, 26, 27, 28
KEY0 = 61440
TMUL = 0x9e3779b1
TINV = pow(TMUL, -1, 1 << 32)
vE1V, vE1L, vQFR, vKA, vVA, vOPW, vMLW, vOPR, vMLR, vMST, vL16, vWOA, vE3V, vOXW, vOXR, vFLW = 192, 194, 196, 197, 201, 209, 210, 211, 212, 213, 214, 216, 220, 221, 222, 223
vMASK = 112
sMS, sE2, sE3, sE1, sE1G = 40, 41, 42, 43, 44

DOC = r"""
; ---------------------------------------------------------------------------------------------------------------
; ---------------------------------------------------------------------------------------------------------------
"""

def gen(opt):
    o = dict(DEF); o.update(opt)
    assert o["winkv"] <= 16
    NT = " nt" if o["nt"] else ""
    NTKV = NT if o["ntkv"] < 0 else (" nt" if o["ntkv"] else "")
    a = Asm(); e = a
    uid = [0]
    def L(p):
        uid[0] += 1; return f"L_{p}_{uid[0]}"
    sT, sCNT = 50, 51
    DPP = "row_mask:0xf bank_mask:0xf"
    def srd(d, lo, size):
        e(f"s_mov_b32 s{d}, s{lo}"); e(f"s_and_b32 s{d+1}, s{lo+1}, 0xffff"); e(f"s_mov_b32 s{d+2}, {size}"); e(f"s_mov_b32 s{d+3}, 0x20000")
    def stamp(k):
        if o["stamps"]: e(f"s_memrealtime s[{80+2*k}:{81+2*k}]")
    def dump_stamps(cnts=None, final=False):
        if not o["stamps"]: return
        if o["stamps"] == 3:
            e("s_waitcnt lgkmcnt(0)")
            e("s_mov_b64 exec, -1")
            e("s_lshl_b32 s76, s3, 5"); e(f"s_add_u32 s76, s76, {STL}"); e("v_mov_b32 v20, s76")
            for k in range(8): e(f"v_mov_b32 v{4+k}, s{80+2*k}")
            e("ds_write_b128 v20, v[4:7]"); e("ds_write_b128 v20, v[8:11] offset:16"); e("s_waitcnt lgkmcnt(0)")
            if final:
                e("s_sleep 20")
                e("s_load_dwordx2 s[76:77], s[0:1], 88"); e("s_waitcnt lgkmcnt(0)")
                e("s_mov_b32 s72, s76"); e("s_and_b32 s73, s77, 0xffff"); e("s_mov_b32 s74, 256"); e("s_mov_b32 s75, 0x20000")
                e(f"v_mov_b32 v20, {STL}"); e("v_mov_b32 v23, 0"); e("s_mov_b64 exec, 1")
                sel = [(2,0,1),(2,0,0),(4,1,0),(0,3,0),(0,5,0),(4,4,0),(2,6,0),(2,7,0),(0,0,0),(4,5,0),(2,2,0),(2,3,0),(6,4,0),(6,6,0),(6,7,0),(1,1,0)]
                for slot, (w, k, inv) in enumerate(sel):
                    e(f"ds_read_b32 v4, v20 offset:{w*32+k*4}"); e("s_waitcnt lgkmcnt(0)")
                    if inv: e("v_not_b32 v4, v4")
                    e(f"buffer_atomic_umax v4, v23, s[72:75], 0 offen offset:{4*slot}")
                e("s_waitcnt vmcnt(0)")
            return
        e("s_waitcnt lgkmcnt(0)")
        for (slot, sreg) in (cnts or []):
            e(f"s_mov_b32 s{80+2*slot}, s{sreg}"); e(f"s_mov_b32 s{81+2*slot}, 0")
        e("s_mov_b64 exec, -1")
        e("s_waitcnt vmcnt(0)")
        e("s_lshl_b32 s76, s2, 3"); e("s_add_u32 s76, s76, s3"); e("s_lshl_b32 s76, s76, 6"); e(f"s_add_u32 s76, s76, {STB}")
        for k in range(8):
            e(f"v_mov_b32 v{2*k+4}, s{80+2*k}"); e(f"v_mov_b32 v{2*k+5}, s{81+2*k}")
        e("v_mov_b32 v20, 0")
        e("s_mov_b64 exec, 1")
        for k in range(4):
            e(f"buffer_store_dwordx4 v[{4*k+4}:{4*k+7}], v20, s[28:31], s76 offen offset:{16*k}")
        e("s_waitcnt vmcnt(0)")
    def spin_tick():
        e(f"s_sub_u32 s{sCNT}, s{sCNT}, 1"); e("s_cbranch_scc1 L_abort")
    def and_flags(vt, n):
        if n == 2: e(f"v_and_b32 v{vt}, v{vt}, v{vt+1}")
        if n == 4:
            e(f"v_and_b32 v{vt}, v{vt}, v{vt+1}"); e(f"v_and_b32 v{vt+2}, v{vt+2}, v{vt+3}"); e(f"v_and_b32 v{vt}, v{vt}, v{vt+2}")
    def read_flags(first, n, vt):
        if n == 1: e(f"ds_read_b32 v{vt}, v21 offset:{first*4}")
        elif n == 2: e(f"ds_read_b64 v[{vt}:{vt+1}], v21 offset:{first*4}")
        else: e(f"ds_read_b128 v[{vt}:{vt+3}], v21 offset:{first*4}")
    def wait_flags(first, n, vt, extra=None, sleep=0, lowprio=None):
        if lowprio and o["prio"]: e(f"s_setprio {lowprio[0]}")
        l = L("wf"); e.label(l)
        read_flags(first, n, vt)
        if extra: extra()
        spin_tick()
        if sleep: e(f"s_sleep {sleep}")
        e("s_waitcnt lgkmcnt(0)")
        and_flags(vt, n)
        e(f"v_cmp_ne_u32 vcc, 0, v{vt}")
        e(f"s_cbranch_vccz {l}")
        if lowprio and o["prio"]: e(f"s_setprio {lowprio[1]}")
    def set_flag(idx, vaddr=21):
        e(f"ds_write_b32 v{vaddr}, v22 offset:{idx*4}")
    def bf16r(dst, src):
        e(f"v_cvt_pk_bf16_f32 v{dst}, v{src}, v{src}"); e(f"v_lshlrev_b32 v{dst}, 16, v{dst}")
    def allreduce_row16(v, op, shs=(8, 4, 2, 1)):
        for sh in shs:
            e.nop(2); e(f"{op}_dpp v{v}, v{v}, v{v} row_ror:{sh} {DPP}")
    def allreduce_xrow(v, t, op):
        e(f"v_mov_b32 v{t}, v{v}"); e.nop(2); e(f"v_permlane32_swap_b32 v{v}, v{t}"); e(f"{op} v{v}, v{v}, v{t}")
        e(f"v_mov_b32 v{t}, v{v}"); e.nop(2); e(f"v_permlane16_swap_b32 v{v}, v{t}"); e(f"{op} v{v}, v{v}, v{t}")
    def reduce_scatter4(b):
        e(f"v_permlane32_swap_b32 v{b}, v{b+2}"); e(f"v_permlane32_swap_b32 v{b+1}, v{b+3}")
        e(f"v_add_f32 v{b}, v{b}, v{b+2}"); e(f"v_add_f32 v{b+1}, v{b+1}, v{b+3}"); e.nop(2)
        e(f"v_permlane16_swap_b32 v{b}, v{b+1}"); e(f"v_add_f32 v{b}, v{b}, v{b+1}")
    def ln_stats(xf, t0, vm, vrs):
        s, t = t0, t0 + 1
        e(f"v_add_f32 v{s}, v{xf}, v{xf+1}"); e(f"v_add_f32 v{t}, v{xf+2}, v{xf+3}")
        for k in range(4, 16, 2):
            e(f"v_add_f32 v{s}, v{s}, v{xf+k}"); e(f"v_add_f32 v{t}, v{t}, v{xf+k+1}")
        e(f"v_add_f32 v{s}, v{s}, v{t}")
        allreduce_row16(s, "v_add_f32"); allreduce_xrow(s, t, "v_add_f32")
        e(f"v_mul_f32 v{s}, {f32bits(1/1024):#x}, v{s}")
        e(f"v_sub_f32 v{t}, v{xf}, v{s}"); e(f"v_sub_f32 v{t0+3}, v{xf+1}, v{s}")
        e(f"v_mul_f32 v{t0+2}, v{t}, v{t}"); e(f"v_mul_f32 v{t0+4}, v{t0+3}, v{t0+3}")
        for k in range(2, 16, 2):
            e(f"v_sub_f32 v{t}, v{xf+k}, v{s}"); e(f"v_sub_f32 v{t0+3}, v{xf+k+1}, v{s}")
            e(f"v_fmac_f32 v{t0+2}, v{t}, v{t}"); e(f"v_fmac_f32 v{t0+4}, v{t0+3}, v{t0+3}")
        e(f"v_add_f32 v{t0+2}, v{t0+2}, v{t0+4}")
        allreduce_row16(t0 + 2, "v_add_f32"); allreduce_xrow(t0 + 2, t, "v_add_f32")
        e(f"v_mul_f32 v{t0+2}, {f32bits(1/1024):#x}, v{t0+2}")
        bf16r(vm, s)
        bf16r(t, t0 + 2)
        e(f"v_add_f32 v{t}, {f32bits(1e-5):#x}, v{t}")
        bf16r(t, t)
        e(f"v_sqrt_f32 v{t}, v{t}"); e.nop(1)
        bf16r(t, t)
        e(f"v_rcp_f32 v{vrs}, v{t}"); e.nop(1)
    def unpack(dlo, dhi, src):
        e(f"v_lshlrev_b32 v{dlo}, 16, v{src}"); e(f"v_and_b32 v{dhi}, 0xffff0000, v{src}")
    def tagbytes(s0):
        for k in range(4):
            e(f"s_lshr_b32 s{s0+k}, s{sT}, {8*k}"); e(f"s_and_b32 s{s0+k}, s{s0+k}, 0xff")
    def chk4(b, t):
        e(f"v_xor_b32 v{t}, s60, v{b}"); e(f"v_bitop3_b32 v{t}, v{t}, v{b+1}, s61 bitop3:0xf6"); e(f"v_bitop3_b32 v{t}, v{t}, v{b+2}, s62 bitop3:0xf6")
        e(f"v_bitop3_b32 v{t}, v{t}, v{b+3}, s63 bitop3:0xf6"); e(f"v_and_b32 v{t}, 0xff, v{t}"); e(f"v_cmp_ne_u32 vcc, 0, v{t}")
    def mpoll(loads, cnt=None, pre=None, shadow=None):
        top = L("mp"); ent = L("me")
        for ld in loads:
            ini = ld.get('init', -1); m = ld['mask']
            if ini == -1: e(f"s_mov_b64 s[{m}:{m+1}], -1")
            else: e(f"s_mov_b32 s{m}, {ini[0]:#x}"); e(f"s_mov_b32 s{m+1}, {ini[1]:#x}")
        if cnt: e(f"s_mov_b32 s{cnt}, 0")
        for ld in loads:
            m = ld['mask']
            if ld.get('init', -1) != -1: e(f"s_mov_b64 exec, s[{m}:{m+1}]")
            ld['issue']()
            if ld.get('init', -1) != -1: e("s_mov_b64 exec, -1")
        if shadow: shadow()
        e(f"s_branch {ent}")
        e.label(top)
        spin_tick()
        if pre: pre()
        for ld in loads:
            sk = L("sk"); m = ld['mask']
            e(f"s_mov_b64 exec, s[{m}:{m+1}]"); e(f"s_cbranch_execz {sk}"); ld['issue'](); e.label(sk)
        e("s_mov_b64 exec, -1")
        e.label(ent)
        if cnt: e(f"s_add_u32 s{cnt}, s{cnt}, 1")
        e("s_waitcnt vmcnt(0)")
        e("s_mov_b64 s[66:67], 0")
        for ld in loads:
            sk = L("sc"); m = ld['mask']
            e(f"s_mov_b64 exec, s[{m}:{m+1}]"); e(f"s_cbranch_execz {sk}")
            ld['check']()
            if ld.get('take'):
                e("s_andn2_b64 exec, exec, vcc"); sk2 = L("sd"); e(f"s_cbranch_execz {sk2}"); ld['take'](); e.label(sk2)
            e(f"s_mov_b64 s[{m}:{m+1}], vcc"); e("s_or_b64 s[66:67], s[66:67], vcc")
            e.label(sk)
        e("s_mov_b64 exec, -1")
        e("s_cmp_lg_u64 s[66:67], 0"); e(f"s_cbranch_scc1 {top}")
    LOW = (0, 3)

    e("s_cmp_ge_u32 s2, 256"); e("s_cbranch_scc1 L_exit")
    stamp(0)
    e("s_load_dwordx16 s[4:19], s[0:1], 0")
    e("s_load_dwordx4 s[20:23], s[0:1], 64")
    e("s_load_dwordx2 s[24:25], s[0:1], 80")
    e("s_load_dwordx2 s[26:27], s[0:1], 96")
    e("v_lshrrev_b32 v1, 6, v0"); e("v_and_b32 v0, 63, v0")
    e("s_and_b32 s48, s2, 7")
    e("v_readfirstlane_b32 s3, v1")
    e("s_lshr_b32 s49, s2, 3")
    e("s_lshl_b32 s46, s48, 3"); e("s_and_b32 s47, s49, 7"); e("s_add_u32 s46, s46, s47"); e("s_lshr_b32 s47, s49, 3")
    def common_init():
        e("v_lshrrev_b32 v2, 4, v0"); e("v_and_b32 v3, 15, v0")
        e(f"s_mov_b32 s{sCNT}, {o['spinmax']}")
        e(f"v_mov_b32 v21, {FL}"); e("v_mov_b32 v22, 1")
    e("s_cmp_eq_u32 s3, 0"); e("s_cbranch_scc0 L_not0")
    e("v_lshrrev_b32 v24, 3, v0"); e("v_and_b32 v25, 7, v0"); e("v_lshlrev_b32 v25, 4, v25")
    e("v_bfe_u32 v27, v24, 1, 2"); e("v_lshlrev_b32 v27, 5, v27"); e("v_xor_b32 v25, v25, v27")
    e("v_lshl_add_u32 v24, v24, 13, v25")
    e("s_lshl_b32 s56, s47, 21"); e("s_lshl_b32 s57, s46, 7"); e("s_add_u32 s56, s56, s57")
    e(f"s_mov_b32 m0, {WQ}"); e("s_mov_b32 s57, 0")
    e("s_mov_b32 s38, 8388608"); e("s_mov_b32 s39, 0x20000")
    e("s_waitcnt lgkmcnt(0)")
    e("s_mov_b32 s36, s10"); e("s_and_b32 s37, s11, 0xffff")
    UN = o["wqun"]
    e.label("L_wqloop")
    for u_ in range(UN):
        e(f"buffer_load_dwordx4 v24, s[36:39], s56 offen{NT} lds")
        e("s_add_u32 m0, m0, 1024"); e(f"s_add_u32 s56, s56, {8*8192}")
    if UN < 32:
        e(f"s_add_u32 s57, s57, {UN}"); e("s_cmp_lt_u32 s57, 32"); e("s_cbranch_scc1 L_wqloop")
    if o["early"]: stamp(4)
    common_init()
    e("s_barrier")
    e("s_branch L_qproj")
    e.label("L_not0")
    common_init()
    e("s_cmp_eq_u32 s3, 1"); e("s_cbranch_scc0 L_not1")
    e("v_lshlrev_b32 v23, 5, v0"); e("v_mov_b32 v24, 0")
    e("s_waitcnt lgkmcnt(0)")
    srd(28, 26, 268435456); srd(32, 4, 2048)
    e("buffer_load_dwordx4 v[4:7], v23, s[32:35], 0 offen")
    e("buffer_load_dwordx4 v[8:11], v23, s[32:35], 0 offen offset:16")
    e("buffer_load_dword v20, v24, s[28:31], 0 offen sc1")
    e("s_barrier")
    e("s_branch L_ln")
    e.label("L_not1")
    e("s_cmp_ge_u32 s3, 6"); e("s_cbranch_scc1 L_bearly")
    e("s_cmp_ge_u32 s3, 4"); e("s_cbranch_scc1 L_learly")
    if o["cpf"]:
        lc = L("cpf"); e("s_cmp_eq_u32 s3, 2"); e(f"s_cbranch_scc0 {lc}")
        e("s_getpc_b64 s[54:55]")
        e.label("L_pc")
        e(f"s_sub_u32 s54, s54, L_pc-{KN}_kernel"); e("s_subb_u32 s55, s55, 0")
        e("s_mul_i32 s56, s49, 6"); e("v_add_u32 v24, s56, v0"); e("v_lshlrev_b32 v24, 7, v24")
        e(f"s_mov_b32 s56, L_exit-{KN}_kernel")
        e("v_cmp_gt_u32 vcc, s56, v24")
        e("s_and_b64 exec, vcc, 0x3f")
        lc2 = L("cpf"); e(f"s_cbranch_execz {lc2}")
        e("global_load_dword v150, v24, s[54:55]")
        e.label(lc2)
        e("s_mov_b64 exec, -1")
        e.label(lc)
    if o["tlb"]:
        lt = L("tlb"); e("s_cmp_eq_u32 s3, 3"); e(f"s_cbranch_scc0 {lt}")
        e("s_lshr_b32 s53, s48, 1"); e("s_lshl_b32 s53, s53, 24"); e("s_and_b32 s54, s48, 1"); e("s_lshl_b32 s54, s54, 4"); e("s_lshr_b32 s55, s49, 1"); e("s_add_u32 s54, s54, s55")
        e("s_lshl_b32 s54, s54, 15"); e("s_add_u32 s53, s53, s54"); e(f"s_add_u32 s53, s53, {KEY0*256}")
        e("s_lshr_b32 s55, s49, 2"); e("s_lshl_b32 s55, s55, 3"); e("s_add_u32 s55, s55, s48"); e("s_lshl_b32 s55, s55, 17")
        e("v_mov_b32 v24, s53"); e("v_mov_b32 v25, s55"); e("v_mov_b32 v26, 0")
        e("s_waitcnt lgkmcnt(0)")
        e("s_mov_b64 exec, 1")
        e("global_load_dword v151, v24, s[8:9]" + NT); e("global_load_dword v152, v25, s[12:13]" + NT)
        e("global_load_dword v153, v24, s[6:7]" + NT); e("global_load_dword v154, v26, s[24:25]")
        e("s_mov_b64 exec, -1")
        e.label(lt)
    e("s_barrier")
    e("s_branch L_w23")
    e.label("L_learly")
    lz = L("nz"); e("s_cmp_eq_u32 s3, 4"); e(f"s_cbranch_scc0 {lz}")
    e("v_lshlrev_b32 v4, 2, v0"); e(f"v_add_u32 v4, {FL}, v4"); e("v_mov_b32 v5, 0")
    e("s_mov_b64 exec, 0xffffffff"); e("ds_write_b32 v4, v5"); e("s_mov_b64 exec, -1"); e("s_waitcnt lgkmcnt(0)")
    e.label(lz)
    if not o["lbar"]: e("s_barrier")
    e("s_branch L_loader")
    e.label("L_bearly")
    e("s_sub_u32 s52, s3, 6")
    e("s_lshr_b32 s53, s2, 4"); e("s_and_b32 s54, s2, 15")
    e("v_and_b32 v23, 31, v0"); e("v_lshlrev_b32 v23, 1, v23"); e("s_lshl_b32 s55, s53, 7"); e("s_lshl_b32 s56, s52, 6"); e("s_add_u32 s55, s55, s56")
    e("s_mul_i32 s56, s54, 448"); e("v_lshlrev_b32 v24, 1, v0")
    e("s_waitcnt lgkmcnt(0)")
    srd(28, 26, 268435456); srd(32, 4, 2048)
    srd(36, 16, 7168); srd(40, 18, 7168); srd(44, 20, 7168)
    if o["bafter"]: e("s_barrier")
    e("buffer_load_ushort v12, v23, s[32:35], s55 offen")
    for n in range(4):
        e(f"buffer_load_ushort v{40+2*n}, v24, s[36:39], s56 offen offset:{128*n}")
        e(f"buffer_load_ushort v{41+2*n}, v24, s[40:43], s56 offen offset:{128*n}")
        e(f"buffer_load_ushort v{48+2*n}, v24, s[44:47], s56 offen offset:{128*n}")
    e("s_load_dword s59, s[22:23], 0")
    if not o["bafter"]: e("s_barrier")
    e("s_branch L_bbranch")

    def common_srd():
        e("s_waitcnt lgkmcnt(0)")
        srd(28, 26, 268435456)
        srd(32, 4, 2048)

    def prep():
        e("s_lshr_b32 s52, s48, 1"); e("s_lshl_b32 s52, s52, 3"); e("s_and_b32 s54, s49, 1"); e("s_lshl_b32 s54, s54, 2"); e("s_add_u32 s52, s52, s54")
        e("s_and_b32 s54, s48, 1"); e("s_lshl_b32 s54, s54, 4"); e("s_lshr_b32 s55, s49, 1"); e("s_add_u32 s55, s55, s54")
        e("s_lshl_b32 s57, s3, 2"); e(f"v_add_u32 v{vFLW}, s57, v21")
        e("v_lshrrev_b32 v28, 2, v3")
        for u in range(4):
            e(f"v_cmp_eq_u32 vcc, {u}, v28"); e.nop(2); e(f"v_cndmask_b32 v{vMASK+u}, 0, -1, vcc")
        e("v_lshrrev_b32 v28, 3, v0"); e("v_and_b32 v29, 7, v0")
        for i in range(2):
            e(f"v_add_u32 v30, {8*i}, v28")
            e("v_and_b32 v31, 3, v30"); e("v_lshlrev_b32 v31, 2, v31"); e(f"v_lshrrev_b32 v{vE1V+i}, 2, v30"); e(f"v_add_u32 v31, v31, v{vE1V+i}"); e("v_lshlrev_b32 v31, 9, v31")
            e(f"v_lshl_add_u32 v{vE1V+i}, v29, 4, v31")
            e("v_lshrrev_b32 v31, 1, v29"); e("v_lshl_add_u32 v31, v31, 4, v30"); e("v_lshlrev_b32 v31, 4, v31")
            e("v_and_b32 v30, 1, v29"); e("v_lshl_add_u32 v31, v30, 3, v31")
            e("s_lshl_b32 s57, s3, 10"); e(f"s_add_u32 s57, s57, {QF}"); e(f"v_add_u32 v{vE1L+i}, s57, v31")
        e(f"s_lshl_b32 s{sE1G}, s52, 11"); e("s_lshl_b32 s57, s3, 7"); e(f"s_add_u32 s{sE1G}, s{sE1G}, s57"); e(f"s_add_u32 s{sE1G}, s{sE1G}, {QB}")
        if o["local"]:
            e("s_xor_b32 s57, s48, s49"); e("s_and_b32 s57, s57, 1")
            e(f"s_mov_b32 s58, {QL - QB}"); e("s_cmp_eq_u32 s57, 0"); e("s_cselect_b32 s58, s58, 0"); e(f"s_add_u32 s{sE1}, s{sE1G}, s58")
        else: e(f"s_mov_b32 s{sE1}, s{sE1G}")
        e(f"v_lshlrev_b32 v{vL16}, 4, v0"); e(f"v_add_u32 v{vQFR}, {QF}, v{vL16}")
        e("s_lshl_b32 s57, s3, 13"); e(f"s_add_u32 s57, s57, {KL}")
        e("v_lshlrev_b32 v28, 8, v3"); e("v_add_u32 v28, s57, v28"); e("v_xor_b32 v29, v2, v3"); e(f"v_lshl_add_u32 v{vKA}, v29, 4, v28")
        for t in range(1, 4): e(f"v_xor_b32 v{vKA+t}, {t<<6}, v{vKA}")
        e("v_lshrrev_b32 v28, 2, v3"); e("v_lshl_add_u32 v28, v2, 2, v28")
        e("v_and_b32 v29, 7, v28"); e("v_lshlrev_b32 v29, 5, v29"); e("v_lshl_add_u32 v28, v28, 8, v29")
        e("v_and_b32 v29, 3, v3"); e("v_lshl_add_u32 v28, v29, 3, v28")
        e("s_lshl_b32 s57, s3, 13"); e(f"s_add_u32 s57, s57, {VL}"); e(f"v_add_u32 v{vVA}, s57, v28")
        for t in range(1, 8): e(f"v_xor_b32 v{vVA+t}, {t<<5}, v{vVA}")
        e("s_lshl_b32 s57, s3, 11"); e(f"s_add_u32 s57, s57, {OP}"); e(f"v_add_u32 v{vOPW}, s57, v{vL16}")
        e("s_lshl_b32 s57, s3, 3"); e(f"s_add_u32 s57, s57, {ML}"); e("v_lshlrev_b32 v28, 5, v3"); e(f"v_add_u32 v{vMLW}, s57, v28")
        e("s_and_b32 s57, s3, 1"); e("s_lshl_b32 s57, s57, 10"); e(f"s_add_u32 s57, s57, {OP}"); e(f"v_add_u32 v{vOPR}, s57, v{vL16}")
        e("v_and_b32 v28, 3, v3"); e("v_lshlrev_b32 v29, 5, v28"); e(f"v_add_u32 v{vMLR}, {ML}, v29")
        e("v_lshlrev_b32 v28, 14, v28"); e("v_lshrrev_b32 v29, 3, v3"); e("v_lshl_add_u32 v28, v29, 13, v28")
        e("v_bfe_u32 v29, v3, 2, 1"); e("v_lshl_add_u32 v29, v29, 2, v2"); e(f"v_lshl_add_u32 v{vMST}, v29, 4, v28")
        e(f"s_lshl_b32 s{sMS}, s52, 14"); e("s_lshl_b32 s57, s55, 8"); e(f"s_add_u32 s{sMS}, s{sMS}, s57"); e("s_and_b32 s57, s3, 1"); e("s_lshl_b32 s57, s57, 7")
        e(f"s_add_u32 s{sMS}, s{sMS}, s57"); e(f"s_add_u32 s{sMS}, s{sMS}, {OB}")
        if o["gmap"]: e("s_lshr_b32 s56, s49, 2"); e("s_lshl_b32 s57, s48, 3"); e("s_add_u32 s56, s56, s57")
        else: e("s_lshr_b32 s56, s49, 2"); e("s_lshl_b32 s56, s56, 3"); e("s_add_u32 s56, s56, s48")
        e(f"s_lshl_b32 s{sE2}, s56, 13"); e("s_lshl_b32 s57, s3, 11"); e(f"s_add_u32 s{sE2}, s{sE2}, s57"); e(f"s_add_u32 s{sE2}, s{sE2}, {OB}")
        e("v_lshrrev_b32 v28, 2, v3"); e("v_lshl_add_u32 v29, v28, 2, v2"); e("v_lshlrev_b32 v29, 9, v29")
        e("v_and_b32 v30, 1, v2"); e("v_lshl_add_u32 v30, v30, 2, v28"); e("v_lshl_add_u32 v29, v30, 5, v29")
        e("v_and_b32 v30, 3, v3"); e("v_lshl_add_u32 v29, v30, 3, v29"); e(f"v_add_u32 v29, {WO}, v29")
        e("s_lshl_b32 s57, s3, 7"); e(f"v_xor_b32 v{vWOA}, s57, v29")
        for u in range(1, 4): e(f"v_xor_b32 v{vWOA+u}, {u<<5}, v{vWOA}")
        e("s_and_b32 s57, s49, 3"); e("s_lshl_b32 s57, s57, 3"); e("s_lshl_b32 s58, s3, 1"); e("s_add_u32 s57, s57, s58"); e(f"s_lshl_b32 s{sE3}, s57, 13")
        e("s_lshl_b32 s57, s56, 7"); e(f"s_add_u32 s{sE3}, s{sE3}, s57"); e(f"s_add_u32 s{sE3}, s{sE3}, {FB}")
        e("v_lshrrev_b32 v28, 3, v3"); e("v_lshlrev_b32 v28, 13, v28"); e("v_and_b32 v29, 7, v3"); e(f"v_lshl_add_u32 v{vE3V}, v29, 4, v28")
        e(f"v_add_u32 v{vOXR}, {OX}, v{vL16}"); e("s_lshl_b32 s57, s3, 2"); e(f"v_add_u32 v{vOXW}, s57, v{vOXR}")

    e.label("L_ln")
    if o["prio"]: e("s_setprio 3")
    e("s_lshl_b32 s54, s47, 4"); e("v_subrev_u32 v23, s54, v0"); e("v_lshlrev_b32 v23, 5, v23"); e(f"v_add_u32 v23, {XN}, v23")
    e("s_mov_b32 s56, 0xffff"); e("s_mov_b32 s57, 0"); e("s_lshl_b64 s[58:59], s[56:57], s54")
    e("s_waitcnt vmcnt(0)")
    stamp(2)
    e(f"v_readfirstlane_b32 s{sT}, v20")
    for k in range(8): unpack(24 + 2 * k, 25 + 2 * k, 4 + k)
    e(f"s_add_u32 s{sT}, s{sT}, 1"); e(f"s_mul_i32 s{sT}, s{sT}, {TMUL:#x}")
    ln_stats(24, 98, 104, 105)
    e(f"v_mov_b32 v20, s{sT}"); e(f"ds_write_b32 v21, v20 offset:{F_T*4}")
    for k in range(16): e(f"v_sub_f32 v{24+k}, v{24+k}, v104")
    for k in range(8): e(f"v_cvt_pk_bf16_f32 v{4+k}, v{24+2*k}, v{25+2*k}")
    for k in range(8): unpack(24 + 2 * k, 25 + 2 * k, 4 + k)
    for k in range(16): e(f"v_mul_f32 v{24+k}, v{24+k}, v105")
    for k in range(8): e(f"v_cvt_pk_bf16_f32 v{4+k}, v{24+2*k}, v{25+2*k}")
    e("s_mov_b64 exec, s[58:59]")
    e("ds_write_b128 v23, v[4:7]"); e("ds_write_b128 v23, v[8:11] offset:16")
    e("s_mov_b64 exec, -1")
    set_flag(F_XN)
    stamp(1)
    for k in range(8): unpack(24 + 2 * k, 25 + 2 * k, 4 + k)
    ln_stats(24, 98, 106, 107)
    e(f"v_mov_b32 v23, {LNS}"); e("ds_write_b128 v23, v[104:107]")
    set_flag(F_LN2)
    stamp(3)
    e("s_branch L_prep")
    e.label("L_qproj")
    if o["prio"]: e("s_setprio 3")
    stamp(1)
    srd(28, 26, 268435456)
    e("s_branch L_prep")
    e.label("L_qproj2")
    e("v_lshrrev_b32 v24, 2, v3"); e("v_and_b32 v25, 3, v3")
    e("v_lshlrev_b32 v26, 2, v2"); e("v_add_u32 v26, v26, v24")
    e("v_lshrrev_b32 v27, 1, v26"); e("v_and_b32 v27, 3, v27")
    e("v_lshlrev_b32 v26, 7, v26"); e("v_lshlrev_b32 v25, 3, v25"); e("v_add_u32 v26, v26, v25")
    e("v_lshlrev_b32 v27, 5, v27"); e("v_add_u32 v108, v26, v27")
    for u in range(1, 4): e(f"v_xor_b32 v{108+u}, {u<<5}, v108")
    e("s_lshr_b32 s57, s46, 1"); e("s_lshl_b32 s57, s57, 11"); e("s_and_b32 s58, s46, 1"); e("s_lshl_b32 s58, s58, 8"); e("s_add_u32 s57, s57, s58")
    e("s_lshl_b32 s58, s47, 9"); e("s_add_u32 s57, s57, s58"); e(f"s_add_u32 s46, s57, {QB}"); e(f"s_add_u32 s47, s57, {QL}")
    e("v_lshlrev_b32 v27, 2, v0")
    e("v_lshlrev_b32 v26, 3, v2"); e(f"v_add_u32 v26, {XN}, v26")
    def xn_extra():
        e(f"ds_read_b32 v29, v21 offset:{F_T*4}")
        for k in range(8): e(f"ds_read2_b64 v[{40+4*k}:{43+4*k}], v26 offset0:{8*k} offset1:{8*k+4}")
    wait_flags(F_XN, 1, 28, extra=xn_extra)
    e(f"v_readfirstlane_b32 s{sT}, v29")
    stamp(2)
    csc = math.log2(math.e) / math.sqrt(128.0)
    e(f"s_mov_b32 s58, {f32bits(csc):#x}")
    def wq_reads(k):
        B = 128 + 16 * (k & 1)
        for u in range(4):
            for rho in range(2):
                r = B + 4 * u + 2 * rho
                e(f"ds_read_b64_tr_b16 v[{r}:{r+1}], v{108+u} offset:{k*4096 + rho*2048}")
    e("s_waitcnt vmcnt(28)")
    wq_reads(0)
    for k in range(8):
        B = 128 + 16 * (k & 1)
        if k < 7:
            e(f"s_waitcnt vmcnt({24 - 4*k})")
            if k == 6: stamp(3)
            wq_reads(k + 1)
            e("s_waitcnt lgkmcnt(8)")
        else:
            e("s_waitcnt lgkmcnt(0)")
        for u in range(4):
            c = "0" if k == 0 else f"v[{72+4*u}:{75+4*u}]"
            e(f"v_mfma_f32_16x16x32_bf16 v[{72+4*u}:{75+4*u}], v[{40+4*k}:{43+4*k}], v[{B+4*u}:{B+4*u+3}], {c}")
    e(f"v_mov_b32 v49, s{sT}"); e(f"v_mov_b32 v51, s{sT}")
    e("s_mov_b32 s56, 0x11111111"); e("s_mov_b32 s57, 0x11111111")
    e("s_mov_b32 s60, 0xffff0000"); e("s_mov_b32 s61, 0"); e("s_mov_b32 s62, 0"); e("s_mov_b32 s63, 0xffff"); e("s_mov_b32 s64, 0"); e("s_mov_b32 s65, 0xffff0000")
    e.nop(2)
    e("v_cndmask_b32 v104, v72, v76, s[60:61]"); e("v_cndmask_b32 v104, v104, v80, s[62:63]"); e("v_cndmask_b32 v104, v104, v84, s[64:65]")
    e("v_mul_f32 v104, s58, v104"); e.nop(2)
    e(f"v_mov_b32_dpp v105, v104 quad_perm:[1,0,3,2] {DPP}")
    e("v_cvt_pk_bf16_f32 v48, v104, v105"); e.nop(2)
    e(f"v_mov_b32_dpp v50, v48 quad_perm:[2,3,0,1] {DPP}")
    e("s_mov_b64 exec, s[56:57]")
    if o["local"]: e("buffer_store_dwordx4 v[48:51], v27, s[28:31], s47 offen")
    e("buffer_store_dwordx4 v[48:51], v27, s[28:31], s46 offen sc1")
    e("s_mov_b64 exec, -1")
    set_flag(F_QPUB)
    stamp(5)
    e("s_branch L_attn")

    if o["pages"]: e(".p2align 12")
    e.label("L_w23")
    if o["prio"]: e("s_setprio 3")
    common_srd()
    e.label("L_prep")
    prep()
    e("s_cmp_eq_u32 s3, 0"); e("s_cbranch_scc1 L_qproj2")
    e("s_cmp_eq_u32 s3, 1"); e("s_cbranch_scc1 L_attn")
    wait_flags(F_XN, 1, 28, extra=lambda: e(f"ds_read_b32 v29, v21 offset:{F_T*4}"), sleep=o["slp"], lowprio=LOW)
    e(f"v_readfirstlane_b32 s{sT}, v29")
    e.label("L_attn")
    wait_flags(F_QPUB, 1, 28, sleep=o["slp"], lowprio=LOW)
    if o["dl1"]: e(f"s_sleep {o['dl1']}")
    wait_flags(F_VI, 2, 28, lowprio=LOW)
    PB = 128
    def mk_e1(i):
        b = PB + 4 * i
        return dict(issue=lambda: e(f"buffer_load_dwordx4 v[{b}:{b+3}], v{vE1V+i}, s[28:31], s{sE1} offen sc1"),
                    check=lambda: (e(f"v_xor_b32 v36, s{sT}, v{b+1}"), e(f"v_xor_b32 v37, s{sT}, v{b+3}"), e("v_or_b32 v36, v36, v37"), e("v_cmp_ne_u32 vcc, 0, v36")),
                    take=lambda: e(f"ds_write2_b32 v{vE1L+i}, v{b}, v{b+2} offset0:0 offset1:1"), mask=70 + 2 * i)
    def kreads():
        for kt in range(2):
            for t in range(4):
                r = 40 + 16 * kt + 4 * t
                e(f"ds_read_b128 v[{r}:{r+3}], v{vKA+t} offset:{kt*4096}")
    def e1_pre():
        if o["local"]: e(f"s_cmp_ge_u32 s68, {o['fb1']}"); e(f"s_cselect_b32 s{sE1}, s{sE1G}, s{sE1}")
    if not o["early"]: stamp(1)
    def e1_shadow():
        if o["wpre"] or o["vh"] < 16: e(f"ds_write_b32 v{vFLW}, v22 offset:{F_P1*4}")
        if o["vi"] >= 16: kreads()
    mpoll([mk_e1(0), mk_e1(1)], cnt=68, pre=e1_pre, shadow=e1_shadow)
    e(f"ds_write_b32 v{vFLW}, v22 offset:{F_QF*4}")
    stamp(6)
    if o["vi"] < 16:
        wait_flags(F_K, 2, 28); kreads()
    VF = 160
    def vreads():
        for t in range(8):
            for rho in range(2):
                r = VF + 4 * t + 2 * rho
                e(f"ds_read_b64_tr_b16 v[{r}:{r+1}], v{vVA+t} offset:{rho*4096}")
    def qf_extra():
        e(f"ds_read_b64 v[32:33], v21 offset:{F_V*4}")
        for t in range(4): e(f"ds_read_b128 v[{72+4*t}:{75+4*t}], v{vQFR} offset:{t*1024}")
    wait_flags(F_QF, 4, 28, extra=qf_extra)
    for t in range(4):
        for kt in range(2):
            c = "0" if t == 0 else f"v[{88+4*kt}:{91+4*kt}]"
            e(f"v_mfma_f32_16x16x32_bf16 v[{88+4*kt}:{91+4*kt}], v[{40+16*kt+4*t}:{43+16*kt+4*t}], v[{72+4*t}:{75+4*t}], {c}")
    e("v_and_b32 v32, v32, v33"); e("v_cmp_ne_u32 vcc, 0, v32")
    e("s_mov_b32 s59, 0")
    lv = L("vlate"); e(f"s_cbranch_vccz {lv}")
    vreads(); e("s_mov_b32 s59, 1")
    e.label(lv)
    for m in range(4): e(f"v_mov_b32 v{44+m}, 0x3f803f80")
    e.nop(3)
    S = list(range(88, 96))
    for s_ in S: e(f"v_add_f32_dpp v{s_+8}, v{s_}, v{s_} row_ror:4 {DPP}")
    for s_ in S: e(f"v_add_f32_dpp v{s_}, v{s_+8}, v{s_+8} row_ror:8 {DPP}")
    e("v_max3_f32 v96, v88, v89, v90"); e("v_max3_f32 v97, v91, v92, v93"); e("v_max3_f32 v96, v96, v94, v95"); e("v_max_f32 v96, v96, v97")
    allreduce_xrow(96, 97, "v_max_f32")
    for s_ in S: e(f"v_sub_f32 v{s_}, v{s_}, v96")
    for s_ in S: e(f"v_exp_f32 v{s_}, v{s_}")
    e.nop(1)
    for m in range(4): e(f"v_cvt_pk_bf16_f32 v{100+m}, v{88+2*m}, v{89+2*m}")
    lw = L("vok"); e("s_cmp_lg_u32 s59, 0"); e(f"s_cbranch_scc1 {lw}")
    wait_flags(F_V, 2, 28); vreads()
    e.label(lw)
    for m in range(4): e(f"v_and_b32 v{72+m}, v{100+m}, v{vMASK}")
    for m in range(4): e(f"v_and_b32 v{76+m}, v{100+m}, v{vMASK+1}")
    e("s_waitcnt lgkmcnt(0)")
    first = [True, True]
    for t in range(8):
        ee = (t >> 1) & 1; u = 2 * (t >> 2) + (t & 1)
        c = "0" if first[ee] else f"v[{104+4*ee}:{107+4*ee}]"; first[ee] = False
        e(f"v_mfma_f32_16x16x32_bf16 v[{104+4*ee}:{107+4*ee}], v[{VF+4*t}:{VF+4*t+3}], v[{72+4*u}:{75+4*u}], {c}")
        if t in (0, 1):
            for m in range(4): e(f"v_and_b32 v{80+4*t+m}, v{100+m}, v{vMASK+2+t}")
    e("v_mfma_f32_16x16x32_bf16 v[92:95], v[44:47], v[100:103], 0")
    e.nop(6)
    e(f"ds_write_b128 v{vOPW}, v[104:107]")
    e(f"ds_write_b128 v{vOPW}, v[108:111] offset:1024")
    e("v_mov_b32 v97, v92")
    e("s_mov_b64 exec, 0xf")
    e(f"ds_write_b64 v{vMLW}, v[96:97]")
    e("s_mov_b64 exec, -1")
    e(f"ds_write_b32 v{vFLW}, v22 offset:{F_O*4}")
    stamp(7)
    tagbytes(60); e("s_mov_b32 s64, 0x07060500"); e("s_mov_b32 s59, 0")
    e("s_cmp_ge_u32 s3, 2"); e("s_cbranch_scc1 L_e2")
    e(f"v_mov_b32 v63, s{sT}")
    def mg_extra():
        for w in range(4): e(f"ds_read_b128 v[{32+4*w}:{35+4*w}], v{vOPR} offset:{w*2048}")
        e(f"ds_read_b128 v[48:51], v{vMLR}"); e(f"ds_read_b128 v[52:55], v{vMLR} offset:16")
    wait_flags(F_O, 4, 28, extra=mg_extra)
    e("v_max3_f32 v56, v48, v50, v52"); e("v_max_f32 v56, v56, v54")
    for w in range(4): e(f"v_sub_f32 v{48+2*w}, v{48+2*w}, v56")
    for w in range(4): e(f"v_exp_f32 v{48+2*w}, v{48+2*w}")
    e.nop(1)
    e("v_mul_f32 v57, v48, v49")
    for m in range(4): e(f"v_mul_f32 v{32+m}, v{32+m}, v48")
    for w in range(1, 4): e(f"v_fmac_f32 v57, v{48+2*w}, v{49+2*w}")
    for m in range(4): e(f"v_fmac_f32 v{32+m}, v{36+m}, v50")
    e("v_rcp_f32 v58, v57"); e("v_log_f32 v59, v57")
    for w in range(2, 4):
        for m in range(4): e(f"v_fmac_f32 v{32+m}, v{32+4*w+m}, v{48+2*w}")
    e("v_add_f32 v62, v56, v59")
    for m in range(4): e(f"v_mul_f32 v{32+m}, v{32+m}, v58")
    e("v_cvt_pk_bf16_f32 v60, v32, v33"); e("v_cvt_pk_bf16_f32 v61, v34, v35")
    e(f"buffer_store_dwordx4 v[60:63], v{vMST}, s[28:31], s{sMS} offen sc1")
    e(f"ds_write_b32 v{vFLW}, v22 offset:{F_MP*4}")
    if o["stamps"]: e("s_memrealtime s[80:81]")

    e.label("L_e2")
    def woreads():
        for u in range(4):
            for tp in range(4):
                r = 40 + 8 * u + 2 * tp
                e(f"ds_read_b64_tr_b16 v[{r}:{r+1}], v{vWOA+u} offset:{tp*8192}")
    def wo_try():
        lskip = L("wo"); e("s_cmp_lg_u32 s59, 0"); e(f"s_cbranch_scc1 {lskip}")
        e(f"ds_read_b64 v[28:29], v21 offset:{F_WO*4}"); e("s_waitcnt lgkmcnt(0)")
        e("v_and_b32 v28, v28, v29"); e("v_cmp_ne_u32 vcc, 0, v28"); e(f"s_cbranch_vccz {lskip}")
        woreads(); e("s_mov_b32 s59, 1")
        e.label(lskip)
    for k in range(4): e(f"v_mov_b32 v{8+k}, s{60+k}")
    e("v_mov_b32 v10, v10") if False else None
    wait_flags(F_MP, 2, 28, lowprio=LOW)
    if o["dl2"]: e(f"s_sleep {o['dl2']}")
    B2 = 128
    def mk_dat(n):
        b = B2 + 4 * n
        return dict(issue=lambda: e(f"buffer_load_dwordx4 v[{b}:{b+3}], v{vL16}, s[28:31], s{sE2} offen offset:{n*1024} sc1"),
                    check=lambda: e(f"v_cmp_ne_u32 vcc, s{sT}, v{b+3}"), mask=70 + 2 * n)
    def st23(sl):
        if not o["stamps"]: return
        if o["early"]:
            lsk = L("se"); e("s_cmp_lt_u32 s3, 2"); e(f"s_cbranch_scc1 {lsk}"); e(f"s_memrealtime s[{80+2*sl}:{81+2*sl}]"); e.label(lsk)
        else: e(f"s_memrealtime s[{80+2*sl}:{81+2*sl}]")
    st23(1)
    mpoll([mk_dat(0), mk_dat(1)], cnt=69, pre=wo_try, shadow=wo_try)
    st23(2)
    l0, l1 = B2 + 2, B2 + 6
    e(f"v_max_f32 v7, v{l0}, v{l1}")
    e("v_mov_b32 v20, 0xffff0000")
    e(f"v_lshlrev_b32 v16, 16, v{B2}"); e(f"v_and_b32 v17, v20, v{B2}")
    allreduce_xrow(7, 6, "v_max_f32")
    e(f"v_sub_f32 v{l0}, v{l0}, v7"); e(f"v_sub_f32 v{l1}, v{l1}, v7")
    e(f"v_lshlrev_b32 v18, 16, v{B2+1}"); e(f"v_and_b32 v19, v20, v{B2+1}")
    e(f"v_exp_f32 v{l0}, v{l0}"); e(f"v_exp_f32 v{l1}, v{l1}")
    e(f"v_lshlrev_b32 v24, 16, v{B2+4}"); e(f"v_and_b32 v25, v20, v{B2+4}"); e(f"v_lshlrev_b32 v26, 16, v{B2+5}"); e(f"v_and_b32 v27, v20, v{B2+5}")
    for i in range(4): e(f"v_mul_f32 v{12+i}, v{16+i}, v{l0}")
    e(f"v_add_f32 v5, v{l0}, v{l1}")
    for i in range(4): e(f"v_fmac_f32 v{12+i}, v{24+i}, v{l1}")
    e("v_mov_b32 v4, v7")
    allreduce_xrow(5, 6, "v_add_f32")
    reduce_scatter4(12)
    e(f"ds_write_b32 v{vOXW}, v12")
    e("s_lshl_b32 s57, s3, 3"); e(f"s_add_u32 s57, s57, {SX}"); e("v_mov_b32 v6, s57")
    e("s_mov_b64 exec, 1"); e("ds_write_b64 v6, v[4:5]"); e("s_mov_b64 exec, -1")
    e(f"ds_write_b32 v{vFLW}, v22 offset:{F_OX*4}")
    e(f"v_mov_b32 v6, {SX}")
    def ox_extra():
        e(f"ds_read_b128 v[12:15], v{vOXR}"); e("ds_read_b128 v[24:27], v6"); e("ds_read_b128 v[72:75], v6 offset:16")
    wait_flags(F_OX, 4, 28, extra=ox_extra)
    e("v_max3_f32 v7, v24, v26, v72"); e("v_max_f32 v7, v7, v74")
    e("v_sub_f32 v24, v24, v7"); e("v_sub_f32 v26, v26, v7"); e("v_sub_f32 v72, v72, v7"); e("v_sub_f32 v74, v74, v7")
    e("v_exp_f32 v24, v24"); e("v_exp_f32 v26, v26"); e("v_exp_f32 v72, v72"); e("v_exp_f32 v74, v74"); e.nop(1)
    e("v_mul_f32 v5, v24, v25"); e("v_mul_f32 v12, v12, v24"); e("v_fmac_f32 v5, v26, v27"); e("v_fmac_f32 v12, v13, v26")
    e("v_fmac_f32 v5, v72, v73"); e("v_fmac_f32 v12, v14, v72"); e("v_fmac_f32 v5, v74, v75"); e("v_fmac_f32 v12, v15, v74")
    e("v_rcp_f32 v5, v5"); e.nop(1); e("v_mul_f32 v12, v12, v5"); e.nop(2)
    e(f"v_mov_b32_dpp v13, v12 quad_perm:[1,0,3,2] {DPP}")
    e("v_cvt_pk_bf16_f32 v12, v12, v13"); e.nop(2)
    for m in range(8): e(f"v_mov_b32_dpp v{76+m}, v12 row_newbcast:{2*m} {DPP}")
    lw = L("wook"); e("s_cmp_lg_u32 s59, 0"); e(f"s_cbranch_scc1 {lw}")
    wait_flags(F_WO, 2, 28); woreads(); e("s_waitcnt lgkmcnt(0)")
    e.label(lw)
    AC = 136
    for k in range(2):
        for u in range(4):
            c = "0" if k == 0 else f"v[{AC+4*u}:{AC+4*u+3}]"
            e(f"v_mfma_f32_16x16x32_bf16 v[{AC+4*u}:{AC+4*u+3}], v[{76+4*k}:{79+4*k}], v[{40+8*u+4*k}:{43+8*u+4*k}], {c}")
    e("s_mov_b64 exec, 0xffff")
    e.nop(4)
    for i in range(4): e(f"v_perm_b32 v{4+i}, v{AC+4*i}, v{8+i}, s64")
    e(f"buffer_store_dwordx4 v[4:7], v{vE3V}, s[28:31], s{sE3} offen sc1")
    e("s_mov_b64 exec, -1")
    set_flag(F_PUB3)
    if o["stamps"] == 3 or o["early"]:
        lsk = L("st3"); e("s_cmp_lt_u32 s3, 2"); e(f"s_cbranch_scc1 {lsk}"); e("s_memrealtime s[86:87]"); e.label(lsk)
    elif o["stamps"]: e("s_memrealtime s[86:87]")
    e("s_waitcnt lgkmcnt(0)")
    dump_stamps(cnts=([(4, 68), (5, 69)] if (o["stamps"] != 3 and not o["early"]) else None))
    e("s_endpgm")

    e.label("L_loader")
    stamp(1)
    if o["prio"]: e("s_setprio 2")
    e("s_sub_u32 s52, s3, 4")
    e("s_lshr_b32 s53, s48, 1"); e("s_lshl_b32 s53, s53, 24"); e("s_and_b32 s54, s48, 1"); e("s_lshl_b32 s54, s54, 4"); e("s_lshr_b32 s55, s49, 1"); e("s_add_u32 s54, s54, s55")
    e("s_lshl_b32 s54, s54, 15"); e("s_add_u32 s53, s53, s54"); e(f"s_add_u32 s53, s53, {KEY0*256}")
    e("s_lshl_b32 s54, s52, 14"); e("s_add_u32 s53, s53, s54")
    if o["gmap"]: e("s_lshr_b32 s55, s49, 2"); e("s_lshl_b32 s56, s48, 3"); e("s_add_u32 s55, s55, s56"); e("s_lshl_b32 s55, s55, 17")
    else: e("s_lshr_b32 s55, s49, 2"); e("s_lshl_b32 s55, s55, 3"); e("s_add_u32 s55, s55, s48"); e("s_lshl_b32 s55, s55, 17")
    e("s_and_b32 s56, s49, 3"); e("s_lshl_b32 s56, s56, 9"); e("s_add_u32 s55, s55, s56")
    e("s_lshl_b32 s56, s52, 16"); e("s_add_u32 s55, s55, s56")
    e("s_lshl_b32 s57, s52, 14")
    for m in range(4):
        e(f"v_add_u32 v4, {4*m}, v2"); e("v_xor_b32 v4, v4, v3"); e("v_lshlrev_b32 v4, 4, v4"); e("v_lshlrev_b32 v5, 8, v2"); e(f"v_add_u32 v{8+m}, v4, v5")
    for m in range(2):
        e(f"v_add_u32 v4, {4*m}, v2"); e("v_lshrrev_b32 v5, 1, v3"); e("v_xor_b32 v4, v4, v5"); e("v_lshlrev_b32 v4, 1, v4"); e("v_and_b32 v5, 1, v3"); e("v_or_b32 v4, v4, v5")
        e("v_lshlrev_b32 v4, 4, v4"); e("v_lshlrev_b32 v5, 8, v2"); e(f"v_add_u32 v{12+m}, v4, v5")
    e("v_lshrrev_b32 v6, 5, v0"); e("v_and_b32 v7, 31, v0")
    for m in range(4):
        e("v_lshlrev_b32 v4, 2, v6"); e(f"v_add_u32 v4, {m}, v4"); e("v_lshrrev_b32 v5, 1, v7"); e("v_xor_b32 v4, v4, v5"); e("v_lshlrev_b32 v4, 1, v4")
        e("v_and_b32 v5, 1, v7"); e("v_or_b32 v4, v4, v5"); e("v_lshlrev_b32 v4, 4, v4"); e("v_lshlrev_b32 v5, 11, v6"); e(f"v_add_u32 v{16+m}, v4, v5")
    e("s_lshl_b32 s58, s52, 2"); e("v_add_u32 v20, s58, v21")
    e("s_waitcnt lgkmcnt(0)")
    srd(36, 6, 67108864); srd(40, 8, 67108864); srd(44, 12, 8388608)
    if o["stamps"]: srd(28, 26, 268435456)
    if o["lbar"]: e("s_barrier")
    stamp(2)
    W = o["win"]; WKV = o["winkv"]
    seq = [("K", m) for m in range(16)] + [("V", m) for m in range(16)] + [("W", m) for m in range(16)]
    st = dict(landed=-1)
    def land(upto):
        for x in range(st["landed"] + 1, upto + 1):
            if x == 15: set_flag(F_K, 20); stamp(3)
            if x == 31: set_flag(F_V, 20); stamp(4)
        st["landed"] = max(st["landed"], upto)
    for i, (kind, m) in enumerate(seq):
        w_ = WKV if i < 32 else W
        skipwin = False
        if o["vi"] < 16 and i == 16 + o["vi"]: set_flag(F_VI, 20)
        if o["vh"] < 16 and i == 16 + o["vh"]:
            if st["landed"] < 15: e(f"s_waitcnt vmcnt({i - 16})"); land(15)
            set_flag(F_VI, 20)
            wait_flags(F_P1, 4, 24)
        if i == 32:
            assert st["landed"] >= 15
            if o["vh"] >= 16:
                if o["vi"] >= 16: set_flag(F_VI, 20)
                if o["wpre"]: wait_flags(F_P1, 4, 24)
            if not o["wpre"]:
                e("s_waitcnt vmcnt(0)"); land(31)
                wait_flags(F_QF, 4, 24)
        if o["wpre"] and 32 <= i < 32 + o["wpre"]:
            skipwin = True
        if o["wpre"] and i == 32 + o["wpre"]:
            e(f"s_waitcnt vmcnt({o['wpre']})"); land(31)
            wait_flags(F_QF, 4, 24)
        if not skipwin and i - st["landed"] - 1 > w_ - 1:
            e(f"s_waitcnt vmcnt({w_-1})"); land(i - w_)
        if kind == "K":
            e(f"s_add_u32 m0, s57, {KL + m*1024}"); e(f"s_add_u32 s58, s53, {m*1024}")
            e(f"buffer_load_dwordx4 v{8 + (m & 3)}, s[36:39], s58 offen{NTKV} lds")
        elif kind == "V":
            e(f"s_add_u32 m0, s57, {VL + m*1024}"); e(f"s_add_u32 s58, s53, {m*1024}")
            e(f"buffer_load_dwordx4 v{12 + (m & 1)}, s[40:43], s58 offen{NTKV} lds")
        else:
            e(f"s_add_u32 m0, s57, {WO + m*1024}"); e(f"s_add_u32 s58, s55, {m*4096}")
            e(f"buffer_load_dwordx4 v{16 + ((m >> 1) & 3)}, s[44:47], s58 offen{NT} lds")
    e("s_waitcnt vmcnt(0)"); set_flag(F_WO, 20); stamp(5)
    e("s_waitcnt lgkmcnt(0)")
    dump_stamps()
    e("s_endpgm")

    e.label("L_final")
    tagbytes(60)
    e("s_mov_b32 s64, 0x07060500")
    for k in range(4): e(f"v_mov_b32 v{8+k}, s{60+k}")
    e("v_lshlrev_b32 v24, 2, v3"); e(f"v_add_u32 v24, {YP}, v24")
    wait_flags(F_G, 1, 28, extra=lambda: [e(f"ds_read_b32 v{96+i}, v24 offset:{64*i}") for i in range(4)])
    for k in range(4): e(f"v_perm_b32 v{4+k}, v{96+k}, v{8+k}, s64")
    e("s_lshl_b32 s56, s2, 8"); e(f"s_add_u32 s56, s56, {GB}")
    e("v_lshlrev_b32 v24, 4, v0")
    e("s_mov_b64 exec, 0xffff")
    e("buffer_store_dwordx4 v[4:7], v24, s[28:31], s56 offen sc1")
    e("s_mov_b64 exec, -1")
    stamp(4)
    e("s_lshr_b32 s53, s49, 3"); e("s_lshl_b32 s53, s53, 3"); e("s_add_u32 s53, s53, s48")
    e("s_and_b32 s54, s49, 7")
    e("s_lshr_b32 s55, s53, 1"); e("s_lshl_b32 s55, s55, 6"); e("s_and_b32 s56, s53, 1"); e("s_lshl_b32 s56, s56, 3"); e("s_add_u32 s55, s55, s56"); e("s_add_u32 s55, s55, s54")
    e("v_lshlrev_b32 v25, 5, v2"); e("s_lshl_b32 s55, s55, 1")
    e("buffer_load_ushort v12, v25, s[32:35], s55 offen")
    e("v_lshlrev_b32 v26, 2, v3"); e("v_add_u32 v26, v26, v2"); e("v_lshlrev_b32 v26, 8, v26")
    e("s_lshr_b32 s56, s53, 1"); e("s_lshl_b32 s56, s56, 12"); e("s_and_b32 s57, s53, 1"); e("s_lshl_b32 s57, s57, 3"); e("s_add_u32 s57, s57, s54"); e("s_lshl_b32 s57, s57, 4")
    e("s_add_u32 s57, s57, s56"); e(f"s_add_u32 s57, s57, {GB}")
    e("v_lshlrev_b32 v24, 7, v0")
    e("s_lshl_b32 s56, s53, 13"); e("s_lshl_b32 s58, s54, 4"); e("s_add_u32 s56, s56, s58"); e(f"s_add_u32 s56, s56, {FB}")
    srd(36, 24, 2048)
    wait_flags(F_MP, 2, 28, sleep=4)
    mpoll([dict(issue=lambda: e("buffer_load_dwordx4 v[32:35], v26, s[28:31], s57 offen sc1"), check=lambda: chk4(32, 60), mask=70, init=(0x000f000f, 0x000f000f))])
    reduce_scatter4(32); e("v_mov_b32 v96, v32"); e.nop(2)
    e(f"v_add_f32_dpp v96, v96, v96 quad_perm:[1,0,3,2] {DPP}"); e.nop(2)
    e(f"v_add_f32_dpp v96, v96, v96 quad_perm:[2,3,0,1] {DPP}")
    bf16r(96, 96)
    e("s_and_b32 s59, s59, 0xffff"); e("s_lshl_b32 s59, s59, 16")
    e("v_add_f32 v96, s59, v96"); bf16r(96, 96)
    e(f"v_mul_f32 v97, {f32bits(-math.log2(math.e)):#x}, v96"); e("v_exp_f32 v97, v97"); e.nop(1); e("v_add_f32 v97, 1.0, v97"); e("v_rcp_f32 v97, v97"); e.nop(1)
    e("v_mul_f32 v96, v96, v97"); bf16r(96, 96)
    e("v_lshlrev_b32 v14, 16, v12")
    stamp(1)
    wait_flags(F_PUB3, 1, 28, sleep=1)
    if o["prio"]: e("s_setprio 3")
    if o["dl3"]: e(f"s_sleep {o['dl3']}")
    stamp(5)
    mpoll([dict(issue=lambda: e("buffer_load_dwordx4 v[28:31], v24, s[28:31], s56 offen sc1"), check=lambda: chk4(28, 100), mask=70)], cnt=69)
    stamp(6)
    reduce_scatter4(28)
    allreduce_row16(28, "v_add_f32")
    bf16r(28, 28)
    e("v_mul_f32 v28, v28, v96"); bf16r(28, 28)
    e("v_add_f32 v28, v28, v14")
    e("v_cvt_pk_bf16_f32 v28, v28, v28")
    e("s_mov_b32 exec_lo, 0x00010001"); e("s_mov_b32 exec_hi, 0x00010001")
    e("buffer_store_short v28, v25, s[36:39], s55 offen")
    l = L("ne"); e("s_cmp_lg_u32 s2, 0"); e(f"s_cbranch_scc1 {l}")
    e("s_mov_b64 exec, 1")
    e(f"s_mul_i32 s57, s{sT}, {TINV:#x}"); e("v_mov_b32 v20, s57"); e("v_mov_b32 v23, 0")
    e("buffer_store_dword v20, v23, s[28:31], 0 offen sc1")
    e.label(l)
    e("s_mov_b64 exec, -1")
    stamp(7)
    dump_stamps(cnts=[(2, 69)], final=True)
    e("s_endpgm")
    if o["pages"]: e(".p2align 12")
    e.label("L_bbranch")
    if o["prio"]: e(f"s_setprio {o['bprio']}")
    e(f"v_mov_b32 v23, {LNS}")
    k1 = -2.0 * math.sqrt(2.0 / math.pi) * math.log2(math.e); k2 = k1 * 0.044715
    e(f"v_mov_b32 v92, {f32bits(k1):#x}"); e(f"v_mov_b32 v93, {f32bits(k2):#x}")
    wait_flags(F_LN2, 1, 28, extra=lambda: (e("ds_read_b128 v[32:35], v23"), e(f"ds_read_b32 v29, v21 offset:{F_T*4}")), sleep=2)
    e(f"v_readfirstlane_b32 s{sT}, v29")
    e("s_waitcnt vmcnt(0)")
    stamp(1)
    for k in range(8): e(f"v_lshlrev_b32 v{40+k}, 16, v{40+k}")
    for n in range(4): e(f"v_lshlrev_b32 v{48+2*n}, 16, v{48+2*n}")
    e("v_cmp_gt_u32 vcc, 32, v0"); e("v_mov_b32 v94, 1.0"); e("v_mov_b32 v95, 1.0"); e("v_cndmask_b32 v54, 0, v54, vcc")
    e("v_lshlrev_b32 v14, 16, v12")
    e("v_sub_f32 v16, v14, v32"); bf16r(16, 16); e("v_mul_f32 v16, v16, v33"); bf16r(16, 16)
    e("v_sub_f32 v16, v16, v34"); bf16r(16, 16); e("v_mul_f32 v16, v16, v35"); bf16r(16, 16)
    ACCB = 128
    for half in range(2):
        e.nop(1)
        for k in range(16): e(f"v_readlane_b32 s{64+k}, v16, {16*half+k}")
        e.nop(2)
        NI = o["bilp"]
        for k in range(0, 16, 2 * NI):
            dps = [16 * half + k + 2 * q_ for q_ in range(NI)]
            for n in range(4):
                R = range(NI)
                U = [f"v[{100+6*q_}:{101+6*q_}]" for q_ in R]; Z = [f"v[{102+6*q_}:{103+6*q_}]" for q_ in R]; G = [f"v[{104+6*q_}:{105+6*q_}]" for q_ in R]
                WB = f"v[{40+2*n}:{41+2*n}]"; W2 = f"v[{48+2*n}:{49+2*n}]"
                for q_, d in enumerate(dps): e(f"v_pk_fma_f32 {U[q_]}, s[{64+(d&15)}:{65+(d&15)}], {WB}, {WB} op_sel:[0,0,1] op_sel_hi:[1,0,1]")
                for q_ in R: e(f"v_pk_mul_f32 {Z[q_]}, {U[q_]}, {U[q_]}")
                for q_ in R: e(f"v_pk_fma_f32 {Z[q_]}, {Z[q_]}, v[92:93], v[92:93] op_sel:[0,1,0] op_sel_hi:[1,1,0]")
                for q_ in R: e(f"v_pk_mul_f32 {Z[q_]}, {Z[q_]}, {U[q_]}")
                for q_ in R: e(f"v_pk_mul_f32 {G[q_]}, {U[q_]}, {W2} op_sel_hi:[1,0]")
                for q_ in R: e(f"v_exp_f32 v{102+6*q_}, v{102+6*q_}"); e(f"v_exp_f32 v{103+6*q_}, v{103+6*q_}")
                e.nop(1)
                for q_ in R: e(f"v_pk_add_f32 {Z[q_]}, {Z[q_]}, v[94:95]")
                for q_ in R: e(f"v_rcp_f32 v{102+6*q_}, v{102+6*q_}"); e(f"v_rcp_f32 v{103+6*q_}, v{103+6*q_}")
                e.nop(1)
                for q_, d in enumerate(dps):
                    A_ = f"v[{ACCB+d}:{ACCB+d+1}]"
                    if n == 0: e(f"v_pk_mul_f32 {A_}, {G[q_]}, {Z[q_]}")
                    else: e(f"v_pk_fma_f32 {A_}, {G[q_]}, {Z[q_]}, {A_}")
    stamp(3)
    e.nop(2)
    for k in range(16):
        e(f"v_permlane32_swap_b32 v{ACCB+k}, v{ACCB+16+k}")
    for k in range(16): e(f"v_add_f32 v{ACCB+k}, v{ACCB+k}, v{ACCB+16+k}")
    e.nop(1)
    for k in range(8): e(f"v_permlane16_swap_b32 v{ACCB+k}, v{ACCB+8+k}")
    for k in range(8): e(f"v_add_f32 v{ACCB+k}, v{ACCB+k}, v{ACCB+8+k}")
    for sh in (8, 4, 2, 1):
        e.nop(1)
        for k in range(8): e(f"v_add_f32_dpp v{ACCB+k}, v{ACCB+k}, v{ACCB+k} row_ror:{sh} {DPP}")
    e("s_lshl_b32 s57, s52, 7"); e(f"s_add_u32 s57, s57, {YP}"); e("v_lshlrev_b32 v24, 5, v2"); e("v_add_u32 v24, s57, v24")
    e("s_mov_b32 exec_lo, 0x00010001"); e("s_mov_b32 exec_hi, 0x00010001")
    e(f"ds_write_b128 v24, v[{ACCB}:{ACCB+3}]"); e(f"ds_write_b128 v24, v[{ACCB+4}:{ACCB+7}] offset:16")
    e("s_mov_b64 exec, -1")
    e("s_cmp_eq_u32 s52, 0"); e("s_cbranch_scc1 L_final")
    set_flag(F_G)
    e("s_waitcnt lgkmcnt(0)")
    dump_stamps()
    e("s_endpgm")
    e.label("L_abort")
    e("s_endpgm")
    e.label("L_exit")

    probs = check(a.lines)
    body = a.text()
    nv = 224
    PAD = ".p2align 12\n.fill 832, 4, 0xbf810000\n" if o["pgal"] else ""
    hdr = open("cdna_kernels/" + KN + ".s.ref").read().split("; Override launch")[0]
    out = hdr + f"; Override launch geometry by editing the next line.\n; @launch grid=(256,1,1) block=(512,1,1) lds={LDS_BYTES}\n" + DOC.lstrip("\n")
    out += f""".amdgcn_target "amdgcn-amd-amdhsa--gfx950"
.text
.globl {KN}_kernel
{PAD}.p2align 8
.type {KN}_kernel,@function
{KN}_kernel:
{body}
    s_endpgm
.section .rodata,"a"
.p2align 6
.amdhsa_kernel {KN}_kernel
  .amdhsa_next_free_vgpr {nv}
  .amdhsa_next_free_sgpr 100
  .amdhsa_accum_offset {nv}
  .amdhsa_group_segment_fixed_size 0
  .amdhsa_kernarg_size 104
  .amdhsa_user_sgpr_count 2
  .amdhsa_user_sgpr_kernarg_segment_ptr 1
  .amdhsa_system_sgpr_workgroup_id_x 1
.end_amdhsa_kernel
"""
    return out, probs

if __name__ == "__main__":
    opt = {}
    name = sys.argv[1]
    for kv in sys.argv[2:]:
        k, v = kv.split("="); opt[k] = int(v, 0)
    s, probs = gen(opt)
    open(name, "w").write(s)
    for p in probs: print("HAZARD:", p)
```

```python
import sys, math, struct
from asmlib import Asm, check
KN = "recurrent_scan__sliding_block_cached__mixer_token_mlp__decode"
def f32bits(x): return struct.unpack("<I", struct.pack("<f", x))[0]

DEF = dict(stamps=0, nt=1, win=12, winkv=16, spinmax=1 << 20, prio=1, dl2=24, dl3=18, local=1, fb1=12, slp=1, bprio=1, bearly=1, bilp=2, wpre=3, cpf=1, tlb=0, early=0, vh=16, dl1=0, ntkv=-1, wqun=1, vi=16, gmap=1, bafter=0, lbar=0, pgal=1, pages=1)

QB, QL, GB, OB, FB, STB = 0x10000, 0x20000, 0x30000, 0x40000, 0x100000, 0x200000
WQ, KL, VL, WO = 0, 32768, 65536, 98304
QF = 131072; OP = QF + 4096; ML = OP + 8192; FL = ML + 128; OX = FL + 128; SX = OX + 1024
XN = SX + 64; LNS = XN + 512; YP = LNS + 16; STL = YP + 256; LDS_BYTES = STL + 256
F_QF, F_O, F_OX, F_K, F_V, F_WO, F_VI, F_MP, F_G, F_XN, F_LN2, F_T, F_QPUB, F_PUB3, F_P1 = 0, 4, 8, 12, 14, 16, 18, 20, 22, 23, 24, 25, 26, 27, 28
KEY0 = 61440
TMUL = 0x9e3779b1
TINV = pow(TMUL, -1, 1 << 32)
vE1V, vE1L, vQFR, vKA, vVA, vOPW, vMLW, vOPR, vMLR, vMST, vL16, vWOA, vE3V, vOXW, vOXR, vFLW = 192, 194, 196, 197, 201, 209, 210, 211, 212, 213, 214, 216, 220, 221, 222, 223
vMASK = 112
sMS, sE2, sE3, sE1, sE1G = 40, 41, 42, 43, 44

DOC = r"""
; ---------------------------------------------------------------------------------------------------------------
; ---------------------------------------------------------------------------------------------------------------
"""

def gen(opt):
    o = dict(DEF); o.update(opt)
    assert o["winkv"] <= 16
    NT = " nt" if o["nt"] else ""
    NTKV = NT if o["ntkv"] < 0 else (" nt" if o["ntkv"] else "")
    a = Asm(); e = a
    uid = [0]
    def L(p):
        uid[0] += 1; return f"L_{p}_{uid[0]}"
    sT, sCNT = 50, 51
    DPP = "row_mask:0xf bank_mask:0xf"
    def srd(d, lo, size):
        e(f"s_mov_b32 s{d}, s{lo}"); e(f"s_and_b32 s{d+1}, s{lo+1}, 0xffff"); e(f"s_mov_b32 s{d+2}, {size}"); e(f"s_mov_b32 s{d+3}, 0x20000")
    def stamp(k):
        if o["stamps"]: e(f"s_memrealtime s[{80+2*k}:{81+2*k}]")
    def dump_stamps(cnts=None, final=False):
        if not o["stamps"]: return
        if o["stamps"] == 3:
            e("s_waitcnt lgkmcnt(0)")
            e("s_mov_b64 exec, -1")
            e("s_lshl_b32 s76, s3, 5"); e(f"s_add_u32 s76, s76, {STL}"); e("v_mov_b32 v20, s76")
            for k in range(8): e(f"v_mov_b32 v{4+k}, s{80+2*k}")
            e("ds_write_b128 v20, v[4:7]"); e("ds_write_b128 v20, v[8:11] offset:16"); e("s_waitcnt lgkmcnt(0)")
            if final:
                e("s_sleep 20")
                e("s_load_dwordx2 s[76:77], s[0:1], 88"); e("s_waitcnt lgkmcnt(0)")
                e("s_mov_b32 s72, s76"); e("s_and_b32 s73, s77, 0xffff"); e("s_mov_b32 s74, 256"); e("s_mov_b32 s75, 0x20000")
                e(f"v_mov_b32 v20, {STL}"); e("v_mov_b32 v23, 0"); e("s_mov_b64 exec, 1")
                sel = [(2,0,1),(2,0,0),(4,1,0),(0,3,0),(0,5,0),(4,4,0),(2,6,0),(2,7,0),(0,0,0),(4,5,0),(2,2,0),(2,3,0),(6,4,0),(6,6,0),(6,7,0),(1,1,0)]
                if o["early"]: sel = [(2,0,1),(2,0,0),(0,4,0),(1,4,0),(2,4,0),(4,6,0),(7,4,0),(4,1,0),(1,2,0),(1,1,0),(0,2,0),(0,3,0),(0,5,0),(4,3,0),(4,4,0),(6,7,0)]
                for slot, (w, k, inv) in enumerate(sel):
                    e(f"ds_read_b32 v4, v20 offset:{w*32+k*4}"); e("s_waitcnt lgkmcnt(0)")
                    if inv: e("v_not_b32 v4, v4")
                    e(f"buffer_atomic_umax v4, v23, s[72:75], 0 offen offset:{4*slot}")
                e("s_waitcnt vmcnt(0)")
            return
        e("s_waitcnt lgkmcnt(0)")
        for (slot, sreg) in (cnts or []):
            e(f"s_mov_b32 s{80+2*slot}, s{sreg}"); e(f"s_mov_b32 s{81+2*slot}, 0")
        e("s_mov_b64 exec, -1")
        e("s_waitcnt vmcnt(0)")
        e("s_lshl_b32 s76, s2, 3"); e("s_add_u32 s76, s76, s3"); e("s_lshl_b32 s76, s76, 6"); e(f"s_add_u32 s76, s76, {STB}")
        for k in range(8):
            e(f"v_mov_b32 v{2*k+4}, s{80+2*k}"); e(f"v_mov_b32 v{2*k+5}, s{81+2*k}")
        e("v_mov_b32 v20, 0")
        e("s_mov_b64 exec, 1")
        for k in range(4):
            e(f"buffer_store_dwordx4 v[{4*k+4}:{4*k+7}], v20, s[28:31], s76 offen offset:{16*k}")
        e("s_waitcnt vmcnt(0)")
    def spin_tick():
        e(f"s_sub_u32 s{sCNT}, s{sCNT}, 1"); e("s_cbranch_scc1 L_abort")
    def and_flags(vt, n):
        if n == 2: e(f"v_and_b32 v{vt}, v{vt}, v{vt+1}")
        if n == 4:
            e(f"v_and_b32 v{vt}, v{vt}, v{vt+1}"); e(f"v_and_b32 v{vt+2}, v{vt+2}, v{vt+3}"); e(f"v_and_b32 v{vt}, v{vt}, v{vt+2}")
    def read_flags(first, n, vt):
        if n == 1: e(f"ds_read_b32 v{vt}, v21 offset:{first*4}")
        elif n == 2: e(f"ds_read_b64 v[{vt}:{vt+1}], v21 offset:{first*4}")
        else: e(f"ds_read_b128 v[{vt}:{vt+3}], v21 offset:{first*4}")
    def wait_flags(first, n, vt, extra=None, sleep=0, lowprio=None):
        if lowprio and o["prio"]: e(f"s_setprio {lowprio[0]}")
        l = L("wf"); e.label(l)
        read_flags(first, n, vt)
        if extra: extra()
        spin_tick()
        if sleep: e(f"s_sleep {sleep}")
        e("s_waitcnt lgkmcnt(0)")
        and_flags(vt, n)
        e(f"v_cmp_ne_u32 vcc, 0, v{vt}")
        e(f"s_cbranch_vccz {l}")
        if lowprio and o["prio"]: e(f"s_setprio {lowprio[1]}")
    def set_flag(idx, vaddr=21):
        e(f"ds_write_b32 v{vaddr}, v22 offset:{idx*4}")
    def bf16r(dst, src):
        e(f"v_cvt_pk_bf16_f32 v{dst}, v{src}, v{src}"); e(f"v_lshlrev_b32 v{dst}, 16, v{dst}")
    def allreduce_row16(v, op, shs=(8, 4, 2, 1)):
        for sh in shs:
            e.nop(2); e(f"{op}_dpp v{v}, v{v}, v{v} row_ror:{sh} {DPP}")
    def allreduce_xrow(v, t, op):
        e(f"v_mov_b32 v{t}, v{v}"); e.nop(2); e(f"v_permlane32_swap_b32 v{v}, v{t}"); e(f"{op} v{v}, v{v}, v{t}")
        e(f"v_mov_b32 v{t}, v{v}"); e.nop(2); e(f"v_permlane16_swap_b32 v{v}, v{t}"); e(f"{op} v{v}, v{v}, v{t}")
    def reduce_scatter4(b):
        e(f"v_permlane32_swap_b32 v{b}, v{b+2}"); e(f"v_permlane32_swap_b32 v{b+1}, v{b+3}")
        e(f"v_add_f32 v{b}, v{b}, v{b+2}"); e(f"v_add_f32 v{b+1}, v{b+1}, v{b+3}"); e.nop(2)
        e(f"v_permlane16_swap_b32 v{b}, v{b+1}"); e(f"v_add_f32 v{b}, v{b}, v{b+1}")
    def ln_stats(xf, t0, vm, vrs):
        s, t = t0, t0 + 1
        e(f"v_add_f32 v{s}, v{xf}, v{xf+1}"); e(f"v_add_f32 v{t}, v{xf+2}, v{xf+3}")
        for k in range(4, 16, 2):
            e(f"v_add_f32 v{s}, v{s}, v{xf+k}"); e(f"v_add_f32 v{t}, v{t}, v{xf+k+1}")
        e(f"v_add_f32 v{s}, v{s}, v{t}")
        allreduce_row16(s, "v_add_f32"); allreduce_xrow(s, t, "v_add_f32")
        e(f"v_mul_f32 v{s}, {f32bits(1/1024):#x}, v{s}")
        e(f"v_sub_f32 v{t}, v{xf}, v{s}"); e(f"v_sub_f32 v{t0+3}, v{xf+1}, v{s}")
        e(f"v_mul_f32 v{t0+2}, v{t}, v{t}"); e(f"v_mul_f32 v{t0+4}, v{t0+3}, v{t0+3}")
        for k in range(2, 16, 2):
            e(f"v_sub_f32 v{t}, v{xf+k}, v{s}"); e(f"v_sub_f32 v{t0+3}, v{xf+k+1}, v{s}")
            e(f"v_fmac_f32 v{t0+2}, v{t}, v{t}"); e(f"v_fmac_f32 v{t0+4}, v{t0+3}, v{t0+3}")
        e(f"v_add_f32 v{t0+2}, v{t0+2}, v{t0+4}")
        allreduce_row16(t0 + 2, "v_add_f32"); allreduce_xrow(t0 + 2, t, "v_add_f32")
        e(f"v_mul_f32 v{t0+2}, {f32bits(1/1024):#x}, v{t0+2}")
        bf16r(vm, s)
        bf16r(t, t0 + 2)
        e(f"v_add_f32 v{t}, {f32bits(1e-5):#x}, v{t}")
        bf16r(t, t)
        e(f"v_sqrt_f32 v{t}, v{t}"); e.nop(1)
        bf16r(t, t)
        e(f"v_rcp_f32 v{vrs}, v{t}"); e.nop(1)
    def unpack(dlo, dhi, src):
        e(f"v_lshlrev_b32 v{dlo}, 16, v{src}"); e(f"v_and_b32 v{dhi}, 0xffff0000, v{src}")
    def tagbytes(s0):
        for k in range(4):
            e(f"s_lshr_b32 s{s0+k}, s{sT}, {8*k}"); e(f"s_and_b32 s{s0+k}, s{s0+k}, 0xff")
    def chk4(b, t):
        e(f"v_xor_b32 v{t}, s60, v{b}"); e(f"v_bitop3_b32 v{t}, v{t}, v{b+1}, s61 bitop3:0xf6"); e(f"v_bitop3_b32 v{t}, v{t}, v{b+2}, s62 bitop3:0xf6")
        e(f"v_bitop3_b32 v{t}, v{t}, v{b+3}, s63 bitop3:0xf6"); e(f"v_and_b32 v{t}, 0xff, v{t}"); e(f"v_cmp_ne_u32 vcc, 0, v{t}")
    def mpoll(loads, cnt=None, pre=None, shadow=None):
        top = L("mp"); ent = L("me")
        for ld in loads:
            ini = ld.get('init', -1); m = ld['mask']
            if ini == -1: e(f"s_mov_b64 s[{m}:{m+1}], -1")
            else: e(f"s_mov_b32 s{m}, {ini[0]:#x}"); e(f"s_mov_b32 s{m+1}, {ini[1]:#x}")
        if cnt: e(f"s_mov_b32 s{cnt}, 0")
        for ld in loads:
            m = ld['mask']
            if ld.get('init', -1) != -1: e(f"s_mov_b64 exec, s[{m}:{m+1}]")
            ld['issue']()
            if ld.get('init', -1) != -1: e("s_mov_b64 exec, -1")
        if shadow: shadow()
        e(f"s_branch {ent}")
        e.label(top)
        spin_tick()
        if pre: pre()
        for ld in loads:
            sk = L("sk"); m = ld['mask']
            e(f"s_mov_b64 exec, s[{m}:{m+1}]"); e(f"s_cbranch_execz {sk}"); ld['issue'](); e.label(sk)
        e("s_mov_b64 exec, -1")
        e.label(ent)
        if cnt: e(f"s_add_u32 s{cnt}, s{cnt}, 1")
        e("s_waitcnt vmcnt(0)")
        e("s_mov_b64 s[66:67], 0")
        for ld in loads:
            sk = L("sc"); m = ld['mask']
            e(f"s_mov_b64 exec, s[{m}:{m+1}]"); e(f"s_cbranch_execz {sk}")
            ld['check']()
            if ld.get('take'):
                e("s_andn2_b64 exec, exec, vcc"); sk2 = L("sd"); e(f"s_cbranch_execz {sk2}"); ld['take'](); e.label(sk2)
            e(f"s_mov_b64 s[{m}:{m+1}], vcc"); e("s_or_b64 s[66:67], s[66:67], vcc")
            e.label(sk)
        e("s_mov_b64 exec, -1")
        e("s_cmp_lg_u64 s[66:67], 0"); e(f"s_cbranch_scc1 {top}")
    LOW = (0, 3)

    e("s_cmp_ge_u32 s2, 256"); e("s_cbranch_scc1 L_exit")
    stamp(0)
    e("s_load_dwordx16 s[4:19], s[0:1], 0")
    e("s_load_dwordx4 s[20:23], s[0:1], 64")
    e("s_load_dwordx2 s[24:25], s[0:1], 80")
    e("s_load_dwordx2 s[26:27], s[0:1], 96")
    e("v_lshrrev_b32 v1, 6, v0"); e("v_and_b32 v0, 63, v0")
    e("s_and_b32 s48, s2, 7")
    e("v_readfirstlane_b32 s3, v1")
    e("s_lshr_b32 s49, s2, 3")
    e("s_lshl_b32 s46, s48, 3"); e("s_and_b32 s47, s49, 7"); e("s_add_u32 s46, s46, s47"); e("s_lshr_b32 s47, s49, 3")
    def common_init():
        e("v_lshrrev_b32 v2, 4, v0"); e("v_and_b32 v3, 15, v0")
        e(f"s_mov_b32 s{sCNT}, {o['spinmax']}")
        e(f"v_mov_b32 v21, {FL}"); e("v_mov_b32 v22, 1")
    e("s_cmp_eq_u32 s3, 0"); e("s_cbranch_scc0 L_not0")
    e("v_lshrrev_b32 v24, 3, v0"); e("v_and_b32 v25, 7, v0"); e("v_lshlrev_b32 v25, 4, v25")
    e("v_bfe_u32 v27, v24, 1, 2"); e("v_lshlrev_b32 v27, 5, v27"); e("v_xor_b32 v25, v25, v27")
    e("v_lshl_add_u32 v24, v24, 13, v25")
    e("s_lshl_b32 s56, s47, 21"); e("s_lshl_b32 s57, s46, 7"); e("s_add_u32 s56, s56, s57")
    e(f"s_mov_b32 m0, {WQ}"); e("s_mov_b32 s57, 0")
    e("s_mov_b32 s38, 8388608"); e("s_mov_b32 s39, 0x20000")
    e("s_waitcnt lgkmcnt(0)")
    e("s_mov_b32 s36, s10"); e("s_and_b32 s37, s11, 0xffff")
    UN = o["wqun"]
    e.label("L_wqloop")
    for u_ in range(UN):
        e(f"buffer_load_dwordx4 v24, s[36:39], s56 offen{NT} lds")
        e("s_add_u32 m0, m0, 1024"); e(f"s_add_u32 s56, s56, {8*8192}")
    if UN < 32:
        e(f"s_add_u32 s57, s57, {UN}"); e("s_cmp_lt_u32 s57, 32"); e("s_cbranch_scc1 L_wqloop")
    if o["early"]: stamp(4)
    common_init()
    e("s_barrier")
    e("s_branch L_qproj")
    e.label("L_not0")
    common_init()
    e("s_cmp_eq_u32 s3, 1"); e("s_cbranch_scc0 L_not1")
    e("v_lshlrev_b32 v23, 5, v0"); e("v_mov_b32 v24, 0")
    e("s_waitcnt lgkmcnt(0)")
    srd(28, 26, 268435456); srd(32, 4, 2048)
    e("buffer_load_dwordx4 v[4:7], v23, s[32:35], 0 offen")
    e("buffer_load_dwordx4 v[8:11], v23, s[32:35], 0 offen offset:16")
    e("buffer_load_dword v20, v24, s[28:31], 0 offen sc1")
    if o["early"]: stamp(4)
    e("s_barrier")
    e("s_branch L_ln")
    e.label("L_not1")
    e("s_cmp_ge_u32 s3, 6"); e("s_cbranch_scc1 L_bearly")
    e("s_cmp_ge_u32 s3, 4"); e("s_cbranch_scc1 L_learly")
    if o["cpf"]:
        lc = L("cpf"); e("s_cmp_eq_u32 s3, 2"); e(f"s_cbranch_scc0 {lc}")
        e("s_getpc_b64 s[54:55]")
        e.label("L_pc")
        e(f"s_sub_u32 s54, s54, L_pc-{KN}_kernel"); e("s_subb_u32 s55, s55, 0")
        e("s_mul_i32 s56, s49, 6"); e("v_add_u32 v24, s56, v0"); e("v_lshlrev_b32 v24, 7, v24")
        e(f"s_mov_b32 s56, L_exit-{KN}_kernel")
        e("v_cmp_gt_u32 vcc, s56, v24")
        e("s_and_b64 exec, vcc, 0x3f")
        lc2 = L("cpf"); e(f"s_cbranch_execz {lc2}")
        e("global_load_dword v150, v24, s[54:55]")
        e.label(lc2)
        e("s_mov_b64 exec, -1")
        e.label(lc)
    if o["tlb"]:
        lt = L("tlb"); e("s_cmp_eq_u32 s3, 3"); e(f"s_cbranch_scc0 {lt}")
        e("s_lshr_b32 s53, s48, 1"); e("s_lshl_b32 s53, s53, 24"); e("s_and_b32 s54, s48, 1"); e("s_lshl_b32 s54, s54, 4"); e("s_lshr_b32 s55, s49, 1"); e("s_add_u32 s54, s54, s55")
        e("s_lshl_b32 s54, s54, 15"); e("s_add_u32 s53, s53, s54"); e(f"s_add_u32 s53, s53, {KEY0*256}")
        e("s_lshr_b32 s55, s49, 2"); e("s_lshl_b32 s55, s55, 3"); e("s_add_u32 s55, s55, s48"); e("s_lshl_b32 s55, s55, 17")
        e("v_mov_b32 v24, s53"); e("v_mov_b32 v25, s55"); e("v_mov_b32 v26, 0")
        e("s_waitcnt lgkmcnt(0)")
        e("s_mov_b64 exec, 1")
        e("global_load_dword v151, v24, s[8:9]" + NT); e("global_load_dword v152, v25, s[12:13]" + NT)
        e("global_load_dword v153, v24, s[6:7]" + NT); e("global_load_dword v154, v26, s[24:25]")
        e("s_mov_b64 exec, -1")
        e.label(lt)
    if o["early"]: stamp(4)
    e("s_barrier")
    e("s_branch L_w23")
    e.label("L_learly")
    lz = L("nz"); e("s_cmp_eq_u32 s3, 4"); e(f"s_cbranch_scc0 {lz}")
    e("v_lshlrev_b32 v4, 2, v0"); e(f"v_add_u32 v4, {FL}, v4"); e("v_mov_b32 v5, 0")
    e("s_mov_b64 exec, 0xffffffff"); e("ds_write_b32 v4, v5"); e("s_mov_b64 exec, -1"); e("s_waitcnt lgkmcnt(0)")
    e.label(lz)
    if o["early"]: stamp(6)
    if not o["lbar"]: e("s_barrier")
    e("s_branch L_loader")
    e.label("L_bearly")
    e("s_sub_u32 s52, s3, 6")
    e("s_lshr_b32 s53, s2, 4"); e("s_and_b32 s54, s2, 15")
    e("v_and_b32 v23, 31, v0"); e("v_lshlrev_b32 v23, 1, v23"); e("s_lshl_b32 s55, s53, 7"); e("s_lshl_b32 s56, s52, 6"); e("s_add_u32 s55, s55, s56")
    e("s_mul_i32 s56, s54, 448"); e("v_lshlrev_b32 v24, 1, v0")
    e("s_waitcnt lgkmcnt(0)")
    srd(28, 26, 268435456); srd(32, 4, 2048)
    srd(36, 16, 7168); srd(40, 18, 7168); srd(44, 20, 7168)
    if o["bafter"]: e("s_barrier")
    e("buffer_load_ushort v12, v23, s[32:35], s55 offen")
    for n in range(4):
        e(f"buffer_load_ushort v{40+2*n}, v24, s[36:39], s56 offen offset:{128*n}")
        e(f"buffer_load_ushort v{41+2*n}, v24, s[40:43], s56 offen offset:{128*n}")
        e(f"buffer_load_ushort v{48+2*n}, v24, s[44:47], s56 offen offset:{128*n}")
    e("s_load_dword s59, s[22:23], 0")
    if o["early"]: stamp(4)
    if not o["bafter"]: e("s_barrier")
    e("s_branch L_bbranch")

    def common_srd():
        e("s_waitcnt lgkmcnt(0)")
        srd(28, 26, 268435456)
        srd(32, 4, 2048)

    def prep():
        e("s_lshr_b32 s52, s48, 1"); e("s_lshl_b32 s52, s52, 3"); e("s_and_b32 s54, s49, 1"); e("s_lshl_b32 s54, s54, 2"); e("s_add_u32 s52, s52, s54")
        e("s_and_b32 s54, s48, 1"); e("s_lshl_b32 s54, s54, 4"); e("s_lshr_b32 s55, s49, 1"); e("s_add_u32 s55, s55, s54")
        e("s_lshl_b32 s57, s3, 2"); e(f"v_add_u32 v{vFLW}, s57, v21")
        e("v_lshrrev_b32 v28, 2, v3")
        for u in range(4):
            e(f"v_cmp_eq_u32 vcc, {u}, v28"); e.nop(2); e(f"v_cndmask_b32 v{vMASK+u}, 0, -1, vcc")
        e("v_lshrrev_b32 v28, 3, v0"); e("v_and_b32 v29, 7, v0")
        for i in range(2):
            e(f"v_add_u32 v30, {8*i}, v28")
            e("v_and_b32 v31, 3, v30"); e("v_lshlrev_b32 v31, 2, v31"); e(f"v_lshrrev_b32 v{vE1V+i}, 2, v30"); e(f"v_add_u32 v31, v31, v{vE1V+i}"); e("v_lshlrev_b32 v31, 9, v31")
            e(f"v_lshl_add_u32 v{vE1V+i}, v29, 4, v31")
            e("v_lshrrev_b32 v31, 1, v29"); e("v_lshl_add_u32 v31, v31, 4, v30"); e("v_lshlrev_b32 v31, 4, v31")
            e("v_and_b32 v30, 1, v29"); e("v_lshl_add_u32 v31, v30, 3, v31")
            e("s_lshl_b32 s57, s3, 10"); e(f"s_add_u32 s57, s57, {QF}"); e(f"v_add_u32 v{vE1L+i}, s57, v31")
        e(f"s_lshl_b32 s{sE1G}, s52, 11"); e("s_lshl_b32 s57, s3, 7"); e(f"s_add_u32 s{sE1G}, s{sE1G}, s57"); e(f"s_add_u32 s{sE1G}, s{sE1G}, {QB}")
        if o["local"]:
            e("s_xor_b32 s57, s48, s49"); e("s_and_b32 s57, s57, 1")
            e(f"s_mov_b32 s58, {QL - QB}"); e("s_cmp_eq_u32 s57, 0"); e("s_cselect_b32 s58, s58, 0"); e(f"s_add_u32 s{sE1}, s{sE1G}, s58")
        else: e(f"s_mov_b32 s{sE1}, s{sE1G}")
        e(f"v_lshlrev_b32 v{vL16}, 4, v0"); e(f"v_add_u32 v{vQFR}, {QF}, v{vL16}")
        e("s_lshl_b32 s57, s3, 13"); e(f"s_add_u32 s57, s57, {KL}")
        e("v_lshlrev_b32 v28, 8, v3"); e("v_add_u32 v28, s57, v28"); e("v_xor_b32 v29, v2, v3"); e(f"v_lshl_add_u32 v{vKA}, v29, 4, v28")
        for t in range(1, 4): e(f"v_xor_b32 v{vKA+t}, {t<<6}, v{vKA}")
        e("v_lshrrev_b32 v28, 2, v3"); e("v_lshl_add_u32 v28, v2, 2, v28")
        e("v_and_b32 v29, 7, v28"); e("v_lshlrev_b32 v29, 5, v29"); e("v_lshl_add_u32 v28, v28, 8, v29")
        e("v_and_b32 v29, 3, v3"); e("v_lshl_add_u32 v28, v29, 3, v28")
        e("s_lshl_b32 s57, s3, 13"); e(f"s_add_u32 s57, s57, {VL}"); e(f"v_add_u32 v{vVA}, s57, v28")
        for t in range(1, 8): e(f"v_xor_b32 v{vVA+t}, {t<<5}, v{vVA}")
        e("s_lshl_b32 s57, s3, 11"); e(f"s_add_u32 s57, s57, {OP}"); e(f"v_add_u32 v{vOPW}, s57, v{vL16}")
        e("s_lshl_b32 s57, s3, 3"); e(f"s_add_u32 s57, s57, {ML}"); e("v_lshlrev_b32 v28, 5, v3"); e(f"v_add_u32 v{vMLW}, s57, v28")
        e("s_and_b32 s57, s3, 1"); e("s_lshl_b32 s57, s57, 10"); e(f"s_add_u32 s57, s57, {OP}"); e(f"v_add_u32 v{vOPR}, s57, v{vL16}")
        e("v_and_b32 v28, 3, v3"); e("v_lshlrev_b32 v29, 5, v28"); e(f"v_add_u32 v{vMLR}, {ML}, v29")
        e("v_lshlrev_b32 v28, 14, v28"); e("v_lshrrev_b32 v29, 3, v3"); e("v_lshl_add_u32 v28, v29, 13, v28")
        e("v_bfe_u32 v29, v3, 2, 1"); e("v_lshl_add_u32 v29, v29, 2, v2"); e(f"v_lshl_add_u32 v{vMST}, v29, 4, v28")
        e(f"s_lshl_b32 s{sMS}, s52, 14"); e("s_lshl_b32 s57, s55, 8"); e(f"s_add_u32 s{sMS}, s{sMS}, s57"); e("s_and_b32 s57, s3, 1"); e("s_lshl_b32 s57, s57, 7")
        e(f"s_add_u32 s{sMS}, s{sMS}, s57"); e(f"s_add_u32 s{sMS}, s{sMS}, {OB}")
        if o["gmap"]: e("s_lshr_b32 s56, s49, 2"); e("s_lshl_b32 s57, s48, 3"); e("s_add_u32 s56, s56, s57")
        else: e("s_lshr_b32 s56, s49, 2"); e("s_lshl_b32 s56, s56, 3"); e("s_add_u32 s56, s56, s48")
        e(f"s_lshl_b32 s{sE2}, s56, 13"); e("s_lshl_b32 s57, s3, 11"); e(f"s_add_u32 s{sE2}, s{sE2}, s57"); e(f"s_add_u32 s{sE2}, s{sE2}, {OB}")
        e("v_lshrrev_b32 v28, 2, v3"); e("v_lshl_add_u32 v29, v28, 2, v2"); e("v_lshlrev_b32 v29, 9, v29")
        e("v_and_b32 v30, 1, v2"); e("v_lshl_add_u32 v30, v30, 2, v28"); e("v_lshl_add_u32 v29, v30, 5, v29")
        e("v_and_b32 v30, 3, v3"); e("v_lshl_add_u32 v29, v30, 3, v29"); e(f"v_add_u32 v29, {WO}, v29")
        e("s_lshl_b32 s57, s3, 7"); e(f"v_xor_b32 v{vWOA}, s57, v29")
        for u in range(1, 4): e(f"v_xor_b32 v{vWOA+u}, {u<<5}, v{vWOA}")
        e("s_and_b32 s57, s49, 3"); e("s_lshl_b32 s57, s57, 3"); e("s_lshl_b32 s58, s3, 1"); e("s_add_u32 s57, s57, s58"); e(f"s_lshl_b32 s{sE3}, s57, 13")
        e("s_lshl_b32 s57, s56, 7"); e(f"s_add_u32 s{sE3}, s{sE3}, s57"); e(f"s_add_u32 s{sE3}, s{sE3}, {FB}")
        e("v_lshrrev_b32 v28, 3, v3"); e("v_lshlrev_b32 v28, 13, v28"); e("v_and_b32 v29, 7, v3"); e(f"v_lshl_add_u32 v{vE3V}, v29, 4, v28")
        e(f"v_add_u32 v{vOXR}, {OX}, v{vL16}"); e("s_lshl_b32 s57, s3, 2"); e(f"v_add_u32 v{vOXW}, s57, v{vOXR}")

    e.label("L_ln")
    if o["prio"]: e("s_setprio 3")
    e("s_lshl_b32 s54, s47, 4"); e("v_subrev_u32 v23, s54, v0"); e("v_lshlrev_b32 v23, 5, v23"); e(f"v_add_u32 v23, {XN}, v23")
    e("s_mov_b32 s56, 0xffff"); e("s_mov_b32 s57, 0"); e("s_lshl_b64 s[58:59], s[56:57], s54")
    e("s_waitcnt vmcnt(0)")
    stamp(2)
    e(f"v_readfirstlane_b32 s{sT}, v20")
    for k in range(8): unpack(24 + 2 * k, 25 + 2 * k, 4 + k)
    e(f"s_add_u32 s{sT}, s{sT}, 1"); e(f"s_mul_i32 s{sT}, s{sT}, {TMUL:#x}")
    ln_stats(24, 98, 104, 105)
    e(f"v_mov_b32 v20, s{sT}"); e(f"ds_write_b32 v21, v20 offset:{F_T*4}")
    for k in range(16): e(f"v_sub_f32 v{24+k}, v{24+k}, v104")
    for k in range(8): e(f"v_cvt_pk_bf16_f32 v{4+k}, v{24+2*k}, v{25+2*k}")
    for k in range(8): unpack(24 + 2 * k, 25 + 2 * k, 4 + k)
    for k in range(16): e(f"v_mul_f32 v{24+k}, v{24+k}, v105")
    for k in range(8): e(f"v_cvt_pk_bf16_f32 v{4+k}, v{24+2*k}, v{25+2*k}")
    e("s_mov_b64 exec, s[58:59]")
    e("ds_write_b128 v23, v[4:7]"); e("ds_write_b128 v23, v[8:11] offset:16")
    e("s_mov_b64 exec, -1")
    set_flag(F_XN)
    stamp(1)
    for k in range(8): unpack(24 + 2 * k, 25 + 2 * k, 4 + k)
    ln_stats(24, 98, 106, 107)
    e(f"v_mov_b32 v23, {LNS}"); e("ds_write_b128 v23, v[104:107]")
    set_flag(F_LN2)
    stamp(3)
    e("s_branch L_prep")
    e.label("L_qproj")
    if o["prio"]: e("s_setprio 3")
    stamp(1)
    srd(28, 26, 268435456)
    e("s_branch L_prep")
    e.label("L_qproj2")
    e("v_lshrrev_b32 v24, 2, v3"); e("v_and_b32 v25, 3, v3")
    e("v_lshlrev_b32 v26, 2, v2"); e("v_add_u32 v26, v26, v24")
    e("v_lshrrev_b32 v27, 1, v26"); e("v_and_b32 v27, 3, v27")
    e("v_lshlrev_b32 v26, 7, v26"); e("v_lshlrev_b32 v25, 3, v25"); e("v_add_u32 v26, v26, v25")
    e("v_lshlrev_b32 v27, 5, v27"); e("v_add_u32 v108, v26, v27")
    for u in range(1, 4): e(f"v_xor_b32 v{108+u}, {u<<5}, v108")
    e("s_lshr_b32 s57, s46, 1"); e("s_lshl_b32 s57, s57, 11"); e("s_and_b32 s58, s46, 1"); e("s_lshl_b32 s58, s58, 8"); e("s_add_u32 s57, s57, s58")
    e("s_lshl_b32 s58, s47, 9"); e("s_add_u32 s57, s57, s58"); e(f"s_add_u32 s46, s57, {QB}"); e(f"s_add_u32 s47, s57, {QL}")
    e("v_lshlrev_b32 v27, 2, v0")
    e("v_lshlrev_b32 v26, 3, v2"); e(f"v_add_u32 v26, {XN}, v26")
    def xn_extra():
        e(f"ds_read_b32 v29, v21 offset:{F_T*4}")
        for k in range(8): e(f"ds_read2_b64 v[{40+4*k}:{43+4*k}], v26 offset0:{8*k} offset1:{8*k+4}")
    wait_flags(F_XN, 1, 28, extra=xn_extra)
    e(f"v_readfirstlane_b32 s{sT}, v29")
    stamp(2)
    csc = math.log2(math.e) / math.sqrt(128.0)
    e(f"s_mov_b32 s58, {f32bits(csc):#x}")
    def wq_reads(k):
        B = 128 + 16 * (k & 1)
        for u in range(4):
            for rho in range(2):
                r = B + 4 * u + 2 * rho
                e(f"ds_read_b64_tr_b16 v[{r}:{r+1}], v{108+u} offset:{k*4096 + rho*2048}")
    e("s_waitcnt vmcnt(28)")
    wq_reads(0)
    for k in range(8):
        B = 128 + 16 * (k & 1)
        if k < 7:
            e(f"s_waitcnt vmcnt({24 - 4*k})")
            if k == 6: stamp(3)
            wq_reads(k + 1)
            e("s_waitcnt lgkmcnt(8)")
        else:
            e("s_waitcnt lgkmcnt(0)")
        for u in range(4):
            c = "0" if k == 0 else f"v[{72+4*u}:{75+4*u}]"
            e(f"v_mfma_f32_16x16x32_bf16 v[{72+4*u}:{75+4*u}], v[{40+4*k}:{43+4*k}], v[{B+4*u}:{B+4*u+3}], {c}")
    e(f"v_mov_b32 v49, s{sT}"); e(f"v_mov_b32 v51, s{sT}")
    e("s_mov_b32 s56, 0x11111111"); e("s_mov_b32 s57, 0x11111111")
    e("s_mov_b32 s60, 0xffff0000"); e("s_mov_b32 s61, 0"); e("s_mov_b32 s62, 0"); e("s_mov_b32 s63, 0xffff"); e("s_mov_b32 s64, 0"); e("s_mov_b32 s65, 0xffff0000")
    e.nop(2)
    e("v_cndmask_b32 v104, v72, v76, s[60:61]"); e("v_cndmask_b32 v104, v104, v80, s[62:63]"); e("v_cndmask_b32 v104, v104, v84, s[64:65]")
    e("v_mul_f32 v104, s58, v104"); e.nop(2)
    e(f"v_mov_b32_dpp v105, v104 quad_perm:[1,0,3,2] {DPP}")
    e("v_cvt_pk_bf16_f32 v48, v104, v105"); e.nop(2)
    e(f"v_mov_b32_dpp v50, v48 quad_perm:[2,3,0,1] {DPP}")
    e("s_mov_b64 exec, s[56:57]")
    if o["local"]: e("buffer_store_dwordx4 v[48:51], v27, s[28:31], s47 offen")
    e("buffer_store_dwordx4 v[48:51], v27, s[28:31], s46 offen sc1")
    e("s_mov_b64 exec, -1")
    set_flag(F_QPUB)
    stamp(5)
    e("s_branch L_attn")

    if o["pages"]: e(".p2align 12")
    e.label("L_w23")
    if o["prio"]: e("s_setprio 3")
    common_srd()
    e.label("L_prep")
    prep()
    e("s_cmp_eq_u32 s3, 0"); e("s_cbranch_scc1 L_qproj2")
    e("s_cmp_eq_u32 s3, 1"); e("s_cbranch_scc1 L_attn")
    wait_flags(F_XN, 1, 28, extra=lambda: e(f"ds_read_b32 v29, v21 offset:{F_T*4}"), sleep=o["slp"], lowprio=LOW)
    e(f"v_readfirstlane_b32 s{sT}, v29")
    e.label("L_attn")
    wait_flags(F_QPUB, 1, 28, sleep=o["slp"], lowprio=LOW)
    if o["dl1"]: e(f"s_sleep {o['dl1']}")
    wait_flags(F_VI, 2, 28, lowprio=LOW)
    PB = 128
    def mk_e1(i):
        b = PB + 4 * i
        return dict(issue=lambda: e(f"buffer_load_dwordx4 v[{b}:{b+3}], v{vE1V+i}, s[28:31], s{sE1} offen sc1"),
                    check=lambda: (e(f"v_xor_b32 v36, s{sT}, v{b+1}"), e(f"v_xor_b32 v37, s{sT}, v{b+3}"), e("v_or_b32 v36, v36, v37"), e("v_cmp_ne_u32 vcc, 0, v36")),
                    take=lambda: e(f"ds_write2_b32 v{vE1L+i}, v{b}, v{b+2} offset0:0 offset1:1"), mask=70 + 2 * i)
    def kreads():
        for kt in range(2):
            for t in range(4):
                r = 40 + 16 * kt + 4 * t
                e(f"ds_read_b128 v[{r}:{r+3}], v{vKA+t} offset:{kt*4096}")
    def e1_pre():
        if o["local"]: e(f"s_cmp_ge_u32 s68, {o['fb1']}"); e(f"s_cselect_b32 s{sE1}, s{sE1G}, s{sE1}")
    if not o["early"]: stamp(1)
    def e1_shadow():
        if o["wpre"] or o["vh"] < 16: e(f"ds_write_b32 v{vFLW}, v22 offset:{F_P1*4}")
        if o["vi"] >= 16: kreads()
    mpoll([mk_e1(0), mk_e1(1)], cnt=68, pre=e1_pre, shadow=e1_shadow)
    e(f"ds_write_b32 v{vFLW}, v22 offset:{F_QF*4}")
    stamp(6)
    if o["vi"] < 16:
        wait_flags(F_K, 2, 28); kreads()
    VF = 160
    def vreads():
        for t in range(8):
            for rho in range(2):
                r = VF + 4 * t + 2 * rho
                e(f"ds_read_b64_tr_b16 v[{r}:{r+1}], v{vVA+t} offset:{rho*4096}")
    def qf_extra():
        e(f"ds_read_b64 v[32:33], v21 offset:{F_V*4}")
        for t in range(4): e(f"ds_read_b128 v[{72+4*t}:{75+4*t}], v{vQFR} offset:{t*1024}")
    wait_flags(F_QF, 4, 28, extra=qf_extra)
    for t in range(4):
        for kt in range(2):
            c = "0" if t == 0 else f"v[{88+4*kt}:{91+4*kt}]"
            e(f"v_mfma_f32_16x16x32_bf16 v[{88+4*kt}:{91+4*kt}], v[{40+16*kt+4*t}:{43+16*kt+4*t}], v[{72+4*t}:{75+4*t}], {c}")
    e("v_and_b32 v32, v32, v33"); e("v_cmp_ne_u32 vcc, 0, v32")
    e("s_mov_b32 s59, 0")
    lv = L("vlate"); e(f"s_cbranch_vccz {lv}")
    vreads(); e("s_mov_b32 s59, 1")
    e.label(lv)
    for m in range(4): e(f"v_mov_b32 v{44+m}, 0x3f803f80")
    e.nop(3)
    S = list(range(88, 96))
    for s_ in S: e(f"v_add_f32_dpp v{s_+8}, v{s_}, v{s_} row_ror:4 {DPP}")
    for s_ in S: e(f"v_add_f32_dpp v{s_}, v{s_+8}, v{s_+8} row_ror:8 {DPP}")
    e("v_max3_f32 v96, v88, v89, v90"); e("v_max3_f32 v97, v91, v92, v93"); e("v_max3_f32 v96, v96, v94, v95"); e("v_max_f32 v96, v96, v97")
    allreduce_xrow(96, 97, "v_max_f32")
    for s_ in S: e(f"v_sub_f32 v{s_}, v{s_}, v96")
    for s_ in S: e(f"v_exp_f32 v{s_}, v{s_}")
    e.nop(1)
    for m in range(4): e(f"v_cvt_pk_bf16_f32 v{100+m}, v{88+2*m}, v{89+2*m}")
    lw = L("vok"); e("s_cmp_lg_u32 s59, 0"); e(f"s_cbranch_scc1 {lw}")
    wait_flags(F_V, 2, 28); vreads()
    e.label(lw)
    for m in range(4): e(f"v_and_b32 v{72+m}, v{100+m}, v{vMASK}")
    for m in range(4): e(f"v_and_b32 v{76+m}, v{100+m}, v{vMASK+1}")
    e("s_waitcnt lgkmcnt(0)")
    first = [True, True]
    for t in range(8):
        ee = (t >> 1) & 1; u = 2 * (t >> 2) + (t & 1)
        c = "0" if first[ee] else f"v[{104+4*ee}:{107+4*ee}]"; first[ee] = False
        e(f"v_mfma_f32_16x16x32_bf16 v[{104+4*ee}:{107+4*ee}], v[{VF+4*t}:{VF+4*t+3}], v[{72+4*u}:{75+4*u}], {c}")
        if t in (0, 1):
            for m in range(4): e(f"v_and_b32 v{80+4*t+m}, v{100+m}, v{vMASK+2+t}")
    e("v_mfma_f32_16x16x32_bf16 v[92:95], v[44:47], v[100:103], 0")
    e.nop(6)
    e(f"ds_write_b128 v{vOPW}, v[104:107]")
    e(f"ds_write_b128 v{vOPW}, v[108:111] offset:1024")
    e("v_mov_b32 v97, v92")
    e("s_mov_b64 exec, 0xf")
    e(f"ds_write_b64 v{vMLW}, v[96:97]")
    e("s_mov_b64 exec, -1")
    e(f"ds_write_b32 v{vFLW}, v22 offset:{F_O*4}")
    stamp(7)
    tagbytes(60); e("s_mov_b32 s64, 0x07060500"); e("s_mov_b32 s59, 0")
    e("s_cmp_ge_u32 s3, 2"); e("s_cbranch_scc1 L_e2")
    e(f"v_mov_b32 v63, s{sT}")
    def mg_extra():
        for w in range(4): e(f"ds_read_b128 v[{32+4*w}:{35+4*w}], v{vOPR} offset:{w*2048}")
        e(f"ds_read_b128 v[48:51], v{vMLR}"); e(f"ds_read_b128 v[52:55], v{vMLR} offset:16")
    wait_flags(F_O, 4, 28, extra=mg_extra)
    e("v_max3_f32 v56, v48, v50, v52"); e("v_max_f32 v56, v56, v54")
    for w in range(4): e(f"v_sub_f32 v{48+2*w}, v{48+2*w}, v56")
    for w in range(4): e(f"v_exp_f32 v{48+2*w}, v{48+2*w}")
    e.nop(1)
    e("v_mul_f32 v57, v48, v49")
    for m in range(4): e(f"v_mul_f32 v{32+m}, v{32+m}, v48")
    for w in range(1, 4): e(f"v_fmac_f32 v57, v{48+2*w}, v{49+2*w}")
    for m in range(4): e(f"v_fmac_f32 v{32+m}, v{36+m}, v50")
    e("v_rcp_f32 v58, v57"); e("v_log_f32 v59, v57")
    for w in range(2, 4):
        for m in range(4): e(f"v_fmac_f32 v{32+m}, v{32+4*w+m}, v{48+2*w}")
    e("v_add_f32 v62, v56, v59")
    for m in range(4): e(f"v_mul_f32 v{32+m}, v{32+m}, v58")
    e("v_cvt_pk_bf16_f32 v60, v32, v33"); e("v_cvt_pk_bf16_f32 v61, v34, v35")
    e(f"buffer_store_dwordx4 v[60:63], v{vMST}, s[28:31], s{sMS} offen sc1")
    e(f"ds_write_b32 v{vFLW}, v22 offset:{F_MP*4}")
    if o["stamps"]: e("s_memrealtime s[80:81]")

    e.label("L_e2")
    def woreads():
        for u in range(4):
            for tp in range(4):
                r = 40 + 8 * u + 2 * tp
                e(f"ds_read_b64_tr_b16 v[{r}:{r+1}], v{vWOA+u} offset:{tp*8192}")
    def wo_try():
        lskip = L("wo"); e("s_cmp_lg_u32 s59, 0"); e(f"s_cbranch_scc1 {lskip}")
        e(f"ds_read_b64 v[28:29], v21 offset:{F_WO*4}"); e("s_waitcnt lgkmcnt(0)")
        e("v_and_b32 v28, v28, v29"); e("v_cmp_ne_u32 vcc, 0, v28"); e(f"s_cbranch_vccz {lskip}")
        woreads(); e("s_mov_b32 s59, 1")
        e.label(lskip)
    for k in range(4): e(f"v_mov_b32 v{8+k}, s{60+k}")
    e("v_mov_b32 v10, v10") if False else None
    wait_flags(F_MP, 2, 28, lowprio=LOW)
    if o["dl2"]: e(f"s_sleep {o['dl2']}")
    B2 = 128
    def mk_dat(n):
        b = B2 + 4 * n
        return dict(issue=lambda: e(f"buffer_load_dwordx4 v[{b}:{b+3}], v{vL16}, s[28:31], s{sE2} offen offset:{n*1024} sc1"),
                    check=lambda: e(f"v_cmp_ne_u32 vcc, s{sT}, v{b+3}"), mask=70 + 2 * n)
    def st23(sl):
        if not o["stamps"]: return
        if o["early"]:
            lsk = L("se"); e("s_cmp_lt_u32 s3, 2"); e(f"s_cbranch_scc1 {lsk}"); e(f"s_memrealtime s[{80+2*sl}:{81+2*sl}]"); e.label(lsk)
        else: e(f"s_memrealtime s[{80+2*sl}:{81+2*sl}]")
    st23(1)
    mpoll([mk_dat(0), mk_dat(1)], cnt=69, pre=wo_try, shadow=wo_try)
    st23(2)
    l0, l1 = B2 + 2, B2 + 6
    e(f"v_max_f32 v7, v{l0}, v{l1}")
    e("v_mov_b32 v20, 0xffff0000")
    e(f"v_lshlrev_b32 v16, 16, v{B2}"); e(f"v_and_b32 v17, v20, v{B2}")
    allreduce_xrow(7, 6, "v_max_f32")
    e(f"v_sub_f32 v{l0}, v{l0}, v7"); e(f"v_sub_f32 v{l1}, v{l1}, v7")
    e(f"v_lshlrev_b32 v18, 16, v{B2+1}"); e(f"v_and_b32 v19, v20, v{B2+1}")
    e(f"v_exp_f32 v{l0}, v{l0}"); e(f"v_exp_f32 v{l1}, v{l1}")
    e(f"v_lshlrev_b32 v24, 16, v{B2+4}"); e(f"v_and_b32 v25, v20, v{B2+4}"); e(f"v_lshlrev_b32 v26, 16, v{B2+5}"); e(f"v_and_b32 v27, v20, v{B2+5}")
    for i in range(4): e(f"v_mul_f32 v{12+i}, v{16+i}, v{l0}")
    e(f"v_add_f32 v5, v{l0}, v{l1}")
    for i in range(4): e(f"v_fmac_f32 v{12+i}, v{24+i}, v{l1}")
    e("v_mov_b32 v4, v7")
    allreduce_xrow(5, 6, "v_add_f32")
    reduce_scatter4(12)
    e(f"ds_write_b32 v{vOXW}, v12")
    e("s_lshl_b32 s57, s3, 3"); e(f"s_add_u32 s57, s57, {SX}"); e("v_mov_b32 v6, s57")
    e("s_mov_b64 exec, 1"); e("ds_write_b64 v6, v[4:5]"); e("s_mov_b64 exec, -1")
    e(f"ds_write_b32 v{vFLW}, v22 offset:{F_OX*4}")
    e(f"v_mov_b32 v6, {SX}")
    def ox_extra():
        e(f"ds_read_b128 v[12:15], v{vOXR}"); e("ds_read_b128 v[24:27], v6"); e("ds_read_b128 v[72:75], v6 offset:16")
    wait_flags(F_OX, 4, 28, extra=ox_extra)
    e("v_max3_f32 v7, v24, v26, v72"); e("v_max_f32 v7, v7, v74")
    e("v_sub_f32 v24, v24, v7"); e("v_sub_f32 v26, v26, v7"); e("v_sub_f32 v72, v72, v7"); e("v_sub_f32 v74, v74, v7")
    e("v_exp_f32 v24, v24"); e("v_exp_f32 v26, v26"); e("v_exp_f32 v72, v72"); e("v_exp_f32 v74, v74"); e.nop(1)
    e("v_mul_f32 v5, v24, v25"); e("v_mul_f32 v12, v12, v24"); e("v_fmac_f32 v5, v26, v27"); e("v_fmac_f32 v12, v13, v26")
    e("v_fmac_f32 v5, v72, v73"); e("v_fmac_f32 v12, v14, v72"); e("v_fmac_f32 v5, v74, v75"); e("v_fmac_f32 v12, v15, v74")
    e("v_rcp_f32 v5, v5"); e.nop(1); e("v_mul_f32 v12, v12, v5"); e.nop(2)
    e(f"v_mov_b32_dpp v13, v12 quad_perm:[1,0,3,2] {DPP}")
    e("v_cvt_pk_bf16_f32 v12, v12, v13"); e.nop(2)
    for m in range(8): e(f"v_mov_b32_dpp v{76+m}, v12 row_newbcast:{2*m} {DPP}")
    lw = L("wook"); e("s_cmp_lg_u32 s59, 0"); e(f"s_cbranch_scc1 {lw}")
    wait_flags(F_WO, 2, 28); woreads(); e("s_waitcnt lgkmcnt(0)")
    e.label(lw)
    AC = 136
    for k in range(2):
        for u in range(4):
            c = "0" if k == 0 else f"v[{AC+4*u}:{AC+4*u+3}]"
            e(f"v_mfma_f32_16x16x32_bf16 v[{AC+4*u}:{AC+4*u+3}], v[{76+4*k}:{79+4*k}], v[{40+8*u+4*k}:{43+8*u+4*k}], {c}")
    e("s_mov_b64 exec, 0xffff")
    e.nop(4)
    for i in range(4): e(f"v_perm_b32 v{4+i}, v{AC+4*i}, v{8+i}, s64")
    e(f"buffer_store_dwordx4 v[4:7], v{vE3V}, s[28:31], s{sE3} offen sc1")
    e("s_mov_b64 exec, -1")
    set_flag(F_PUB3)
    if o["stamps"] == 3 or o["early"]:
        lsk = L("st3"); e("s_cmp_lt_u32 s3, 2"); e(f"s_cbranch_scc1 {lsk}"); e("s_memrealtime s[86:87]"); e.label(lsk)
    elif o["stamps"]: e("s_memrealtime s[86:87]")
    e("s_waitcnt lgkmcnt(0)")
    dump_stamps(cnts=([(4, 68), (5, 69)] if (o["stamps"] != 3 and not o["early"]) else None))
    e("s_endpgm")

    e.label("L_loader")
    stamp(1)
    if o["prio"]: e("s_setprio 2")
    e("s_sub_u32 s52, s3, 4")
    e("s_lshr_b32 s53, s48, 1"); e("s_lshl_b32 s53, s53, 24"); e("s_and_b32 s54, s48, 1"); e("s_lshl_b32 s54, s54, 4"); e("s_lshr_b32 s55, s49, 1"); e("s_add_u32 s54, s54, s55")
    e("s_lshl_b32 s54, s54, 15"); e("s_add_u32 s53, s53, s54"); e(f"s_add_u32 s53, s53, {KEY0*256}")
    e("s_lshl_b32 s54, s52, 14"); e("s_add_u32 s53, s53, s54")
    if o["gmap"]: e("s_lshr_b32 s55, s49, 2"); e("s_lshl_b32 s56, s48, 3"); e("s_add_u32 s55, s55, s56"); e("s_lshl_b32 s55, s55, 17")
    else: e("s_lshr_b32 s55, s49, 2"); e("s_lshl_b32 s55, s55, 3"); e("s_add_u32 s55, s55, s48"); e("s_lshl_b32 s55, s55, 17")
    e("s_and_b32 s56, s49, 3"); e("s_lshl_b32 s56, s56, 9"); e("s_add_u32 s55, s55, s56")
    e("s_lshl_b32 s56, s52, 16"); e("s_add_u32 s55, s55, s56")
    e("s_lshl_b32 s57, s52, 14")
    for m in range(4):
        e(f"v_add_u32 v4, {4*m}, v2"); e("v_xor_b32 v4, v4, v3"); e("v_lshlrev_b32 v4, 4, v4"); e("v_lshlrev_b32 v5, 8, v2"); e(f"v_add_u32 v{8+m}, v4, v5")
    for m in range(2):
        e(f"v_add_u32 v4, {4*m}, v2"); e("v_lshrrev_b32 v5, 1, v3"); e("v_xor_b32 v4, v4, v5"); e("v_lshlrev_b32 v4, 1, v4"); e("v_and_b32 v5, 1, v3"); e("v_or_b32 v4, v4, v5")
        e("v_lshlrev_b32 v4, 4, v4"); e("v_lshlrev_b32 v5, 8, v2"); e(f"v_add_u32 v{12+m}, v4, v5")
    e("v_lshrrev_b32 v6, 5, v0"); e("v_and_b32 v7, 31, v0")
    for m in range(4):
        e("v_lshlrev_b32 v4, 2, v6"); e(f"v_add_u32 v4, {m}, v4"); e("v_lshrrev_b32 v5, 1, v7"); e("v_xor_b32 v4, v4, v5"); e("v_lshlrev_b32 v4, 1, v4")
        e("v_and_b32 v5, 1, v7"); e("v_or_b32 v4, v4, v5"); e("v_lshlrev_b32 v4, 4, v4"); e("v_lshlrev_b32 v5, 11, v6"); e(f"v_add_u32 v{16+m}, v4, v5")
    e("s_lshl_b32 s58, s52, 2"); e("v_add_u32 v20, s58, v21")
    e("s_waitcnt lgkmcnt(0)")
    srd(36, 6, 67108864); srd(40, 8, 67108864); srd(44, 12, 8388608)
    if o["stamps"]: srd(28, 26, 268435456)
    if o["lbar"]: e("s_barrier")
    stamp(2)
    W = o["win"]; WKV = o["winkv"]
    seq = [("K", m) for m in range(16)] + [("V", m) for m in range(16)] + [("W", m) for m in range(16)]
    st = dict(landed=-1)
    def land(upto):
        for x in range(st["landed"] + 1, upto + 1):
            if x == 15: set_flag(F_K, 20); stamp(3)
            if x == 31: set_flag(F_V, 20); stamp(4)
        st["landed"] = max(st["landed"], upto)
    for i, (kind, m) in enumerate(seq):
        w_ = WKV if i < 32 else W
        skipwin = False
        if o["vi"] < 16 and i == 16 + o["vi"]: set_flag(F_VI, 20)
        if o["vh"] < 16 and i == 16 + o["vh"]:
            if st["landed"] < 15: e(f"s_waitcnt vmcnt({i - 16})"); land(15)
            set_flag(F_VI, 20)
            wait_flags(F_P1, 4, 24)
        if i == 32:
            assert st["landed"] >= 15
            if o["vh"] >= 16:
                if o["vi"] >= 16: set_flag(F_VI, 20)
                if o["wpre"]: wait_flags(F_P1, 4, 24)
            if not o["wpre"]:
                e("s_waitcnt vmcnt(0)"); land(31)
                wait_flags(F_QF, 4, 24)
        if o["wpre"] and 32 <= i < 32 + o["wpre"]:
            skipwin = True
        if o["wpre"] and i == 32 + o["wpre"]:
            e(f"s_waitcnt vmcnt({o['wpre']})"); land(31)
            wait_flags(F_QF, 4, 24)
        if not skipwin and i - st["landed"] - 1 > w_ - 1:
            e(f"s_waitcnt vmcnt({w_-1})"); land(i - w_)
        if kind == "K":
            e(f"s_add_u32 m0, s57, {KL + m*1024}"); e(f"s_add_u32 s58, s53, {m*1024}")
            e(f"buffer_load_dwordx4 v{8 + (m & 3)}, s[36:39], s58 offen{NTKV} lds")
        elif kind == "V":
            e(f"s_add_u32 m0, s57, {VL + m*1024}"); e(f"s_add_u32 s58, s53, {m*1024}")
            e(f"buffer_load_dwordx4 v{12 + (m & 1)}, s[40:43], s58 offen{NTKV} lds")
        else:
            e(f"s_add_u32 m0, s57, {WO + m*1024}"); e(f"s_add_u32 s58, s55, {m*4096}")
            e(f"buffer_load_dwordx4 v{16 + ((m >> 1) & 3)}, s[44:47], s58 offen{NT} lds")
    e("s_waitcnt vmcnt(0)"); set_flag(F_WO, 20); stamp(5)
    e("s_waitcnt lgkmcnt(0)")
    dump_stamps()
    e("s_endpgm")

    e.label("L_final")
    tagbytes(60)
    e("s_mov_b32 s64, 0x07060500")
    for k in range(4): e(f"v_mov_b32 v{8+k}, s{60+k}")
    e("v_lshlrev_b32 v24, 2, v3"); e(f"v_add_u32 v24, {YP}, v24")
    wait_flags(F_G, 1, 28, extra=lambda: [e(f"ds_read_b32 v{96+i}, v24 offset:{64*i}") for i in range(4)])
    for k in range(4): e(f"v_perm_b32 v{4+k}, v{96+k}, v{8+k}, s64")
    e("s_lshl_b32 s56, s2, 8"); e(f"s_add_u32 s56, s56, {GB}")
    e("v_lshlrev_b32 v24, 4, v0")
    e("s_mov_b64 exec, 0xffff")
    e("buffer_store_dwordx4 v[4:7], v24, s[28:31], s56 offen sc1")
    e("s_mov_b64 exec, -1")
    stamp(4)
    e("s_lshr_b32 s53, s49, 3"); e("s_lshl_b32 s53, s53, 3"); e("s_add_u32 s53, s53, s48")
    e("s_and_b32 s54, s49, 7")
    e("s_lshr_b32 s55, s53, 1"); e("s_lshl_b32 s55, s55, 6"); e("s_and_b32 s56, s53, 1"); e("s_lshl_b32 s56, s56, 3"); e("s_add_u32 s55, s55, s56"); e("s_add_u32 s55, s55, s54")
    e("v_lshlrev_b32 v25, 5, v2"); e("s_lshl_b32 s55, s55, 1")
    e("buffer_load_ushort v12, v25, s[32:35], s55 offen")
    e("v_lshlrev_b32 v26, 2, v3"); e("v_add_u32 v26, v26, v2"); e("v_lshlrev_b32 v26, 8, v26")
    e("s_lshr_b32 s56, s53, 1"); e("s_lshl_b32 s56, s56, 12"); e("s_and_b32 s57, s53, 1"); e("s_lshl_b32 s57, s57, 3"); e("s_add_u32 s57, s57, s54"); e("s_lshl_b32 s57, s57, 4")
    e("s_add_u32 s57, s57, s56"); e(f"s_add_u32 s57, s57, {GB}")
    e("v_lshlrev_b32 v24, 7, v0")
    e("s_lshl_b32 s56, s53, 13"); e("s_lshl_b32 s58, s54, 4"); e("s_add_u32 s56, s56, s58"); e(f"s_add_u32 s56, s56, {FB}")
    srd(36, 24, 2048)
    wait_flags(F_MP, 2, 28, sleep=4)
    mpoll([dict(issue=lambda: e("buffer_load_dwordx4 v[32:35], v26, s[28:31], s57 offen sc1"), check=lambda: chk4(32, 60), mask=70, init=(0x000f000f, 0x000f000f))])
    reduce_scatter4(32); e("v_mov_b32 v96, v32"); e.nop(2)
    e(f"v_add_f32_dpp v96, v96, v96 quad_perm:[1,0,3,2] {DPP}"); e.nop(2)
    e(f"v_add_f32_dpp v96, v96, v96 quad_perm:[2,3,0,1] {DPP}")
    bf16r(96, 96)
    e("s_and_b32 s59, s59, 0xffff"); e("s_lshl_b32 s59, s59, 16")
    e("v_add_f32 v96, s59, v96"); bf16r(96, 96)
    e(f"v_mul_f32 v97, {f32bits(-math.log2(math.e)):#x}, v96"); e("v_exp_f32 v97, v97"); e.nop(1); e("v_add_f32 v97, 1.0, v97"); e("v_rcp_f32 v97, v97"); e.nop(1)
    e("v_mul_f32 v96, v96, v97"); bf16r(96, 96)
    e("v_lshlrev_b32 v14, 16, v12")
    stamp(1)
    wait_flags(F_PUB3, 1, 28, sleep=1)
    if o["prio"]: e("s_setprio 3")
    if o["dl3"]: e(f"s_sleep {o['dl3']}")
    stamp(5)
    mpoll([dict(issue=lambda: e("buffer_load_dwordx4 v[28:31], v24, s[28:31], s56 offen sc1"), check=lambda: chk4(28, 100), mask=70)], cnt=69)
    stamp(6)
    reduce_scatter4(28)
    allreduce_row16(28, "v_add_f32")
    bf16r(28, 28)
    e("v_mul_f32 v28, v28, v96"); bf16r(28, 28)
    e("v_add_f32 v28, v28, v14")
    e("v_cvt_pk_bf16_f32 v28, v28, v28")
    e("s_mov_b32 exec_lo, 0x00010001"); e("s_mov_b32 exec_hi, 0x00010001")
    e("buffer_store_short v28, v25, s[36:39], s55 offen")
    l = L("ne"); e("s_cmp_lg_u32 s2, 0"); e(f"s_cbranch_scc1 {l}")
    e("s_mov_b64 exec, 1")
    e(f"s_mul_i32 s57, s{sT}, {TINV:#x}"); e("v_mov_b32 v20, s57"); e("v_mov_b32 v23, 0")
    e("buffer_store_dword v20, v23, s[28:31], 0 offen sc1")
    e.label(l)
    e("s_mov_b64 exec, -1")
    stamp(7)
    dump_stamps(cnts=[(2, 69)], final=True)
    e("s_endpgm")
    if o["pages"]: e(".p2align 12")
    e.label("L_bbranch")
    if o["prio"]: e(f"s_setprio {o['bprio']}")
    e(f"v_mov_b32 v23, {LNS}")
    k1 = -2.0 * math.sqrt(2.0 / math.pi) * math.log2(math.e); k2 = k1 * 0.044715
    e(f"v_mov_b32 v92, {f32bits(k1):#x}"); e(f"v_mov_b32 v93, {f32bits(k2):#x}")
    wait_flags(F_LN2, 1, 28, extra=lambda: (e("ds_read_b128 v[32:35], v23"), e(f"ds_read_b32 v29, v21 offset:{F_T*4}")), sleep=2)
    e(f"v_readfirstlane_b32 s{sT}, v29")
    e("s_waitcnt vmcnt(0)")
    stamp(1)
    for k in range(8): e(f"v_lshlrev_b32 v{40+k}, 16, v{40+k}")
    for n in range(4): e(f"v_lshlrev_b32 v{48+2*n}, 16, v{48+2*n}")
    e("v_cmp_gt_u32 vcc, 32, v0"); e("v_mov_b32 v94, 1.0"); e("v_mov_b32 v95, 1.0"); e("v_cndmask_b32 v54, 0, v54, vcc")
    e("v_lshlrev_b32 v14, 16, v12")
    e("v_sub_f32 v16, v14, v32"); bf16r(16, 16); e("v_mul_f32 v16, v16, v33"); bf16r(16, 16)
    e("v_sub_f32 v16, v16, v34"); bf16r(16, 16); e("v_mul_f32 v16, v16, v35"); bf16r(16, 16)
    ACCB = 128
    for half in range(2):
        e.nop(1)
        for k in range(16): e(f"v_readlane_b32 s{64+k}, v16, {16*half+k}")
        e.nop(2)
        NI = o["bilp"]
        for k in range(0, 16, 2 * NI):
            dps = [16 * half + k + 2 * q_ for q_ in range(NI)]
            for n in range(4):
                R = range(NI)
                U = [f"v[{100+6*q_}:{101+6*q_}]" for q_ in R]; Z = [f"v[{102+6*q_}:{103+6*q_}]" for q_ in R]; G = [f"v[{104+6*q_}:{105+6*q_}]" for q_ in R]
                WB = f"v[{40+2*n}:{41+2*n}]"; W2 = f"v[{48+2*n}:{49+2*n}]"
                for q_, d in enumerate(dps): e(f"v_pk_fma_f32 {U[q_]}, s[{64+(d&15)}:{65+(d&15)}], {WB}, {WB} op_sel:[0,0,1] op_sel_hi:[1,0,1]")
                for q_ in R: e(f"v_pk_mul_f32 {Z[q_]}, {U[q_]}, {U[q_]}")
                for q_ in R: e(f"v_pk_fma_f32 {Z[q_]}, {Z[q_]}, v[92:93], v[92:93] op_sel:[0,1,0] op_sel_hi:[1,1,0]")
                for q_ in R: e(f"v_pk_mul_f32 {Z[q_]}, {Z[q_]}, {U[q_]}")
                for q_ in R: e(f"v_pk_mul_f32 {G[q_]}, {U[q_]}, {W2} op_sel_hi:[1,0]")
                for q_ in R: e(f"v_exp_f32 v{102+6*q_}, v{102+6*q_}"); e(f"v_exp_f32 v{103+6*q_}, v{103+6*q_}")
                e.nop(1)
                for q_ in R: e(f"v_pk_add_f32 {Z[q_]}, {Z[q_]}, v[94:95]")
                for q_ in R: e(f"v_rcp_f32 v{102+6*q_}, v{102+6*q_}"); e(f"v_rcp_f32 v{103+6*q_}, v{103+6*q_}")
                e.nop(1)
                for q_, d in enumerate(dps):
                    A_ = f"v[{ACCB+d}:{ACCB+d+1}]"
                    if n == 0: e(f"v_pk_mul_f32 {A_}, {G[q_]}, {Z[q_]}")
                    else: e(f"v_pk_fma_f32 {A_}, {G[q_]}, {Z[q_]}, {A_}")
    stamp(3)
    e.nop(2)
    for k in range(16):
        e(f"v_permlane32_swap_b32 v{ACCB+k}, v{ACCB+16+k}")
    for k in range(16): e(f"v_add_f32 v{ACCB+k}, v{ACCB+k}, v{ACCB+16+k}")
    e.nop(1)
    for k in range(8): e(f"v_permlane16_swap_b32 v{ACCB+k}, v{ACCB+8+k}")
    for k in range(8): e(f"v_add_f32 v{ACCB+k}, v{ACCB+k}, v{ACCB+8+k}")
    for sh in (8, 4, 2, 1):
        e.nop(1)
        for k in range(8): e(f"v_add_f32_dpp v{ACCB+k}, v{ACCB+k}, v{ACCB+k} row_ror:{sh} {DPP}")
    e("s_lshl_b32 s57, s52, 7"); e(f"s_add_u32 s57, s57, {YP}"); e("v_lshlrev_b32 v24, 5, v2"); e("v_add_u32 v24, s57, v24")
    e("s_mov_b32 exec_lo, 0x00010001"); e("s_mov_b32 exec_hi, 0x00010001")
    e(f"ds_write_b128 v24, v[{ACCB}:{ACCB+3}]"); e(f"ds_write_b128 v24, v[{ACCB+4}:{ACCB+7}] offset:16")
    e("s_mov_b64 exec, -1")
    e("s_cmp_eq_u32 s52, 0"); e("s_cbranch_scc1 L_final")
    set_flag(F_G)
    e("s_waitcnt lgkmcnt(0)")
    dump_stamps()
    e("s_endpgm")
    e.label("L_abort")
    e("s_endpgm")
    e.label("L_exit")

    probs = check(a.lines)
    body = a.text()
    nv = 224
    PAD = ".p2align 12\n.fill 832, 4, 0xbf810000\n" if o["pgal"] else ""
    hdr = open("cdna_kernels/" + KN + ".s.ref").read().split("; Override launch")[0]
    out = hdr + f"; Override launch geometry by editing the next line.\n; @launch grid=(256,1,1) block=(512,1,1) lds={LDS_BYTES}\n" + DOC.lstrip("\n")
    out += f""".amdgcn_target "amdgcn-amd-amdhsa--gfx950"
.text
.globl {KN}_kernel
{PAD}.p2align 8
.type {KN}_kernel,@function
{KN}_kernel:
{body}
    s_endpgm
.section .rodata,"a"
.p2align 6
.amdhsa_kernel {KN}_kernel
  .amdhsa_next_free_vgpr {nv}
  .amdhsa_next_free_sgpr 100
  .amdhsa_accum_offset {nv}
  .amdhsa_group_segment_fixed_size 0
  .amdhsa_kernarg_size 104
  .amdhsa_user_sgpr_count 2
  .amdhsa_user_sgpr_kernarg_segment_ptr 1
  .amdhsa_system_sgpr_workgroup_id_x 1
.end_amdhsa_kernel
"""
    return out, probs

if __name__ == "__main__":
    opt = {}
    name = sys.argv[1]
    for kv in sys.argv[2:]:
        k, v = kv.split("="); opt[k] = int(v, 0)
    s, probs = gen(opt)
    open(name, "w").write(s)
    for p in probs: print("HAZARD:", p)
```

```python
import sys, math, struct
from asmlib import Asm, check
KN = "recurrent_scan__sliding_block_cached__mixer_token_mlp__decode"
def f32bits(x): return struct.unpack("<I", struct.pack("<f", x))[0]

DEF = dict(stamps=0, nt=1, win=12, winkv=16, spinmax=1 << 20, prio=1, dl2=24, dl3=18, local=1, fb1=12, slp=1, bprio=1, bearly=1, bilp=2, wpre=3, cpf=1, tlb=0, early=0, vh=16, dl1=0, ntkv=-1, wqun=1, vi=16, gmap=1, bafter=0, lbar=0, pgal=1, pages=1, kgate=0, rearly=0, dry=1)

QB, QL, GB, OB, FB, STB = 0x10000, 0x20000, 0x30000, 0x40000, 0x100000, 0x200000
WQ, KL, VL, WO = 0, 32768, 65536, 98304
QF = 131072; OP = QF + 4096; ML = OP + 8192; FL = ML + 128; OX = FL + 128; SX = OX + 1024
XN = SX + 64; LNS = XN + 512; YP = LNS + 16; STL = YP + 256; DFL = STL + 256; LDS_BYTES = DFL + 128
F_QF, F_O, F_OX, F_K, F_V, F_WO, F_VI, F_MP, F_G, F_XN, F_LN2, F_T, F_QPUB, F_PUB3, F_P1 = 0, 4, 8, 12, 14, 16, 18, 20, 22, 23, 24, 25, 26, 27, 28

F_KG = (SX + 32 - FL) // 4
KEY0 = 61440
TMUL = 0x9e3779b1
TINV = pow(TMUL, -1, 1 << 32)
vE1V, vE1L, vQFR, vKA, vVA, vOPW, vMLW, vOPR, vMLR, vMST, vL16, vWOA, vE3V, vOXW, vOXR, vFLW = 192, 194, 196, 197, 201, 209, 210, 211, 212, 213, 214, 216, 220, 221, 222, 223
vMASK = 112
sMS, sE2, sE3, sE1, sE1G = 40, 41, 42, 43, 44

DOC = r"""
; ---------------------------------------------------------------------------------------------------------------
; ---------------------------------------------------------------------------------------------------------------
"""

sDRY = 98

def gen(opt):
    o = dict(DEF); o.update(opt)
    assert o["winkv"] <= 16
    NT = " nt" if o["nt"] else ""
    NTKV = NT if o["ntkv"] < 0 else (" nt" if o["ntkv"] else "")
    a = Asm(); e = a
    uid = [0]
    def L(p):
        uid[0] += 1; return f"L_{p}_{uid[0]}"
    sT, sCNT = 50, 51
    DPP = "row_mask:0xf bank_mask:0xf"
    def srd(d, lo, size):
        e(f"s_mov_b32 s{d}, s{lo}"); e(f"s_and_b32 s{d+1}, s{lo+1}, 0xffff"); e(f"s_mov_b32 s{d+2}, {size}"); e(f"s_mov_b32 s{d+3}, 0x20000")
    def stamp(k):
        if o["stamps"]: e(f"s_memrealtime s[{80+2*k}:{81+2*k}]")
    def dump_stamps(cnts=None, final=False):
        if not o["stamps"]: return
        if o["stamps"] == 3:
            e("s_waitcnt lgkmcnt(0)")
            e("s_mov_b64 exec, -1")
            e("s_lshl_b32 s76, s3, 5"); e(f"s_add_u32 s76, s76, {STL}"); e("v_mov_b32 v20, s76")
            for k in range(8): e(f"v_mov_b32 v{4+k}, s{80+2*k}")
            e("ds_write_b128 v20, v[4:7]"); e("ds_write_b128 v20, v[8:11] offset:16"); e("s_waitcnt lgkmcnt(0)")
            if final:
                e("s_sleep 20")
                e("s_load_dwordx2 s[76:77], s[0:1], 88"); e("s_waitcnt lgkmcnt(0)")
                e("s_mov_b32 s72, s76"); e("s_and_b32 s73, s77, 0xffff"); e("s_mov_b32 s74, 256"); e("s_mov_b32 s75, 0x20000")
                e(f"v_mov_b32 v20, {STL}"); e("v_mov_b32 v23, 0"); e("s_mov_b64 exec, 1")
                sel = [(2,0,1),(2,0,0),(4,1,0),(0,3,0),(0,5,0),(4,4,0),(2,6,0),(2,7,0),(0,0,0),(4,5,0),(2,2,0),(2,3,0),(6,4,0),(6,6,0),(6,7,0),(1,1,0)]
                if o["early"]: sel = [(2,0,1),(2,0,0),(0,4,0),(1,4,0),(2,4,0),(4,6,0),(7,4,0),(4,1,0),(1,2,0),(1,1,0),(0,2,0),(0,3,0),(0,5,0),(4,3,0),(4,4,0),(6,7,0)]
                for slot, (w, k, inv) in enumerate(sel):
                    e(f"ds_read_b32 v4, v20 offset:{w*32+k*4}"); e("s_waitcnt lgkmcnt(0)")
                    if inv: e("v_not_b32 v4, v4")
                    e(f"buffer_atomic_umax v4, v23, s[72:75], 0 offen offset:{4*slot}")
                e("s_waitcnt vmcnt(0)")
            return
        e("s_waitcnt lgkmcnt(0)")
        for (slot, sreg) in (cnts or []):
            e(f"s_mov_b32 s{80+2*slot}, s{sreg}"); e(f"s_mov_b32 s{81+2*slot}, 0")
        e("s_mov_b64 exec, -1")
        e("s_waitcnt vmcnt(0)")
        e("s_lshl_b32 s76, s2, 3"); e("s_add_u32 s76, s76, s3"); e("s_lshl_b32 s76, s76, 6"); e(f"s_add_u32 s76, s76, {STB}")
        for k in range(8):
            e(f"v_mov_b32 v{2*k+4}, s{80+2*k}"); e(f"v_mov_b32 v{2*k+5}, s{81+2*k}")
        e("v_mov_b32 v20, 0")
        e("s_mov_b64 exec, 1")
        for k in range(4):
            e(f"buffer_store_dwordx4 v[{4*k+4}:{4*k+7}], v20, s[28:31], s76 offen offset:{16*k}")
        e("s_waitcnt vmcnt(0)")
    def spin_tick():
        e(f"s_sub_u32 s{sCNT}, s{sCNT}, 1"); e("s_cbranch_scc1 L_abort")
    def and_flags(vt, n):
        if n == 2: e(f"v_and_b32 v{vt}, v{vt}, v{vt+1}")
        if n == 4:
            e(f"v_and_b32 v{vt}, v{vt}, v{vt+1}"); e(f"v_and_b32 v{vt+2}, v{vt+2}, v{vt+3}"); e(f"v_and_b32 v{vt}, v{vt}, v{vt+2}")
    def read_flags(first, n, vt):
        if n == 1: e(f"ds_read_b32 v{vt}, v21 offset:{first*4}")
        elif n == 2: e(f"ds_read_b64 v[{vt}:{vt+1}], v21 offset:{first*4}")
        else: e(f"ds_read_b128 v[{vt}:{vt+3}], v21 offset:{first*4}")
    def wait_flags(first, n, vt, extra=None, sleep=0, lowprio=None):
        if lowprio and o["prio"]: e(f"s_setprio {lowprio[0]}")
        l = L("wf"); e.label(l)
        read_flags(first, n, vt)
        if extra: extra()
        spin_tick()
        if sleep: e(f"s_sleep {sleep}")
        e("s_waitcnt lgkmcnt(0)")
        and_flags(vt, n)
        e(f"v_cmp_ne_u32 vcc, 0, v{vt}")
        e(f"s_cbranch_vccz {l}")
        if lowprio and o["prio"]: e(f"s_setprio {lowprio[1]}")
    def set_flag(idx, vaddr=21):
        e(f"ds_write_b32 v{vaddr}, v22 offset:{idx*4}")
    def bf16r(dst, src):
        e(f"v_cvt_pk_bf16_f32 v{dst}, v{src}, v{src}"); e(f"v_lshlrev_b32 v{dst}, 16, v{dst}")
    def allreduce_row16(v, op, shs=(8, 4, 2, 1)):
        for sh in shs:
            e.nop(2); e(f"{op}_dpp v{v}, v{v}, v{v} row_ror:{sh} {DPP}")
    def allreduce_xrow(v, t, op):
        e(f"v_mov_b32 v{t}, v{v}"); e.nop(2); e(f"v_permlane32_swap_b32 v{v}, v{t}"); e(f"{op} v{v}, v{v}, v{t}")
        e(f"v_mov_b32 v{t}, v{v}"); e.nop(2); e(f"v_permlane16_swap_b32 v{v}, v{t}"); e(f"{op} v{v}, v{v}, v{t}")
    def reduce_scatter4(b):
        e(f"v_permlane32_swap_b32 v{b}, v{b+2}"); e(f"v_permlane32_swap_b32 v{b+1}, v{b+3}")
        e(f"v_add_f32 v{b}, v{b}, v{b+2}"); e(f"v_add_f32 v{b+1}, v{b+1}, v{b+3}"); e.nop(2)
        e(f"v_permlane16_swap_b32 v{b}, v{b+1}"); e(f"v_add_f32 v{b}, v{b}, v{b+1}")
    def ln_stats(xf, t0, vm, vrs):
        s, t = t0, t0 + 1
        e(f"v_add_f32 v{s}, v{xf}, v{xf+1}"); e(f"v_add_f32 v{t}, v{xf+2}, v{xf+3}")
        for k in range(4, 16, 2):
            e(f"v_add_f32 v{s}, v{s}, v{xf+k}"); e(f"v_add_f32 v{t}, v{t}, v{xf+k+1}")
        e(f"v_add_f32 v{s}, v{s}, v{t}")
        allreduce_row16(s, "v_add_f32"); allreduce_xrow(s, t, "v_add_f32")
        e(f"v_mul_f32 v{s}, {f32bits(1/1024):#x}, v{s}")
        e(f"v_sub_f32 v{t}, v{xf}, v{s}"); e(f"v_sub_f32 v{t0+3}, v{xf+1}, v{s}")
        e(f"v_mul_f32 v{t0+2}, v{t}, v{t}"); e(f"v_mul_f32 v{t0+4}, v{t0+3}, v{t0+3}")
        for k in range(2, 16, 2):
            e(f"v_sub_f32 v{t}, v{xf+k}, v{s}"); e(f"v_sub_f32 v{t0+3}, v{xf+k+1}, v{s}")
            e(f"v_fmac_f32 v{t0+2}, v{t}, v{t}"); e(f"v_fmac_f32 v{t0+4}, v{t0+3}, v{t0+3}")
        e(f"v_add_f32 v{t0+2}, v{t0+2}, v{t0+4}")
        allreduce_row16(t0 + 2, "v_add_f32"); allreduce_xrow(t0 + 2, t, "v_add_f32")
        e(f"v_mul_f32 v{t0+2}, {f32bits(1/1024):#x}, v{t0+2}")
        bf16r(vm, s)
        bf16r(t, t0 + 2)
        e(f"v_add_f32 v{t}, {f32bits(1e-5):#x}, v{t}")
        bf16r(t, t)
        e(f"v_sqrt_f32 v{t}, v{t}"); e.nop(1)
        bf16r(t, t)
        e(f"v_rcp_f32 v{vrs}, v{t}"); e.nop(1)
    def unpack(dlo, dhi, src):
        e(f"v_lshlrev_b32 v{dlo}, 16, v{src}"); e(f"v_and_b32 v{dhi}, 0xffff0000, v{src}")
    def tagbytes(s0):
        for k in range(4):
            e(f"s_lshr_b32 s{s0+k}, s{sT}, {8*k}"); e(f"s_and_b32 s{s0+k}, s{s0+k}, 0xff")
    def chk4(b, t):
        e(f"v_xor_b32 v{t}, s60, v{b}"); e(f"v_bitop3_b32 v{t}, v{t}, v{b+1}, s61 bitop3:0xf6"); e(f"v_bitop3_b32 v{t}, v{t}, v{b+2}, s62 bitop3:0xf6")
        e(f"v_bitop3_b32 v{t}, v{t}, v{b+3}, s63 bitop3:0xf6"); e(f"v_and_b32 v{t}, 0xff, v{t}"); e(f"v_cmp_ne_u32 vcc, 0, v{t}")
    def mpoll(loads, cnt=None, pre=None, shadow=None):
        top = L("mp"); ent = L("me")
        for ld in loads:
            ini = ld.get('init', -1); m = ld['mask']
            if ini == -1: e(f"s_mov_b64 s[{m}:{m+1}], -1")
            else: e(f"s_mov_b32 s{m}, {ini[0]:#x}"); e(f"s_mov_b32 s{m+1}, {ini[1]:#x}")
        if cnt: e(f"s_mov_b32 s{cnt}, 0")
        for ld in loads:
            m = ld['mask']
            if ld.get('init', -1) != -1: e(f"s_mov_b64 exec, s[{m}:{m+1}]")
            ld['issue']()
            if ld.get('init', -1) != -1: e("s_mov_b64 exec, -1")
        if shadow: shadow()
        e(f"s_branch {ent}")
        e.label(top)
        spin_tick()
        if pre: pre()
        for ld in loads:
            sk = L("sk"); m = ld['mask']
            e(f"s_mov_b64 exec, s[{m}:{m+1}]"); e(f"s_cbranch_execz {sk}"); ld['issue'](); e.label(sk)
        e("s_mov_b64 exec, -1")
        e.label(ent)
        if cnt: e(f"s_add_u32 s{cnt}, s{cnt}, 1")
        e("s_waitcnt vmcnt(0)")
        e("s_mov_b64 s[66:67], 0")
        for ld in loads:
            sk = L("sc"); m = ld['mask']
            e(f"s_mov_b64 exec, s[{m}:{m+1}]"); e(f"s_cbranch_execz {sk}")
            ld['check']()
            if ld.get('take'):
                e("s_andn2_b64 exec, exec, vcc"); sk2 = L("sd"); e(f"s_cbranch_execz {sk2}"); ld['take'](); e.label(sk2)
            e(f"s_mov_b64 s[{m}:{m+1}], vcc"); e("s_or_b64 s[66:67], s[66:67], vcc")
            e.label(sk)
        e("s_mov_b64 exec, -1")
        e("s_cmp_lg_u64 s[66:67], 0"); e(f"s_cbranch_scc1 {top}")
    LOW = (0, 3)

    e("s_cmp_ge_u32 s2, 256"); e("s_cbranch_scc1 L_exit")
    stamp(0)
    e("s_load_dwordx16 s[4:19], s[0:1], 0")
    e("s_load_dwordx4 s[20:23], s[0:1], 64")
    e("s_load_dwordx2 s[24:25], s[0:1], 80")
    e("s_load_dwordx2 s[26:27], s[0:1], 96")
    e("v_lshrrev_b32 v1, 6, v0"); e("v_and_b32 v0, 63, v0")
    e("s_and_b32 s48, s2, 7")
    e("v_readfirstlane_b32 s3, v1")
    e("s_lshr_b32 s49, s2, 3")
    e("s_lshl_b32 s46, s48, 3"); e("s_and_b32 s47, s49, 7"); e("s_add_u32 s46, s46, s47"); e("s_lshr_b32 s47, s49, 3")
    def common_init():
        e("v_lshrrev_b32 v2, 4, v0"); e("v_and_b32 v3, 15, v0")
        e(f"s_mov_b32 s{sCNT}, {o['spinmax']}")
        e(f"v_mov_b32 v21, {FL}"); e("v_mov_b32 v22, 1"); e(f"s_mov_b32 s{sDRY}, 0")
    e("s_cmp_eq_u32 s3, 0"); e("s_cbranch_scc0 L_not0")
    e("v_lshrrev_b32 v24, 3, v0"); e("v_and_b32 v25, 7, v0"); e("v_lshlrev_b32 v25, 4, v25")
    e("v_bfe_u32 v27, v24, 1, 2"); e("v_lshlrev_b32 v27, 5, v27"); e("v_xor_b32 v25, v25, v27")
    e("v_lshl_add_u32 v24, v24, 13, v25")
    e("s_lshl_b32 s56, s47, 21"); e("s_lshl_b32 s57, s46, 7"); e("s_add_u32 s56, s56, s57")
    e(f"s_mov_b32 m0, {WQ}"); e("s_mov_b32 s57, 0")
    e("s_mov_b32 s38, 8388608"); e("s_mov_b32 s39, 0x20000")
    e("s_waitcnt lgkmcnt(0)")
    e("s_mov_b32 s36, s10"); e("s_and_b32 s37, s11, 0xffff")
    UN = o["wqun"]
    e.label("L_wqloop")
    for u_ in range(UN):
        e(f"buffer_load_dwordx4 v24, s[36:39], s56 offen{NT} lds")
        e("s_add_u32 m0, m0, 1024"); e(f"s_add_u32 s56, s56, {8*8192}")
    if UN < 32:
        e(f"s_add_u32 s57, s57, {UN}"); e("s_cmp_lt_u32 s57, 32"); e("s_cbranch_scc1 L_wqloop")
    if o["early"]: stamp(4)
    common_init()
    e("s_barrier")
    e("s_branch L_qproj")
    e.label("L_not0")
    common_init()
    e("s_cmp_eq_u32 s3, 1"); e("s_cbranch_scc0 L_not1")
    e("v_lshlrev_b32 v23, 5, v0"); e("v_mov_b32 v24, 0")
    e("s_waitcnt lgkmcnt(0)")
    srd(28, 26, 268435456); srd(32, 4, 2048)
    e("buffer_load_dwordx4 v[4:7], v23, s[32:35], 0 offen")
    e("buffer_load_dwordx4 v[8:11], v23, s[32:35], 0 offen offset:16")
    e("buffer_load_dword v20, v24, s[28:31], 0 offen sc1")
    if o["early"]: stamp(4)
    e("s_barrier")
    e("s_branch L_ln")
    e.label("L_not1")
    e("s_cmp_ge_u32 s3, 6"); e("s_cbranch_scc1 L_bearly")
    e("s_cmp_ge_u32 s3, 4"); e("s_cbranch_scc1 L_learly")
    if o["cpf"]:
        lc = L("cpf"); e("s_cmp_eq_u32 s3, 2"); e(f"s_cbranch_scc0 {lc}")
        e("s_getpc_b64 s[54:55]")
        e.label("L_pc")
        e(f"s_sub_u32 s54, s54, L_pc-{KN}_kernel"); e("s_subb_u32 s55, s55, 0")
        e("s_mul_i32 s56, s49, 6"); e("v_add_u32 v24, s56, v0"); e("v_lshlrev_b32 v24, 7, v24")
        e(f"s_mov_b32 s56, L_exit-{KN}_kernel")
        e("v_cmp_gt_u32 vcc, s56, v24")
        e("s_and_b64 exec, vcc, 0x3f")
        lc2 = L("cpf"); e(f"s_cbranch_execz {lc2}")
        e("global_load_dword v150, v24, s[54:55]")
        e.label(lc2)
        e("s_mov_b64 exec, -1")
        e.label(lc)
    if o["tlb"]:
        lt = L("tlb"); e("s_cmp_eq_u32 s3, 3"); e(f"s_cbranch_scc0 {lt}")
        e("s_lshr_b32 s53, s48, 1"); e("s_lshl_b32 s53, s53, 24"); e("s_and_b32 s54, s48, 1"); e("s_lshl_b32 s54, s54, 4"); e("s_lshr_b32 s55, s49, 1"); e("s_add_u32 s54, s54, s55")
        e("s_lshl_b32 s54, s54, 15"); e("s_add_u32 s53, s53, s54"); e(f"s_add_u32 s53, s53, {KEY0*256}")
        e("s_lshr_b32 s55, s49, 2"); e("s_lshl_b32 s55, s55, 3"); e("s_add_u32 s55, s55, s48"); e("s_lshl_b32 s55, s55, 17")
        e("v_mov_b32 v24, s53"); e("v_mov_b32 v25, s55"); e("v_mov_b32 v26, 0")
        e("s_waitcnt lgkmcnt(0)")
        e("s_mov_b64 exec, 1")
        e("global_load_dword v151, v24, s[8:9]" + NT); e("global_load_dword v152, v25, s[12:13]" + NT)
        e("global_load_dword v153, v24, s[6:7]" + NT); e("global_load_dword v154, v26, s[24:25]")
        e("s_mov_b64 exec, -1")
        e.label(lt)
    if o["early"]: stamp(4)
    e("s_barrier")
    e("s_branch L_w23")
    e.label("L_learly")
    lz = L("nz"); e("s_cmp_eq_u32 s3, 4"); e(f"s_cbranch_scc0 {lz}")
    e("v_lshlrev_b32 v4, 2, v0"); e(f"v_add_u32 v4, {FL}, v4"); e("v_mov_b32 v5, 0")
    if o["dry"]:
        e("v_lshrrev_b32 v6, 5, v0"); e(f"v_mul_u32_u24 v7, {DFL - FL - 128}, v6"); e("v_add_u32 v4, v4, v7"); e("ds_write_b32 v4, v6")
    else:
        e("s_mov_b64 exec, 0xffffffff"); e("ds_write_b32 v4, v5"); e("s_mov_b64 exec, -1")
    if o["kgate"]: e(f"ds_write_b32 v21, v5 offset:{F_KG*4}")
    e("s_waitcnt lgkmcnt(0)")
    e.label(lz)
    if o["early"]: stamp(6)
    if not o["lbar"]: e("s_barrier")
    e("s_branch L_loader")
    e.label("L_bearly")
    e("s_sub_u32 s52, s3, 6")
    e("s_lshr_b32 s53, s2, 4"); e("s_and_b32 s54, s2, 15")
    e("v_and_b32 v23, 31, v0"); e("v_lshlrev_b32 v23, 1, v23"); e("s_lshl_b32 s55, s53, 7"); e("s_lshl_b32 s56, s52, 6"); e("s_add_u32 s55, s55, s56")
    e("s_mul_i32 s56, s54, 448"); e("v_lshlrev_b32 v24, 1, v0")
    e("s_waitcnt lgkmcnt(0)")
    srd(28, 26, 268435456); srd(32, 4, 2048)
    srd(36, 16, 7168); srd(40, 18, 7168); srd(44, 20, 7168)
    if o["bafter"]: e("s_barrier")
    e("buffer_load_ushort v12, v23, s[32:35], s55 offen")
    for n in range(4):
        e(f"buffer_load_ushort v{40+2*n}, v24, s[36:39], s56 offen offset:{128*n}")
        e(f"buffer_load_ushort v{41+2*n}, v24, s[40:43], s56 offen offset:{128*n}")
        e(f"buffer_load_ushort v{48+2*n}, v24, s[44:47], s56 offen offset:{128*n}")
    e("s_load_dword s59, s[22:23], 0")
    if o["early"]: stamp(4)
    if not o["bafter"]: e("s_barrier")
    e("s_branch L_bbranch")

    def common_srd():
        e("s_waitcnt lgkmcnt(0)")
        srd(28, 26, 268435456)
        srd(32, 4, 2048)

    def prep():
        e("s_lshr_b32 s52, s48, 1"); e("s_lshl_b32 s52, s52, 3"); e("s_and_b32 s54, s49, 1"); e("s_lshl_b32 s54, s54, 2"); e("s_add_u32 s52, s52, s54")
        e("s_and_b32 s54, s48, 1"); e("s_lshl_b32 s54, s54, 4"); e("s_lshr_b32 s55, s49, 1"); e("s_add_u32 s55, s55, s54")
        e("s_lshl_b32 s57, s3, 2"); e(f"v_add_u32 v{vFLW}, s57, v21")
        e("v_lshrrev_b32 v28, 2, v3")
        for u in range(4):
            e(f"v_cmp_eq_u32 vcc, {u}, v28"); e.nop(2); e(f"v_cndmask_b32 v{vMASK+u}, 0, -1, vcc")
        e("v_lshrrev_b32 v28, 3, v0"); e("v_and_b32 v29, 7, v0")
        for i in range(2):
            e(f"v_add_u32 v30, {8*i}, v28")
            e("v_and_b32 v31, 3, v30"); e("v_lshlrev_b32 v31, 2, v31"); e(f"v_lshrrev_b32 v{vE1V+i}, 2, v30"); e(f"v_add_u32 v31, v31, v{vE1V+i}"); e("v_lshlrev_b32 v31, 9, v31")
            e(f"v_lshl_add_u32 v{vE1V+i}, v29, 4, v31")
            e("v_lshrrev_b32 v31, 1, v29"); e("v_lshl_add_u32 v31, v31, 4, v30"); e("v_lshlrev_b32 v31, 4, v31")
            e("v_and_b32 v30, 1, v29"); e("v_lshl_add_u32 v31, v30, 3, v31")
            e("s_lshl_b32 s57, s3, 10"); e(f"s_add_u32 s57, s57, {QF}"); e(f"v_add_u32 v{vE1L+i}, s57, v31")
        e(f"s_lshl_b32 s{sE1G}, s52, 11"); e("s_lshl_b32 s57, s3, 7"); e(f"s_add_u32 s{sE1G}, s{sE1G}, s57"); e(f"s_add_u32 s{sE1G}, s{sE1G}, {QB}")
        if o["local"]:
            e("s_xor_b32 s57, s48, s49"); e("s_and_b32 s57, s57, 1")
            e(f"s_mov_b32 s58, {QL - QB}"); e("s_cmp_eq_u32 s57, 0"); e("s_cselect_b32 s58, s58, 0"); e(f"s_add_u32 s{sE1}, s{sE1G}, s58")
        else: e(f"s_mov_b32 s{sE1}, s{sE1G}")
        e(f"v_lshlrev_b32 v{vL16}, 4, v0"); e(f"v_add_u32 v{vQFR}, {QF}, v{vL16}")
        e("s_lshl_b32 s57, s3, 13"); e(f"s_add_u32 s57, s57, {KL}")
        e("v_lshlrev_b32 v28, 8, v3"); e("v_add_u32 v28, s57, v28"); e("v_xor_b32 v29, v2, v3"); e(f"v_lshl_add_u32 v{vKA}, v29, 4, v28")
        for t in range(1, 4): e(f"v_xor_b32 v{vKA+t}, {t<<6}, v{vKA}")
        e("v_lshrrev_b32 v28, 2, v3"); e("v_lshl_add_u32 v28, v2, 2, v28")
        e("v_and_b32 v29, 7, v28"); e("v_lshlrev_b32 v29, 5, v29"); e("v_lshl_add_u32 v28, v28, 8, v29")
        e("v_and_b32 v29, 3, v3"); e("v_lshl_add_u32 v28, v29, 3, v28")
        e("s_lshl_b32 s57, s3, 13"); e(f"s_add_u32 s57, s57, {VL}"); e(f"v_add_u32 v{vVA}, s57, v28")
        for t in range(1, 8): e(f"v_xor_b32 v{vVA+t}, {t<<5}, v{vVA}")
        e("s_lshl_b32 s57, s3, 11"); e(f"s_add_u32 s57, s57, {OP}"); e(f"v_add_u32 v{vOPW}, s57, v{vL16}")
        e("s_lshl_b32 s57, s3, 3"); e(f"s_add_u32 s57, s57, {ML}"); e("v_lshlrev_b32 v28, 5, v3"); e(f"v_add_u32 v{vMLW}, s57, v28")
        e("s_and_b32 s57, s3, 1"); e("s_lshl_b32 s57, s57, 10"); e(f"s_add_u32 s57, s57, {OP}"); e(f"v_add_u32 v{vOPR}, s57, v{vL16}")
        e("v_and_b32 v28, 3, v3"); e("v_lshlrev_b32 v29, 5, v28"); e(f"v_add_u32 v{vMLR}, {ML}, v29")
        e("v_lshlrev_b32 v28, 14, v28"); e("v_lshrrev_b32 v29, 3, v3"); e("v_lshl_add_u32 v28, v29, 13, v28")
        e("v_bfe_u32 v29, v3, 2, 1"); e("v_lshl_add_u32 v29, v29, 2, v2"); e(f"v_lshl_add_u32 v{vMST}, v29, 4, v28")
        e(f"s_lshl_b32 s{sMS}, s52, 14"); e("s_lshl_b32 s57, s55, 8"); e(f"s_add_u32 s{sMS}, s{sMS}, s57"); e("s_and_b32 s57, s3, 1"); e("s_lshl_b32 s57, s57, 7")
        e(f"s_add_u32 s{sMS}, s{sMS}, s57"); e(f"s_add_u32 s{sMS}, s{sMS}, {OB}")
        if o["gmap"]: e("s_lshr_b32 s56, s49, 2"); e("s_lshl_b32 s57, s48, 3"); e("s_add_u32 s56, s56, s57")
        else: e("s_lshr_b32 s56, s49, 2"); e("s_lshl_b32 s56, s56, 3"); e("s_add_u32 s56, s56, s48")
        e(f"s_lshl_b32 s{sE2}, s56, 13"); e("s_lshl_b32 s57, s3, 11"); e(f"s_add_u32 s{sE2}, s{sE2}, s57"); e(f"s_add_u32 s{sE2}, s{sE2}, {OB}")
        e("v_lshrrev_b32 v28, 2, v3"); e("v_lshl_add_u32 v29, v28, 2, v2"); e("v_lshlrev_b32 v29, 9, v29")
        e("v_and_b32 v30, 1, v2"); e("v_lshl_add_u32 v30, v30, 2, v28"); e("v_lshl_add_u32 v29, v30, 5, v29")
        e("v_and_b32 v30, 3, v3"); e("v_lshl_add_u32 v29, v30, 3, v29"); e(f"v_add_u32 v29, {WO}, v29")
        e("s_lshl_b32 s57, s3, 7"); e(f"v_xor_b32 v{vWOA}, s57, v29")
        for u in range(1, 4): e(f"v_xor_b32 v{vWOA+u}, {u<<5}, v{vWOA}")
        e("s_and_b32 s57, s49, 3"); e("s_lshl_b32 s57, s57, 3"); e("s_lshl_b32 s58, s3, 1"); e("s_add_u32 s57, s57, s58"); e(f"s_lshl_b32 s{sE3}, s57, 13")
        e("s_lshl_b32 s57, s56, 7"); e(f"s_add_u32 s{sE3}, s{sE3}, s57"); e(f"s_add_u32 s{sE3}, s{sE3}, {FB}")
        e("v_lshrrev_b32 v28, 3, v3"); e("v_lshlrev_b32 v28, 13, v28"); e("v_and_b32 v29, 7, v3"); e(f"v_lshl_add_u32 v{vE3V}, v29, 4, v28")
        e(f"v_add_u32 v{vOXR}, {OX}, v{vL16}"); e("s_lshl_b32 s57, s3, 2"); e(f"v_add_u32 v{vOXW}, s57, v{vOXR}")

    e.label("L_ln")
    if o["prio"]: e("s_setprio 3")
    e("s_lshl_b32 s54, s47, 4"); e("v_subrev_u32 v23, s54, v0"); e("v_lshlrev_b32 v23, 5, v23"); e(f"v_add_u32 v23, {XN}, v23")
    e("s_mov_b32 s56, 0xffff"); e("s_mov_b32 s57, 0"); e("s_lshl_b64 s[58:59], s[56:57], s54")
    e("s_waitcnt vmcnt(0)")
    stamp(2)
    e(f"v_readfirstlane_b32 s{sT}, v20")
    for k in range(8): unpack(24 + 2 * k, 25 + 2 * k, 4 + k)
    e(f"s_add_u32 s{sT}, s{sT}, 1"); e(f"s_mul_i32 s{sT}, s{sT}, {TMUL:#x}")
    ln_stats(24, 98, 104, 105)
    e(f"v_mov_b32 v20, s{sT}"); e(f"ds_write_b32 v21, v20 offset:{F_T*4}")
    for k in range(16): e(f"v_sub_f32 v{24+k}, v{24+k}, v104")
    for k in range(8): e(f"v_cvt_pk_bf16_f32 v{4+k}, v{24+2*k}, v{25+2*k}")
    for k in range(8): unpack(24 + 2 * k, 25 + 2 * k, 4 + k)
    for k in range(16): e(f"v_mul_f32 v{24+k}, v{24+k}, v105")
    for k in range(8): e(f"v_cvt_pk_bf16_f32 v{4+k}, v{24+2*k}, v{25+2*k}")
    e("s_mov_b64 exec, s[58:59]")
    e("ds_write_b128 v23, v[4:7]"); e("ds_write_b128 v23, v[8:11] offset:16")
    e("s_mov_b64 exec, -1")
    set_flag(F_XN)
    stamp(1)
    for k in range(8): unpack(24 + 2 * k, 25 + 2 * k, 4 + k)
    ln_stats(24, 98, 106, 107)
    e(f"v_mov_b32 v23, {LNS}"); e("ds_write_b128 v23, v[104:107]")
    set_flag(F_LN2)
    stamp(3)
    e("s_branch L_prep")
    e.label("L_qproj")
    if o["prio"]: e("s_setprio 3")
    stamp(1)
    srd(28, 26, 268435456)
    e("s_branch L_prep")
    e.label("L_qproj2")
    e("v_lshrrev_b32 v24, 2, v3"); e("v_and_b32 v25, 3, v3")
    e("v_lshlrev_b32 v26, 2, v2"); e("v_add_u32 v26, v26, v24")
    e("v_lshrrev_b32 v27, 1, v26"); e("v_and_b32 v27, 3, v27")
    e("v_lshlrev_b32 v26, 7, v26"); e("v_lshlrev_b32 v25, 3, v25"); e("v_add_u32 v26, v26, v25")
    e("v_lshlrev_b32 v27, 5, v27"); e("v_add_u32 v108, v26, v27")
    for u in range(1, 4): e(f"v_xor_b32 v{108+u}, {u<<5}, v108")
    e("s_lshr_b32 s57, s46, 1"); e("s_lshl_b32 s57, s57, 11"); e("s_and_b32 s58, s46, 1"); e("s_lshl_b32 s58, s58, 8"); e("s_add_u32 s57, s57, s58")
    e("s_lshl_b32 s58, s47, 9"); e("s_add_u32 s57, s57, s58"); e(f"s_add_u32 s46, s57, {QB}"); e(f"s_add_u32 s47, s57, {QL}")
    e("v_lshlrev_b32 v27, 2, v0")
    e("v_lshlrev_b32 v26, 3, v2"); e(f"v_add_u32 v26, {XN}, v26")
    def xn_extra():
        e(f"ds_read_b32 v29, v21 offset:{F_T*4}")
        for k in range(8): e(f"ds_read2_b64 v[{40+4*k}:{43+4*k}], v26 offset0:{8*k} offset1:{8*k+4}")
    wait_flags(F_XN, 1, 28, extra=xn_extra)
    e(f"v_readfirstlane_b32 s{sT}, v29")
    stamp(2)
    csc = math.log2(math.e) / math.sqrt(128.0)
    e(f"s_mov_b32 s58, {f32bits(csc):#x}")
    def wq_reads(k):
        B = 128 + 16 * (k & 1)
        for u in range(4):
            for rho in range(2):
                r = B + 4 * u + 2 * rho
                e(f"ds_read_b64_tr_b16 v[{r}:{r+1}], v{108+u} offset:{k*4096 + rho*2048}")
    if o["kgate"] == 1: set_flag(F_KG)
    e("s_waitcnt vmcnt(28)")
    wq_reads(0)
    for k in range(8):
        if o["kgate"] == k + 2: set_flag(F_KG)
        B = 128 + 16 * (k & 1)
        if k < 7:
            e(f"s_waitcnt vmcnt({24 - 4*k})")
            if k == 6: stamp(3)
            wq_reads(k + 1)
            e("s_waitcnt lgkmcnt(8)")
        else:
            e("s_waitcnt lgkmcnt(0)")
        for u in range(4):
            c = "0" if k == 0 else f"v[{72+4*u}:{75+4*u}]"
            e(f"v_mfma_f32_16x16x32_bf16 v[{72+4*u}:{75+4*u}], v[{40+4*k}:{43+4*k}], v[{B+4*u}:{B+4*u+3}], {c}")
    e(f"v_mov_b32 v49, s{sT}"); e(f"v_mov_b32 v51, s{sT}")
    e("s_mov_b32 s56, 0x11111111"); e("s_mov_b32 s57, 0x11111111")
    e("s_mov_b32 s60, 0xffff0000"); e("s_mov_b32 s61, 0"); e("s_mov_b32 s62, 0"); e("s_mov_b32 s63, 0xffff"); e("s_mov_b32 s64, 0"); e("s_mov_b32 s65, 0xffff0000")
    e.nop(2)
    e("v_cndmask_b32 v104, v72, v76, s[60:61]"); e("v_cndmask_b32 v104, v104, v80, s[62:63]"); e("v_cndmask_b32 v104, v104, v84, s[64:65]")
    e("v_mul_f32 v104, s58, v104"); e.nop(2)
    e(f"v_mov_b32_dpp v105, v104 quad_perm:[1,0,3,2] {DPP}")
    e("v_cvt_pk_bf16_f32 v48, v104, v105"); e.nop(2)
    e(f"v_mov_b32_dpp v50, v48 quad_perm:[2,3,0,1] {DPP}")
    e("s_mov_b64 exec, s[56:57]")
    if o["local"]: e("buffer_store_dwordx4 v[48:51], v27, s[28:31], s47 offen")
    e("buffer_store_dwordx4 v[48:51], v27, s[28:31], s46 offen sc1")
    e("s_mov_b64 exec, -1")
    set_flag(F_QPUB)
    stamp(5)
    e("s_branch L_attn")

    if o["pages"]: e(".p2align 12")
    e.label("L_w23")
    if o["prio"]: e("s_setprio 3")
    common_srd()
    e.label("L_prep")
    prep()
    e("s_cmp_eq_u32 s3, 0"); e("s_cbranch_scc1 L_qproj2")
    e("s_cmp_eq_u32 s3, 1"); e("s_cbranch_scc1 L_attn")
    if o["dry"]:
        e(f"s_mov_b32 s{sDRY}, s3"); e("s_mov_b32 s30, 0"); e(f"s_mov_b32 s{sT}, 0")
        e(f"v_mov_b32 v21, {DFL}"); e(f"v_mov_b32 v{vFLW}, {DFL}")
        e(f"s_mov_b32 s59, 0"); tagbytes(60); e("s_mov_b32 s64, 0x07060500")
        e("s_cmp_eq_u32 s3, 2"); e("s_cbranch_scc1 L_e2c")
        e("s_mov_b32 s3, 1")
        e("s_branch L_qk")
        e.label("L_dryret")
        e(f"s_mov_b32 s3, s{sDRY}"); e(f"s_mov_b32 s{sDRY}, 0"); e("s_mov_b32 s30, 268435456")
        e(f"v_mov_b32 v21, {FL}"); e("s_lshl_b32 s57, s3, 2"); e(f"v_add_u32 v{vFLW}, s57, v21")
        e.label("L_nodry")
    wait_flags(F_XN, 1, 28, extra=lambda: e(f"ds_read_b32 v29, v21 offset:{F_T*4}"), sleep=o["slp"], lowprio=LOW)
    e(f"v_readfirstlane_b32 s{sT}, v29")
    e.label("L_attn")
    wait_flags(F_QPUB, 1, 28, sleep=o["slp"], lowprio=LOW)
    if o["rearly"]:
        lloc = L("loc"); lgo = L("go")
        e(f"s_cmp_lg_u32 s{sE1}, s{sE1G}"); e(f"s_cbranch_scc1 {lloc}")
        e(f"s_sleep {o['rearly']}"); e("s_mov_b32 s59, 0"); e(f"s_branch {lgo}")
        e.label(lloc)
        wait_flags(F_VI, 2, 28, lowprio=LOW); e("s_mov_b32 s59, 1")
        e.label(lgo)
    else:
        if o["dl1"]: e(f"s_sleep {o['dl1']}")
        wait_flags(F_VI, 2, 28, lowprio=LOW)
    PB = 128
    def mk_e1(i):
        b = PB + 4 * i
        return dict(issue=lambda: e(f"buffer_load_dwordx4 v[{b}:{b+3}], v{vE1V+i}, s[28:31], s{sE1} offen sc1"),
                    check=lambda: (e(f"v_xor_b32 v36, s{sT}, v{b+1}"), e(f"v_xor_b32 v37, s{sT}, v{b+3}"), e("v_or_b32 v36, v36, v37"), e("v_cmp_ne_u32 vcc, 0, v36")),
                    take=lambda: e(f"ds_write2_b32 v{vE1L+i}, v{b}, v{b+2} offset0:0 offset1:1"), mask=70 + 2 * i)
    def kreads():
        for kt in range(2):
            for t in range(4):
                r = 40 + 16 * kt + 4 * t
                e(f"ds_read_b128 v[{r}:{r+3}], v{vKA+t} offset:{kt*4096}")
    def e1_pre():
        if o["local"]: e(f"s_cmp_ge_u32 s68, {o['fb1']}"); e(f"s_cselect_b32 s{sE1}, s{sE1G}, s{sE1}")
    if not o["early"]: stamp(1)
    def e1_shadow():
        if o["wpre"] or o["vh"] < 16: e(f"ds_write_b32 v{vFLW}, v22 offset:{F_P1*4}")
        if o["rearly"]:
            lk = L("nk"); e("s_cmp_eq_u32 s59, 0"); e(f"s_cbranch_scc1 {lk}"); kreads(); e.label(lk)
        elif o["vi"] >= 16: kreads()
    mpoll([mk_e1(0), mk_e1(1)], cnt=68, pre=e1_pre, shadow=e1_shadow)
    e.label("L_qk")
    e(f"ds_write_b32 v{vFLW}, v22 offset:{F_QF*4}")
    stamp(6)
    if o["rearly"]:
        lk2 = L("k2"); e("s_cmp_lg_u32 s59, 0"); e(f"s_cbranch_scc1 {lk2}"); wait_flags(F_K, 2, 28); kreads(); e.label(lk2)
    elif o["vi"] < 16:
        wait_flags(F_K, 2, 28); kreads()
    VF = 160
    def vreads():
        for t in range(8):
            for rho in range(2):
                r = VF + 4 * t + 2 * rho
                e(f"ds_read_b64_tr_b16 v[{r}:{r+1}], v{vVA+t} offset:{rho*4096}")
    def qf_extra():
        e(f"ds_read_b64 v[32:33], v21 offset:{F_V*4}")
        for t in range(4): e(f"ds_read_b128 v[{72+4*t}:{75+4*t}], v{vQFR} offset:{t*1024}")
    wait_flags(F_QF, 4, 28, extra=qf_extra)
    for t in range(4):
        for kt in range(2):
            c = "0" if t == 0 else f"v[{88+4*kt}:{91+4*kt}]"
            e(f"v_mfma_f32_16x16x32_bf16 v[{88+4*kt}:{91+4*kt}], v[{40+16*kt+4*t}:{43+16*kt+4*t}], v[{72+4*t}:{75+4*t}], {c}")
    e("v_and_b32 v32, v32, v33"); e("v_cmp_ne_u32 vcc, 0, v32")
    e("s_mov_b32 s59, 0")
    lv = L("vlate"); e(f"s_cbranch_vccz {lv}")
    vreads(); e("s_mov_b32 s59, 1")
    e.label(lv)
    for m in range(4): e(f"v_mov_b32 v{44+m}, 0x3f803f80")
    e.nop(3)
    S = list(range(88, 96))
    for s_ in S: e(f"v_add_f32_dpp v{s_+8}, v{s_}, v{s_} row_ror:4 {DPP}")
    for s_ in S: e(f"v_add_f32_dpp v{s_}, v{s_+8}, v{s_+8} row_ror:8 {DPP}")
    e("v_max3_f32 v96, v88, v89, v90"); e("v_max3_f32 v97, v91, v92, v93"); e("v_max3_f32 v96, v96, v94, v95"); e("v_max_f32 v96, v96, v97")
    allreduce_xrow(96, 97, "v_max_f32")
    for s_ in S: e(f"v_sub_f32 v{s_}, v{s_}, v96")
    for s_ in S: e(f"v_exp_f32 v{s_}, v{s_}")
    e.nop(1)
    for m in range(4): e(f"v_cvt_pk_bf16_f32 v{100+m}, v{88+2*m}, v{89+2*m}")
    lw = L("vok"); e("s_cmp_lg_u32 s59, 0"); e(f"s_cbranch_scc1 {lw}")
    wait_flags(F_V, 2, 28); vreads()
    e.label(lw)
    for m in range(4): e(f"v_and_b32 v{72+m}, v{100+m}, v{vMASK}")
    for m in range(4): e(f"v_and_b32 v{76+m}, v{100+m}, v{vMASK+1}")
    e("s_waitcnt lgkmcnt(0)")
    first = [True, True]
    for t in range(8):
        ee = (t >> 1) & 1; u = 2 * (t >> 2) + (t & 1)
        c = "0" if first[ee] else f"v[{104+4*ee}:{107+4*ee}]"; first[ee] = False
        e(f"v_mfma_f32_16x16x32_bf16 v[{104+4*ee}:{107+4*ee}], v[{VF+4*t}:{VF+4*t+3}], v[{72+4*u}:{75+4*u}], {c}")
        if t in (0, 1):
            for m in range(4): e(f"v_and_b32 v{80+4*t+m}, v{100+m}, v{vMASK+2+t}")
    e("v_mfma_f32_16x16x32_bf16 v[92:95], v[44:47], v[100:103], 0")
    e.nop(6)
    e(f"ds_write_b128 v{vOPW}, v[104:107]")
    e(f"ds_write_b128 v{vOPW}, v[108:111] offset:1024")
    e("v_mov_b32 v97, v92")
    e("s_mov_b64 exec, 0xf")
    e(f"ds_write_b64 v{vMLW}, v[96:97]")
    e("s_mov_b64 exec, -1")
    e(f"ds_write_b32 v{vFLW}, v22 offset:{F_O*4}")
    stamp(7)
    tagbytes(60); e("s_mov_b32 s64, 0x07060500"); e("s_mov_b32 s59, 0")
    e("s_cmp_ge_u32 s3, 2"); e("s_cbranch_scc1 L_e2")
    e(f"v_mov_b32 v63, s{sT}")
    def mg_extra():
        for w in range(4): e(f"ds_read_b128 v[{32+4*w}:{35+4*w}], v{vOPR} offset:{w*2048}")
        e(f"ds_read_b128 v[48:51], v{vMLR}"); e(f"ds_read_b128 v[52:55], v{vMLR} offset:16")
    wait_flags(F_O, 4, 28, extra=mg_extra)
    e("v_max3_f32 v56, v48, v50, v52"); e("v_max_f32 v56, v56, v54")
    for w in range(4): e(f"v_sub_f32 v{48+2*w}, v{48+2*w}, v56")
    for w in range(4): e(f"v_exp_f32 v{48+2*w}, v{48+2*w}")
    e.nop(1)
    e("v_mul_f32 v57, v48, v49")
    for m in range(4): e(f"v_mul_f32 v{32+m}, v{32+m}, v48")
    for w in range(1, 4): e(f"v_fmac_f32 v57, v{48+2*w}, v{49+2*w}")
    for m in range(4): e(f"v_fmac_f32 v{32+m}, v{36+m}, v50")
    e("v_rcp_f32 v58, v57"); e("v_log_f32 v59, v57")
    for w in range(2, 4):
        for m in range(4): e(f"v_fmac_f32 v{32+m}, v{32+4*w+m}, v{48+2*w}")
    e("v_add_f32 v62, v56, v59")
    for m in range(4): e(f"v_mul_f32 v{32+m}, v{32+m}, v58")
    e("v_cvt_pk_bf16_f32 v60, v32, v33"); e("v_cvt_pk_bf16_f32 v61, v34, v35")
    e(f"buffer_store_dwordx4 v[60:63], v{vMST}, s[28:31], s{sMS} offen sc1")
    e(f"ds_write_b32 v{vFLW}, v22 offset:{F_MP*4}")
    if o["stamps"]: e("s_memrealtime s[80:81]")

    e.label("L_e2")
    if o["dry"]: e(f"s_cmp_eq_u32 s{sDRY}, 3"); e("s_cbranch_scc1 L_dryret"); e.label("L_e2b")
    def woreads():
        for u in range(4):
            for tp in range(4):
                r = 40 + 8 * u + 2 * tp
                e(f"ds_read_b64_tr_b16 v[{r}:{r+1}], v{vWOA+u} offset:{tp*8192}")
    def wo_try():
        lskip = L("wo"); e("s_cmp_lg_u32 s59, 0"); e(f"s_cbranch_scc1 {lskip}")
        e(f"ds_read_b64 v[28:29], v21 offset:{F_WO*4}"); e("s_waitcnt lgkmcnt(0)")
        e("v_and_b32 v28, v28, v29"); e("v_cmp_ne_u32 vcc, 0, v28"); e(f"s_cbranch_vccz {lskip}")
        woreads(); e("s_mov_b32 s59, 1")
        e.label(lskip)
    for k in range(4): e(f"v_mov_b32 v{8+k}, s{60+k}")
    e("v_mov_b32 v10, v10") if False else None
    wait_flags(F_MP, 2, 28, lowprio=LOW)
    if o["dl2"]:
        if o["dry"]:
            lsl = L("sl"); e(f"s_cmp_lg_u32 s{sDRY}, 0"); e(f"s_cbranch_scc1 {lsl}"); e(f"s_sleep {o['dl2']}"); e.label(lsl)
        else: e(f"s_sleep {o['dl2']}")
    B2 = 128
    def mk_dat(n):
        b = B2 + 4 * n
        return dict(issue=lambda: e(f"buffer_load_dwordx4 v[{b}:{b+3}], v{vL16}, s[28:31], s{sE2} offen offset:{n*1024} sc1"),
                    check=lambda: e(f"v_cmp_ne_u32 vcc, s{sT}, v{b+3}"), mask=70 + 2 * n)
    def st23(sl):
        if not o["stamps"]: return
        if o["early"]:
            lsk = L("se"); e("s_cmp_lt_u32 s3, 2"); e(f"s_cbranch_scc1 {lsk}"); e(f"s_memrealtime s[{80+2*sl}:{81+2*sl}]"); e.label(lsk)
        else: e(f"s_memrealtime s[{80+2*sl}:{81+2*sl}]")
    st23(1)
    mpoll([mk_dat(0), mk_dat(1)], cnt=69, pre=wo_try, shadow=wo_try)
    if o["dry"]: e.label("L_e2c")
    st23(2)
    l0, l1 = B2 + 2, B2 + 6
    e(f"v_max_f32 v7, v{l0}, v{l1}")
    e("v_mov_b32 v20, 0xffff0000")
    e(f"v_lshlrev_b32 v16, 16, v{B2}"); e(f"v_and_b32 v17, v20, v{B2}")
    allreduce_xrow(7, 6, "v_max_f32")
    e(f"v_sub_f32 v{l0}, v{l0}, v7"); e(f"v_sub_f32 v{l1}, v{l1}, v7")
    e(f"v_lshlrev_b32 v18, 16, v{B2+1}"); e(f"v_and_b32 v19, v20, v{B2+1}")
    e(f"v_exp_f32 v{l0}, v{l0}"); e(f"v_exp_f32 v{l1}, v{l1}")
    e(f"v_lshlrev_b32 v24, 16, v{B2+4}"); e(f"v_and_b32 v25, v20, v{B2+4}"); e(f"v_lshlrev_b32 v26, 16, v{B2+5}"); e(f"v_and_b32 v27, v20, v{B2+5}")
    for i in range(4): e(f"v_mul_f32 v{12+i}, v{16+i}, v{l0}")
    e(f"v_add_f32 v5, v{l0}, v{l1}")
    for i in range(4): e(f"v_fmac_f32 v{12+i}, v{24+i}, v{l1}")
    e("v_mov_b32 v4, v7")
    allreduce_xrow(5, 6, "v_add_f32")
    reduce_scatter4(12)
    e(f"ds_write_b32 v{vOXW}, v12")
    e("s_lshl_b32 s57, s3, 3"); e(f"s_add_u32 s57, s57, {SX}"); e("v_mov_b32 v6, s57")
    e("s_mov_b64 exec, 1"); e("ds_write_b64 v6, v[4:5]"); e("s_mov_b64 exec, -1")
    e(f"ds_write_b32 v{vFLW}, v22 offset:{F_OX*4}")
    e(f"v_mov_b32 v6, {SX}")
    def ox_extra():
        e(f"ds_read_b128 v[12:15], v{vOXR}"); e("ds_read_b128 v[24:27], v6"); e("ds_read_b128 v[72:75], v6 offset:16")
    wait_flags(F_OX, 4, 28, extra=ox_extra)
    e("v_max3_f32 v7, v24, v26, v72"); e("v_max_f32 v7, v7, v74")
    e("v_sub_f32 v24, v24, v7"); e("v_sub_f32 v26, v26, v7"); e("v_sub_f32 v72, v72, v7"); e("v_sub_f32 v74, v74, v7")
    e("v_exp_f32 v24, v24"); e("v_exp_f32 v26, v26"); e("v_exp_f32 v72, v72"); e("v_exp_f32 v74, v74"); e.nop(1)
    e("v_mul_f32 v5, v24, v25"); e("v_mul_f32 v12, v12, v24"); e("v_fmac_f32 v5, v26, v27"); e("v_fmac_f32 v12, v13, v26")
    e("v_fmac_f32 v5, v72, v73"); e("v_fmac_f32 v12, v14, v72"); e("v_fmac_f32 v5, v74, v75"); e("v_fmac_f32 v12, v15, v74")
    e("v_rcp_f32 v5, v5"); e.nop(1); e("v_mul_f32 v12, v12, v5"); e.nop(2)
    e(f"v_mov_b32_dpp v13, v12 quad_perm:[1,0,3,2] {DPP}")
    e("v_cvt_pk_bf16_f32 v12, v12, v13"); e.nop(2)
    for m in range(8): e(f"v_mov_b32_dpp v{76+m}, v12 row_newbcast:{2*m} {DPP}")
    lw = L("wook"); e("s_cmp_lg_u32 s59, 0"); e(f"s_cbranch_scc1 {lw}")
    wait_flags(F_WO, 2, 28); woreads(); e("s_waitcnt lgkmcnt(0)")
    e.label(lw)
    AC = 136
    for k in range(2):
        for u in range(4):
            c = "0" if k == 0 else f"v[{AC+4*u}:{AC+4*u+3}]"
            e(f"v_mfma_f32_16x16x32_bf16 v[{AC+4*u}:{AC+4*u+3}], v[{76+4*k}:{79+4*k}], v[{40+8*u+4*k}:{43+8*u+4*k}], {c}")
    e("s_mov_b64 exec, 0xffff")
    e.nop(4)
    for i in range(4): e(f"v_perm_b32 v{4+i}, v{AC+4*i}, v{8+i}, s64")
    e(f"buffer_store_dwordx4 v[4:7], v{vE3V}, s[28:31], s{sE3} offen sc1")
    e("s_mov_b64 exec, -1")
    set_flag(F_PUB3)
    if o["stamps"] == 3 or o["early"]:
        lsk = L("st3"); e("s_cmp_lt_u32 s3, 2"); e(f"s_cbranch_scc1 {lsk}"); e("s_memrealtime s[86:87]"); e.label(lsk)
    elif o["stamps"]: e("s_memrealtime s[86:87]")
    e("s_waitcnt lgkmcnt(0)")
    if o["dry"]: e(f"s_cmp_lg_u32 s{sDRY}, 0"); e("s_cbranch_scc1 L_dryret")
    dump_stamps(cnts=([(4, 68), (5, 69)] if (o["stamps"] != 3 and not o["early"]) else None))
    e("s_endpgm")

    e.label("L_loader")
    stamp(1)
    if o["prio"]: e("s_setprio 2")
    e("s_sub_u32 s52, s3, 4")
    e("s_lshr_b32 s53, s48, 1"); e("s_lshl_b32 s53, s53, 24"); e("s_and_b32 s54, s48, 1"); e("s_lshl_b32 s54, s54, 4"); e("s_lshr_b32 s55, s49, 1"); e("s_add_u32 s54, s54, s55")
    e("s_lshl_b32 s54, s54, 15"); e("s_add_u32 s53, s53, s54"); e(f"s_add_u32 s53, s53, {KEY0*256}")
    e("s_lshl_b32 s54, s52, 14"); e("s_add_u32 s53, s53, s54")
    if o["gmap"]: e("s_lshr_b32 s55, s49, 2"); e("s_lshl_b32 s56, s48, 3"); e("s_add_u32 s55, s55, s56"); e("s_lshl_b32 s55, s55, 17")
    else: e("s_lshr_b32 s55, s49, 2"); e("s_lshl_b32 s55, s55, 3"); e("s_add_u32 s55, s55, s48"); e("s_lshl_b32 s55, s55, 17")
    e("s_and_b32 s56, s49, 3"); e("s_lshl_b32 s56, s56, 9"); e("s_add_u32 s55, s55, s56")
    e("s_lshl_b32 s56, s52, 16"); e("s_add_u32 s55, s55, s56")
    e("s_lshl_b32 s57, s52, 14")
    for m in range(4):
        e(f"v_add_u32 v4, {4*m}, v2"); e("v_xor_b32 v4, v4, v3"); e("v_lshlrev_b32 v4, 4, v4"); e("v_lshlrev_b32 v5, 8, v2"); e(f"v_add_u32 v{8+m}, v4, v5")
    for m in range(2):
        e(f"v_add_u32 v4, {4*m}, v2"); e("v_lshrrev_b32 v5, 1, v3"); e("v_xor_b32 v4, v4, v5"); e("v_lshlrev_b32 v4, 1, v4"); e("v_and_b32 v5, 1, v3"); e("v_or_b32 v4, v4, v5")
        e("v_lshlrev_b32 v4, 4, v4"); e("v_lshlrev_b32 v5, 8, v2"); e(f"v_add_u32 v{12+m}, v4, v5")
    e("v_lshrrev_b32 v6, 5, v0"); e("v_and_b32 v7, 31, v0")
    for m in range(4):
        e("v_lshlrev_b32 v4, 2, v6"); e(f"v_add_u32 v4, {m}, v4"); e("v_lshrrev_b32 v5, 1, v7"); e("v_xor_b32 v4, v4, v5"); e("v_lshlrev_b32 v4, 1, v4")
        e("v_and_b32 v5, 1, v7"); e("v_or_b32 v4, v4, v5"); e("v_lshlrev_b32 v4, 4, v4"); e("v_lshlrev_b32 v5, 11, v6"); e(f"v_add_u32 v{16+m}, v4, v5")
    e("s_lshl_b32 s58, s52, 2"); e("v_add_u32 v20, s58, v21")
    e("s_waitcnt lgkmcnt(0)")
    srd(36, 6, 67108864); srd(40, 8, 67108864); srd(44, 12, 8388608)
    if o["stamps"]: srd(28, 26, 268435456)
    if o["lbar"]: e("s_barrier")
    if o["kgate"]: wait_flags(F_KG, 1, 24)
    stamp(2)
    W = o["win"]; WKV = o["winkv"]
    seq = [("K", m) for m in range(16)] + [("V", m) for m in range(16)] + [("W", m) for m in range(16)]
    st = dict(landed=-1)
    def land(upto):
        for x in range(st["landed"] + 1, upto + 1):
            if x == 15: set_flag(F_K, 20); stamp(3)
            if x == 31: set_flag(F_V, 20); stamp(4)
        st["landed"] = max(st["landed"], upto)
    for i, (kind, m) in enumerate(seq):
        w_ = WKV if i < 32 else W
        skipwin = False
        if o["vi"] < 16 and i == 16 + o["vi"]: set_flag(F_VI, 20)
        if o["vh"] < 16 and i == 16 + o["vh"]:
            if st["landed"] < 15: e(f"s_waitcnt vmcnt({i - 16})"); land(15)
            set_flag(F_VI, 20)
            wait_flags(F_P1, 4, 24)
        if i == 32:
            assert st["landed"] >= 15
            if o["vh"] >= 16:
                if o["vi"] >= 16: set_flag(F_VI, 20)
                if o["wpre"]: wait_flags(F_P1, 4, 24)
            if not o["wpre"]:
                e("s_waitcnt vmcnt(0)"); land(31)
                wait_flags(F_QF, 4, 24)
        if o["wpre"] and 32 <= i < 32 + o["wpre"]:
            skipwin = True
        if o["wpre"] and i == 32 + o["wpre"]:
            e(f"s_waitcnt vmcnt({o['wpre']})"); land(31)
            wait_flags(F_QF, 4, 24)
        if not skipwin and i - st["landed"] - 1 > w_ - 1:
            e(f"s_waitcnt vmcnt({w_-1})"); land(i - w_)
        if kind == "K":
            e(f"s_add_u32 m0, s57, {KL + m*1024}"); e(f"s_add_u32 s58, s53, {m*1024}")
            e(f"buffer_load_dwordx4 v{8 + (m & 3)}, s[36:39], s58 offen{NTKV} lds")
        elif kind == "V":
            e(f"s_add_u32 m0, s57, {VL + m*1024}"); e(f"s_add_u32 s58, s53, {m*1024}")
            e(f"buffer_load_dwordx4 v{12 + (m & 1)}, s[40:43], s58 offen{NTKV} lds")
        else:
            e(f"s_add_u32 m0, s57, {WO + m*1024}"); e(f"s_add_u32 s58, s55, {m*4096}")
            e(f"buffer_load_dwordx4 v{16 + ((m >> 1) & 3)}, s[44:47], s58 offen{NT} lds")
    e("s_waitcnt vmcnt(0)"); set_flag(F_WO, 20); stamp(5)
    e("s_waitcnt lgkmcnt(0)")
    dump_stamps()
    e("s_endpgm")

    e.label("L_final")
    tagbytes(60)
    e("s_mov_b32 s64, 0x07060500")
    for k in range(4): e(f"v_mov_b32 v{8+k}, s{60+k}")
    e("v_lshlrev_b32 v24, 2, v3"); e(f"v_add_u32 v24, {YP}, v24")
    wait_flags(F_G, 1, 28, extra=lambda: [e(f"ds_read_b32 v{96+i}, v24 offset:{64*i}") for i in range(4)])
    for k in range(4): e(f"v_perm_b32 v{4+k}, v{96+k}, v{8+k}, s64")
    e("s_lshl_b32 s56, s2, 8"); e(f"s_add_u32 s56, s56, {GB}")
    e("v_lshlrev_b32 v24, 4, v0")
    e("s_mov_b64 exec, 0xffff")
    e("buffer_store_dwordx4 v[4:7], v24, s[28:31], s56 offen sc1")
    e("s_mov_b64 exec, -1")
    stamp(4)
    e("s_lshr_b32 s53, s49, 3"); e("s_lshl_b32 s53, s53, 3"); e("s_add_u32 s53, s53, s48")
    e("s_and_b32 s54, s49, 7")
    e("s_lshr_b32 s55, s53, 1"); e("s_lshl_b32 s55, s55, 6"); e("s_and_b32 s56, s53, 1"); e("s_lshl_b32 s56, s56, 3"); e("s_add_u32 s55, s55, s56"); e("s_add_u32 s55, s55, s54")
    e("v_lshlrev_b32 v25, 5, v2"); e("s_lshl_b32 s55, s55, 1")
    e("buffer_load_ushort v12, v25, s[32:35], s55 offen")
    e("v_lshlrev_b32 v26, 2, v3"); e("v_add_u32 v26, v26, v2"); e("v_lshlrev_b32 v26, 8, v26")
    e("s_lshr_b32 s56, s53, 1"); e("s_lshl_b32 s56, s56, 12"); e("s_and_b32 s57, s53, 1"); e("s_lshl_b32 s57, s57, 3"); e("s_add_u32 s57, s57, s54"); e("s_lshl_b32 s57, s57, 4")
    e("s_add_u32 s57, s57, s56"); e(f"s_add_u32 s57, s57, {GB}")
    e("v_lshlrev_b32 v24, 7, v0")
    e("s_lshl_b32 s56, s53, 13"); e("s_lshl_b32 s58, s54, 4"); e("s_add_u32 s56, s56, s58"); e(f"s_add_u32 s56, s56, {FB}")
    srd(36, 24, 2048)
    if o["dry"]: e(f"s_cmp_lg_u32 s{sDRY}, 0"); e("s_cselect_b32 s38, 0, s38")
    wait_flags(F_MP, 2, 28, sleep=4)
    mpoll([dict(issue=lambda: e("buffer_load_dwordx4 v[32:35], v26, s[28:31], s57 offen sc1"), check=lambda: chk4(32, 60), mask=70, init=(0x000f000f, 0x000f000f))])
    reduce_scatter4(32); e("v_mov_b32 v96, v32"); e.nop(2)
    e(f"v_add_f32_dpp v96, v96, v96 quad_perm:[1,0,3,2] {DPP}"); e.nop(2)
    e(f"v_add_f32_dpp v96, v96, v96 quad_perm:[2,3,0,1] {DPP}")
    bf16r(96, 96)
    e("s_and_b32 s59, s59, 0xffff"); e("s_lshl_b32 s59, s59, 16")
    e("v_add_f32 v96, s59, v96"); bf16r(96, 96)
    e(f"v_mul_f32 v97, {f32bits(-math.log2(math.e)):#x}, v96"); e("v_exp_f32 v97, v97"); e.nop(1); e("v_add_f32 v97, 1.0, v97"); e("v_rcp_f32 v97, v97"); e.nop(1)
    e("v_mul_f32 v96, v96, v97"); bf16r(96, 96)
    e("v_lshlrev_b32 v14, 16, v12")
    stamp(1)
    wait_flags(F_PUB3, 1, 28, sleep=1)
    if o["prio"]:
        if o["dry"]:
            lpr = L("pr"); e(f"s_cmp_lg_u32 s{sDRY}, 0"); e(f"s_cbranch_scc1 {lpr}"); e("s_setprio 3"); e.label(lpr)
        else: e("s_setprio 3")
    if o["dl3"]:
        if o["dry"]:
            lsl3 = L("sl"); e(f"s_cmp_lg_u32 s{sDRY}, 0"); e(f"s_cbranch_scc1 {lsl3}"); e(f"s_sleep {o['dl3']}"); e.label(lsl3)
        else: e(f"s_sleep {o['dl3']}")
    stamp(5)
    mpoll([dict(issue=lambda: e("buffer_load_dwordx4 v[28:31], v24, s[28:31], s56 offen sc1"), check=lambda: chk4(28, 100), mask=70)], cnt=69)
    stamp(6)
    reduce_scatter4(28)
    allreduce_row16(28, "v_add_f32")
    bf16r(28, 28)
    e("v_mul_f32 v28, v28, v96"); bf16r(28, 28)
    e("v_add_f32 v28, v28, v14")
    e("v_cvt_pk_bf16_f32 v28, v28, v28")
    e("s_mov_b32 exec_lo, 0x00010001"); e("s_mov_b32 exec_hi, 0x00010001")
    e("buffer_store_short v28, v25, s[36:39], s55 offen")
    l = L("ne"); e("s_cmp_lg_u32 s2, 0"); e(f"s_cbranch_scc1 {l}")
    e("s_mov_b64 exec, 1")
    e(f"s_mul_i32 s57, s{sT}, {TINV:#x}"); e("v_mov_b32 v20, s57"); e("v_mov_b32 v23, 0")
    e("buffer_store_dword v20, v23, s[28:31], 0 offen sc1")
    e.label(l)
    e("s_mov_b64 exec, -1")
    stamp(7)
    dump_stamps(cnts=[(2, 69)], final=True)
    e("s_endpgm")
    if o["pages"]: e(".p2align 12")
    e.label("L_bbranch")
    if o["prio"]: e(f"s_setprio {o['bprio']}")
    e(f"v_mov_b32 v23, {LNS}")
    k1 = -2.0 * math.sqrt(2.0 / math.pi) * math.log2(math.e); k2 = k1 * 0.044715
    e(f"v_mov_b32 v92, {f32bits(k1):#x}"); e(f"v_mov_b32 v93, {f32bits(k2):#x}")
    wait_flags(F_LN2, 1, 28, extra=lambda: (e("ds_read_b128 v[32:35], v23"), e(f"ds_read_b32 v29, v21 offset:{F_T*4}")), sleep=2)
    e(f"v_readfirstlane_b32 s{sT}, v29")
    e("s_waitcnt vmcnt(0)")
    stamp(1)
    for k in range(8): e(f"v_lshlrev_b32 v{40+k}, 16, v{40+k}")
    for n in range(4): e(f"v_lshlrev_b32 v{48+2*n}, 16, v{48+2*n}")
    e("v_cmp_gt_u32 vcc, 32, v0"); e("v_mov_b32 v94, 1.0"); e("v_mov_b32 v95, 1.0"); e("v_cndmask_b32 v54, 0, v54, vcc")
    e("v_lshlrev_b32 v14, 16, v12")
    e("v_sub_f32 v16, v14, v32"); bf16r(16, 16); e("v_mul_f32 v16, v16, v33"); bf16r(16, 16)
    e("v_sub_f32 v16, v16, v34"); bf16r(16, 16); e("v_mul_f32 v16, v16, v35"); bf16r(16, 16)
    ACCB = 128
    for half in range(2):
        e.nop(1)
        for k in range(16): e(f"v_readlane_b32 s{64+k}, v16, {16*half+k}")
        e.nop(2)
        NI = o["bilp"]
        for k in range(0, 16, 2 * NI):
            dps = [16 * half + k + 2 * q_ for q_ in range(NI)]
            for n in range(4):
                R = range(NI)
                U = [f"v[{100+6*q_}:{101+6*q_}]" for q_ in R]; Z = [f"v[{102+6*q_}:{103+6*q_}]" for q_ in R]; G = [f"v[{104+6*q_}:{105+6*q_}]" for q_ in R]
                WB = f"v[{40+2*n}:{41+2*n}]"; W2 = f"v[{48+2*n}:{49+2*n}]"
                for q_, d in enumerate(dps): e(f"v_pk_fma_f32 {U[q_]}, s[{64+(d&15)}:{65+(d&15)}], {WB}, {WB} op_sel:[0,0,1] op_sel_hi:[1,0,1]")
                for q_ in R: e(f"v_pk_mul_f32 {Z[q_]}, {U[q_]}, {U[q_]}")
                for q_ in R: e(f"v_pk_fma_f32 {Z[q_]}, {Z[q_]}, v[92:93], v[92:93] op_sel:[0,1,0] op_sel_hi:[1,1,0]")
                for q_ in R: e(f"v_pk_mul_f32 {Z[q_]}, {Z[q_]}, {U[q_]}")
                for q_ in R: e(f"v_pk_mul_f32 {G[q_]}, {U[q_]}, {W2} op_sel_hi:[1,0]")
                for q_ in R: e(f"v_exp_f32 v{102+6*q_}, v{102+6*q_}"); e(f"v_exp_f32 v{103+6*q_}, v{103+6*q_}")
                e.nop(1)
                for q_ in R: e(f"v_pk_add_f32 {Z[q_]}, {Z[q_]}, v[94:95]")
                for q_ in R: e(f"v_rcp_f32 v{102+6*q_}, v{102+6*q_}"); e(f"v_rcp_f32 v{103+6*q_}, v{103+6*q_}")
                e.nop(1)
                for q_, d in enumerate(dps):
                    A_ = f"v[{ACCB+d}:{ACCB+d+1}]"
                    if n == 0: e(f"v_pk_mul_f32 {A_}, {G[q_]}, {Z[q_]}")
                    else: e(f"v_pk_fma_f32 {A_}, {G[q_]}, {Z[q_]}, {A_}")
    stamp(3)
    e.nop(2)
    for k in range(16):
        e(f"v_permlane32_swap_b32 v{ACCB+k}, v{ACCB+16+k}")
    for k in range(16): e(f"v_add_f32 v{ACCB+k}, v{ACCB+k}, v{ACCB+16+k}")
    e.nop(1)
    for k in range(8): e(f"v_permlane16_swap_b32 v{ACCB+k}, v{ACCB+8+k}")
    for k in range(8): e(f"v_add_f32 v{ACCB+k}, v{ACCB+k}, v{ACCB+8+k}")
    for sh in (8, 4, 2, 1):
        e.nop(1)
        for k in range(8): e(f"v_add_f32_dpp v{ACCB+k}, v{ACCB+k}, v{ACCB+k} row_ror:{sh} {DPP}")
    e("s_lshl_b32 s57, s52, 7"); e(f"s_add_u32 s57, s57, {YP}"); e("v_lshlrev_b32 v24, 5, v2"); e("v_add_u32 v24, s57, v24")
    e("s_mov_b32 exec_lo, 0x00010001"); e("s_mov_b32 exec_hi, 0x00010001")
    e(f"ds_write_b128 v24, v[{ACCB}:{ACCB+3}]"); e(f"ds_write_b128 v24, v[{ACCB+4}:{ACCB+7}] offset:16")
    e("s_mov_b64 exec, -1")
    e("s_cmp_eq_u32 s52, 0"); e("s_cbranch_scc1 L_final")
    set_flag(F_G)
    e("s_waitcnt lgkmcnt(0)")
    if o["dry"] and o["stamps"] != 3:
        e(f"s_mov_b32 s{sDRY}, 1"); e("s_mov_b32 s30, 0"); e(f"s_mov_b32 s{sT}, 0"); e(f"v_mov_b32 v21, {DFL}")
        e("s_branch L_final")
    else:
        dump_stamps()
        e("s_endpgm")
    e.label("L_abort")
    e("s_endpgm")
    e.label("L_exit")

    probs = check(a.lines)
    body = a.text()
    nv = 224
    PAD = ".p2align 12\n.fill 832, 4, 0xbf810000\n" if o["pgal"] else ""
    hdr = open("cdna_kernels/" + KN + ".s.ref").read().split("; Override launch")[0]
    out = hdr + f"; Override launch geometry by editing the next line.\n; @launch grid=(256,1,1) block=(512,1,1) lds={LDS_BYTES}\n" + DOC.lstrip("\n")
    out += f""".amdgcn_target "amdgcn-amd-amdhsa--gfx950"
.text
.globl {KN}_kernel
{PAD}.p2align 8
.type {KN}_kernel,@function
{KN}_kernel:
{body}
    s_endpgm
.section .rodata,"a"
.p2align 6
.amdhsa_kernel {KN}_kernel
  .amdhsa_next_free_vgpr {nv}
  .amdhsa_next_free_sgpr 100
  .amdhsa_accum_offset {nv}
  .amdhsa_group_segment_fixed_size 0
  .amdhsa_kernarg_size 104
  .amdhsa_user_sgpr_count 2
  .amdhsa_user_sgpr_kernarg_segment_ptr 1
  .amdhsa_system_sgpr_workgroup_id_x 1
.end_amdhsa_kernel
"""
    return out, probs

if __name__ == "__main__":
    opt = {}
    name = sys.argv[1]
    for kv in sys.argv[2:]:
        k, v = kv.split("="); opt[k] = int(v, 0)
    s, probs = gen(opt)
    open(name, "w").write(s)
    for p in probs: print("HAZARD:", p)
```

```python
import sys, math, struct
from asmlib import Asm, check
KN = "recurrent_scan__sliding_block_cached__mixer_token_mlp__decode"
def f32bits(x): return struct.unpack("<I", struct.pack("<f", x))[0]

DEF = dict(stamps=0, nt=1, win=12, winkv=16, spinmax=1 << 20, prio=1, dl2=24, dl3=18, local=1, fb1=12, slp=1, bprio=1, bearly=1, bilp=2, wpre=3, cpf=1, tlb=0, early=0, vh=16, dl1=0, ntkv=-1, wqun=1, vi=16, gmap=1, bafter=0, lbar=0, pgal=1, pages=1, kgate=0)

QB, QL, GB, OB, FB, STB = 0x10000, 0x20000, 0x30000, 0x40000, 0x100000, 0x200000
WQ, KL, VL, WO = 0, 32768, 65536, 98304
QF = 131072; OP = QF + 4096; ML = OP + 8192; FL = ML + 128; OX = FL + 128; SX = OX + 1024
XN = SX + 64; LNS = XN + 512; YP = LNS + 16; STL = YP + 256; LDS_BYTES = STL + 256
F_QF, F_O, F_OX, F_K, F_V, F_WO, F_VI, F_MP, F_G, F_XN, F_LN2, F_T, F_QPUB, F_PUB3, F_P1 = 0, 4, 8, 12, 14, 16, 18, 20, 22, 23, 24, 25, 26, 27, 28

F_KG = (SX + 32 - FL) // 4
KEY0 = 61440
TMUL = 0x9e3779b1
TINV = pow(TMUL, -1, 1 << 32)
vE1V, vE1L, vQFR, vKA, vVA, vOPW, vMLW, vOPR, vMLR, vMST, vL16, vWOA, vE3V, vOXW, vOXR, vFLW = 192, 194, 196, 197, 201, 209, 210, 211, 212, 213, 214, 216, 220, 221, 222, 223
vMASK = 112
sMS, sE2, sE3, sE1, sE1G = 40, 41, 42, 43, 44

DOC = r"""
; ---------------------------------------------------------------------------------------------------------------
; ---------------------------------------------------------------------------------------------------------------
"""

def gen(opt):
    o = dict(DEF); o.update(opt)
    assert o["winkv"] <= 16
    NT = " nt" if o["nt"] else ""
    NTKV = NT if o["ntkv"] < 0 else (" nt" if o["ntkv"] else "")
    a = Asm(); e = a
    uid = [0]
    def L(p):
        uid[0] += 1; return f"L_{p}_{uid[0]}"
    sT, sCNT = 50, 51
    DPP = "row_mask:0xf bank_mask:0xf"
    def srd(d, lo, size):
        e(f"s_mov_b32 s{d}, s{lo}"); e(f"s_and_b32 s{d+1}, s{lo+1}, 0xffff"); e(f"s_mov_b32 s{d+2}, {size}"); e(f"s_mov_b32 s{d+3}, 0x20000")
    def stamp(k):
        if o["stamps"]: e(f"s_memrealtime s[{80+2*k}:{81+2*k}]")
    def dump_stamps(cnts=None, final=False):
        if not o["stamps"]: return
        if o["stamps"] == 3:
            e("s_waitcnt lgkmcnt(0)")
            e("s_mov_b64 exec, -1")
            e("s_lshl_b32 s76, s3, 5"); e(f"s_add_u32 s76, s76, {STL}"); e("v_mov_b32 v20, s76")
            for k in range(8): e(f"v_mov_b32 v{4+k}, s{80+2*k}")
            e("ds_write_b128 v20, v[4:7]"); e("ds_write_b128 v20, v[8:11] offset:16"); e("s_waitcnt lgkmcnt(0)")
            if final:
                e("s_sleep 20")
                e("s_load_dwordx2 s[76:77], s[0:1], 88"); e("s_waitcnt lgkmcnt(0)")
                e("s_mov_b32 s72, s76"); e("s_and_b32 s73, s77, 0xffff"); e("s_mov_b32 s74, 256"); e("s_mov_b32 s75, 0x20000")
                e(f"v_mov_b32 v20, {STL}"); e("v_mov_b32 v23, 0"); e("s_mov_b64 exec, 1")
                sel = [(2,0,1),(2,0,0),(4,1,0),(0,3,0),(0,5,0),(4,4,0),(2,6,0),(2,7,0),(0,0,0),(4,5,0),(2,2,0),(2,3,0),(6,4,0),(6,6,0),(6,7,0),(1,1,0)]
                if o["early"]: sel = [(2,0,1),(2,0,0),(0,4,0),(1,4,0),(2,4,0),(4,6,0),(7,4,0),(4,1,0),(1,2,0),(1,1,0),(0,2,0),(0,3,0),(0,5,0),(4,3,0),(4,4,0),(6,7,0)]
                for slot, (w, k, inv) in enumerate(sel):
                    e(f"ds_read_b32 v4, v20 offset:{w*32+k*4}"); e("s_waitcnt lgkmcnt(0)")
                    if inv: e("v_not_b32 v4, v4")
                    e(f"buffer_atomic_umax v4, v23, s[72:75], 0 offen offset:{4*slot}")
                e("s_waitcnt vmcnt(0)")
            return
        e("s_waitcnt lgkmcnt(0)")
        for (slot, sreg) in (cnts or []):
            e(f"s_mov_b32 s{80+2*slot}, s{sreg}"); e(f"s_mov_b32 s{81+2*slot}, 0")
        e("s_mov_b64 exec, -1")
        e("s_waitcnt vmcnt(0)")
        e("s_lshl_b32 s76, s2, 3"); e("s_add_u32 s76, s76, s3"); e("s_lshl_b32 s76, s76, 6"); e(f"s_add_u32 s76, s76, {STB}")
        for k in range(8):
            e(f"v_mov_b32 v{2*k+4}, s{80+2*k}"); e(f"v_mov_b32 v{2*k+5}, s{81+2*k}")
        e("v_mov_b32 v20, 0")
        e("s_mov_b64 exec, 1")
        for k in range(4):
            e(f"buffer_store_dwordx4 v[{4*k+4}:{4*k+7}], v20, s[28:31], s76 offen offset:{16*k}")
        e("s_waitcnt vmcnt(0)")
    def spin_tick():
        e(f"s_sub_u32 s{sCNT}, s{sCNT}, 1"); e("s_cbranch_scc1 L_abort")
    def and_flags(vt, n):
        if n == 2: e(f"v_and_b32 v{vt}, v{vt}, v{vt+1}")
        if n == 4:
            e(f"v_and_b32 v{vt}, v{vt}, v{vt+1}"); e(f"v_and_b32 v{vt+2}, v{vt+2}, v{vt+3}"); e(f"v_and_b32 v{vt}, v{vt}, v{vt+2}")
    def read_flags(first, n, vt):
        if n == 1: e(f"ds_read_b32 v{vt}, v21 offset:{first*4}")
        elif n == 2: e(f"ds_read_b64 v[{vt}:{vt+1}], v21 offset:{first*4}")
        else: e(f"ds_read_b128 v[{vt}:{vt+3}], v21 offset:{first*4}")
    def wait_flags(first, n, vt, extra=None, sleep=0, lowprio=None):
        if lowprio and o["prio"]: e(f"s_setprio {lowprio[0]}")
        l = L("wf"); e.label(l)
        read_flags(first, n, vt)
        if extra: extra()
        spin_tick()
        if sleep: e(f"s_sleep {sleep}")
        e("s_waitcnt lgkmcnt(0)")
        and_flags(vt, n)
        e(f"v_cmp_ne_u32 vcc, 0, v{vt}")
        e(f"s_cbranch_vccz {l}")
        if lowprio and o["prio"]: e(f"s_setprio {lowprio[1]}")
    def set_flag(idx, vaddr=21):
        e(f"ds_write_b32 v{vaddr}, v22 offset:{idx*4}")
    def bf16r(dst, src):
        e(f"v_cvt_pk_bf16_f32 v{dst}, v{src}, v{src}"); e(f"v_lshlrev_b32 v{dst}, 16, v{dst}")
    def allreduce_row16(v, op, shs=(8, 4, 2, 1)):
        for sh in shs:
            e.nop(2); e(f"{op}_dpp v{v}, v{v}, v{v} row_ror:{sh} {DPP}")
    def allreduce_xrow(v, t, op):
        e(f"v_mov_b32 v{t}, v{v}"); e.nop(2); e(f"v_permlane32_swap_b32 v{v}, v{t}"); e(f"{op} v{v}, v{v}, v{t}")
        e(f"v_mov_b32 v{t}, v{v}"); e.nop(2); e(f"v_permlane16_swap_b32 v{v}, v{t}"); e(f"{op} v{v}, v{v}, v{t}")
    def reduce_scatter4(b):
        e(f"v_permlane32_swap_b32 v{b}, v{b+2}"); e(f"v_permlane32_swap_b32 v{b+1}, v{b+3}")
        e(f"v_add_f32 v{b}, v{b}, v{b+2}"); e(f"v_add_f32 v{b+1}, v{b+1}, v{b+3}"); e.nop(2)
        e(f"v_permlane16_swap_b32 v{b}, v{b+1}"); e(f"v_add_f32 v{b}, v{b}, v{b+1}")
    def ln_stats(xf, t0, vm, vrs):
        s, t = t0, t0 + 1
        e(f"v_add_f32 v{s}, v{xf}, v{xf+1}"); e(f"v_add_f32 v{t}, v{xf+2}, v{xf+3}")
        for k in range(4, 16, 2):
            e(f"v_add_f32 v{s}, v{s}, v{xf+k}"); e(f"v_add_f32 v{t}, v{t}, v{xf+k+1}")
        e(f"v_add_f32 v{s}, v{s}, v{t}")
        allreduce_row16(s, "v_add_f32"); allreduce_xrow(s, t, "v_add_f32")
        e(f"v_mul_f32 v{s}, {f32bits(1/1024):#x}, v{s}")
        e(f"v_sub_f32 v{t}, v{xf}, v{s}"); e(f"v_sub_f32 v{t0+3}, v{xf+1}, v{s}")
        e(f"v_mul_f32 v{t0+2}, v{t}, v{t}"); e(f"v_mul_f32 v{t0+4}, v{t0+3}, v{t0+3}")
        for k in range(2, 16, 2):
            e(f"v_sub_f32 v{t}, v{xf+k}, v{s}"); e(f"v_sub_f32 v{t0+3}, v{xf+k+1}, v{s}")
            e(f"v_fmac_f32 v{t0+2}, v{t}, v{t}"); e(f"v_fmac_f32 v{t0+4}, v{t0+3}, v{t0+3}")
        e(f"v_add_f32 v{t0+2}, v{t0+2}, v{t0+4}")
        allreduce_row16(t0 + 2, "v_add_f32"); allreduce_xrow(t0 + 2, t, "v_add_f32")
        e(f"v_mul_f32 v{t0+2}, {f32bits(1/1024):#x}, v{t0+2}")
        bf16r(vm, s)
        bf16r(t, t0 + 2)
        e(f"v_add_f32 v{t}, {f32bits(1e-5):#x}, v{t}")
        bf16r(t, t)
        e(f"v_sqrt_f32 v{t}, v{t}"); e.nop(1)
        bf16r(t, t)
        e(f"v_rcp_f32 v{vrs}, v{t}"); e.nop(1)
    def unpack(dlo, dhi, src):
        e(f"v_lshlrev_b32 v{dlo}, 16, v{src}"); e(f"v_and_b32 v{dhi}, 0xffff0000, v{src}")
    def tagbytes(s0):
        for k in range(4):
            e(f"s_lshr_b32 s{s0+k}, s{sT}, {8*k}"); e(f"s_and_b32 s{s0+k}, s{s0+k}, 0xff")
    def chk4(b, t):
        e(f"v_xor_b32 v{t}, s60, v{b}"); e(f"v_bitop3_b32 v{t}, v{t}, v{b+1}, s61 bitop3:0xf6"); e(f"v_bitop3_b32 v{t}, v{t}, v{b+2}, s62 bitop3:0xf6")
        e(f"v_bitop3_b32 v{t}, v{t}, v{b+3}, s63 bitop3:0xf6"); e(f"v_and_b32 v{t}, 0xff, v{t}"); e(f"v_cmp_ne_u32 vcc, 0, v{t}")
    def mpoll(loads, cnt=None, pre=None, shadow=None):
        top = L("mp"); ent = L("me")
        for ld in loads:
            ini = ld.get('init', -1); m = ld['mask']
            if ini == -1: e(f"s_mov_b64 s[{m}:{m+1}], -1")
            else: e(f"s_mov_b32 s{m}, {ini[0]:#x}"); e(f"s_mov_b32 s{m+1}, {ini[1]:#x}")
        if cnt: e(f"s_mov_b32 s{cnt}, 0")
        for ld in loads:
            m = ld['mask']
            if ld.get('init', -1) != -1: e(f"s_mov_b64 exec, s[{m}:{m+1}]")
            ld['issue']()
            if ld.get('init', -1) != -1: e("s_mov_b64 exec, -1")
        if shadow: shadow()
        e(f"s_branch {ent}")
        e.label(top)
        spin_tick()
        if pre: pre()
        for ld in loads:
            sk = L("sk"); m = ld['mask']
            e(f"s_mov_b64 exec, s[{m}:{m+1}]"); e(f"s_cbranch_execz {sk}"); ld['issue'](); e.label(sk)
        e("s_mov_b64 exec, -1")
        e.label(ent)
        if cnt: e(f"s_add_u32 s{cnt}, s{cnt}, 1")
        e("s_waitcnt vmcnt(0)")
        e("s_mov_b64 s[66:67], 0")
        for ld in loads:
            sk = L("sc"); m = ld['mask']
            e(f"s_mov_b64 exec, s[{m}:{m+1}]"); e(f"s_cbranch_execz {sk}")
            ld['check']()
            if ld.get('take'):
                e("s_andn2_b64 exec, exec, vcc"); sk2 = L("sd"); e(f"s_cbranch_execz {sk2}"); ld['take'](); e.label(sk2)
            e(f"s_mov_b64 s[{m}:{m+1}], vcc"); e("s_or_b64 s[66:67], s[66:67], vcc")
            e.label(sk)
        e("s_mov_b64 exec, -1")
        e("s_cmp_lg_u64 s[66:67], 0"); e(f"s_cbranch_scc1 {top}")
    LOW = (0, 3)

    e("s_cmp_ge_u32 s2, 256"); e("s_cbranch_scc1 L_exit")
    stamp(0)
    e("s_load_dwordx16 s[4:19], s[0:1], 0")
    e("s_load_dwordx4 s[20:23], s[0:1], 64")
    e("s_load_dwordx2 s[24:25], s[0:1], 80")
    e("s_load_dwordx2 s[26:27], s[0:1], 96")
    e("v_lshrrev_b32 v1, 6, v0"); e("v_and_b32 v0, 63, v0")
    e("s_and_b32 s48, s2, 7")
    e("v_readfirstlane_b32 s3, v1")
    e("s_lshr_b32 s49, s2, 3")
    e("s_lshl_b32 s46, s48, 3"); e("s_and_b32 s47, s49, 7"); e("s_add_u32 s46, s46, s47"); e("s_lshr_b32 s47, s49, 3")
    def common_init():
        e("v_lshrrev_b32 v2, 4, v0"); e("v_and_b32 v3, 15, v0")
        e(f"s_mov_b32 s{sCNT}, {o['spinmax']}")
        e(f"v_mov_b32 v21, {FL}"); e("v_mov_b32 v22, 1")
    e("s_cmp_eq_u32 s3, 0"); e("s_cbranch_scc0 L_not0")
    e("v_lshrrev_b32 v24, 3, v0"); e("v_and_b32 v25, 7, v0"); e("v_lshlrev_b32 v25, 4, v25")
    e("v_bfe_u32 v27, v24, 1, 2"); e("v_lshlrev_b32 v27, 5, v27"); e("v_xor_b32 v25, v25, v27")
    e("v_lshl_add_u32 v24, v24, 13, v25")
    e("s_lshl_b32 s56, s47, 21"); e("s_lshl_b32 s57, s46, 7"); e("s_add_u32 s56, s56, s57")
    e(f"s_mov_b32 m0, {WQ}"); e("s_mov_b32 s57, 0")
    e("s_mov_b32 s38, 8388608"); e("s_mov_b32 s39, 0x20000")
    e("s_waitcnt lgkmcnt(0)")
    e("s_mov_b32 s36, s10"); e("s_and_b32 s37, s11, 0xffff")
    UN = o["wqun"]
    e.label("L_wqloop")
    for u_ in range(UN):
        e(f"buffer_load_dwordx4 v24, s[36:39], s56 offen{NT} lds")
        e("s_add_u32 m0, m0, 1024"); e(f"s_add_u32 s56, s56, {8*8192}")
    if UN < 32:
        e(f"s_add_u32 s57, s57, {UN}"); e("s_cmp_lt_u32 s57, 32"); e("s_cbranch_scc1 L_wqloop")
    if o["early"]: stamp(4)
    common_init()
    e("s_barrier")
    e("s_branch L_qproj")
    e.label("L_not0")
    common_init()
    e("s_cmp_eq_u32 s3, 1"); e("s_cbranch_scc0 L_not1")
    e("v_lshlrev_b32 v23, 5, v0"); e("v_mov_b32 v24, 0")
    e("s_waitcnt lgkmcnt(0)")
    srd(28, 26, 268435456); srd(32, 4, 2048)
    e("buffer_load_dwordx4 v[4:7], v23, s[32:35], 0 offen")
    e("buffer_load_dwordx4 v[8:11], v23, s[32:35], 0 offen offset:16")
    e("buffer_load_dword v20, v24, s[28:31], 0 offen sc1")
    if o["early"]: stamp(4)
    e("s_barrier")
    e("s_branch L_ln")
    e.label("L_not1")
    e("s_cmp_ge_u32 s3, 6"); e("s_cbranch_scc1 L_bearly")
    e("s_cmp_ge_u32 s3, 4"); e("s_cbranch_scc1 L_learly")
    if o["cpf"]:
        lc = L("cpf"); e("s_cmp_eq_u32 s3, 2"); e(f"s_cbranch_scc0 {lc}")
        e("s_getpc_b64 s[54:55]")
        e.label("L_pc")
        e(f"s_sub_u32 s54, s54, L_pc-{KN}_kernel"); e("s_subb_u32 s55, s55, 0")
        e("s_mul_i32 s56, s49, 6"); e("v_add_u32 v24, s56, v0"); e("v_lshlrev_b32 v24, 7, v24")
        e(f"s_mov_b32 s56, L_exit-{KN}_kernel")
        e("v_cmp_gt_u32 vcc, s56, v24")
        e("s_and_b64 exec, vcc, 0x3f")
        lc2 = L("cpf"); e(f"s_cbranch_execz {lc2}")
        e("global_load_dword v150, v24, s[54:55]")
        e.label(lc2)
        e("s_mov_b64 exec, -1")
        e.label(lc)
    if o["tlb"]:
        lt = L("tlb"); e("s_cmp_eq_u32 s3, 3"); e(f"s_cbranch_scc0 {lt}")
        e("s_lshr_b32 s53, s48, 1"); e("s_lshl_b32 s53, s53, 24"); e("s_and_b32 s54, s48, 1"); e("s_lshl_b32 s54, s54, 4"); e("s_lshr_b32 s55, s49, 1"); e("s_add_u32 s54, s54, s55")
        e("s_lshl_b32 s54, s54, 15"); e("s_add_u32 s53, s53, s54"); e(f"s_add_u32 s53, s53, {KEY0*256}")
        e("s_lshr_b32 s55, s49, 2"); e("s_lshl_b32 s55, s55, 3"); e("s_add_u32 s55, s55, s48"); e("s_lshl_b32 s55, s55, 17")
        e("v_mov_b32 v24, s53"); e("v_mov_b32 v25, s55"); e("v_mov_b32 v26, 0")
        e("s_waitcnt lgkmcnt(0)")
        e("s_mov_b64 exec, 1")
        e("global_load_dword v151, v24, s[8:9]" + NT); e("global_load_dword v152, v25, s[12:13]" + NT)
        e("global_load_dword v153, v24, s[6:7]" + NT); e("global_load_dword v154, v26, s[24:25]")
        e("s_mov_b64 exec, -1")
        e.label(lt)
    if o["early"]: stamp(4)
    e("s_barrier")
    e("s_branch L_w23")
    e.label("L_learly")
    lz = L("nz"); e("s_cmp_eq_u32 s3, 4"); e(f"s_cbranch_scc0 {lz}")
    e("v_lshlrev_b32 v4, 2, v0"); e(f"v_add_u32 v4, {FL}, v4"); e("v_mov_b32 v5, 0")
    e("s_mov_b64 exec, 0xffffffff"); e("ds_write_b32 v4, v5"); e("s_mov_b64 exec, -1")
    if o["kgate"]: e(f"ds_write_b32 v21, v5 offset:{F_KG*4}")
    e("s_waitcnt lgkmcnt(0)")
    e.label(lz)
    if o["early"]: stamp(6)
    if not o["lbar"]: e("s_barrier")
    e("s_branch L_loader")
    e.label("L_bearly")
    e("s_sub_u32 s52, s3, 6")
    e("s_lshr_b32 s53, s2, 4"); e("s_and_b32 s54, s2, 15")
    e("v_and_b32 v23, 31, v0"); e("v_lshlrev_b32 v23, 1, v23"); e("s_lshl_b32 s55, s53, 7"); e("s_lshl_b32 s56, s52, 6"); e("s_add_u32 s55, s55, s56")
    e("s_mul_i32 s56, s54, 448"); e("v_lshlrev_b32 v24, 1, v0")
    e("s_waitcnt lgkmcnt(0)")
    srd(28, 26, 268435456); srd(32, 4, 2048)
    srd(36, 16, 7168); srd(40, 18, 7168); srd(44, 20, 7168)
    if o["bafter"]: e("s_barrier")
    e("buffer_load_ushort v12, v23, s[32:35], s55 offen")
    for n in range(4):
        e(f"buffer_load_ushort v{40+2*n}, v24, s[36:39], s56 offen offset:{128*n}")
        e(f"buffer_load_ushort v{41+2*n}, v24, s[40:43], s56 offen offset:{128*n}")
        e(f"buffer_load_ushort v{48+2*n}, v24, s[44:47], s56 offen offset:{128*n}")
    e("s_load_dword s59, s[22:23], 0")
    if o["early"]: stamp(4)
    if not o["bafter"]: e("s_barrier")
    e("s_branch L_bbranch")

    def common_srd():
        e("s_waitcnt lgkmcnt(0)")
        srd(28, 26, 268435456)
        srd(32, 4, 2048)

    def prep():
        e("s_lshr_b32 s52, s48, 1"); e("s_lshl_b32 s52, s52, 3"); e("s_and_b32 s54, s49, 1"); e("s_lshl_b32 s54, s54, 2"); e("s_add_u32 s52, s52, s54")
        e("s_and_b32 s54, s48, 1"); e("s_lshl_b32 s54, s54, 4"); e("s_lshr_b32 s55, s49, 1"); e("s_add_u32 s55, s55, s54")
        e("s_lshl_b32 s57, s3, 2"); e(f"v_add_u32 v{vFLW}, s57, v21")
        e("v_lshrrev_b32 v28, 2, v3")
        for u in range(4):
            e(f"v_cmp_eq_u32 vcc, {u}, v28"); e.nop(2); e(f"v_cndmask_b32 v{vMASK+u}, 0, -1, vcc")
        e("v_lshrrev_b32 v28, 3, v0"); e("v_and_b32 v29, 7, v0")
        for i in range(2):
            e(f"v_add_u32 v30, {8*i}, v28")
            e("v_and_b32 v31, 3, v30"); e("v_lshlrev_b32 v31, 2, v31"); e(f"v_lshrrev_b32 v{vE1V+i}, 2, v30"); e(f"v_add_u32 v31, v31, v{vE1V+i}"); e("v_lshlrev_b32 v31, 9, v31")
            e(f"v_lshl_add_u32 v{vE1V+i}, v29, 4, v31")
            e("v_lshrrev_b32 v31, 1, v29"); e("v_lshl_add_u32 v31, v31, 4, v30"); e("v_lshlrev_b32 v31, 4, v31")
            e("v_and_b32 v30, 1, v29"); e("v_lshl_add_u32 v31, v30, 3, v31")
            e("s_lshl_b32 s57, s3, 10"); e(f"s_add_u32 s57, s57, {QF}"); e(f"v_add_u32 v{vE1L+i}, s57, v31")
        e(f"s_lshl_b32 s{sE1G}, s52, 11"); e("s_lshl_b32 s57, s3, 7"); e(f"s_add_u32 s{sE1G}, s{sE1G}, s57"); e(f"s_add_u32 s{sE1G}, s{sE1G}, {QB}")
        if o["local"]:
            e("s_xor_b32 s57, s48, s49"); e("s_and_b32 s57, s57, 1")
            e(f"s_mov_b32 s58, {QL - QB}"); e("s_cmp_eq_u32 s57, 0"); e("s_cselect_b32 s58, s58, 0"); e(f"s_add_u32 s{sE1}, s{sE1G}, s58")
        else: e(f"s_mov_b32 s{sE1}, s{sE1G}")
        e(f"v_lshlrev_b32 v{vL16}, 4, v0"); e(f"v_add_u32 v{vQFR}, {QF}, v{vL16}")
        e("s_lshl_b32 s57, s3, 13"); e(f"s_add_u32 s57, s57, {KL}")
        e("v_lshlrev_b32 v28, 8, v3"); e("v_add_u32 v28, s57, v28"); e("v_xor_b32 v29, v2, v3"); e(f"v_lshl_add_u32 v{vKA}, v29, 4, v28")
        for t in range(1, 4): e(f"v_xor_b32 v{vKA+t}, {t<<6}, v{vKA}")
        e("v_lshrrev_b32 v28, 2, v3"); e("v_lshl_add_u32 v28, v2, 2, v28")
        e("v_and_b32 v29, 7, v28"); e("v_lshlrev_b32 v29, 5, v29"); e("v_lshl_add_u32 v28, v28, 8, v29")
        e("v_and_b32 v29, 3, v3"); e("v_lshl_add_u32 v28, v29, 3, v28")
        e("s_lshl_b32 s57, s3, 13"); e(f"s_add_u32 s57, s57, {VL}"); e(f"v_add_u32 v{vVA}, s57, v28")
        for t in range(1, 8): e(f"v_xor_b32 v{vVA+t}, {t<<5}, v{vVA}")
        e("s_lshl_b32 s57, s3, 11"); e(f"s_add_u32 s57, s57, {OP}"); e(f"v_add_u32 v{vOPW}, s57, v{vL16}")
        e("s_lshl_b32 s57, s3, 3"); e(f"s_add_u32 s57, s57, {ML}"); e("v_lshlrev_b32 v28, 5, v3"); e(f"v_add_u32 v{vMLW}, s57, v28")
        e("s_and_b32 s57, s3, 1"); e("s_lshl_b32 s57, s57, 10"); e(f"s_add_u32 s57, s57, {OP}"); e(f"v_add_u32 v{vOPR}, s57, v{vL16}")
        e("v_and_b32 v28, 3, v3"); e("v_lshlrev_b32 v29, 5, v28"); e(f"v_add_u32 v{vMLR}, {ML}, v29")
        e("v_lshlrev_b32 v28, 14, v28"); e("v_lshrrev_b32 v29, 3, v3"); e("v_lshl_add_u32 v28, v29, 13, v28")
        e("v_bfe_u32 v29, v3, 2, 1"); e("v_lshl_add_u32 v29, v29, 2, v2"); e(f"v_lshl_add_u32 v{vMST}, v29, 4, v28")
        e(f"s_lshl_b32 s{sMS}, s52, 14"); e("s_lshl_b32 s57, s55, 8"); e(f"s_add_u32 s{sMS}, s{sMS}, s57"); e("s_and_b32 s57, s3, 1"); e("s_lshl_b32 s57, s57, 7")
        e(f"s_add_u32 s{sMS}, s{sMS}, s57"); e(f"s_add_u32 s{sMS}, s{sMS}, {OB}")
        if o["gmap"]: e("s_lshr_b32 s56, s49, 2"); e("s_lshl_b32 s57, s48, 3"); e("s_add_u32 s56, s56, s57")
        else: e("s_lshr_b32 s56, s49, 2"); e("s_lshl_b32 s56, s56, 3"); e("s_add_u32 s56, s56, s48")
        e(f"s_lshl_b32 s{sE2}, s56, 13"); e("s_lshl_b32 s57, s3, 11"); e(f"s_add_u32 s{sE2}, s{sE2}, s57"); e(f"s_add_u32 s{sE2}, s{sE2}, {OB}")
        e("v_lshrrev_b32 v28, 2, v3"); e("v_lshl_add_u32 v29, v28, 2, v2"); e("v_lshlrev_b32 v29, 9, v29")
        e("v_and_b32 v30, 1, v2"); e("v_lshl_add_u32 v30, v30, 2, v28"); e("v_lshl_add_u32 v29, v30, 5, v29")
        e("v_and_b32 v30, 3, v3"); e("v_lshl_add_u32 v29, v30, 3, v29"); e(f"v_add_u32 v29, {WO}, v29")
        e("s_lshl_b32 s57, s3, 7"); e(f"v_xor_b32 v{vWOA}, s57, v29")
        for u in range(1, 4): e(f"v_xor_b32 v{vWOA+u}, {u<<5}, v{vWOA}")
        e("s_and_b32 s57, s49, 3"); e("s_lshl_b32 s57, s57, 3"); e("s_lshl_b32 s58, s3, 1"); e("s_add_u32 s57, s57, s58"); e(f"s_lshl_b32 s{sE3}, s57, 13")
        e("s_lshl_b32 s57, s56, 7"); e(f"s_add_u32 s{sE3}, s{sE3}, s57"); e(f"s_add_u32 s{sE3}, s{sE3}, {FB}")
        e("v_lshrrev_b32 v28, 3, v3"); e("v_lshlrev_b32 v28, 13, v28"); e("v_and_b32 v29, 7, v3"); e(f"v_lshl_add_u32 v{vE3V}, v29, 4, v28")
        e(f"v_add_u32 v{vOXR}, {OX}, v{vL16}"); e("s_lshl_b32 s57, s3, 2"); e(f"v_add_u32 v{vOXW}, s57, v{vOXR}")

    e.label("L_ln")
    if o["prio"]: e("s_setprio 3")
    e("s_lshl_b32 s54, s47, 4"); e("v_subrev_u32 v23, s54, v0"); e("v_lshlrev_b32 v23, 5, v23"); e(f"v_add_u32 v23, {XN}, v23")
    e("s_mov_b32 s56, 0xffff"); e("s_mov_b32 s57, 0"); e("s_lshl_b64 s[58:59], s[56:57], s54")
    e("s_waitcnt vmcnt(0)")
    stamp(2)
    e(f"v_readfirstlane_b32 s{sT}, v20")
    for k in range(8): unpack(24 + 2 * k, 25 + 2 * k, 4 + k)
    e(f"s_add_u32 s{sT}, s{sT}, 1"); e(f"s_mul_i32 s{sT}, s{sT}, {TMUL:#x}")
    ln_stats(24, 98, 104, 105)
    e(f"v_mov_b32 v20, s{sT}"); e(f"ds_write_b32 v21, v20 offset:{F_T*4}")
    for k in range(16): e(f"v_sub_f32 v{24+k}, v{24+k}, v104")
    for k in range(8): e(f"v_cvt_pk_bf16_f32 v{4+k}, v{24+2*k}, v{25+2*k}")
    for k in range(8): unpack(24 + 2 * k, 25 + 2 * k, 4 + k)
    for k in range(16): e(f"v_mul_f32 v{24+k}, v{24+k}, v105")
    for k in range(8): e(f"v_cvt_pk_bf16_f32 v{4+k}, v{24+2*k}, v{25+2*k}")
    e("s_mov_b64 exec, s[58:59]")
    e("ds_write_b128 v23, v[4:7]"); e("ds_write_b128 v23, v[8:11] offset:16")
    e("s_mov_b64 exec, -1")
    set_flag(F_XN)
    stamp(1)
    for k in range(8): unpack(24 + 2 * k, 25 + 2 * k, 4 + k)
    ln_stats(24, 98, 106, 107)
    e(f"v_mov_b32 v23, {LNS}"); e("ds_write_b128 v23, v[104:107]")
    set_flag(F_LN2)
    stamp(3)
    e("s_branch L_prep")
    e.label("L_qproj")
    if o["prio"]: e("s_setprio 3")
    stamp(1)
    srd(28, 26, 268435456)
    e("s_branch L_prep")
    e.label("L_qproj2")
    e("v_lshrrev_b32 v24, 2, v3"); e("v_and_b32 v25, 3, v3")
    e("v_lshlrev_b32 v26, 2, v2"); e("v_add_u32 v26, v26, v24")
    e("v_lshrrev_b32 v27, 1, v26"); e("v_and_b32 v27, 3, v27")
    e("v_lshlrev_b32 v26, 7, v26"); e("v_lshlrev_b32 v25, 3, v25"); e("v_add_u32 v26, v26, v25")
    e("v_lshlrev_b32 v27, 5, v27"); e("v_add_u32 v108, v26, v27")
    for u in range(1, 4): e(f"v_xor_b32 v{108+u}, {u<<5}, v108")
    e("s_lshr_b32 s57, s46, 1"); e("s_lshl_b32 s57, s57, 11"); e("s_and_b32 s58, s46, 1"); e("s_lshl_b32 s58, s58, 8"); e("s_add_u32 s57, s57, s58")
    e("s_lshl_b32 s58, s47, 9"); e("s_add_u32 s57, s57, s58"); e(f"s_add_u32 s46, s57, {QB}"); e(f"s_add_u32 s47, s57, {QL}")
    e("v_lshlrev_b32 v27, 2, v0")
    e("v_lshlrev_b32 v26, 3, v2"); e(f"v_add_u32 v26, {XN}, v26")
    def xn_extra():
        e(f"ds_read_b32 v29, v21 offset:{F_T*4}")
        for k in range(8): e(f"ds_read2_b64 v[{40+4*k}:{43+4*k}], v26 offset0:{8*k} offset1:{8*k+4}")
    wait_flags(F_XN, 1, 28, extra=xn_extra)
    e(f"v_readfirstlane_b32 s{sT}, v29")
    stamp(2)
    csc = math.log2(math.e) / math.sqrt(128.0)
    e(f"s_mov_b32 s58, {f32bits(csc):#x}")
    def wq_reads(k):
        B = 128 + 16 * (k & 1)
        for u in range(4):
            for rho in range(2):
                r = B + 4 * u + 2 * rho
                e(f"ds_read_b64_tr_b16 v[{r}:{r+1}], v{108+u} offset:{k*4096 + rho*2048}")
    if o["kgate"] == 1: set_flag(F_KG)
    e("s_waitcnt vmcnt(28)")
    wq_reads(0)
    for k in range(8):
        if o["kgate"] == k + 2: set_flag(F_KG)
        B = 128 + 16 * (k & 1)
        if k < 7:
            e(f"s_waitcnt vmcnt({24 - 4*k})")
            if k == 6: stamp(3)
            wq_reads(k + 1)
            e("s_waitcnt lgkmcnt(8)")
        else:
            e("s_waitcnt lgkmcnt(0)")
        for u in range(4):
            c = "0" if k == 0 else f"v[{72+4*u}:{75+4*u}]"
            e(f"v_mfma_f32_16x16x32_bf16 v[{72+4*u}:{75+4*u}], v[{40+4*k}:{43+4*k}], v[{B+4*u}:{B+4*u+3}], {c}")
    e(f"v_mov_b32 v49, s{sT}"); e(f"v_mov_b32 v51, s{sT}")
    e("s_mov_b32 s56, 0x11111111"); e("s_mov_b32 s57, 0x11111111")
    e("s_mov_b32 s60, 0xffff0000"); e("s_mov_b32 s61, 0"); e("s_mov_b32 s62, 0"); e("s_mov_b32 s63, 0xffff"); e("s_mov_b32 s64, 0"); e("s_mov_b32 s65, 0xffff0000")
    e.nop(2)
    e("v_cndmask_b32 v104, v72, v76, s[60:61]"); e("v_cndmask_b32 v104, v104, v80, s[62:63]"); e("v_cndmask_b32 v104, v104, v84, s[64:65]")
    e("v_mul_f32 v104, s58, v104"); e.nop(2)
    e(f"v_mov_b32_dpp v105, v104 quad_perm:[1,0,3,2] {DPP}")
    e("v_cvt_pk_bf16_f32 v48, v104, v105"); e.nop(2)
    e(f"v_mov_b32_dpp v50, v48 quad_perm:[2,3,0,1] {DPP}")
    e("s_mov_b64 exec, s[56:57]")
    if o["local"]: e("buffer_store_dwordx4 v[48:51], v27, s[28:31], s47 offen")
    e("buffer_store_dwordx4 v[48:51], v27, s[28:31], s46 offen sc1")
    e("s_mov_b64 exec, -1")
    set_flag(F_QPUB)
    stamp(5)
    e("s_branch L_attn")

    if o["pages"]: e(".p2align 12")
    e.label("L_w23")
    if o["prio"]: e("s_setprio 3")
    common_srd()
    e.label("L_prep")
    prep()
    e("s_cmp_eq_u32 s3, 0"); e("s_cbranch_scc1 L_qproj2")
    e("s_cmp_eq_u32 s3, 1"); e("s_cbranch_scc1 L_attn")
    wait_flags(F_XN, 1, 28, extra=lambda: e(f"ds_read_b32 v29, v21 offset:{F_T*4}"), sleep=o["slp"], lowprio=LOW)
    e(f"v_readfirstlane_b32 s{sT}, v29")
    e.label("L_attn")
    wait_flags(F_QPUB, 1, 28, sleep=o["slp"], lowprio=LOW)
    if o["dl1"]: e(f"s_sleep {o['dl1']}")
    wait_flags(F_VI, 2, 28, lowprio=LOW)
    PB = 128
    def mk_e1(i):
        b = PB + 4 * i
        return dict(issue=lambda: e(f"buffer_load_dwordx4 v[{b}:{b+3}], v{vE1V+i}, s[28:31], s{sE1} offen sc1"),
                    check=lambda: (e(f"v_xor_b32 v36, s{sT}, v{b+1}"), e(f"v_xor_b32 v37, s{sT}, v{b+3}"), e("v_or_b32 v36, v36, v37"), e("v_cmp_ne_u32 vcc, 0, v36")),
                    take=lambda: e(f"ds_write2_b32 v{vE1L+i}, v{b}, v{b+2} offset0:0 offset1:1"), mask=70 + 2 * i)
    def kreads():
        for kt in range(2):
            for t in range(4):
                r = 40 + 16 * kt + 4 * t
                e(f"ds_read_b128 v[{r}:{r+3}], v{vKA+t} offset:{kt*4096}")
    def e1_pre():
        if o["local"]: e(f"s_cmp_ge_u32 s68, {o['fb1']}"); e(f"s_cselect_b32 s{sE1}, s{sE1G}, s{sE1}")
    if not o["early"]: stamp(1)
    def e1_shadow():
        if o["wpre"] or o["vh"] < 16: e(f"ds_write_b32 v{vFLW}, v22 offset:{F_P1*4}")
        if o["vi"] >= 16: kreads()
    mpoll([mk_e1(0), mk_e1(1)], cnt=68, pre=e1_pre, shadow=e1_shadow)
    e(f"ds_write_b32 v{vFLW}, v22 offset:{F_QF*4}")
    stamp(6)
    if o["vi"] < 16:
        wait_flags(F_K, 2, 28); kreads()
    VF = 160
    def vreads():
        for t in range(8):
            for rho in range(2):
                r = VF + 4 * t + 2 * rho
                e(f"ds_read_b64_tr_b16 v[{r}:{r+1}], v{vVA+t} offset:{rho*4096}")
    def qf_extra():
        e(f"ds_read_b64 v[32:33], v21 offset:{F_V*4}")
        for t in range(4): e(f"ds_read_b128 v[{72+4*t}:{75+4*t}], v{vQFR} offset:{t*1024}")
    wait_flags(F_QF, 4, 28, extra=qf_extra)
    for t in range(4):
        for kt in range(2):
            c = "0" if t == 0 else f"v[{88+4*kt}:{91+4*kt}]"
            e(f"v_mfma_f32_16x16x32_bf16 v[{88+4*kt}:{91+4*kt}], v[{40+16*kt+4*t}:{43+16*kt+4*t}], v[{72+4*t}:{75+4*t}], {c}")
    e("v_and_b32 v32, v32, v33"); e("v_cmp_ne_u32 vcc, 0, v32")
    e("s_mov_b32 s59, 0")
    lv = L("vlate"); e(f"s_cbranch_vccz {lv}")
    vreads(); e("s_mov_b32 s59, 1")
    e.label(lv)
    for m in range(4): e(f"v_mov_b32 v{44+m}, 0x3f803f80")
    e.nop(3)
    S = list(range(88, 96))
    for s_ in S: e(f"v_add_f32_dpp v{s_+8}, v{s_}, v{s_} row_ror:4 {DPP}")
    for s_ in S: e(f"v_add_f32_dpp v{s_}, v{s_+8}, v{s_+8} row_ror:8 {DPP}")
    e("v_max3_f32 v96, v88, v89, v90"); e("v_max3_f32 v97, v91, v92, v93"); e("v_max3_f32 v96, v96, v94, v95"); e("v_max_f32 v96, v96, v97")
    allreduce_xrow(96, 97, "v_max_f32")
    for s_ in S: e(f"v_sub_f32 v{s_}, v{s_}, v96")
    for s_ in S: e(f"v_exp_f32 v{s_}, v{s_}")
    e.nop(1)
    for m in range(4): e(f"v_cvt_pk_bf16_f32 v{100+m}, v{88+2*m}, v{89+2*m}")
    lw = L("vok"); e("s_cmp_lg_u32 s59, 0"); e(f"s_cbranch_scc1 {lw}")
    wait_flags(F_V, 2, 28); vreads()
    e.label(lw)
    for m in range(4): e(f"v_and_b32 v{72+m}, v{100+m}, v{vMASK}")
    for m in range(4): e(f"v_and_b32 v{76+m}, v{100+m}, v{vMASK+1}")
    e("s_waitcnt lgkmcnt(0)")
    first = [True, True]
    for t in range(8):
        ee = (t >> 1) & 1; u = 2 * (t >> 2) + (t & 1)
        c = "0" if first[ee] else f"v[{104+4*ee}:{107+4*ee}]"; first[ee] = False
        e(f"v_mfma_f32_16x16x32_bf16 v[{104+4*ee}:{107+4*ee}], v[{VF+4*t}:{VF+4*t+3}], v[{72+4*u}:{75+4*u}], {c}")
        if t in (0, 1):
            for m in range(4): e(f"v_and_b32 v{80+4*t+m}, v{100+m}, v{vMASK+2+t}")
    e("v_mfma_f32_16x16x32_bf16 v[92:95], v[44:47], v[100:103], 0")
    e.nop(6)
    e(f"ds_write_b128 v{vOPW}, v[104:107]")
    e(f"ds_write_b128 v{vOPW}, v[108:111] offset:1024")
    e("v_mov_b32 v97, v92")
    e("s_mov_b64 exec, 0xf")
    e(f"ds_write_b64 v{vMLW}, v[96:97]")
    e("s_mov_b64 exec, -1")
    e(f"ds_write_b32 v{vFLW}, v22 offset:{F_O*4}")
    stamp(7)
    tagbytes(60); e("s_mov_b32 s64, 0x07060500"); e("s_mov_b32 s59, 0")
    e("s_cmp_ge_u32 s3, 2"); e("s_cbranch_scc1 L_e2")
    e(f"v_mov_b32 v63, s{sT}")
    def mg_extra():
        for w in range(4): e(f"ds_read_b128 v[{32+4*w}:{35+4*w}], v{vOPR} offset:{w*2048}")
        e(f"ds_read_b128 v[48:51], v{vMLR}"); e(f"ds_read_b128 v[52:55], v{vMLR} offset:16")
    wait_flags(F_O, 4, 28, extra=mg_extra)
    e("v_max3_f32 v56, v48, v50, v52"); e("v_max_f32 v56, v56, v54")
    for w in range(4): e(f"v_sub_f32 v{48+2*w}, v{48+2*w}, v56")
    for w in range(4): e(f"v_exp_f32 v{48+2*w}, v{48+2*w}")
    e.nop(1)
    e("v_mul_f32 v57, v48, v49")
    for m in range(4): e(f"v_mul_f32 v{32+m}, v{32+m}, v48")
    for w in range(1, 4): e(f"v_fmac_f32 v57, v{48+2*w}, v{49+2*w}")
    for m in range(4): e(f"v_fmac_f32 v{32+m}, v{36+m}, v50")
    e("v_rcp_f32 v58, v57"); e("v_log_f32 v59, v57")
    for w in range(2, 4):
        for m in range(4): e(f"v_fmac_f32 v{32+m}, v{32+4*w+m}, v{48+2*w}")
    e("v_add_f32 v62, v56, v59")
    for m in range(4): e(f"v_mul_f32 v{32+m}, v{32+m}, v58")
    e("v_cvt_pk_bf16_f32 v60, v32, v33"); e("v_cvt_pk_bf16_f32 v61, v34, v35")
    e(f"buffer_store_dwordx4 v[60:63], v{vMST}, s[28:31], s{sMS} offen sc1")
    e(f"ds_write_b32 v{vFLW}, v22 offset:{F_MP*4}")
    if o["stamps"]: e("s_memrealtime s[80:81]")

    e.label("L_e2")
    def woreads():
        for u in range(4):
            for tp in range(4):
                r = 40 + 8 * u + 2 * tp
                e(f"ds_read_b64_tr_b16 v[{r}:{r+1}], v{vWOA+u} offset:{tp*8192}")
    def wo_try():
        lskip = L("wo"); e("s_cmp_lg_u32 s59, 0"); e(f"s_cbranch_scc1 {lskip}")
        e(f"ds_read_b64 v[28:29], v21 offset:{F_WO*4}"); e("s_waitcnt lgkmcnt(0)")
        e("v_and_b32 v28, v28, v29"); e("v_cmp_ne_u32 vcc, 0, v28"); e(f"s_cbranch_vccz {lskip}")
        woreads(); e("s_mov_b32 s59, 1")
        e.label(lskip)
    for k in range(4): e(f"v_mov_b32 v{8+k}, s{60+k}")
    e("v_mov_b32 v10, v10") if False else None
    wait_flags(F_MP, 2, 28, lowprio=LOW)
    if o["dl2"]: e(f"s_sleep {o['dl2']}")
    B2 = 128
    def mk_dat(n):
        b = B2 + 4 * n
        return dict(issue=lambda: e(f"buffer_load_dwordx4 v[{b}:{b+3}], v{vL16}, s[28:31], s{sE2} offen offset:{n*1024} sc1"),
                    check=lambda: e(f"v_cmp_ne_u32 vcc, s{sT}, v{b+3}"), mask=70 + 2 * n)
    def st23(sl):
        if not o["stamps"]: return
        if o["early"]:
            lsk = L("se"); e("s_cmp_lt_u32 s3, 2"); e(f"s_cbranch_scc1 {lsk}"); e(f"s_memrealtime s[{80+2*sl}:{81+2*sl}]"); e.label(lsk)
        else: e(f"s_memrealtime s[{80+2*sl}:{81+2*sl}]")
    st23(1)
    mpoll([mk_dat(0), mk_dat(1)], cnt=69, pre=wo_try, shadow=wo_try)
    st23(2)
    l0, l1 = B2 + 2, B2 + 6
    e(f"v_max_f32 v7, v{l0}, v{l1}")
    e("v_mov_b32 v20, 0xffff0000")
    e(f"v_lshlrev_b32 v16, 16, v{B2}"); e(f"v_and_b32 v17, v20, v{B2}")
    allreduce_xrow(7, 6, "v_max_f32")
    e(f"v_sub_f32 v{l0}, v{l0}, v7"); e(f"v_sub_f32 v{l1}, v{l1}, v7")
    e(f"v_lshlrev_b32 v18, 16, v{B2+1}"); e(f"v_and_b32 v19, v20, v{B2+1}")
    e(f"v_exp_f32 v{l0}, v{l0}"); e(f"v_exp_f32 v{l1}, v{l1}")
    e(f"v_lshlrev_b32 v24, 16, v{B2+4}"); e(f"v_and_b32 v25, v20, v{B2+4}"); e(f"v_lshlrev_b32 v26, 16, v{B2+5}"); e(f"v_and_b32 v27, v20, v{B2+5}")
    for i in range(4): e(f"v_mul_f32 v{12+i}, v{16+i}, v{l0}")
    e(f"v_add_f32 v5, v{l0}, v{l1}")
    for i in range(4): e(f"v_fmac_f32 v{12+i}, v{24+i}, v{l1}")
    e("v_mov_b32 v4, v7")
    allreduce_xrow(5, 6, "v_add_f32")
    reduce_scatter4(12)
    e(f"ds_write_b32 v{vOXW}, v12")
    e("s_lshl_b32 s57, s3, 3"); e(f"s_add_u32 s57, s57, {SX}"); e("v_mov_b32 v6, s57")
    e("s_mov_b64 exec, 1"); e("ds_write_b64 v6, v[4:5]"); e("s_mov_b64 exec, -1")
    e(f"ds_write_b32 v{vFLW}, v22 offset:{F_OX*4}")
    e(f"v_mov_b32 v6, {SX}")
    def ox_extra():
        e(f"ds_read_b128 v[12:15], v{vOXR}"); e("ds_read_b128 v[24:27], v6"); e("ds_read_b128 v[72:75], v6 offset:16")
    wait_flags(F_OX, 4, 28, extra=ox_extra)
    e("v_max3_f32 v7, v24, v26, v72"); e("v_max_f32 v7, v7, v74")
    e("v_sub_f32 v24, v24, v7"); e("v_sub_f32 v26, v26, v7"); e("v_sub_f32 v72, v72, v7"); e("v_sub_f32 v74, v74, v7")
    e("v_exp_f32 v24, v24"); e("v_exp_f32 v26, v26"); e("v_exp_f32 v72, v72"); e("v_exp_f32 v74, v74"); e.nop(1)
    e("v_mul_f32 v5, v24, v25"); e("v_mul_f32 v12, v12, v24"); e("v_fmac_f32 v5, v26, v27"); e("v_fmac_f32 v12, v13, v26")
    e("v_fmac_f32 v5, v72, v73"); e("v_fmac_f32 v12, v14, v72"); e("v_fmac_f32 v5, v74, v75"); e("v_fmac_f32 v12, v15, v74")
    e("v_rcp_f32 v5, v5"); e.nop(1); e("v_mul_f32 v12, v12, v5"); e.nop(2)
    e(f"v_mov_b32_dpp v13, v12 quad_perm:[1,0,3,2] {DPP}")
    e("v_cvt_pk_bf16_f32 v12, v12, v13"); e.nop(2)
    for m in range(8): e(f"v_mov_b32_dpp v{76+m}, v12 row_newbcast:{2*m} {DPP}")
    lw = L("wook"); e("s_cmp_lg_u32 s59, 0"); e(f"s_cbranch_scc1 {lw}")
    wait_flags(F_WO, 2, 28); woreads(); e("s_waitcnt lgkmcnt(0)")
    e.label(lw)
    AC = 136
    for k in range(2):
        for u in range(4):
            c = "0" if k == 0 else f"v[{AC+4*u}:{AC+4*u+3}]"
            e(f"v_mfma_f32_16x16x32_bf16 v[{AC+4*u}:{AC+4*u+3}], v[{76+4*k}:{79+4*k}], v[{40+8*u+4*k}:{43+8*u+4*k}], {c}")
    e("s_mov_b64 exec, 0xffff")
    e.nop(4)
    for i in range(4): e(f"v_perm_b32 v{4+i}, v{AC+4*i}, v{8+i}, s64")
    e(f"buffer_store_dwordx4 v[4:7], v{vE3V}, s[28:31], s{sE3} offen sc1")
    e("s_mov_b64 exec, -1")
    set_flag(F_PUB3)
    if o["stamps"] == 3 or o["early"]:
        lsk = L("st3"); e("s_cmp_lt_u32 s3, 2"); e(f"s_cbranch_scc1 {lsk}"); e("s_memrealtime s[86:87]"); e.label(lsk)
    elif o["stamps"]: e("s_memrealtime s[86:87]")
    e("s_waitcnt lgkmcnt(0)")
    dump_stamps(cnts=([(4, 68), (5, 69)] if (o["stamps"] != 3 and not o["early"]) else None))
    e("s_endpgm")

    e.label("L_loader")
    stamp(1)
    if o["prio"]: e("s_setprio 2")
    e("s_sub_u32 s52, s3, 4")
    e("s_lshr_b32 s53, s48, 1"); e("s_lshl_b32 s53, s53, 24"); e("s_and_b32 s54, s48, 1"); e("s_lshl_b32 s54, s54, 4"); e("s_lshr_b32 s55, s49, 1"); e("s_add_u32 s54, s54, s55")
    e("s_lshl_b32 s54, s54, 15"); e("s_add_u32 s53, s53, s54"); e(f"s_add_u32 s53, s53, {KEY0*256}")
    e("s_lshl_b32 s54, s52, 14"); e("s_add_u32 s53, s53, s54")
    if o["gmap"]: e("s_lshr_b32 s55, s49, 2"); e("s_lshl_b32 s56, s48, 3"); e("s_add_u32 s55, s55, s56"); e("s_lshl_b32 s55, s55, 17")
    else: e("s_lshr_b32 s55, s49, 2"); e("s_lshl_b32 s55, s55, 3"); e("s_add_u32 s55, s55, s48"); e("s_lshl_b32 s55, s55, 17")
    e("s_and_b32 s56, s49, 3"); e("s_lshl_b32 s56, s56, 9"); e("s_add_u32 s55, s55, s56")
    e("s_lshl_b32 s56, s52, 16"); e("s_add_u32 s55, s55, s56")
    e("s_lshl_b32 s57, s52, 14")
    for m in range(4):
        e(f"v_add_u32 v4, {4*m}, v2"); e("v_xor_b32 v4, v4, v3"); e("v_lshlrev_b32 v4, 4, v4"); e("v_lshlrev_b32 v5, 8, v2"); e(f"v_add_u32 v{8+m}, v4, v5")
    for m in range(2):
        e(f"v_add_u32 v4, {4*m}, v2"); e("v_lshrrev_b32 v5, 1, v3"); e("v_xor_b32 v4, v4, v5"); e("v_lshlrev_b32 v4, 1, v4"); e("v_and_b32 v5, 1, v3"); e("v_or_b32 v4, v4, v5")
        e("v_lshlrev_b32 v4, 4, v4"); e("v_lshlrev_b32 v5, 8, v2"); e(f"v_add_u32 v{12+m}, v4, v5")
    e("v_lshrrev_b32 v6, 5, v0"); e("v_and_b32 v7, 31, v0")
    for m in range(4):
        e("v_lshlrev_b32 v4, 2, v6"); e(f"v_add_u32 v4, {m}, v4"); e("v_lshrrev_b32 v5, 1, v7"); e("v_xor_b32 v4, v4, v5"); e("v_lshlrev_b32 v4, 1, v4")
        e("v_and_b32 v5, 1, v7"); e("v_or_b32 v4, v4, v5"); e("v_lshlrev_b32 v4, 4, v4"); e("v_lshlrev_b32 v5, 11, v6"); e(f"v_add_u32 v{16+m}, v4, v5")
    e("s_lshl_b32 s58, s52, 2"); e("v_add_u32 v20, s58, v21")
    e("s_waitcnt lgkmcnt(0)")
    srd(36, 6, 67108864); srd(40, 8, 67108864); srd(44, 12, 8388608)
    if o["stamps"]: srd(28, 26, 268435456)
    if o["lbar"]: e("s_barrier")
    if o["kgate"]: wait_flags(F_KG, 1, 24)
    stamp(2)
    W = o["win"]; WKV = o["winkv"]
    seq = [("K", m) for m in range(16)] + [("V", m) for m in range(16)] + [("W", m) for m in range(16)]
    st = dict(landed=-1)
    def land(upto):
        for x in range(st["landed"] + 1, upto + 1):
            if x == 15: set_flag(F_K, 20); stamp(3)
            if x == 31: set_flag(F_V, 20); stamp(4)
        st["landed"] = max(st["landed"], upto)
    for i, (kind, m) in enumerate(seq):
        w_ = WKV if i < 32 else W
        skipwin = False
        if o["vi"] < 16 and i == 16 + o["vi"]: set_flag(F_VI, 20)
        if o["vh"] < 16 and i == 16 + o["vh"]:
            if st["landed"] < 15: e(f"s_waitcnt vmcnt({i - 16})"); land(15)
            set_flag(F_VI, 20)
            wait_flags(F_P1, 4, 24)
        if i == 32:
            assert st["landed"] >= 15
            if o["vh"] >= 16:
                if o["vi"] >= 16: set_flag(F_VI, 20)
                if o["wpre"]: wait_flags(F_P1, 4, 24)
            if not o["wpre"]:
                e("s_waitcnt vmcnt(0)"); land(31)
                wait_flags(F_QF, 4, 24)
        if o["wpre"] and 32 <= i < 32 + o["wpre"]:
            skipwin = True
        if o["wpre"] and i == 32 + o["wpre"]:
            e(f"s_waitcnt vmcnt({o['wpre']})"); land(31)
            wait_flags(F_QF, 4, 24)
        if not skipwin and i - st["landed"] - 1 > w_ - 1:
            e(f"s_waitcnt vmcnt({w_-1})"); land(i - w_)
        if kind == "K":
            e(f"s_add_u32 m0, s57, {KL + m*1024}"); e(f"s_add_u32 s58, s53, {m*1024}")
            e(f"buffer_load_dwordx4 v{8 + (m & 3)}, s[36:39], s58 offen{NTKV} lds")
        elif kind == "V":
            e(f"s_add_u32 m0, s57, {VL + m*1024}"); e(f"s_add_u32 s58, s53, {m*1024}")
            e(f"buffer_load_dwordx4 v{12 + (m & 1)}, s[40:43], s58 offen{NTKV} lds")
        else:
            e(f"s_add_u32 m0, s57, {WO + m*1024}"); e(f"s_add_u32 s58, s55, {m*4096}")
            e(f"buffer_load_dwordx4 v{16 + ((m >> 1) & 3)}, s[44:47], s58 offen{NT} lds")
    e("s_waitcnt vmcnt(0)"); set_flag(F_WO, 20); stamp(5)
    e("s_waitcnt lgkmcnt(0)")
    dump_stamps()
    e("s_endpgm")

    e.label("L_final")
    tagbytes(60)
    e("s_mov_b32 s64, 0x07060500")
    for k in range(4): e(f"v_mov_b32 v{8+k}, s{60+k}")
    e("v_lshlrev_b32 v24, 2, v3"); e(f"v_add_u32 v24, {YP}, v24")
    wait_flags(F_G, 1, 28, extra=lambda: [e(f"ds_read_b32 v{96+i}, v24 offset:{64*i}") for i in range(4)])
    for k in range(4): e(f"v_perm_b32 v{4+k}, v{96+k}, v{8+k}, s64")
    e("s_lshl_b32 s56, s2, 8"); e(f"s_add_u32 s56, s56, {GB}")
    e("v_lshlrev_b32 v24, 4, v0")
    e("s_mov_b64 exec, 0xffff")
    e("buffer_store_dwordx4 v[4:7], v24, s[28:31], s56 offen sc1")
    e("s_mov_b64 exec, -1")
    stamp(4)
    e("s_lshr_b32 s53, s49, 3"); e("s_lshl_b32 s53, s53, 3"); e("s_add_u32 s53, s53, s48")
    e("s_and_b32 s54, s49, 7")
    e("s_lshr_b32 s55, s53, 1"); e("s_lshl_b32 s55, s55, 6"); e("s_and_b32 s56, s53, 1"); e("s_lshl_b32 s56, s56, 3"); e("s_add_u32 s55, s55, s56"); e("s_add_u32 s55, s55, s54")
    e("v_lshlrev_b32 v25, 5, v2"); e("s_lshl_b32 s55, s55, 1")
    e("buffer_load_ushort v12, v25, s[32:35], s55 offen")
    e("v_lshlrev_b32 v26, 2, v3"); e("v_add_u32 v26, v26, v2"); e("v_lshlrev_b32 v26, 8, v26")
    e("s_lshr_b32 s56, s53, 1"); e("s_lshl_b32 s56, s56, 12"); e("s_and_b32 s57, s53, 1"); e("s_lshl_b32 s57, s57, 3"); e("s_add_u32 s57, s57, s54"); e("s_lshl_b32 s57, s57, 4")
    e("s_add_u32 s57, s57, s56"); e(f"s_add_u32 s57, s57, {GB}")
    e("v_lshlrev_b32 v24, 7, v0")
    e("s_lshl_b32 s56, s53, 13"); e("s_lshl_b32 s58, s54, 4"); e("s_add_u32 s56, s56, s58"); e(f"s_add_u32 s56, s56, {FB}")
    srd(36, 24, 2048)
    wait_flags(F_MP, 2, 28, sleep=4)
    mpoll([dict(issue=lambda: e("buffer_load_dwordx4 v[32:35], v26, s[28:31], s57 offen sc1"), check=lambda: chk4(32, 60), mask=70, init=(0x000f000f, 0x000f000f))])
    reduce_scatter4(32); e("v_mov_b32 v96, v32"); e.nop(2)
    e(f"v_add_f32_dpp v96, v96, v96 quad_perm:[1,0,3,2] {DPP}"); e.nop(2)
    e(f"v_add_f32_dpp v96, v96, v96 quad_perm:[2,3,0,1] {DPP}")
    bf16r(96, 96)
    e("s_and_b32 s59, s59, 0xffff"); e("s_lshl_b32 s59, s59, 16")
    e("v_add_f32 v96, s59, v96"); bf16r(96, 96)
    e(f"v_mul_f32 v97, {f32bits(-math.log2(math.e)):#x}, v96"); e("v_exp_f32 v97, v97"); e.nop(1); e("v_add_f32 v97, 1.0, v97"); e("v_rcp_f32 v97, v97"); e.nop(1)
    e("v_mul_f32 v96, v96, v97"); bf16r(96, 96)
    e("v_lshlrev_b32 v14, 16, v12")
    stamp(1)
    wait_flags(F_PUB3, 1, 28, sleep=1)
    if o["prio"]: e("s_setprio 3")
    if o["dl3"]: e(f"s_sleep {o['dl3']}")
    stamp(5)
    mpoll([dict(issue=lambda: e("buffer_load_dwordx4 v[28:31], v24, s[28:31], s56 offen sc1"), check=lambda: chk4(28, 100), mask=70)], cnt=69)
    stamp(6)
    reduce_scatter4(28)
    allreduce_row16(28, "v_add_f32")
    bf16r(28, 28)
    e("v_mul_f32 v28, v28, v96"); bf16r(28, 28)
    e("v_add_f32 v28, v28, v14")
    e("v_cvt_pk_bf16_f32 v28, v28, v28")
    e("s_mov_b32 exec_lo, 0x00010001"); e("s_mov_b32 exec_hi, 0x00010001")
    e("buffer_store_short v28, v25, s[36:39], s55 offen")
    l = L("ne"); e("s_cmp_lg_u32 s2, 0"); e(f"s_cbranch_scc1 {l}")
    e("s_mov_b64 exec, 1")
    e(f"s_mul_i32 s57, s{sT}, {TINV:#x}"); e("v_mov_b32 v20, s57"); e("v_mov_b32 v23, 0")
    e("buffer_store_dword v20, v23, s[28:31], 0 offen sc1")
    e.label(l)
    e("s_mov_b64 exec, -1")
    stamp(7)
    dump_stamps(cnts=[(2, 69)], final=True)
    e("s_endpgm")
    if o["pages"]: e(".p2align 12")
    e.label("L_bbranch")
    if o["prio"]: e(f"s_setprio {o['bprio']}")
    e(f"v_mov_b32 v23, {LNS}")
    k1 = -2.0 * math.sqrt(2.0 / math.pi) * math.log2(math.e); k2 = k1 * 0.044715
    e(f"v_mov_b32 v92, {f32bits(k1):#x}"); e(f"v_mov_b32 v93, {f32bits(k2):#x}")
    wait_flags(F_LN2, 1, 28, extra=lambda: (e("ds_read_b128 v[32:35], v23"), e(f"ds_read_b32 v29, v21 offset:{F_T*4}")), sleep=2)
    e(f"v_readfirstlane_b32 s{sT}, v29")
    e("s_waitcnt vmcnt(0)")
    stamp(1)
    for k in range(8): e(f"v_lshlrev_b32 v{40+k}, 16, v{40+k}")
    for n in range(4): e(f"v_lshlrev_b32 v{48+2*n}, 16, v{48+2*n}")
    e("v_cmp_gt_u32 vcc, 32, v0"); e("v_mov_b32 v94, 1.0"); e("v_mov_b32 v95, 1.0"); e("v_cndmask_b32 v54, 0, v54, vcc")
    e("v_lshlrev_b32 v14, 16, v12")
    e("v_sub_f32 v16, v14, v32"); bf16r(16, 16); e("v_mul_f32 v16, v16, v33"); bf16r(16, 16)
    e("v_sub_f32 v16, v16, v34"); bf16r(16, 16); e("v_mul_f32 v16, v16, v35"); bf16r(16, 16)
    ACCB = 128
    for half in range(2):
        e.nop(1)
        for k in range(16): e(f"v_readlane_b32 s{64+k}, v16, {16*half+k}")
        e.nop(2)
        NI = o["bilp"]
        for k in range(0, 16, 2 * NI):
            dps = [16 * half + k + 2 * q_ for q_ in range(NI)]
            for n in range(4):
                R = range(NI)
                U = [f"v[{100+6*q_}:{101+6*q_}]" for q_ in R]; Z = [f"v[{102+6*q_}:{103+6*q_}]" for q_ in R]; G = [f"v[{104+6*q_}:{105+6*q_}]" for q_ in R]
                WB = f"v[{40+2*n}:{41+2*n}]"; W2 = f"v[{48+2*n}:{49+2*n}]"
                for q_, d in enumerate(dps): e(f"v_pk_fma_f32 {U[q_]}, s[{64+(d&15)}:{65+(d&15)}], {WB}, {WB} op_sel:[0,0,1] op_sel_hi:[1,0,1]")
                for q_ in R: e(f"v_pk_mul_f32 {Z[q_]}, {U[q_]}, {U[q_]}")
                for q_ in R: e(f"v_pk_fma_f32 {Z[q_]}, {Z[q_]}, v[92:93], v[92:93] op_sel:[0,1,0] op_sel_hi:[1,1,0]")
                for q_ in R: e(f"v_pk_mul_f32 {Z[q_]}, {Z[q_]}, {U[q_]}")
                for q_ in R: e(f"v_pk_mul_f32 {G[q_]}, {U[q_]}, {W2} op_sel_hi:[1,0]")
                for q_ in R: e(f"v_exp_f32 v{102+6*q_}, v{102+6*q_}"); e(f"v_exp_f32 v{103+6*q_}, v{103+6*q_}")
                e.nop(1)
                for q_ in R: e(f"v_pk_add_f32 {Z[q_]}, {Z[q_]}, v[94:95]")
                for q_ in R: e(f"v_rcp_f32 v{102+6*q_}, v{102+6*q_}"); e(f"v_rcp_f32 v{103+6*q_}, v{103+6*q_}")
                e.nop(1)
                for q_, d in enumerate(dps):
                    A_ = f"v[{ACCB+d}:{ACCB+d+1}]"
                    if n == 0: e(f"v_pk_mul_f32 {A_}, {G[q_]}, {Z[q_]}")
                    else: e(f"v_pk_fma_f32 {A_}, {G[q_]}, {Z[q_]}, {A_}")
    stamp(3)
    e.nop(2)
    for k in range(16):
        e(f"v_permlane32_swap_b32 v{ACCB+k}, v{ACCB+16+k}")
    for k in range(16): e(f"v_add_f32 v{ACCB+k}, v{ACCB+k}, v{ACCB+16+k}")
    e.nop(1)
    for k in range(8): e(f"v_permlane16_swap_b32 v{ACCB+k}, v{ACCB+8+k}")
    for k in range(8): e(f"v_add_f32 v{ACCB+k}, v{ACCB+k}, v{ACCB+8+k}")
    for sh in (8, 4, 2, 1):
        e.nop(1)
        for k in range(8): e(f"v_add_f32_dpp v{ACCB+k}, v{ACCB+k}, v{ACCB+k} row_ror:{sh} {DPP}")
    e("s_lshl_b32 s57, s52, 7"); e(f"s_add_u32 s57, s57, {YP}"); e("v_lshlrev_b32 v24, 5, v2"); e("v_add_u32 v24, s57, v24")
    e("s_mov_b32 exec_lo, 0x00010001"); e("s_mov_b32 exec_hi, 0x00010001")
    e(f"ds_write_b128 v24, v[{ACCB}:{ACCB+3}]"); e(f"ds_write_b128 v24, v[{ACCB+4}:{ACCB+7}] offset:16")
    e("s_mov_b64 exec, -1")
    e("s_cmp_eq_u32 s52, 0"); e("s_cbranch_scc1 L_final")
    set_flag(F_G)
    e("s_waitcnt lgkmcnt(0)")
    dump_stamps()
    e("s_endpgm")
    e.label("L_abort")
    e("s_endpgm")
    e.label("L_exit")

    probs = check(a.lines)
    body = a.text()
    nv = 224
    PAD = ".p2align 12\n.fill 832, 4, 0xbf810000\n" if o["pgal"] else ""
    hdr = open("cdna_kernels/" + KN + ".s.ref").read().split("; Override launch")[0]
    out = hdr + f"; Override launch geometry by editing the next line.\n; @launch grid=(256,1,1) block=(512,1,1) lds={LDS_BYTES}\n" + DOC.lstrip("\n")
    out += f""".amdgcn_target "amdgcn-amd-amdhsa--gfx950"
.text
.globl {KN}_kernel
{PAD}.p2align 8
.type {KN}_kernel,@function
{KN}_kernel:
{body}
    s_endpgm
.section .rodata,"a"
.p2align 6
.amdhsa_kernel {KN}_kernel
  .amdhsa_next_free_vgpr {nv}
  .amdhsa_next_free_sgpr 100
  .amdhsa_accum_offset {nv}
  .amdhsa_group_segment_fixed_size 0
  .amdhsa_kernarg_size 104
  .amdhsa_user_sgpr_count 2
  .amdhsa_user_sgpr_kernarg_segment_ptr 1
  .amdhsa_system_sgpr_workgroup_id_x 1
.end_amdhsa_kernel
"""
    return out, probs

if __name__ == "__main__":
    opt = {}
    name = sys.argv[1]
    for kv in sys.argv[2:]:
        k, v = kv.split("="); opt[k] = int(v, 0)
    s, probs = gen(opt)
    open(name, "w").write(s)
    for p in probs: print("HAZARD:", p)
```

```python
import sys, math, struct
from asmlib import Asm, check
KN = "recurrent_scan__sliding_block_cached__mixer_token_mlp__decode"
def f32bits(x): return struct.unpack("<I", struct.pack("<f", x))[0]

DEF = dict(stamps=0, nt=1, win=12, winkv=16, spinmax=1 << 20, prio=1, dl2=24, dl3=18, local=1, fb1=12, slp=1, bprio=1, bearly=1, bilp=2, wpre=3, cpf=1, tlb=0, early=0, vh=16, dl1=0, ntkv=-1, wqun=4, vi=16, gmap=1, bafter=0, lbar=0, pgal=1, pages=1, kgate=0, rearly=0, dry=0, dl2r=-1)

QB, QL, GB, OB, FB, STB = 0x10000, 0x20000, 0x30000, 0x40000, 0x100000, 0x200000
WQ, KL, VL, WO = 0, 32768, 65536, 98304
QF = 131072; OP = QF + 4096; ML = OP + 8192; FL = ML + 128; OX = FL + 128; SX = OX + 1024
XN = SX + 64; LNS = XN + 512; YP = LNS + 16; STL = YP + 256; DFL = STL + 256; LDS_BYTES = DFL + 128
F_QF, F_O, F_OX, F_K, F_V, F_WO, F_VI, F_MP, F_G, F_XN, F_LN2, F_T, F_QPUB, F_PUB3, F_P1 = 0, 4, 8, 12, 14, 16, 18, 20, 22, 23, 24, 25, 26, 27, 28

F_KG = (SX + 32 - FL) // 4
KEY0 = 61440
TMUL = 0x9e3779b1
TINV = pow(TMUL, -1, 1 << 32)
vE1V, vE1L, vQFR, vKA, vVA, vOPW, vMLW, vOPR, vMLR, vMST, vL16, vWOA, vE3V, vOXW, vOXR, vFLW = 192, 194, 196, 197, 201, 209, 210, 211, 212, 213, 214, 216, 220, 221, 222, 223
vMASK = 112
sMS, sE2, sE3, sE1, sE1G = 40, 41, 42, 43, 44

DOC = r"""
; ---------------------------------------------------------------------------------------------------------------
; ---------------------------------------------------------------------------------------------------------------
"""

sDRY = 98

def gen(opt):
    o = dict(DEF); o.update(opt)
    assert o["winkv"] <= 16
    NT = " nt" if o["nt"] else ""
    NTKV = NT if o["ntkv"] < 0 else (" nt" if o["ntkv"] else "")
    a = Asm(); e = a
    uid = [0]
    def L(p):
        uid[0] += 1; return f"L_{p}_{uid[0]}"
    sT, sCNT = 50, 51
    DPP = "row_mask:0xf bank_mask:0xf"
    def srd(d, lo, size):
        e(f"s_mov_b32 s{d}, s{lo}"); e(f"s_and_b32 s{d+1}, s{lo+1}, 0xffff"); e(f"s_mov_b32 s{d+2}, {size}"); e(f"s_mov_b32 s{d+3}, 0x20000")
    def stamp(k):
        if o["stamps"]: e(f"s_memrealtime s[{80+2*k}:{81+2*k}]")
    def dump_stamps(cnts=None, final=False):
        if not o["stamps"]: return
        if o["stamps"] == 3:
            e("s_waitcnt lgkmcnt(0)")
            e("s_mov_b64 exec, -1")
            e("s_lshl_b32 s76, s3, 5"); e(f"s_add_u32 s76, s76, {STL}"); e("v_mov_b32 v20, s76")
            for k in range(8): e(f"v_mov_b32 v{4+k}, s{80+2*k}")
            e("ds_write_b128 v20, v[4:7]"); e("ds_write_b128 v20, v[8:11] offset:16"); e("s_waitcnt lgkmcnt(0)")
            if final:
                e("s_sleep 20")
                e("s_load_dwordx2 s[76:77], s[0:1], 88"); e("s_waitcnt lgkmcnt(0)")
                e("s_mov_b32 s72, s76"); e("s_and_b32 s73, s77, 0xffff"); e("s_mov_b32 s74, 256"); e("s_mov_b32 s75, 0x20000")
                e(f"v_mov_b32 v20, {STL}"); e("v_mov_b32 v23, 0"); e("s_mov_b64 exec, 1")
                sel = [(2,0,1),(2,0,0),(4,1,0),(0,3,0),(0,5,0),(4,4,0),(2,6,0),(2,7,0),(0,0,0),(4,5,0),(2,2,0),(2,3,0),(6,4,0),(6,6,0),(6,7,0),(1,1,0)]
                if o["early"]: sel = [(2,0,1),(2,0,0),(0,4,0),(1,4,0),(2,4,0),(4,6,0),(7,4,0),(4,1,0),(1,2,0),(1,1,0),(0,2,0),(0,3,0),(0,5,0),(4,3,0),(4,4,0),(6,7,0)]
                for slot, (w, k, inv) in enumerate(sel):
                    e(f"ds_read_b32 v4, v20 offset:{w*32+k*4}"); e("s_waitcnt lgkmcnt(0)")
                    if inv: e("v_not_b32 v4, v4")
                    e(f"buffer_atomic_umax v4, v23, s[72:75], 0 offen offset:{4*slot}")
                e("s_waitcnt vmcnt(0)")
            return
        e("s_waitcnt lgkmcnt(0)")
        for (slot, sreg) in (cnts or []):
            e(f"s_mov_b32 s{80+2*slot}, s{sreg}"); e(f"s_mov_b32 s{81+2*slot}, 0")
        e("s_mov_b64 exec, -1")
        e("s_waitcnt vmcnt(0)")
        e("s_lshl_b32 s76, s2, 3"); e("s_add_u32 s76, s76, s3"); e("s_lshl_b32 s76, s76, 6"); e(f"s_add_u32 s76, s76, {STB}")
        for k in range(8):
            e(f"v_mov_b32 v{2*k+4}, s{80+2*k}"); e(f"v_mov_b32 v{2*k+5}, s{81+2*k}")
        e("v_mov_b32 v20, 0")
        e("s_mov_b64 exec, 1")
        for k in range(4):
            e(f"buffer_store_dwordx4 v[{4*k+4}:{4*k+7}], v20, s[28:31], s76 offen offset:{16*k}")
        e("s_waitcnt vmcnt(0)")
    def spin_tick():
        e(f"s_sub_u32 s{sCNT}, s{sCNT}, 1"); e("s_cbranch_scc1 L_abort")
    def and_flags(vt, n):
        if n == 2: e(f"v_and_b32 v{vt}, v{vt}, v{vt+1}")
        if n == 4:
            e(f"v_and_b32 v{vt}, v{vt}, v{vt+1}"); e(f"v_and_b32 v{vt+2}, v{vt+2}, v{vt+3}"); e(f"v_and_b32 v{vt}, v{vt}, v{vt+2}")
    def read_flags(first, n, vt):
        if n == 1: e(f"ds_read_b32 v{vt}, v21 offset:{first*4}")
        elif n == 2: e(f"ds_read_b64 v[{vt}:{vt+1}], v21 offset:{first*4}")
        else: e(f"ds_read_b128 v[{vt}:{vt+3}], v21 offset:{first*4}")
    def wait_flags(first, n, vt, extra=None, sleep=0, lowprio=None):
        if lowprio and o["prio"]: e(f"s_setprio {lowprio[0]}")
        l = L("wf"); e.label(l)
        read_flags(first, n, vt)
        if extra: extra()
        spin_tick()
        if sleep: e(f"s_sleep {sleep}")
        e("s_waitcnt lgkmcnt(0)")
        and_flags(vt, n)
        e(f"v_cmp_ne_u32 vcc, 0, v{vt}")
        e(f"s_cbranch_vccz {l}")
        if lowprio and o["prio"]: e(f"s_setprio {lowprio[1]}")
    def set_flag(idx, vaddr=21):
        e(f"ds_write_b32 v{vaddr}, v22 offset:{idx*4}")
    def bf16r(dst, src):
        e(f"v_cvt_pk_bf16_f32 v{dst}, v{src}, v{src}"); e(f"v_lshlrev_b32 v{dst}, 16, v{dst}")
    def allreduce_row16(v, op, shs=(8, 4, 2, 1)):
        for sh in shs:
            e.nop(2); e(f"{op}_dpp v{v}, v{v}, v{v} row_ror:{sh} {DPP}")
    def allreduce_xrow(v, t, op):
        e(f"v_mov_b32 v{t}, v{v}"); e.nop(2); e(f"v_permlane32_swap_b32 v{v}, v{t}"); e(f"{op} v{v}, v{v}, v{t}")
        e(f"v_mov_b32 v{t}, v{v}"); e.nop(2); e(f"v_permlane16_swap_b32 v{v}, v{t}"); e(f"{op} v{v}, v{v}, v{t}")
    def reduce_scatter4(b):
        e(f"v_permlane32_swap_b32 v{b}, v{b+2}"); e(f"v_permlane32_swap_b32 v{b+1}, v{b+3}")
        e(f"v_add_f32 v{b}, v{b}, v{b+2}"); e(f"v_add_f32 v{b+1}, v{b+1}, v{b+3}"); e.nop(2)
        e(f"v_permlane16_swap_b32 v{b}, v{b+1}"); e(f"v_add_f32 v{b}, v{b}, v{b+1}")
    def ln_stats(xf, t0, vm, vrs):
        s, t = t0, t0 + 1
        e(f"v_add_f32 v{s}, v{xf}, v{xf+1}"); e(f"v_add_f32 v{t}, v{xf+2}, v{xf+3}")
        for k in range(4, 16, 2):
            e(f"v_add_f32 v{s}, v{s}, v{xf+k}"); e(f"v_add_f32 v{t}, v{t}, v{xf+k+1}")
        e(f"v_add_f32 v{s}, v{s}, v{t}")
        allreduce_row16(s, "v_add_f32"); allreduce_xrow(s, t, "v_add_f32")
        e(f"v_mul_f32 v{s}, {f32bits(1/1024):#x}, v{s}")
        e(f"v_sub_f32 v{t}, v{xf}, v{s}"); e(f"v_sub_f32 v{t0+3}, v{xf+1}, v{s}")
        e(f"v_mul_f32 v{t0+2}, v{t}, v{t}"); e(f"v_mul_f32 v{t0+4}, v{t0+3}, v{t0+3}")
        for k in range(2, 16, 2):
            e(f"v_sub_f32 v{t}, v{xf+k}, v{s}"); e(f"v_sub_f32 v{t0+3}, v{xf+k+1}, v{s}")
            e(f"v_fmac_f32 v{t0+2}, v{t}, v{t}"); e(f"v_fmac_f32 v{t0+4}, v{t0+3}, v{t0+3}")
        e(f"v_add_f32 v{t0+2}, v{t0+2}, v{t0+4}")
        allreduce_row16(t0 + 2, "v_add_f32"); allreduce_xrow(t0 + 2, t, "v_add_f32")
        e(f"v_mul_f32 v{t0+2}, {f32bits(1/1024):#x}, v{t0+2}")
        bf16r(vm, s)
        bf16r(t, t0 + 2)
        e(f"v_add_f32 v{t}, {f32bits(1e-5):#x}, v{t}")
        bf16r(t, t)
        e(f"v_sqrt_f32 v{t}, v{t}"); e.nop(1)
        bf16r(t, t)
        e(f"v_rcp_f32 v{vrs}, v{t}"); e.nop(1)
    def unpack(dlo, dhi, src):
        e(f"v_lshlrev_b32 v{dlo}, 16, v{src}"); e(f"v_and_b32 v{dhi}, 0xffff0000, v{src}")
    def tagbytes(s0):
        for k in range(4):
            e(f"s_lshr_b32 s{s0+k}, s{sT}, {8*k}"); e(f"s_and_b32 s{s0+k}, s{s0+k}, 0xff")
    def chk4(b, t):
        e(f"v_xor_b32 v{t}, s60, v{b}"); e(f"v_bitop3_b32 v{t}, v{t}, v{b+1}, s61 bitop3:0xf6"); e(f"v_bitop3_b32 v{t}, v{t}, v{b+2}, s62 bitop3:0xf6")
        e(f"v_bitop3_b32 v{t}, v{t}, v{b+3}, s63 bitop3:0xf6"); e(f"v_and_b32 v{t}, 0xff, v{t}"); e(f"v_cmp_ne_u32 vcc, 0, v{t}")
    def mpoll(loads, cnt=None, pre=None, shadow=None):
        top = L("mp"); ent = L("me")
        for ld in loads:
            ini = ld.get('init', -1); m = ld['mask']
            if ini == -1: e(f"s_mov_b64 s[{m}:{m+1}], -1")
            else: e(f"s_mov_b32 s{m}, {ini[0]:#x}"); e(f"s_mov_b32 s{m+1}, {ini[1]:#x}")
        if cnt: e(f"s_mov_b32 s{cnt}, 0")
        for ld in loads:
            m = ld['mask']
            if ld.get('init', -1) != -1: e(f"s_mov_b64 exec, s[{m}:{m+1}]")
            ld['issue']()
            if ld.get('init', -1) != -1: e("s_mov_b64 exec, -1")
        if shadow: shadow()
        e(f"s_branch {ent}")
        e.label(top)
        spin_tick()
        if pre: pre()
        for ld in loads:
            sk = L("sk"); m = ld['mask']
            e(f"s_mov_b64 exec, s[{m}:{m+1}]"); e(f"s_cbranch_execz {sk}"); ld['issue'](); e.label(sk)
        e("s_mov_b64 exec, -1")
        e.label(ent)
        if cnt: e(f"s_add_u32 s{cnt}, s{cnt}, 1")
        e("s_waitcnt vmcnt(0)")
        e("s_mov_b64 s[66:67], 0")
        for ld in loads:
            sk = L("sc"); m = ld['mask']
            e(f"s_mov_b64 exec, s[{m}:{m+1}]"); e(f"s_cbranch_execz {sk}")
            ld['check']()
            if ld.get('take'):
                e("s_andn2_b64 exec, exec, vcc"); sk2 = L("sd"); e(f"s_cbranch_execz {sk2}"); ld['take'](); e.label(sk2)
            e(f"s_mov_b64 s[{m}:{m+1}], vcc"); e("s_or_b64 s[66:67], s[66:67], vcc")
            e.label(sk)
        e("s_mov_b64 exec, -1")
        e("s_cmp_lg_u64 s[66:67], 0"); e(f"s_cbranch_scc1 {top}")
    LOW = (0, 3)

    e("s_cmp_ge_u32 s2, 256"); e("s_cbranch_scc1 L_exit")
    stamp(0)
    e("s_load_dwordx16 s[4:19], s[0:1], 0")
    e("s_load_dwordx4 s[20:23], s[0:1], 64")
    e("s_load_dwordx2 s[24:25], s[0:1], 80")
    e("s_load_dwordx2 s[26:27], s[0:1], 96")
    e("v_lshrrev_b32 v1, 6, v0"); e("v_and_b32 v0, 63, v0")
    e("s_and_b32 s48, s2, 7")
    e("v_readfirstlane_b32 s3, v1")
    e("s_lshr_b32 s49, s2, 3")
    e("s_lshl_b32 s46, s48, 3"); e("s_and_b32 s47, s49, 7"); e("s_add_u32 s46, s46, s47"); e("s_lshr_b32 s47, s49, 3")
    def common_init():
        e("v_lshrrev_b32 v2, 4, v0"); e("v_and_b32 v3, 15, v0")
        e(f"s_mov_b32 s{sCNT}, {o['spinmax']}")
        e(f"v_mov_b32 v21, {FL}"); e("v_mov_b32 v22, 1"); e(f"s_mov_b32 s{sDRY}, 0")
    e("s_cmp_eq_u32 s3, 0"); e("s_cbranch_scc0 L_not0")
    e("v_lshrrev_b32 v24, 3, v0"); e("v_and_b32 v25, 7, v0"); e("v_lshlrev_b32 v25, 4, v25")
    e("v_bfe_u32 v27, v24, 1, 2"); e("v_lshlrev_b32 v27, 5, v27"); e("v_xor_b32 v25, v25, v27")
    e("v_lshl_add_u32 v24, v24, 13, v25")
    e("s_lshl_b32 s56, s47, 21"); e("s_lshl_b32 s57, s46, 7"); e("s_add_u32 s56, s56, s57")
    e(f"s_mov_b32 m0, {WQ}"); e("s_mov_b32 s57, 0")
    e("s_mov_b32 s38, 8388608"); e("s_mov_b32 s39, 0x20000")
    e("s_waitcnt lgkmcnt(0)")
    e("s_mov_b32 s36, s10"); e("s_and_b32 s37, s11, 0xffff")
    UN = o["wqun"]
    e.label("L_wqloop")
    for u_ in range(UN):
        e(f"buffer_load_dwordx4 v24, s[36:39], s56 offen{NT} lds")
        e("s_add_u32 m0, m0, 1024"); e(f"s_add_u32 s56, s56, {8*8192}")
    if UN < 32:
        e(f"s_add_u32 s57, s57, {UN}"); e("s_cmp_lt_u32 s57, 32"); e("s_cbranch_scc1 L_wqloop")
    if o["early"]: stamp(4)
    common_init()
    e("s_barrier")
    e("s_branch L_qproj")
    e.label("L_not0")
    common_init()
    e("s_cmp_eq_u32 s3, 1"); e("s_cbranch_scc0 L_not1")
    e("v_lshlrev_b32 v23, 5, v0"); e("v_mov_b32 v24, 0")
    e("s_waitcnt lgkmcnt(0)")
    srd(28, 26, 268435456); srd(32, 4, 2048)
    e("buffer_load_dwordx4 v[4:7], v23, s[32:35], 0 offen")
    e("buffer_load_dwordx4 v[8:11], v23, s[32:35], 0 offen offset:16")
    e("buffer_load_dword v20, v24, s[28:31], 0 offen sc1")
    if o["early"]: stamp(4)
    e("s_barrier")
    e("s_branch L_ln")
    e.label("L_not1")
    e("s_cmp_ge_u32 s3, 6"); e("s_cbranch_scc1 L_bearly")
    e("s_cmp_ge_u32 s3, 4"); e("s_cbranch_scc1 L_learly")
    if o["cpf"]:
        lc = L("cpf"); e("s_cmp_eq_u32 s3, 2"); e(f"s_cbranch_scc0 {lc}")
        e("s_getpc_b64 s[54:55]")
        e.label("L_pc")
        e(f"s_sub_u32 s54, s54, L_pc-{KN}_kernel"); e("s_subb_u32 s55, s55, 0")
        e("s_mul_i32 s56, s49, 6"); e("v_add_u32 v24, s56, v0"); e("v_lshlrev_b32 v24, 7, v24")
        e(f"s_mov_b32 s56, L_exit-{KN}_kernel")
        e("v_cmp_gt_u32 vcc, s56, v24")
        e("s_and_b64 exec, vcc, 0x3f")
        lc2 = L("cpf"); e(f"s_cbranch_execz {lc2}")
        e("global_load_dword v150, v24, s[54:55]")
        e.label(lc2)
        e("s_mov_b64 exec, -1")
        e.label(lc)
    if o["tlb"]:
        lt = L("tlb"); e("s_cmp_eq_u32 s3, 3"); e(f"s_cbranch_scc0 {lt}")
        e("s_lshr_b32 s53, s48, 1"); e("s_lshl_b32 s53, s53, 24"); e("s_and_b32 s54, s48, 1"); e("s_lshl_b32 s54, s54, 4"); e("s_lshr_b32 s55, s49, 1"); e("s_add_u32 s54, s54, s55")
        e("s_lshl_b32 s54, s54, 15"); e("s_add_u32 s53, s53, s54"); e(f"s_add_u32 s53, s53, {KEY0*256}")
        e("s_lshr_b32 s55, s49, 2"); e("s_lshl_b32 s55, s55, 3"); e("s_add_u32 s55, s55, s48"); e("s_lshl_b32 s55, s55, 17")
        e("v_mov_b32 v24, s53"); e("v_mov_b32 v25, s55"); e("v_mov_b32 v26, 0")
        e("s_waitcnt lgkmcnt(0)")
        e("s_mov_b64 exec, 1")
        e("global_load_dword v151, v24, s[8:9]" + NT); e("global_load_dword v152, v25, s[12:13]" + NT)
        e("global_load_dword v153, v24, s[6:7]" + NT); e("global_load_dword v154, v26, s[24:25]")
        e("s_mov_b64 exec, -1")
        e.label(lt)
    if o["early"]: stamp(4)
    e("s_barrier")
    e("s_branch L_w23")
    e.label("L_learly")
    lz = L("nz"); e("s_cmp_eq_u32 s3, 4"); e(f"s_cbranch_scc0 {lz}")
    e("v_lshlrev_b32 v4, 2, v0"); e(f"v_add_u32 v4, {FL}, v4"); e("v_mov_b32 v5, 0")
    if o["dry"]:
        e("v_lshrrev_b32 v6, 5, v0"); e(f"v_mul_u32_u24 v7, {DFL - FL - 128}, v6"); e("v_add_u32 v4, v4, v7"); e("ds_write_b32 v4, v6")
    else:
        e("s_mov_b64 exec, 0xffffffff"); e("ds_write_b32 v4, v5"); e("s_mov_b64 exec, -1")
    if o["kgate"]: e(f"ds_write_b32 v21, v5 offset:{F_KG*4}")
    e("s_waitcnt lgkmcnt(0)")
    e.label(lz)
    if o["early"]: stamp(6)
    if not o["lbar"]: e("s_barrier")
    e("s_branch L_loader")
    e.label("L_bearly")
    e("s_sub_u32 s52, s3, 6")
    e("s_lshr_b32 s53, s2, 4"); e("s_and_b32 s54, s2, 15")
    e("v_and_b32 v23, 31, v0"); e("v_lshlrev_b32 v23, 1, v23"); e("s_lshl_b32 s55, s53, 7"); e("s_lshl_b32 s56, s52, 6"); e("s_add_u32 s55, s55, s56")
    e("s_mul_i32 s56, s54, 448"); e("v_lshlrev_b32 v24, 1, v0")
    e("s_waitcnt lgkmcnt(0)")
    srd(28, 26, 268435456); srd(32, 4, 2048)
    srd(36, 16, 7168); srd(40, 18, 7168); srd(44, 20, 7168)
    if o["bafter"]: e("s_barrier")
    e("buffer_load_ushort v12, v23, s[32:35], s55 offen")
    for n in range(4):
        e(f"buffer_load_ushort v{40+2*n}, v24, s[36:39], s56 offen offset:{128*n}")
        e(f"buffer_load_ushort v{41+2*n}, v24, s[40:43], s56 offen offset:{128*n}")
        e(f"buffer_load_ushort v{48+2*n}, v24, s[44:47], s56 offen offset:{128*n}")
    e("s_load_dword s59, s[22:23], 0")
    if o["early"]: stamp(4)
    if not o["bafter"]: e("s_barrier")
    e("s_branch L_bbranch")

    def common_srd():
        e("s_waitcnt lgkmcnt(0)")
        srd(28, 26, 268435456)
        srd(32, 4, 2048)

    def prep():
        e("s_lshr_b32 s52, s48, 1"); e("s_lshl_b32 s52, s52, 3"); e("s_and_b32 s54, s49, 1"); e("s_lshl_b32 s54, s54, 2"); e("s_add_u32 s52, s52, s54")
        e("s_and_b32 s54, s48, 1"); e("s_lshl_b32 s54, s54, 4"); e("s_lshr_b32 s55, s49, 1"); e("s_add_u32 s55, s55, s54")
        e("s_lshl_b32 s57, s3, 2"); e(f"v_add_u32 v{vFLW}, s57, v21")
        e("v_lshrrev_b32 v28, 2, v3")
        for u in range(4):
            e(f"v_cmp_eq_u32 vcc, {u}, v28"); e.nop(2); e(f"v_cndmask_b32 v{vMASK+u}, 0, -1, vcc")
        e("v_lshrrev_b32 v28, 3, v0"); e("v_and_b32 v29, 7, v0")
        for i in range(2):
            e(f"v_add_u32 v30, {8*i}, v28")
            e("v_and_b32 v31, 3, v30"); e("v_lshlrev_b32 v31, 2, v31"); e(f"v_lshrrev_b32 v{vE1V+i}, 2, v30"); e(f"v_add_u32 v31, v31, v{vE1V+i}"); e("v_lshlrev_b32 v31, 9, v31")
            e(f"v_lshl_add_u32 v{vE1V+i}, v29, 4, v31")
            e("v_lshrrev_b32 v31, 1, v29"); e("v_lshl_add_u32 v31, v31, 4, v30"); e("v_lshlrev_b32 v31, 4, v31")
            e("v_and_b32 v30, 1, v29"); e("v_lshl_add_u32 v31, v30, 3, v31")
            e("s_lshl_b32 s57, s3, 10"); e(f"s_add_u32 s57, s57, {QF}"); e(f"v_add_u32 v{vE1L+i}, s57, v31")
        e(f"s_lshl_b32 s{sE1G}, s52, 11"); e("s_lshl_b32 s57, s3, 7"); e(f"s_add_u32 s{sE1G}, s{sE1G}, s57"); e(f"s_add_u32 s{sE1G}, s{sE1G}, {QB}")
        if o["local"]:
            e("s_xor_b32 s57, s48, s49"); e("s_and_b32 s57, s57, 1")
            e(f"s_mov_b32 s58, {QL - QB}"); e("s_cmp_eq_u32 s57, 0"); e("s_cselect_b32 s58, s58, 0"); e(f"s_add_u32 s{sE1}, s{sE1G}, s58")
        else: e(f"s_mov_b32 s{sE1}, s{sE1G}")
        e(f"v_lshlrev_b32 v{vL16}, 4, v0"); e(f"v_add_u32 v{vQFR}, {QF}, v{vL16}")
        e("s_lshl_b32 s57, s3, 13"); e(f"s_add_u32 s57, s57, {KL}")
        e("v_lshlrev_b32 v28, 8, v3"); e("v_add_u32 v28, s57, v28"); e("v_xor_b32 v29, v2, v3"); e(f"v_lshl_add_u32 v{vKA}, v29, 4, v28")
        for t in range(1, 4): e(f"v_xor_b32 v{vKA+t}, {t<<6}, v{vKA}")
        e("v_lshrrev_b32 v28, 2, v3"); e("v_lshl_add_u32 v28, v2, 2, v28")
        e("v_and_b32 v29, 7, v28"); e("v_lshlrev_b32 v29, 5, v29"); e("v_lshl_add_u32 v28, v28, 8, v29")
        e("v_and_b32 v29, 3, v3"); e("v_lshl_add_u32 v28, v29, 3, v28")
        e("s_lshl_b32 s57, s3, 13"); e(f"s_add_u32 s57, s57, {VL}"); e(f"v_add_u32 v{vVA}, s57, v28")
        for t in range(1, 8): e(f"v_xor_b32 v{vVA+t}, {t<<5}, v{vVA}")
        e("s_lshl_b32 s57, s3, 11"); e(f"s_add_u32 s57, s57, {OP}"); e(f"v_add_u32 v{vOPW}, s57, v{vL16}")
        e("s_lshl_b32 s57, s3, 3"); e(f"s_add_u32 s57, s57, {ML}"); e("v_lshlrev_b32 v28, 5, v3"); e(f"v_add_u32 v{vMLW}, s57, v28")
        e("s_and_b32 s57, s3, 1"); e("s_lshl_b32 s57, s57, 10"); e(f"s_add_u32 s57, s57, {OP}"); e(f"v_add_u32 v{vOPR}, s57, v{vL16}")
        e("v_and_b32 v28, 3, v3"); e("v_lshlrev_b32 v29, 5, v28"); e(f"v_add_u32 v{vMLR}, {ML}, v29")
        e("v_lshlrev_b32 v28, 14, v28"); e("v_lshrrev_b32 v29, 3, v3"); e("v_lshl_add_u32 v28, v29, 13, v28")
        e("v_bfe_u32 v29, v3, 2, 1"); e("v_lshl_add_u32 v29, v29, 2, v2"); e(f"v_lshl_add_u32 v{vMST}, v29, 4, v28")
        e(f"s_lshl_b32 s{sMS}, s52, 14"); e("s_lshl_b32 s57, s55, 8"); e(f"s_add_u32 s{sMS}, s{sMS}, s57"); e("s_and_b32 s57, s3, 1"); e("s_lshl_b32 s57, s57, 7")
        e(f"s_add_u32 s{sMS}, s{sMS}, s57"); e(f"s_add_u32 s{sMS}, s{sMS}, {OB}")
        if o["gmap"]: e("s_lshr_b32 s56, s49, 2"); e("s_lshl_b32 s57, s48, 3"); e("s_add_u32 s56, s56, s57")
        else: e("s_lshr_b32 s56, s49, 2"); e("s_lshl_b32 s56, s56, 3"); e("s_add_u32 s56, s56, s48")
        e(f"s_lshl_b32 s{sE2}, s56, 13"); e("s_lshl_b32 s57, s3, 11"); e(f"s_add_u32 s{sE2}, s{sE2}, s57"); e(f"s_add_u32 s{sE2}, s{sE2}, {OB}")
        e("v_lshrrev_b32 v28, 2, v3"); e("v_lshl_add_u32 v29, v28, 2, v2"); e("v_lshlrev_b32 v29, 9, v29")
        e("v_and_b32 v30, 1, v2"); e("v_lshl_add_u32 v30, v30, 2, v28"); e("v_lshl_add_u32 v29, v30, 5, v29")
        e("v_and_b32 v30, 3, v3"); e("v_lshl_add_u32 v29, v30, 3, v29"); e(f"v_add_u32 v29, {WO}, v29")
        e("s_lshl_b32 s57, s3, 7"); e(f"v_xor_b32 v{vWOA}, s57, v29")
        for u in range(1, 4): e(f"v_xor_b32 v{vWOA+u}, {u<<5}, v{vWOA}")
        e("s_and_b32 s57, s49, 3"); e("s_lshl_b32 s57, s57, 3"); e("s_lshl_b32 s58, s3, 1"); e("s_add_u32 s57, s57, s58"); e(f"s_lshl_b32 s{sE3}, s57, 13")
        e("s_lshl_b32 s57, s56, 7"); e(f"s_add_u32 s{sE3}, s{sE3}, s57"); e(f"s_add_u32 s{sE3}, s{sE3}, {FB}")
        e("v_lshrrev_b32 v28, 3, v3"); e("v_lshlrev_b32 v28, 13, v28"); e("v_and_b32 v29, 7, v3"); e(f"v_lshl_add_u32 v{vE3V}, v29, 4, v28")
        e(f"v_add_u32 v{vOXR}, {OX}, v{vL16}"); e("s_lshl_b32 s57, s3, 2"); e(f"v_add_u32 v{vOXW}, s57, v{vOXR}")

    e.label("L_ln")
    if o["prio"]: e("s_setprio 3")
    e("s_lshl_b32 s54, s47, 4"); e("v_subrev_u32 v23, s54, v0"); e("v_lshlrev_b32 v23, 5, v23"); e(f"v_add_u32 v23, {XN}, v23")
    e("s_mov_b32 s56, 0xffff"); e("s_mov_b32 s57, 0"); e("s_lshl_b64 s[58:59], s[56:57], s54")
    e("s_waitcnt vmcnt(0)")
    stamp(2)
    e(f"v_readfirstlane_b32 s{sT}, v20")
    for k in range(8): unpack(24 + 2 * k, 25 + 2 * k, 4 + k)
    e(f"s_add_u32 s{sT}, s{sT}, 1"); e(f"s_mul_i32 s{sT}, s{sT}, {TMUL:#x}")
    ln_stats(24, 98, 104, 105)
    e(f"v_mov_b32 v20, s{sT}"); e(f"ds_write_b32 v21, v20 offset:{F_T*4}")
    for k in range(16): e(f"v_sub_f32 v{24+k}, v{24+k}, v104")
    for k in range(8): e(f"v_cvt_pk_bf16_f32 v{4+k}, v{24+2*k}, v{25+2*k}")
    for k in range(8): unpack(24 + 2 * k, 25 + 2 * k, 4 + k)
    for k in range(16): e(f"v_mul_f32 v{24+k}, v{24+k}, v105")
    for k in range(8): e(f"v_cvt_pk_bf16_f32 v{4+k}, v{24+2*k}, v{25+2*k}")
    e("s_mov_b64 exec, s[58:59]")
    e("ds_write_b128 v23, v[4:7]"); e("ds_write_b128 v23, v[8:11] offset:16")
    e("s_mov_b64 exec, -1")
    set_flag(F_XN)
    stamp(1)
    for k in range(8): unpack(24 + 2 * k, 25 + 2 * k, 4 + k)
    ln_stats(24, 98, 106, 107)
    e(f"v_mov_b32 v23, {LNS}"); e("ds_write_b128 v23, v[104:107]")
    set_flag(F_LN2)
    stamp(3)
    e("s_branch L_prep")
    e.label("L_qproj")
    if o["prio"]: e("s_setprio 3")
    stamp(1)
    srd(28, 26, 268435456)
    e("s_branch L_prep")
    e.label("L_qproj2")
    e("v_lshrrev_b32 v24, 2, v3"); e("v_and_b32 v25, 3, v3")
    e("v_lshlrev_b32 v26, 2, v2"); e("v_add_u32 v26, v26, v24")
    e("v_lshrrev_b32 v27, 1, v26"); e("v_and_b32 v27, 3, v27")
    e("v_lshlrev_b32 v26, 7, v26"); e("v_lshlrev_b32 v25, 3, v25"); e("v_add_u32 v26, v26, v25")
    e("v_lshlrev_b32 v27, 5, v27"); e("v_add_u32 v108, v26, v27")
    for u in range(1, 4): e(f"v_xor_b32 v{108+u}, {u<<5}, v108")
    e("s_lshr_b32 s57, s46, 1"); e("s_lshl_b32 s57, s57, 11"); e("s_and_b32 s58, s46, 1"); e("s_lshl_b32 s58, s58, 8"); e("s_add_u32 s57, s57, s58")
    e("s_lshl_b32 s58, s47, 9"); e("s_add_u32 s57, s57, s58"); e(f"s_add_u32 s46, s57, {QB}"); e(f"s_add_u32 s47, s57, {QL}")
    e("v_lshlrev_b32 v27, 2, v0")
    e("v_lshlrev_b32 v26, 3, v2"); e(f"v_add_u32 v26, {XN}, v26")
    def xn_extra():
        e(f"ds_read_b32 v29, v21 offset:{F_T*4}")
        for k in range(8): e(f"ds_read2_b64 v[{40+4*k}:{43+4*k}], v26 offset0:{8*k} offset1:{8*k+4}")
    wait_flags(F_XN, 1, 28, extra=xn_extra)
    e(f"v_readfirstlane_b32 s{sT}, v29")
    stamp(2)
    csc = math.log2(math.e) / math.sqrt(128.0)
    e(f"s_mov_b32 s58, {f32bits(csc):#x}")
    def wq_reads(k):
        B = 128 + 16 * (k & 1)
        for u in range(4):
            for rho in range(2):
                r = B + 4 * u + 2 * rho
                e(f"ds_read_b64_tr_b16 v[{r}:{r+1}], v{108+u} offset:{k*4096 + rho*2048}")
    if o["kgate"] == 1: set_flag(F_KG)
    e("s_waitcnt vmcnt(28)")
    wq_reads(0)
    for k in range(8):
        if o["kgate"] == k + 2: set_flag(F_KG)
        B = 128 + 16 * (k & 1)
        if k < 7:
            e(f"s_waitcnt vmcnt({24 - 4*k})")
            if k == 6: stamp(3)
            wq_reads(k + 1)
            e("s_waitcnt lgkmcnt(8)")
        else:
            e("s_waitcnt lgkmcnt(0)")
        for u in range(4):
            c = "0" if k == 0 else f"v[{72+4*u}:{75+4*u}]"
            e(f"v_mfma_f32_16x16x32_bf16 v[{72+4*u}:{75+4*u}], v[{40+4*k}:{43+4*k}], v[{B+4*u}:{B+4*u+3}], {c}")
    e(f"v_mov_b32 v49, s{sT}"); e(f"v_mov_b32 v51, s{sT}")
    e("s_mov_b32 s56, 0x11111111"); e("s_mov_b32 s57, 0x11111111")
    e("s_mov_b32 s60, 0xffff0000"); e("s_mov_b32 s61, 0"); e("s_mov_b32 s62, 0"); e("s_mov_b32 s63, 0xffff"); e("s_mov_b32 s64, 0"); e("s_mov_b32 s65, 0xffff0000")
    e.nop(2)
    e("v_cndmask_b32 v104, v72, v76, s[60:61]"); e("v_cndmask_b32 v104, v104, v80, s[62:63]"); e("v_cndmask_b32 v104, v104, v84, s[64:65]")
    e("v_mul_f32 v104, s58, v104"); e.nop(2)
    e(f"v_mov_b32_dpp v105, v104 quad_perm:[1,0,3,2] {DPP}")
    e("v_cvt_pk_bf16_f32 v48, v104, v105"); e.nop(2)
    e(f"v_mov_b32_dpp v50, v48 quad_perm:[2,3,0,1] {DPP}")
    e("s_mov_b64 exec, s[56:57]")
    if o["local"]: e("buffer_store_dwordx4 v[48:51], v27, s[28:31], s47 offen")
    e("buffer_store_dwordx4 v[48:51], v27, s[28:31], s46 offen sc1")
    e("s_mov_b64 exec, -1")
    set_flag(F_QPUB)
    stamp(5)
    e("s_branch L_attn")

    if o["pages"]: e(".p2align 12")
    e.label("L_w23")
    if o["prio"]: e("s_setprio 3")
    common_srd()
    e.label("L_prep")
    prep()
    e("s_cmp_eq_u32 s3, 0"); e("s_cbranch_scc1 L_qproj2")
    e("s_cmp_eq_u32 s3, 1"); e("s_cbranch_scc1 L_attn")
    if o["dry"]:
        e(f"s_mov_b32 s{sDRY}, s3"); e("s_mov_b32 s30, 0"); e(f"s_mov_b32 s{sT}, 0")
        e(f"v_mov_b32 v21, {DFL}"); e(f"v_mov_b32 v{vFLW}, {DFL}")
        e(f"s_mov_b32 s59, 0"); tagbytes(60); e("s_mov_b32 s64, 0x07060500")
        e("s_cmp_eq_u32 s3, 2"); e("s_cbranch_scc1 L_e2c")
        e("s_mov_b32 s3, 1")
        e("s_branch L_qk")
        e.label("L_dryret")
        e(f"s_mov_b32 s3, s{sDRY}"); e(f"s_mov_b32 s{sDRY}, 0"); e("s_mov_b32 s30, 268435456")
        e(f"v_mov_b32 v21, {FL}"); e("s_lshl_b32 s57, s3, 2"); e(f"v_add_u32 v{vFLW}, s57, v21")
        e.label("L_nodry")
    wait_flags(F_XN, 1, 28, extra=lambda: e(f"ds_read_b32 v29, v21 offset:{F_T*4}"), sleep=o["slp"], lowprio=LOW)
    e(f"v_readfirstlane_b32 s{sT}, v29")
    e.label("L_attn")
    wait_flags(F_QPUB, 1, 28, sleep=o["slp"], lowprio=LOW)
    if o["rearly"]:
        lloc = L("loc"); lgo = L("go")
        e(f"s_cmp_lg_u32 s{sE1}, s{sE1G}"); e(f"s_cbranch_scc1 {lloc}")
        e(f"s_sleep {o['rearly']}"); e("s_mov_b32 s59, 0"); e(f"s_branch {lgo}")
        e.label(lloc)
        wait_flags(F_VI, 2, 28, lowprio=LOW); e("s_mov_b32 s59, 1")
        e.label(lgo)
    else:
        if o["dl1"]: e(f"s_sleep {o['dl1']}")
        wait_flags(F_VI, 2, 28, lowprio=LOW)
    PB = 128
    def mk_e1(i):
        b = PB + 4 * i
        return dict(issue=lambda: e(f"buffer_load_dwordx4 v[{b}:{b+3}], v{vE1V+i}, s[28:31], s{sE1} offen sc1"),
                    check=lambda: (e(f"v_xor_b32 v36, s{sT}, v{b+1}"), e(f"v_xor_b32 v37, s{sT}, v{b+3}"), e("v_or_b32 v36, v36, v37"), e("v_cmp_ne_u32 vcc, 0, v36")),
                    take=lambda: e(f"ds_write2_b32 v{vE1L+i}, v{b}, v{b+2} offset0:0 offset1:1"), mask=70 + 2 * i)
    def kreads():
        for kt in range(2):
            for t in range(4):
                r = 40 + 16 * kt + 4 * t
                e(f"ds_read_b128 v[{r}:{r+3}], v{vKA+t} offset:{kt*4096}")
    def e1_pre():
        if o["local"]: e(f"s_cmp_ge_u32 s68, {o['fb1']}"); e(f"s_cselect_b32 s{sE1}, s{sE1G}, s{sE1}")
    if not o["early"]: stamp(1)
    def e1_shadow():
        if o["wpre"] or o["vh"] < 16: e(f"ds_write_b32 v{vFLW}, v22 offset:{F_P1*4}")
        if o["rearly"]:
            lk = L("nk"); e("s_cmp_eq_u32 s59, 0"); e(f"s_cbranch_scc1 {lk}"); kreads(); e.label(lk)
        elif o["vi"] >= 16: kreads()
    mpoll([mk_e1(0), mk_e1(1)], cnt=68, pre=e1_pre, shadow=e1_shadow)
    e.label("L_qk")
    e(f"ds_write_b32 v{vFLW}, v22 offset:{F_QF*4}")
    stamp(6)
    if o["rearly"]:
        lk2 = L("k2"); e("s_cmp_lg_u32 s59, 0"); e(f"s_cbranch_scc1 {lk2}"); wait_flags(F_K, 2, 28); kreads(); e.label(lk2)
    elif o["vi"] < 16:
        wait_flags(F_K, 2, 28); kreads()
    VF = 160
    def vreads():
        for t in range(8):
            for rho in range(2):
                r = VF + 4 * t + 2 * rho
                e(f"ds_read_b64_tr_b16 v[{r}:{r+1}], v{vVA+t} offset:{rho*4096}")
    def qf_extra():
        e(f"ds_read_b64 v[32:33], v21 offset:{F_V*4}")
        for t in range(4): e(f"ds_read_b128 v[{72+4*t}:{75+4*t}], v{vQFR} offset:{t*1024}")
    wait_flags(F_QF, 4, 28, extra=qf_extra)
    for t in range(4):
        for kt in range(2):
            c = "0" if t == 0 else f"v[{88+4*kt}:{91+4*kt}]"
            e(f"v_mfma_f32_16x16x32_bf16 v[{88+4*kt}:{91+4*kt}], v[{40+16*kt+4*t}:{43+16*kt+4*t}], v[{72+4*t}:{75+4*t}], {c}")
    e("v_and_b32 v32, v32, v33"); e("v_cmp_ne_u32 vcc, 0, v32")
    e("s_mov_b32 s59, 0")
    lv = L("vlate"); e(f"s_cbranch_vccz {lv}")
    vreads(); e("s_mov_b32 s59, 1")
    e.label(lv)
    for m in range(4): e(f"v_mov_b32 v{44+m}, 0x3f803f80")
    e.nop(3)
    S = list(range(88, 96))
    for s_ in S: e(f"v_add_f32_dpp v{s_+8}, v{s_}, v{s_} row_ror:4 {DPP}")
    for s_ in S: e(f"v_add_f32_dpp v{s_}, v{s_+8}, v{s_+8} row_ror:8 {DPP}")
    e("v_max3_f32 v96, v88, v89, v90"); e("v_max3_f32 v97, v91, v92, v93"); e("v_max3_f32 v96, v96, v94, v95"); e("v_max_f32 v96, v96, v97")
    allreduce_xrow(96, 97, "v_max_f32")
    for s_ in S: e(f"v_sub_f32 v{s_}, v{s_}, v96")
    for s_ in S: e(f"v_exp_f32 v{s_}, v{s_}")
    e.nop(1)
    for m in range(4): e(f"v_cvt_pk_bf16_f32 v{100+m}, v{88+2*m}, v{89+2*m}")
    lw = L("vok"); e("s_cmp_lg_u32 s59, 0"); e(f"s_cbranch_scc1 {lw}")
    wait_flags(F_V, 2, 28); vreads()
    e.label(lw)
    for m in range(4): e(f"v_and_b32 v{72+m}, v{100+m}, v{vMASK}")
    for m in range(4): e(f"v_and_b32 v{76+m}, v{100+m}, v{vMASK+1}")
    e("s_waitcnt lgkmcnt(0)")
    first = [True, True]
    for t in range(8):
        ee = (t >> 1) & 1; u = 2 * (t >> 2) + (t & 1)
        c = "0" if first[ee] else f"v[{104+4*ee}:{107+4*ee}]"; first[ee] = False
        e(f"v_mfma_f32_16x16x32_bf16 v[{104+4*ee}:{107+4*ee}], v[{VF+4*t}:{VF+4*t+3}], v[{72+4*u}:{75+4*u}], {c}")
        if t in (0, 1):
            for m in range(4): e(f"v_and_b32 v{80+4*t+m}, v{100+m}, v{vMASK+2+t}")
    e("v_mfma_f32_16x16x32_bf16 v[92:95], v[44:47], v[100:103], 0")
    e.nop(6)
    e(f"ds_write_b128 v{vOPW}, v[104:107]")
    e(f"ds_write_b128 v{vOPW}, v[108:111] offset:1024")
    e("v_mov_b32 v97, v92")
    e("s_mov_b64 exec, 0xf")
    e(f"ds_write_b64 v{vMLW}, v[96:97]")
    e("s_mov_b64 exec, -1")
    e(f"ds_write_b32 v{vFLW}, v22 offset:{F_O*4}")
    stamp(7)
    tagbytes(60); e("s_mov_b32 s64, 0x07060500"); e("s_mov_b32 s59, 0")
    e("s_cmp_ge_u32 s3, 2"); e("s_cbranch_scc1 L_e2")
    e(f"v_mov_b32 v63, s{sT}")
    def mg_extra():
        for w in range(4): e(f"ds_read_b128 v[{32+4*w}:{35+4*w}], v{vOPR} offset:{w*2048}")
        e(f"ds_read_b128 v[48:51], v{vMLR}"); e(f"ds_read_b128 v[52:55], v{vMLR} offset:16")
    wait_flags(F_O, 4, 28, extra=mg_extra)
    e("v_max3_f32 v56, v48, v50, v52"); e("v_max_f32 v56, v56, v54")
    for w in range(4): e(f"v_sub_f32 v{48+2*w}, v{48+2*w}, v56")
    for w in range(4): e(f"v_exp_f32 v{48+2*w}, v{48+2*w}")
    e.nop(1)
    e("v_mul_f32 v57, v48, v49")
    for m in range(4): e(f"v_mul_f32 v{32+m}, v{32+m}, v48")
    for w in range(1, 4): e(f"v_fmac_f32 v57, v{48+2*w}, v{49+2*w}")
    for m in range(4): e(f"v_fmac_f32 v{32+m}, v{36+m}, v50")
    e("v_rcp_f32 v58, v57"); e("v_log_f32 v59, v57")
    for w in range(2, 4):
        for m in range(4): e(f"v_fmac_f32 v{32+m}, v{32+4*w+m}, v{48+2*w}")
    e("v_add_f32 v62, v56, v59")
    for m in range(4): e(f"v_mul_f32 v{32+m}, v{32+m}, v58")
    e("v_cvt_pk_bf16_f32 v60, v32, v33"); e("v_cvt_pk_bf16_f32 v61, v34, v35")
    e(f"buffer_store_dwordx4 v[60:63], v{vMST}, s[28:31], s{sMS} offen sc1")
    e(f"ds_write_b32 v{vFLW}, v22 offset:{F_MP*4}")
    if o["stamps"]: e("s_memrealtime s[80:81]")

    e.label("L_e2")
    if o["dry"]: e(f"s_cmp_eq_u32 s{sDRY}, 3"); e("s_cbranch_scc1 L_dryret"); e.label("L_e2b")
    def woreads():
        for u in range(4):
            for tp in range(4):
                r = 40 + 8 * u + 2 * tp
                e(f"ds_read_b64_tr_b16 v[{r}:{r+1}], v{vWOA+u} offset:{tp*8192}")
    def wo_try():
        lskip = L("wo"); e("s_cmp_lg_u32 s59, 0"); e(f"s_cbranch_scc1 {lskip}")
        e(f"ds_read_b64 v[28:29], v21 offset:{F_WO*4}"); e("s_waitcnt lgkmcnt(0)")
        e("v_and_b32 v28, v28, v29"); e("v_cmp_ne_u32 vcc, 0, v28"); e(f"s_cbranch_vccz {lskip}")
        woreads(); e("s_mov_b32 s59, 1")
        e.label(lskip)
    for k in range(4): e(f"v_mov_b32 v{8+k}, s{60+k}")
    e("v_mov_b32 v10, v10") if False else None
    wait_flags(F_MP, 2, 28, lowprio=LOW)
    if o["dl2r"] >= 0:
        lr1 = L("dr"); lr2 = L("dr")
        e("s_xor_b32 s57, s48, s49"); e("s_bitcmp1_b32 s57, 0"); e(f"s_cbranch_scc1 {lr1}")
        e(f"s_sleep {o['dl2']}"); e(f"s_branch {lr2}")
        e.label(lr1); e(f"s_sleep {o['dl2r']}"); e.label(lr2)
    elif o["dl2"]:
        if o["dry"]:
            lsl = L("sl"); e(f"s_cmp_lg_u32 s{sDRY}, 0"); e(f"s_cbranch_scc1 {lsl}"); e(f"s_sleep {o['dl2']}"); e.label(lsl)
        else: e(f"s_sleep {o['dl2']}")
    B2 = 128
    def mk_dat(n):
        b = B2 + 4 * n
        return dict(issue=lambda: e(f"buffer_load_dwordx4 v[{b}:{b+3}], v{vL16}, s[28:31], s{sE2} offen offset:{n*1024} sc1"),
                    check=lambda: e(f"v_cmp_ne_u32 vcc, s{sT}, v{b+3}"), mask=70 + 2 * n)
    def st23(sl):
        if not o["stamps"]: return
        if o["early"]:
            lsk = L("se"); e("s_cmp_lt_u32 s3, 2"); e(f"s_cbranch_scc1 {lsk}"); e(f"s_memrealtime s[{80+2*sl}:{81+2*sl}]"); e.label(lsk)
        else: e(f"s_memrealtime s[{80+2*sl}:{81+2*sl}]")
    st23(1)
    mpoll([mk_dat(0), mk_dat(1)], cnt=69, pre=wo_try, shadow=wo_try)
    if o["dry"]: e.label("L_e2c")
    st23(2)
    l0, l1 = B2 + 2, B2 + 6
    e(f"v_max_f32 v7, v{l0}, v{l1}")
    e("v_mov_b32 v20, 0xffff0000")
    e(f"v_lshlrev_b32 v16, 16, v{B2}"); e(f"v_and_b32 v17, v20, v{B2}")
    allreduce_xrow(7, 6, "v_max_f32")
    e(f"v_sub_f32 v{l0}, v{l0}, v7"); e(f"v_sub_f32 v{l1}, v{l1}, v7")
    e(f"v_lshlrev_b32 v18, 16, v{B2+1}"); e(f"v_and_b32 v19, v20, v{B2+1}")
    e(f"v_exp_f32 v{l0}, v{l0}"); e(f"v_exp_f32 v{l1}, v{l1}")
    e(f"v_lshlrev_b32 v24, 16, v{B2+4}"); e(f"v_and_b32 v25, v20, v{B2+4}"); e(f"v_lshlrev_b32 v26, 16, v{B2+5}"); e(f"v_and_b32 v27, v20, v{B2+5}")
    for i in range(4): e(f"v_mul_f32 v{12+i}, v{16+i}, v{l0}")
    e(f"v_add_f32 v5, v{l0}, v{l1}")
    for i in range(4): e(f"v_fmac_f32 v{12+i}, v{24+i}, v{l1}")
    e("v_mov_b32 v4, v7")
    allreduce_xrow(5, 6, "v_add_f32")
    reduce_scatter4(12)
    e(f"ds_write_b32 v{vOXW}, v12")
    e("s_lshl_b32 s57, s3, 3"); e(f"s_add_u32 s57, s57, {SX}"); e("v_mov_b32 v6, s57")
    e("s_mov_b64 exec, 1"); e("ds_write_b64 v6, v[4:5]"); e("s_mov_b64 exec, -1")
    e(f"ds_write_b32 v{vFLW}, v22 offset:{F_OX*4}")
    e(f"v_mov_b32 v6, {SX}")
    def ox_extra():
        e(f"ds_read_b128 v[12:15], v{vOXR}"); e("ds_read_b128 v[24:27], v6"); e("ds_read_b128 v[72:75], v6 offset:16")
    wait_flags(F_OX, 4, 28, extra=ox_extra)
    e("v_max3_f32 v7, v24, v26, v72"); e("v_max_f32 v7, v7, v74")
    e("v_sub_f32 v24, v24, v7"); e("v_sub_f32 v26, v26, v7"); e("v_sub_f32 v72, v72, v7"); e("v_sub_f32 v74, v74, v7")
    e("v_exp_f32 v24, v24"); e("v_exp_f32 v26, v26"); e("v_exp_f32 v72, v72"); e("v_exp_f32 v74, v74"); e.nop(1)
    e("v_mul_f32 v5, v24, v25"); e("v_mul_f32 v12, v12, v24"); e("v_fmac_f32 v5, v26, v27"); e("v_fmac_f32 v12, v13, v26")
    e("v_fmac_f32 v5, v72, v73"); e("v_fmac_f32 v12, v14, v72"); e("v_fmac_f32 v5, v74, v75"); e("v_fmac_f32 v12, v15, v74")
    e("v_rcp_f32 v5, v5"); e.nop(1); e("v_mul_f32 v12, v12, v5"); e.nop(2)
    e(f"v_mov_b32_dpp v13, v12 quad_perm:[1,0,3,2] {DPP}")
    e("v_cvt_pk_bf16_f32 v12, v12, v13"); e.nop(2)
    for m in range(8): e(f"v_mov_b32_dpp v{76+m}, v12 row_newbcast:{2*m} {DPP}")
    lw = L("wook"); e("s_cmp_lg_u32 s59, 0"); e(f"s_cbranch_scc1 {lw}")
    wait_flags(F_WO, 2, 28); woreads(); e("s_waitcnt lgkmcnt(0)")
    e.label(lw)
    AC = 136
    for k in range(2):
        for u in range(4):
            c = "0" if k == 0 else f"v[{AC+4*u}:{AC+4*u+3}]"
            e(f"v_mfma_f32_16x16x32_bf16 v[{AC+4*u}:{AC+4*u+3}], v[{76+4*k}:{79+4*k}], v[{40+8*u+4*k}:{43+8*u+4*k}], {c}")
    e("s_mov_b64 exec, 0xffff")
    e.nop(4)
    for i in range(4): e(f"v_perm_b32 v{4+i}, v{AC+4*i}, v{8+i}, s64")
    e(f"buffer_store_dwordx4 v[4:7], v{vE3V}, s[28:31], s{sE3} offen sc1")
    e("s_mov_b64 exec, -1")
    set_flag(F_PUB3)
    if o["stamps"] == 3 or o["early"]:
        lsk = L("st3"); e("s_cmp_lt_u32 s3, 2"); e(f"s_cbranch_scc1 {lsk}"); e("s_memrealtime s[86:87]"); e.label(lsk)
    elif o["stamps"]: e("s_memrealtime s[86:87]")
    e("s_waitcnt lgkmcnt(0)")
    if o["dry"]: e(f"s_cmp_lg_u32 s{sDRY}, 0"); e("s_cbranch_scc1 L_dryret")
    dump_stamps(cnts=([(4, 68), (5, 69)] if (o["stamps"] != 3 and not o["early"]) else None))
    e("s_endpgm")

    e.label("L_loader")
    stamp(1)
    if o["prio"]: e("s_setprio 2")
    e("s_sub_u32 s52, s3, 4")
    e("s_lshr_b32 s53, s48, 1"); e("s_lshl_b32 s53, s53, 24"); e("s_and_b32 s54, s48, 1"); e("s_lshl_b32 s54, s54, 4"); e("s_lshr_b32 s55, s49, 1"); e("s_add_u32 s54, s54, s55")
    e("s_lshl_b32 s54, s54, 15"); e("s_add_u32 s53, s53, s54"); e(f"s_add_u32 s53, s53, {KEY0*256}")
    e("s_lshl_b32 s54, s52, 14"); e("s_add_u32 s53, s53, s54")
    if o["gmap"]: e("s_lshr_b32 s55, s49, 2"); e("s_lshl_b32 s56, s48, 3"); e("s_add_u32 s55, s55, s56"); e("s_lshl_b32 s55, s55, 17")
    else: e("s_lshr_b32 s55, s49, 2"); e("s_lshl_b32 s55, s55, 3"); e("s_add_u32 s55, s55, s48"); e("s_lshl_b32 s55, s55, 17")
    e("s_and_b32 s56, s49, 3"); e("s_lshl_b32 s56, s56, 9"); e("s_add_u32 s55, s55, s56")
    e("s_lshl_b32 s56, s52, 16"); e("s_add_u32 s55, s55, s56")
    e("s_lshl_b32 s57, s52, 14")
    for m in range(4):
        e(f"v_add_u32 v4, {4*m}, v2"); e("v_xor_b32 v4, v4, v3"); e("v_lshlrev_b32 v4, 4, v4"); e("v_lshlrev_b32 v5, 8, v2"); e(f"v_add_u32 v{8+m}, v4, v5")
    for m in range(2):
        e(f"v_add_u32 v4, {4*m}, v2"); e("v_lshrrev_b32 v5, 1, v3"); e("v_xor_b32 v4, v4, v5"); e("v_lshlrev_b32 v4, 1, v4"); e("v_and_b32 v5, 1, v3"); e("v_or_b32 v4, v4, v5")
        e("v_lshlrev_b32 v4, 4, v4"); e("v_lshlrev_b32 v5, 8, v2"); e(f"v_add_u32 v{12+m}, v4, v5")
    e("v_lshrrev_b32 v6, 5, v0"); e("v_and_b32 v7, 31, v0")
    for m in range(4):
        e("v_lshlrev_b32 v4, 2, v6"); e(f"v_add_u32 v4, {m}, v4"); e("v_lshrrev_b32 v5, 1, v7"); e("v_xor_b32 v4, v4, v5"); e("v_lshlrev_b32 v4, 1, v4")
        e("v_and_b32 v5, 1, v7"); e("v_or_b32 v4, v4, v5"); e("v_lshlrev_b32 v4, 4, v4"); e("v_lshlrev_b32 v5, 11, v6"); e(f"v_add_u32 v{16+m}, v4, v5")
    e("s_lshl_b32 s58, s52, 2"); e("v_add_u32 v20, s58, v21")
    e("s_waitcnt lgkmcnt(0)")
    srd(36, 6, 67108864); srd(40, 8, 67108864); srd(44, 12, 8388608)
    if o["stamps"]: srd(28, 26, 268435456)
    if o["lbar"]: e("s_barrier")
    if o["kgate"]: wait_flags(F_KG, 1, 24)
    stamp(2)
    W = o["win"]; WKV = o["winkv"]
    seq = [("K", m) for m in range(16)] + [("V", m) for m in range(16)] + [("W", m) for m in range(16)]
    st = dict(landed=-1)
    def land(upto):
        for x in range(st["landed"] + 1, upto + 1):
            if x == 15: set_flag(F_K, 20); stamp(3)
            if x == 31: set_flag(F_V, 20); stamp(4)
        st["landed"] = max(st["landed"], upto)
    for i, (kind, m) in enumerate(seq):
        w_ = WKV if i < 32 else W
        skipwin = False
        if o["vi"] < 16 and i == 16 + o["vi"]: set_flag(F_VI, 20)
        if o["vh"] < 16 and i == 16 + o["vh"]:
            if st["landed"] < 15: e(f"s_waitcnt vmcnt({i - 16})"); land(15)
            set_flag(F_VI, 20)
            wait_flags(F_P1, 4, 24)
        if i == 32:
            assert st["landed"] >= 15
            if o["vh"] >= 16:
                if o["vi"] >= 16: set_flag(F_VI, 20)
                if o["wpre"]: wait_flags(F_P1, 4, 24)
            if not o["wpre"]:
                e("s_waitcnt vmcnt(0)"); land(31)
                wait_flags(F_QF, 4, 24)
        if o["wpre"] and 32 <= i < 32 + o["wpre"]:
            skipwin = True
        if o["wpre"] and i == 32 + o["wpre"]:
            e(f"s_waitcnt vmcnt({o['wpre']})"); land(31)
            wait_flags(F_QF, 4, 24)
        if not skipwin and i - st["landed"] - 1 > w_ - 1:
            e(f"s_waitcnt vmcnt({w_-1})"); land(i - w_)
        if kind == "K":
            e(f"s_add_u32 m0, s57, {KL + m*1024}"); e(f"s_add_u32 s58, s53, {m*1024}")
            e(f"buffer_load_dwordx4 v{8 + (m & 3)}, s[36:39], s58 offen{NTKV} lds")
        elif kind == "V":
            e(f"s_add_u32 m0, s57, {VL + m*1024}"); e(f"s_add_u32 s58, s53, {m*1024}")
            e(f"buffer_load_dwordx4 v{12 + (m & 1)}, s[40:43], s58 offen{NTKV} lds")
        else:
            e(f"s_add_u32 m0, s57, {WO + m*1024}"); e(f"s_add_u32 s58, s55, {m*4096}")
            e(f"buffer_load_dwordx4 v{16 + ((m >> 1) & 3)}, s[44:47], s58 offen{NT} lds")
    e("s_waitcnt vmcnt(0)"); set_flag(F_WO, 20); stamp(5)
    e("s_waitcnt lgkmcnt(0)")
    dump_stamps()
    e("s_endpgm")

    e.label("L_final")
    tagbytes(60)
    e("s_mov_b32 s64, 0x07060500")
    for k in range(4): e(f"v_mov_b32 v{8+k}, s{60+k}")
    e("v_lshlrev_b32 v24, 2, v3"); e(f"v_add_u32 v24, {YP}, v24")
    wait_flags(F_G, 1, 28, extra=lambda: [e(f"ds_read_b32 v{96+i}, v24 offset:{64*i}") for i in range(4)])
    for k in range(4): e(f"v_perm_b32 v{4+k}, v{96+k}, v{8+k}, s64")
    e("s_lshl_b32 s56, s2, 8"); e(f"s_add_u32 s56, s56, {GB}")
    e("v_lshlrev_b32 v24, 4, v0")
    e("s_mov_b64 exec, 0xffff")
    e("buffer_store_dwordx4 v[4:7], v24, s[28:31], s56 offen sc1")
    e("s_mov_b64 exec, -1")
    stamp(4)
    e("s_lshr_b32 s53, s49, 3"); e("s_lshl_b32 s53, s53, 3"); e("s_add_u32 s53, s53, s48")
    e("s_and_b32 s54, s49, 7")
    e("s_lshr_b32 s55, s53, 1"); e("s_lshl_b32 s55, s55, 6"); e("s_and_b32 s56, s53, 1"); e("s_lshl_b32 s56, s56, 3"); e("s_add_u32 s55, s55, s56"); e("s_add_u32 s55, s55, s54")
    e("v_lshlrev_b32 v25, 5, v2"); e("s_lshl_b32 s55, s55, 1")
    e("buffer_load_ushort v12, v25, s[32:35], s55 offen")
    e("v_lshlrev_b32 v26, 2, v3"); e("v_add_u32 v26, v26, v2"); e("v_lshlrev_b32 v26, 8, v26")
    e("s_lshr_b32 s56, s53, 1"); e("s_lshl_b32 s56, s56, 12"); e("s_and_b32 s57, s53, 1"); e("s_lshl_b32 s57, s57, 3"); e("s_add_u32 s57, s57, s54"); e("s_lshl_b32 s57, s57, 4")
    e("s_add_u32 s57, s57, s56"); e(f"s_add_u32 s57, s57, {GB}")
    e("v_lshlrev_b32 v24, 7, v0")
    e("s_lshl_b32 s56, s53, 13"); e("s_lshl_b32 s58, s54, 4"); e("s_add_u32 s56, s56, s58"); e(f"s_add_u32 s56, s56, {FB}")
    srd(36, 24, 2048)
    if o["dry"]: e(f"s_cmp_lg_u32 s{sDRY}, 0"); e("s_cselect_b32 s38, 0, s38")
    wait_flags(F_MP, 2, 28, sleep=4)
    mpoll([dict(issue=lambda: e("buffer_load_dwordx4 v[32:35], v26, s[28:31], s57 offen sc1"), check=lambda: chk4(32, 60), mask=70, init=(0x000f000f, 0x000f000f))])
    reduce_scatter4(32); e("v_mov_b32 v96, v32"); e.nop(2)
    e(f"v_add_f32_dpp v96, v96, v96 quad_perm:[1,0,3,2] {DPP}"); e.nop(2)
    e(f"v_add_f32_dpp v96, v96, v96 quad_perm:[2,3,0,1] {DPP}")
    bf16r(96, 96)
    e("s_and_b32 s59, s59, 0xffff"); e("s_lshl_b32 s59, s59, 16")
    e("v_add_f32 v96, s59, v96"); bf16r(96, 96)
    e(f"v_mul_f32 v97, {f32bits(-math.log2(math.e)):#x}, v96"); e("v_exp_f32 v97, v97"); e.nop(1); e("v_add_f32 v97, 1.0, v97"); e("v_rcp_f32 v97, v97"); e.nop(1)
    e("v_mul_f32 v96, v96, v97"); bf16r(96, 96)
    e("v_lshlrev_b32 v14, 16, v12")
    stamp(1)
    wait_flags(F_PUB3, 1, 28, sleep=1)
    if o["prio"]:
        if o["dry"]:
            lpr = L("pr"); e(f"s_cmp_lg_u32 s{sDRY}, 0"); e(f"s_cbranch_scc1 {lpr}"); e("s_setprio 3"); e.label(lpr)
        else: e("s_setprio 3")
    if o["dl3"]:
        if o["dry"]:
            lsl3 = L("sl"); e(f"s_cmp_lg_u32 s{sDRY}, 0"); e(f"s_cbranch_scc1 {lsl3}"); e(f"s_sleep {o['dl3']}"); e.label(lsl3)
        else: e(f"s_sleep {o['dl3']}")
    stamp(5)
    mpoll([dict(issue=lambda: e("buffer_load_dwordx4 v[28:31], v24, s[28:31], s56 offen sc1"), check=lambda: chk4(28, 100), mask=70)], cnt=69)
    stamp(6)
    reduce_scatter4(28)
    allreduce_row16(28, "v_add_f32")
    bf16r(28, 28)
    e("v_mul_f32 v28, v28, v96"); bf16r(28, 28)
    e("v_add_f32 v28, v28, v14")
    e("v_cvt_pk_bf16_f32 v28, v28, v28")
    e("s_mov_b32 exec_lo, 0x00010001"); e("s_mov_b32 exec_hi, 0x00010001")
    e("buffer_store_short v28, v25, s[36:39], s55 offen")
    l = L("ne"); e("s_cmp_lg_u32 s2, 0"); e(f"s_cbranch_scc1 {l}")
    e("s_mov_b64 exec, 1")
    e(f"s_mul_i32 s57, s{sT}, {TINV:#x}"); e("v_mov_b32 v20, s57"); e("v_mov_b32 v23, 0")
    e("buffer_store_dword v20, v23, s[28:31], 0 offen sc1")
    e.label(l)
    e("s_mov_b64 exec, -1")
    stamp(7)
    dump_stamps(cnts=[(2, 69)], final=True)
    e("s_endpgm")
    if o["pages"]: e(".p2align 12")
    e.label("L_bbranch")
    if o["prio"]: e(f"s_setprio {o['bprio']}")
    e(f"v_mov_b32 v23, {LNS}")
    k1 = -2.0 * math.sqrt(2.0 / math.pi) * math.log2(math.e); k2 = k1 * 0.044715
    e(f"v_mov_b32 v92, {f32bits(k1):#x}"); e(f"v_mov_b32 v93, {f32bits(k2):#x}")
    wait_flags(F_LN2, 1, 28, extra=lambda: (e("ds_read_b128 v[32:35], v23"), e(f"ds_read_b32 v29, v21 offset:{F_T*4}")), sleep=2)
    e(f"v_readfirstlane_b32 s{sT}, v29")
    e("s_waitcnt vmcnt(0)")
    stamp(1)
    for k in range(8): e(f"v_lshlrev_b32 v{40+k}, 16, v{40+k}")
    for n in range(4): e(f"v_lshlrev_b32 v{48+2*n}, 16, v{48+2*n}")
    e("v_cmp_gt_u32 vcc, 32, v0"); e("v_mov_b32 v94, 1.0"); e("v_mov_b32 v95, 1.0"); e("v_cndmask_b32 v54, 0, v54, vcc")
    e("v_lshlrev_b32 v14, 16, v12")
    e("v_sub_f32 v16, v14, v32"); bf16r(16, 16); e("v_mul_f32 v16, v16, v33"); bf16r(16, 16)
    e("v_sub_f32 v16, v16, v34"); bf16r(16, 16); e("v_mul_f32 v16, v16, v35"); bf16r(16, 16)
    ACCB = 128
    for half in range(2):
        e.nop(1)
        for k in range(16): e(f"v_readlane_b32 s{64+k}, v16, {16*half+k}")
        e.nop(2)
        NI = o["bilp"]
        for k in range(0, 16, 2 * NI):
            dps = [16 * half + k + 2 * q_ for q_ in range(NI)]
            for n in range(4):
                R = range(NI)
                U = [f"v[{100+6*q_}:{101+6*q_}]" for q_ in R]; Z = [f"v[{102+6*q_}:{103+6*q_}]" for q_ in R]; G = [f"v[{104+6*q_}:{105+6*q_}]" for q_ in R]
                WB = f"v[{40+2*n}:{41+2*n}]"; W2 = f"v[{48+2*n}:{49+2*n}]"
                for q_, d in enumerate(dps): e(f"v_pk_fma_f32 {U[q_]}, s[{64+(d&15)}:{65+(d&15)}], {WB}, {WB} op_sel:[0,0,1] op_sel_hi:[1,0,1]")
                for q_ in R: e(f"v_pk_mul_f32 {Z[q_]}, {U[q_]}, {U[q_]}")
                for q_ in R: e(f"v_pk_fma_f32 {Z[q_]}, {Z[q_]}, v[92:93], v[92:93] op_sel:[0,1,0] op_sel_hi:[1,1,0]")
                for q_ in R: e(f"v_pk_mul_f32 {Z[q_]}, {Z[q_]}, {U[q_]}")
                for q_ in R: e(f"v_pk_mul_f32 {G[q_]}, {U[q_]}, {W2} op_sel_hi:[1,0]")
                for q_ in R: e(f"v_exp_f32 v{102+6*q_}, v{102+6*q_}"); e(f"v_exp_f32 v{103+6*q_}, v{103+6*q_}")
                e.nop(1)
                for q_ in R: e(f"v_pk_add_f32 {Z[q_]}, {Z[q_]}, v[94:95]")
                for q_ in R: e(f"v_rcp_f32 v{102+6*q_}, v{102+6*q_}"); e(f"v_rcp_f32 v{103+6*q_}, v{103+6*q_}")
                e.nop(1)
                for q_, d in enumerate(dps):
                    A_ = f"v[{ACCB+d}:{ACCB+d+1}]"
                    if n == 0: e(f"v_pk_mul_f32 {A_}, {G[q_]}, {Z[q_]}")
                    else: e(f"v_pk_fma_f32 {A_}, {G[q_]}, {Z[q_]}, {A_}")
    stamp(3)
    e.nop(2)
    for k in range(16):
        e(f"v_permlane32_swap_b32 v{ACCB+k}, v{ACCB+16+k}")
    for k in range(16): e(f"v_add_f32 v{ACCB+k}, v{ACCB+k}, v{ACCB+16+k}")
    e.nop(1)
    for k in range(8): e(f"v_permlane16_swap_b32 v{ACCB+k}, v{ACCB+8+k}")
    for k in range(8): e(f"v_add_f32 v{ACCB+k}, v{ACCB+k}, v{ACCB+8+k}")
    for sh in (8, 4, 2, 1):
        e.nop(1)
        for k in range(8): e(f"v_add_f32_dpp v{ACCB+k}, v{ACCB+k}, v{ACCB+k} row_ror:{sh} {DPP}")
    e("s_lshl_b32 s57, s52, 7"); e(f"s_add_u32 s57, s57, {YP}"); e("v_lshlrev_b32 v24, 5, v2"); e("v_add_u32 v24, s57, v24")
    e("s_mov_b32 exec_lo, 0x00010001"); e("s_mov_b32 exec_hi, 0x00010001")
    e(f"ds_write_b128 v24, v[{ACCB}:{ACCB+3}]"); e(f"ds_write_b128 v24, v[{ACCB+4}:{ACCB+7}] offset:16")
    e("s_mov_b64 exec, -1")
    e("s_cmp_eq_u32 s52, 0"); e("s_cbranch_scc1 L_final")
    set_flag(F_G)
    e("s_waitcnt lgkmcnt(0)")
    if o["dry"] and o["stamps"] != 3:
        e(f"s_mov_b32 s{sDRY}, 1"); e("s_mov_b32 s30, 0"); e(f"s_mov_b32 s{sT}, 0"); e(f"v_mov_b32 v21, {DFL}")
        e("s_branch L_final")
    else:
        dump_stamps()
        e("s_endpgm")
    e.label("L_abort")
    e("s_endpgm")
    e.label("L_exit")

    probs = check(a.lines)
    body = a.text()
    nv = 224
    PAD = ".p2align 12\n.fill 832, 4, 0xbf810000\n" if o["pgal"] else ""
    hdr = open("cdna_kernels/" + KN + ".s.ref").read().split("; Override launch")[0]
    out = hdr + f"; Override launch geometry by editing the next line.\n; @launch grid=(256,1,1) block=(512,1,1) lds={LDS_BYTES}\n" + DOC.lstrip("\n")
    out += f""".amdgcn_target "amdgcn-amd-amdhsa--gfx950"
.text
.globl {KN}_kernel
{PAD}.p2align 8
.type {KN}_kernel,@function
{KN}_kernel:
{body}
    s_endpgm
.section .rodata,"a"
.p2align 6
.amdhsa_kernel {KN}_kernel
  .amdhsa_next_free_vgpr {nv}
  .amdhsa_next_free_sgpr 100
  .amdhsa_accum_offset {nv}
  .amdhsa_group_segment_fixed_size 0
  .amdhsa_kernarg_size 104
  .amdhsa_user_sgpr_count 2
  .amdhsa_user_sgpr_kernarg_segment_ptr 1
  .amdhsa_system_sgpr_workgroup_id_x 1
.end_amdhsa_kernel
"""
    return out, probs

if __name__ == "__main__":
    opt = {}
    name = sys.argv[1]
    for kv in sys.argv[2:]:
        k, v = kv.split("="); opt[k] = int(v, 0)
    s, probs = gen(opt)
    open(name, "w").write(s)
    for p in probs: print("HAZARD:", p)
```
